```python
import torch

def _softmax(x, axis=-1):
    return torch.softmax(x, dim=axis)
def _gelu(x):
    return torch.nn.functional.gelu(x, approximate="tanh")
def _silu(x):
    return torch.nn.functional.silu(x)
def _sigmoid(x):
    return torch.sigmoid(x)
def _layernorm(x, axis=-1, eps=1e-5):
    m = x.mean(dim=axis, keepdim=True)
    v = x.var(dim=axis, keepdim=True, unbiased=False)
    return (x - m) / torch.sqrt(v + eps)
def _scatter_add(tgt, idx, src, axis=0):
    return tgt.clone().index_add_(axis, idx, src)
def _segment_sum(src, seg, n):
    out = torch.zeros((n,) + src.shape[1:], dtype=src.dtype)
    return out.index_add_(0, seg, src)
def _pad(x, pw):
    flat = tuple(v for pair in reversed(pw) for v in pair)
    return torch.nn.functional.pad(x, flat)

kernel_name = 'recurrent_scan__linear_kernel_hedgehog__glu_gated_reglu__prompt'

def setup_inputs():

    _w = (lambda a: (lambda t: t.to(torch.bfloat16) if t.is_floating_point() else t)(torch.as_tensor(a)))
    def _A_setup():
        B, S, D, H = 1, 2048, 512, 32
        Dh = D // H
        return {
            "x": _w((lambda *s: torch.randn(*s, dtype=torch.bfloat16) * 0.05)(B, S, D)),
            "wqkv": _w((lambda *s: torch.randn(*s, dtype=torch.bfloat16) * 0.8)(D, 3 * D)),
            "w_phi": _w((lambda *s: torch.randn(*s, dtype=torch.bfloat16) * 0.8)(H, Dh, Dh) * (Dh ** -0.5)),
            "wo": _w((lambda *s: torch.randn(*s, dtype=torch.bfloat16) * 0.8)(D, D)),
        }
    _A_in = _A_setup()

    def _B_setup():
        B, S, D, F = 1, 2048, 512, 1792
        return {
            "x": _w((lambda *s: torch.randn(*s, dtype=torch.bfloat16) * 0.05)(B, S, D)),
            "W_gate": _w((lambda *s: torch.randn(*s, dtype=torch.bfloat16) * 0.2)(D, F) * (2.0 / D) ** 0.5),
            "W_up": _w((lambda *s: torch.randn(*s, dtype=torch.bfloat16) * 0.2)(D, F) * (2.0 / D) ** 0.5),
            "W_down": _w((lambda *s: torch.randn(*s, dtype=torch.bfloat16) * 0.2)(F, D) * (1.0 / F) ** 0.5),
        }
    _B_in = _B_setup()

    return {
        "A_x": _A_in["x"],
        "A_wqkv": _A_in["wqkv"],
        "A_w_phi": _A_in["w_phi"],
        "A_wo": _A_in["wo"],
        "B_x": _B_in["x"],
        "B_W_gate": _B_in["W_gate"],
        "B_W_up": _B_in["W_up"],
        "B_W_down": _B_in["W_down"],
    }

def reference(A_x, A_wqkv, A_w_phi, A_wo, B_x, B_W_gate, B_W_up, B_W_down):
    def _A_ref(x, wqkv, w_phi, wo):
        B, S, D = x.shape
        H = 32; Dh = D // H
        qkv = (lambda x, *d: x.permute(*d))((x @ wqkv).reshape(B, S, 3, H, Dh), 2, 0, 3, 1, 4)
        q, k, v = qkv[0], qkv[1], qkv[2]
        pq = torch.einsum("bhsd,hdf->bhsf", q, w_phi)
        pk = torch.einsum("bhsd,hdf->bhsf", k, w_phi)
        phi_q = torch.concatenate([_softmax(pq, axis=-1), _softmax(-pq, axis=-1)], axis=-1)
        phi_k = torch.concatenate([_softmax(pk, axis=-1), _softmax(-pk, axis=-1)], axis=-1)
        kv = torch.einsum("bhsf,bhsd->bhfd", phi_k, v)
        z  = torch.einsum("bhsf->bhf", phi_k)
        num = torch.einsum("bhqf,bhfd->bhqd", phi_q, kv)
        den = torch.einsum("bhqf,bhf->bhq", phi_q, z)[..., None] + 1e-6
        o = num / den
        return (lambda x, *d: x.permute(*d))(o, 0, 2, 1, 3).reshape(B, S, D) @ wo

    def _B_ref(x, W_gate, W_up, W_down):
        gate = torch.einsum("bsd,df->bsf", x, W_gate)
        up = torch.einsum("bsd,df->bsf", x, W_up)
        gate = gate * (lambda x, dt: x.to(dt))(gate > 0, gate.dtype)
        h = gate * up
        return torch.einsum("bsf,fd->bsd", h, W_down)

    x = A_x
    xn = _layernorm(x, axis=-1)
    s = _A_ref(xn, A_wqkv, A_w_phi, A_wo)
    g = _silu(_B_ref(xn, B_W_gate, B_W_up, B_W_down))
    return x + s * g
```

```python
import re

def regs_of(op):
    op = op.strip()
    op = op.lstrip('-')
    if op.startswith('abs(') or op.startswith('|'):
        op = op.replace('abs(', '').replace(')', '').replace('|', '')
    m = re.fullmatch(r'([vs])(\d+)', op)
    if m: return [(m.group(1), int(m.group(2)))]
    m = re.fullmatch(r'([vs])\[(\d+):(\d+)\]', op)
    if m: return [(m.group(1), i) for i in range(int(m.group(2)), int(m.group(3)) + 1)]
    if op in ('vcc',): return [('s', 'vcc')]
    if op in ('vcc_lo', 'vcc_hi'): return [('s', 'vcc')]
    if op == 'exec': return [('s', 'exec')]
    if op == 'm0': return [('s', 'm0')]
    return []

TRANS = ('v_exp_f32', 'v_log_f32', 'v_rcp_f32', 'v_rsq_f32', 'v_sqrt_f32', 'v_sin_f32', 'v_cos_f32')

class I:
    __slots__ = ('text', 'op', 'rd', 'wr', 'kind', 'tok', 'needs', 'tag')
    def __init__(self, text, needs=None, tag=None):
        self.text = text; self.needs = list(needs or []); self.tok = None; self.tag = tag
        t = text.split(';')[0].strip()
        parts = t.split(None, 1)
        self.op = parts[0]
        rest = parts[1] if len(parts) > 1 else ''
        ops = [o.strip() for o in re.split(r',(?![^\[]*\])', rest)] if rest else []
        mods = ''
        if ops:
            l = ops[-1].split(None, 1)
            if len(l) > 1 and not ops[-1].startswith('hwreg'):
                ops[-1] = l[0]; mods = l[1]
        op = self.op
        rd, wr = [], []
        kind = 'other'
        R = regs_of
        if op.startswith('v_mfma'):
            kind = 'mfma'; wr = R(ops[0]); rd = R(ops[1]) + R(ops[2]) + R(ops[3])
        elif op.startswith('ds_read'):
            kind = 'ds'; wr = R(ops[0]); rd = R(ops[1])
        elif op.startswith('ds_write'):
            kind = 'ds'; rd = sum((R(o) for o in ops), [])
        elif op.startswith('buffer_load') or op.startswith('global_load'):
            kind = 'vm'
            if 'lds' in mods.split():
                rd = sum((R(o) for o in ops), []) + [('s', 'm0')]; kind = 'vmlds'
            else:
                wr = R(ops[0]); rd = sum((R(o) for o in ops[1:]), [])
        elif op.startswith('buffer_store') or op.startswith('global_store') or op.startswith('buffer_atomic'):
            kind = 'vmst'; rd = sum((R(o) for o in ops), [])
        elif op.startswith('s_load') or op in ('s_memtime', 's_memrealtime'):
            kind = 'smem'; wr = R(ops[0]); rd = sum((R(o) for o in ops[1:]), [])
        elif op.startswith('v_cmp'):
            kind = 'valu'; wr = R(ops[0]); rd = sum((R(o) for o in ops[1:]), [])
        elif op.startswith('v_permlane'):
            kind = 'valu'; wr = R(ops[0]) + R(ops[1]); rd = list(wr)
        elif op.startswith('v_readfirstlane') or op.startswith('v_readlane'):
            kind = 'valu'; wr = R(ops[0]); rd = sum((R(o) for o in ops[1:]), [])
        elif op.startswith('v_'):
            kind = 'valu'; wr = R(ops[0]); rd = sum((R(o) for o in ops[1:]), [])
            if op.startswith('v_fmac') or op.startswith('v_dot2c'): rd += wr
            if op.startswith('v_cndmask') and len(ops) == 3: rd += [('s', 'vcc')]
        elif op in ('s_waitcnt', 's_barrier', 's_nop', 's_endpgm', 's_setprio', 's_sleep') or op.startswith('s_cbranch') or op == 's_branch':
            kind = 'ctl'
            if op.startswith('s_cbranch_vcc'): rd = [('s', 'vcc')]
        elif op.startswith('s_cmp'):
            kind = 'salu'; rd = sum((R(o) for o in ops), [])
        elif op.startswith('s_'):
            kind = 'salu'; wr = R(ops[0]); rd = sum((R(o) for o in ops[1:]), [])
            if 'saveexec' in op: wr += [('s', 'exec')]
        elif op.endswith(':') or op.startswith('.'):
            kind = 'label'
        else:
            raise ValueError('unknown instr ' + text)
        self.rd, self.wr, self.kind = rd, wr, kind

class Tok:
    def __init__(self): self.i = None

def finalize(stream, name='', entry_lg=0, entry_vm=0, check_only=False):
    out = []
    lg = []; vm = []
    def emit_wait(nl, nv):
        parts = []
        if nv is not None: parts.append(f'vmcnt({nv})')
        if nl is not None: parts.append(f'lgkmcnt({nl})')
        out.append(I('s_waitcnt ' + ' '.join(parts)))
    for ins in stream:
        if ins.tag == 'raw':
            out.append(ins); continue
        if ins.op == 's_waitcnt':
            t = ins.text
            m = re.search(r'vmcnt\((\d+)\)', t)
            if m:
                n = int(m.group(1)); del vm[:max(0, len(vm) - n)]
            m = re.search(r'lgkmcnt\((\d+)\)', t)
            if m:
                n = int(m.group(1))
                if n == 0: lg.clear()
                elif not any(e.kind == 'smem' for e in lg): del lg[:max(0, len(lg) - n)]
            out.append(ins); continue
        touched = set(ins.rd) | set(ins.wr)
        needl = -1; needv = -1
        for q, e in enumerate(lg):
            if (set(e.wr) & touched) or e in ins.needs: needl = q
        for q, e in enumerate(vm):
            if (set(e.wr) & touched) or e in ins.needs: needv = q
        nl = nv = None
        if needl >= 0:
            if any(e.kind == 'smem' for e in lg): nl = 0; lg.clear()
            else:
                nl = len(lg) - 1 - needl
                nl = min(nl, 15)
                del lg[:len(lg) - nl]
        if needv >= 0:
            nv = len(vm) - 1 - needv
            assert nv <= 63, (name, ins.text, nv)
            del vm[:needv + 1]
        if nl is not None or nv is not None: emit_wait(nl, nv)
        out.append(ins)
        if ins.kind in ('ds', 'smem'): lg.append(ins)
        if ins.kind in ('vm', 'vmlds', 'vmst'):
            vm.append(ins)
            assert len(vm) <= 63, (name, 'vm overflow', ins.text)
    res = []
    def states_since(pred, maxn):
        n = 0
        for p in reversed(res):
            if p.kind == 'label':
                if p.op.startswith('.'): continue
                continue
            if pred(p): return n
            if p.op == 's_nop': n += int(p.text.split()[1]) + 1
            else: n += 1
            if n >= maxn: return None
        return None
    for ins in out:
        need = 0
        def req(pred, k):
            nonlocal need
            d = states_since(pred, k)
            if d is not None: need = max(need, k - d)
        rd = set(ins.rd); wr = set(ins.wr)
        vrd = {r for r in rd if r[0] == 'v'}; vwr = {r for r in wr if r[0] == 'v'}
        srd = {r for r in rd if r[0] == 's'}
        isdot = lambda p: p.op.startswith('v_dot2')
        if ins.kind == 'mfma':
            req(lambda p: p.kind == 'valu' and set(p.wr) & vrd, 2)
            ops = [o.strip() for o in re.split(r',(?![^\[]*\])', ins.text.split(None, 1)[1])]
            ab = set(regs_of(ops[1]) + regs_of(ops[2])); c = set(regs_of(ops[3]))
            req(lambda p: p.kind == 'mfma' and set(p.wr) & ab, 12)
            req(lambda p: p.kind == 'mfma' and (set(p.wr) & c) and set(p.wr) != c, 10)
            req(lambda p: p.kind == 'mfma' and (set(p.wr) & vwr) and set(p.wr) != c, 12)
            req(lambda p: p.kind == 'valu' and ('s', 'exec') in p.wr, 4)
            req(lambda p: isdot(p) and set(p.wr) & (vrd | vwr), 3)
        if ins.kind in ('valu', 'ds', 'vm', 'vmlds', 'vmst'):
            req(lambda p: p.kind == 'mfma' and set(p.wr) & (vrd | vwr), 12)
            if not isdot(ins) : req(lambda p: isdot(p) and set(p.wr) & (vrd | vwr), 3)
        if ins.kind == 'valu':
            def srcC(p):
                ops = [o.strip() for o in re.split(r',(?![^\[]*\])', p.text.split(None, 1)[1])]
                return set(regs_of(ops[3]))
            req(lambda p: p.kind == 'mfma' and srcC(p) & vwr, 7)
            if ins.op not in TRANS: req(lambda p: p.op in TRANS and set(p.wr) & vrd, 1)
            if ins.op.startswith('v_permlane'): req(lambda p: p.kind == 'valu' and set(p.wr) & vrd, 2)
            if ins.op.startswith('v_readfirstlane') or ins.op.startswith('v_readlane'):
                req(lambda p: p.kind == 'valu' and set(p.wr) & vrd, 1)
            if 'dpp' in ins.text or 'row_' in ins.text or 'quad_perm' in ins.text:
                req(lambda p: p.kind == 'valu' and set(p.wr) & vrd, 2)
            req(lambda p: p.kind == 'valu' and set(p.wr) & srd, 2)
            req(lambda p: p.kind == 'vmst' and ('x4' in p.op or 'x3' in p.op) and set(p.rd) & vwr, 2)
            if isdot(ins):
                ops = [o.strip() for o in re.split(r',(?![^\[]*\])', ins.text.split(None, 1)[1])]
                ab = set(regs_of(ops[1]) + regs_of(ops[2].split()[0]))
                req(lambda p: isdot(p) and set(p.wr) & ab, 3)
        if ins.kind in ('vm', 'vmlds', 'vmst'):
            req(lambda p: p.kind == 'valu' and set(p.wr) & srd, 5)
        if ins.kind == 'vmlds':
            req(lambda p: p.kind == 'salu' and ('s', 'm0') in p.wr, 1)
        if ins.kind in ('vm', 'ds') :
            req(lambda p: p.kind == 'vmst' and ('x4' in p.op or 'x3' in p.op) and set(p.rd) & vwr, 1)
        if ins.kind == 'salu' or ins.op.startswith('s_cbranch_vcc'):
            req(lambda p: p.kind == 'valu' and set(p.wr) & srd, 1)
        while need > 0:
            k = min(need, 16); res.append(I(f's_nop {k-1}')); need -= k
        res.append(ins)
    return res

class S:
    def __init__(self): self.l = []
    def __call__(self, text, needs=None, tag=None):
        r = None
        for t in text.split('\n'):
            t = t.strip()
            if not t: continue
            r = I(t, needs, tag); self.l.append(r)
        return r
    def ext(self, other): self.l.extend(other.l if isinstance(other, S) else other)
```

```python
import sys
from fw import S, I, finalize
KN = 'recurrent_scan__linear_kernel_hedgehog__glu_gated_reglu__prompt_kernel'

class Cfg:
    stamps = False
    stop_after_A = False
    mx512 = False
cfg = Cfg()

SLOT = [131072, 0, 32768]
KB, VB, QB, STDB, RSB = 65536, 81920, 98304, 114688, 115712
H_OFF = 0
KV_OFF = 0x900000; KV_STRIDE = 2304
RS_OFF = 0xA20000
FKV_OFF = 0xA30000
FFIN_OFF = 0xA34000
TS_OFF = 0xA40000
WS_BYTES = 0xB00000
SX, SQKV, SG, SU, SD, SO, SWS, SOUT, SDBG, SPHI = 8, 12, 16, 20, 24, 28, 32, 36, 40, 44
def srd(b): return f's[{b}:{b+3}]'
sW, sRB, sJ, sTY, sSB, sNB = 48, 49, 50, 51, 52, 53
sA0, sA1, sM0, sM1, sC0 = 54, 55, 56, 57, 58
sL4, sL2 = 59, 60
sNON = 62
sT, sT2, sT3 = 64, 65, 66
sHA, sHM, sHC = 68, 69, 70
sW4 = 71
sONE_LO, sONE_HI, sONES = 72, 73, 74
sTS = 86
SPIN = 30000

def stamp(s, idx):
    if not cfg.stamps: return
    s(f's_memtime s[76:77]'); s('s_waitcnt lgkmcnt(0)'); s(f's_mov_b32 s{sTS+idx}, s76')

def build_srd(s, b, lo, nbytes):
    s(f's_mov_b32 s{b}, s{lo}\ns_mov_b32 s{b+1}, s{lo+1}\ns_mov_b32 s{b+2}, {nbytes}\ns_mov_b32 s{b+3}, 0x00020000')

def prologue():
    s = S()
    s('s_cmp_ge_u32 s2, 256\ns_cbranch_scc1 L_end')
    s('s_load_dwordx16 s[64:79], s[0:1], 0\ns_load_dwordx4 s[80:83], s[0:1], 64\ns_load_dwordx2 s[84:85], s[0:1], 80')
    if cfg.stamps: s('s_memtime s[86:87]\ns_memrealtime s[88:89]')
    s('v_lshrrev_b32 v2, 6, v0\nv_and_b32 v1, 63, v0')
    s(f'v_readfirstlane_b32 s{sW}, v2')
    s('s_and_b32 s3, s2, 7\ns_lshr_b32 s4, s2, 3')
    s(f's_and_b32 s5, s3, 1\ns_lshl_b32 s5, s5, 3\ns_and_b32 s6, s4, 7\ns_add_u32 s{sRB}, s5, s6')
    s(f's_lshl_b32 s6, s{sW}, 14\ns_lshl_b32 s5, s{sRB}, 17\ns_add_u32 s5, s5, s6')
    s('v_lshlrev_b32 v3, 4, v1')
    s('s_waitcnt lgkmcnt(0)')
    if cfg.stamps:
        s('s_mov_b32 s101, s86\ns_mov_b32 s100, s88')
        for q in range(13): s(f's_mov_b32 s{86+q}, s101')
    build_srd(s, SX, 64, 2097152)
    xt = []
    for r in range(16):
        if r % 4 == 0:
            s(f's_add_u32 m0, s6, {r*1024}\ns_add_u32 s7, s5, {r*1024}')
        if r == 0: va = 'v3'
        else:
            va = f'v{4 + r % 4}'; s(f'v_xor_b32 {va}, {r << 4}, v3')
        xt.append(s(f'buffer_load_dwordx4 {va}, {srd(SX)}, s7 offen offset:{(r%4)*1024} lds'))
    build_srd(s, SQKV, 66, 1572864); build_srd(s, SG, 74, 1835008); build_srd(s, SU, 76, 1835008)
    s(f's_lshr_b32 s5, s4, 3\ns_lshr_b32 s{sTY}, s5, 1\ns_and_b32 s5, s5, 1\ns_and_b32 s6, s3, 6\ns_add_u32 s{sJ}, s6, s5')
    if cfg.mx512:
        s(f's_lshr_b32 s5, s3, 1\ns_lshl_b32 s5, s5, 3\ns_lshr_b32 s6, s4, 2\ns_add_u32 s{sSB}, s5, s6')
        s(f's_and_b32 s5, s3, 1\ns_lshl_b32 s5, s5, 2\ns_and_b32 s6, s4, 3\ns_add_u32 s{sNB}, s5, s6')
    else:
        s(f's_lshl_b32 s5, s3, 2\ns_lshr_b32 s6, s4, 3\ns_add_u32 s{sSB}, s5, s6\ns_and_b32 s{sNB}, s4, 7')
    build_srd(s, SPHI, 68, 16384); build_srd(s, SO, 70, 524288); build_srd(s, SD, 78, 1835008)
    build_srd(s, SOUT, 80, 2097152); build_srd(s, SDBG, 82, 256); build_srd(s, SWS, 84, WS_BYTES)
    s(f's_and_b32 s{sW4}, s{sW}, 3')
    s(f's_mul_i32 s6, s{sJ}, 160\ns_add_u32 s6, s6, 512\ns_and_b32 s7, s{sJ}, 1')
    s('s_lshl_b32 s3, s7, 5\ns_add_u32 s3, s3, s6')
    s('s_xor_b32 s7, s7, 1\ns_lshl_b32 s4, s7, 7\ns_add_u32 s4, s4, s6')
    s(f's_add_u32 s5, s3, 64\ns_lshl_b32 s6, s{sJ}, 6\ns_cmp_eq_u32 s{sTY}, 0\ns_cselect_b32 s5, s6, s5')
    s(f's_cmp_ge_u32 s{sW}, 4\ns_cbranch_scc1 L_helper')
    s(f's_cmp_eq_u32 s{sTY}, 0\ns_cbranch_scc0 L_compY\ns_branch L_compX')
    return s, xt

XN = 0; ACC = [128, 144, 160, 176]; WF = 192; NRING = 8; PK = 224
vTRL, vTRH, vL16, vKW, vVW, vT = 240, 241, 242, 243, 244, 254
vXA = 246
vDUM = 245
def vr(b, n): return f'v[{b}:{b+n-1}]'

def compute(ty):
    X = ty == 'X'
    s = S()
    s('s_setprio 2')
    s(f'v_lshlrev_b32 v{vL16}, 4, v1')
    s(f'v_lshrrev_b32 v2, 5, v1\nv_lshlrev_b32 v{vTRL}, 9, v2')
    s(f'v_bfe_u32 v3, v1, 2, 2\nv_lshl_add_u32 v{vTRL}, v3, 6, v{vTRL}')
    s(f'v_bfe_u32 v3, v1, 4, 1\nv_lshl_add_u32 v{vTRL}, v3, 5, v{vTRL}')
    s(f'v_and_b32 v3, 3, v1\nv_lshl_add_u32 v{vTRL}, v3, 3, v{vTRL}')
    s(f'v_add_u32 v{vTRH}, 0x20000, v{vTRL}')
    s(f'v_and_b32 v3, 31, v1\nv_and_b32 v4, 15, v1\nv_xor_b32 v4, v2, v4\nv_lshlrev_b32 v4, 4, v4')
    s(f'v_lshl_add_u32 v4, v3, 10, v4\ns_lshl_b32 s6, s{sW}, 15\nv_add_u32 v{vXA}, s6, v4')
    for u in range(1, 8): s(f'v_xor_b32 v{vXA+u}, {u<<5}, v{vXA}')
    if X:
        s(f's_lshl_b32 s6, s{sW}, 10\ns_add_u32 s6, s6, {KB}\nv_add_u32 v{vKW}, s6, v{vL16}')
        s(f'v_lshlrev_b32 v4, 5, v3\nv_lshl_add_u32 v4, v2, 4, v4\ns_add_u32 s6, s6, {VB-KB}\nv_add_u32 v{vVW}, s6, v4')
    s(f's_lshl_b32 s6, s{sRB}, 2\ns_add_u32 s6, s6, s{sW}\ns_mul_i32 s6, s6, {144*1024}')
    s(f's_lshl_b32 s7, s3, 6\ns_add_u32 s{sHA}, s6, s7\ns_lshl_b32 s7, s4, 6\ns_add_u32 s{sHM}, s6, s7\ns_lshl_b32 s7, s5, 6\ns_add_u32 s{sHC}, s6, s7')
    s(f's_mov_b32 s{sONE_LO}, 0x00003f80\ns_mov_b32 s{sONE_HI}, 0x3f800000\ns_mov_b32 s{sONES}, 0x3f803f80')
    stamp(s, 0)
    s('s_waitcnt vmcnt(0)')
    s('s_barrier')
    stamp(s, 1)
    for t in range(32):
        s(f'ds_read_b128 {vr(XN+4*t,4)}, v{vXA + (t&7)} offset:{(t>>3)*256}')
        if t >= 14:
            tt = t - 14
            for r in range(4):
                a = vT + (r & 1)
                s(f'v_dot2_f32_bf16 v{a}, v{XN+4*tt+r}, s{sONES}, ' + ('0' if tt == 0 and r < 2 else f'v{a}'))
    for tt in range(18, 32):
        for r in range(4):
            a = vT + (r & 1)
            s(f'v_dot2_f32_bf16 v{a}, v{XN+4*tt+r}, s{sONES}, v{a}')
    s(f'v_add_f32 v{vT}, v{vT}, v{vT+1}')
    s(f'v_mov_b32 v{vT+1}, v{vT}')
    s(f'v_permlane32_swap_b32 v{vT}, v{vT+1}')
    s(f'v_add_f32 v{vT}, v{vT}, v{vT+1}')
    s(f'v_mul_f32 v{vT}, {1/512}, v{vT}'.replace(str(1/512), '0x3b000000'))
    s(f'v_cvt_pk_bf16_f32 v{vT}, v{vT}, v{vT}\nv_and_b32 v{vT}, 0xffff0000, v{vT}')
    stamp(s, 2)
    tmp = [PK + i for i in range(8)]
    for r in range(128):
        a, b = tmp[(2*r) % 8], tmp[(2*r+1) % 8]
        s(f'v_dot2_f32_bf16 v{a}, v{XN+r}, s{sONE_LO}, v{vT} neg_lo:[0,0,1]')
        s(f'v_dot2_f32_bf16 v{b}, v{XN+r}, s{sONE_HI}, v{vT} neg_lo:[0,0,1]')
        if r >= 2:
            q = r - 2; s(f'v_cvt_pk_bf16_f32 v{XN+q}, v{tmp[(2*q)%8]}, v{tmp[(2*q+1)%8]}')
        if r == (84 if X else 12):
            s('s_barrier')
    for q in (126, 127): s(f'v_cvt_pk_bf16_f32 v{XN+q}, v{tmp[(2*q)%8]}, v{tmp[(2*q+1)%8]}')
    stamp(s, 3)
    mf = []
    for st in range(10):
        base = SLOT[st % 3]
        if st < 4 or st >= 6:
            sl = st if st < 4 else st - 6
            accs = [0, 1, 2, 3] if st < 4 else [2, 3, 0, 1]
            for p in range(2):
                for t in range(8):
                    for c in range(2):
                        mf.append((st, accs[2*p+c], 8*sl + t, base + (2*p+c)*8192 + t*1024, sl == 0 and t == 0))
        else:
            sl = st - 4
            for t in range(16):
                for c in range(2):
                    mf.append((st, c, 16*sl + t, base + c*16384 + t*1024, sl == 0 and t == 0))
    N = len(mf)
    def ep_h(g, u, sbase, off):
        e = []
        for j in range(0, 16, 2):
            for jj in (j, j+1):
                e.append(f'v_max_f32 v{g+jj}, 0, v{g+jj}')
            for jj in (j, j+1):
                e.append(f'v_mul_f32 v{g+jj}, v{g+jj}, v{u+jj}')
            e.append(f'v_cvt_pk_bf16_f32 v{PK+j//2}, v{g+j}, v{g+j+1}')
            if j == 6: e.append(f'buffer_store_dwordx4 {vr(PK,4)}, v{vL16}, {srd(SWS)}, s{sbase} offen offset:{off} sc1')
            if j == 14: e.append(f'buffer_store_dwordx4 {vr(PK+4,4)}, v{vL16}, {srd(SWS)}, s{sbase} offen offset:{off+1024} sc1')
        return e
    def ep_hand(a0, a1, vaddr, off):
        e = []
        for ti, a in enumerate((a0, a1)):
            for hh in range(2):
                pk = PK + 4*((2*ti+hh) % 4)
                for j in range(4):
                    e.append(f'v_cvt_pk_bf16_f32 v{pk+j}, v{a+8*hh+2*j}, v{a+8*hh+2*j+1}')
                e.append(f'ds_write_b128 v{vaddr}, {vr(pk,4)} offset:{off + (2*ti+hh)*4096}')
        return e
    A = ACC
    fill = {}
    if X:
        fill[3*32+16] = ep_hand(A[0], A[1], vKW, 0)
        fill[4*32] = ep_hand(A[2], A[3], vVW, 0)
        fill[6*32] = ep_hand(A[0], A[1], vKW, QB - KB)
    else:
        fill[3*32+16] = ep_h(A[0], A[1], sHA, 0)
        fill[4*32] = ep_h(A[2], A[3], sHA, 2048)
        fill[6*32] = ep_h(A[0], A[1], sHM, 0)
    fill[9*32+16] = ep_h(A[2], A[3], sHC, 0)
    tail = ep_h(A[0], A[1], sHC, 2048)
    def rd(n):
        st, a, xf, off, first = mf[n]
        va, o = (vTRH, off - 131072) if off >= 131072 else (vTRL, off)
        r = WF + 4*(n % NRING)
        return [f'ds_read_b64_tr_b16 {vr(r,2)}, v{va} offset:{o}', f'ds_read_b64_tr_b16 {vr(r+2,2)}, v{va} offset:{o+256}']
    nxt = 0
    half = []
    pend = []
    rdtok = {}
    def issue_reads(limit_frag, maxn):
        nonlocal nxt, half
        k = 0
        while k < maxn:
            if not half:
                if nxt > limit_frag or nxt >= N: break
                half = [(nxt, x) for x in rd(nxt)]; nxt += 1
            f, x = half.pop(0); rdtok[f] = s(x); k += 1
        return k
    passed = 0
    issue_reads(min(6, 31), 14)
    delay = 0
    for n in range(N):
        st, a, xf, off, first = mf[n]
        if n in fill:
            assert not pend
            pend = list(fill[n]); delay = 2; dead = n + 15
        needs = []
        if n % 2 == 0 and (n + 1) in rdtok and not (half and half[0][0] == n + 1): needs = [rdtok[n+1]]
        r = WF + 4*(n % NRING)
        s(f'v_mfma_f32_32x32x16_bf16 {vr(A[a],16)}, {vr(r,4)}, {vr(XN+4*xf,4)}, ' + ('0' if first else vr(A[a],16)), needs=needs)
        lim = min(n + NRING - 1, 32*(passed+1) - 1)
        if n % 32 == 27 and st < 9:
            assert nxt == 32*(st+1) and not half
            if st == 8 and False: pass
            s('s_waitcnt lgkmcnt(0)'); s('s_barrier'); passed = st + 1
            if cfg.stamps and st in (3, 5): stamp(s, 4 if st == 3 else 5)
            lim = min(n + NRING - 1, N - 1)
            issue_reads(lim, 6)
            continue
        behind = (lim - nxt + 1) * 2 + len(half)
        k = issue_reads(lim, 3 if behind > 2 else 2)
        budget = 5 - k - (1 if n % 2 == 1 else 0)
        if delay > 0: delay -= 1
        else:
            if pend:
                gaps = sum(1 for m in range(n, dead + 1) if not (m % 32 == 27 and m // 32 < 9))
                budget = max(budget, -(-len(pend) // gaps))
            while pend and budget > 0:
                s(pend.pop(0)); budget -= 1
    assert not pend
    stamp(s, 6)
    for x in tail: s(x)
    s('s_waitcnt vmcnt(0)')
    stamp(s, 7)
    s('s_branch L_endA')
    return s

vOQ, vOG = 2, 3
def dma_stage(s, st, X):
    base = SLOT[st % 3]; last = None
    def piece(sr, voff, sb, goff, sl, loff):
        nonlocal last
        s(f's_add_u32 s{sT}, s{sb}, {goff}\ns_add_u32 m0, s{sl}, {loff}')
        last = s(f'buffer_load_dwordx4 v{voff}, {srd(sr)}, s{sT} offen lds')
    if st < 4 or st >= 6:
        sl = st if st < 4 else st - 6
        for b in range(2):
            row = 128*sl + 16*b
            if X and st < 4:
                for pos, (sb, cb) in enumerate([(sA0, 0), (sA0, 64), (sA1, 0), (sA1, 64)]):
                    piece(SQKV, vOQ, sb, row*3072 + cb, sL4, base + pos*8192 + b*1024)
            else:
                sb = sA0 if st < 4 else sC0
                for sr, cb, pos in [(SG, 0, 0), (SG, 64, 2), (SU, 0, 1), (SU, 64, 3)]:
                    piece(sr, vOG, sb, row*3584 + cb, sL4, base + pos*8192 + b*1024)
    else:
        sl = st - 4
        for b in range(4):
            row = 256*sl + 16*b
            if X:
                for pos in range(2): piece(SQKV, vOQ, sM0, row*3072 + 64*pos, sL2, base + pos*16384 + b*1024)
            else:
                for pos, sr in enumerate((SG, SU)): piece(sr, vOG, sM0, row*3584, sL2, base + pos*16384 + b*1024)
    return last

def softmax(s, P, c, rs, out, t):
    m0, m1, n0, n1 = t
    for m, b in ((m0, P), (m1, P + 8)):
        s(f'v_max3_f32 v{m}, v{b}, v{b+1}, v{b+2}')
    for m, b in ((m0, P), (m1, P + 8)):
        s(f'v_max3_f32 v{m}, v{m}, v{b+3}, v{b+4}')
    for m, b in ((m0, P), (m1, P + 8)):
        s(f'v_max3_f32 v{m}, v{m}, v{b+5}, v{b+6}')
    for m, b in ((m0, P), (m1, P + 8)):
        s(f'v_max_f32 v{m}, v{m}, v{b+7}')
    s(f'v_permlane32_swap_b32 v{m0}, v{m1}')
    s(f'v_max_f32 v{m0}, v{m0}, v{m1}')
    s(f'v_mul_f32 v{m0}, -v{c}, v{m0}')
    s(f'v_mov_b32 v{m1}, v{m0}')
    s(f'v_permlane32_swap_b32 v{m0}, v{m1}')
    for j in range(16): s(f'v_fma_f32 v{P+j}, v{P+j}, v{c}, v{m0 if j < 8 else m1}')
    for j in range(16): s(f'v_exp_f32 v{P+j}, v{P+j}')
    s(f'v_add_f32 v{n0}, v{P}, v{P+1}\nv_add_f32 v{n1}, v{P+8}, v{P+9}')
    for j in range(2, 8): s(f'v_add_f32 v{n0}, v{n0}, v{P+j}\nv_add_f32 v{n1}, v{n1}, v{P+8+j}')
    s(f'v_permlane32_swap_b32 v{n0}, v{n1}')
    s(f'v_add_f32 v{n0}, v{n0}, v{n1}')
    s(f'v_rcp_f32 v{n0}, v{n0}')
    if rs is not None: s(f'v_mul_f32 v{n0}, v{n0}, v{rs}')
    s(f'v_mov_b32 v{n1}, v{n0}')
    s(f'v_permlane32_swap_b32 v{n0}, v{n1}')
    for j in range(0, 16, 2):
        r = n0 if j < 8 else n1
        s(f'v_mul_f32 v{P+j}, v{P+j}, v{r}\nv_mul_f32 v{P+j+1}, v{P+j+1}, v{r}')
        s(f'v_cvt_pk_bf16_f32 v{out+j//2}, v{P+j}, v{P+j+1}')

def poll(s, label, vaddr, sr, vdat, vexp):
    s('s_waitcnt vmcnt(0) lgkmcnt(0)')
    s('s_mov_b32 s75, 0')
    s(f'{label}:')
    s(f'buffer_load_dword v{vdat}, v{vaddr}, {srd(sr)}, 0 offen sc1')
    s(f's_add_u32 s75, s75, 1\ns_cmp_gt_u32 s75, {SPIN}\ns_cbranch_scc1 {label}_x')
    s(f'v_cmp_ne_u32 vcc, v{vdat}, v{vexp}')
    s(f's_cbranch_vccnz {label}')
    s(f'{label}_x:')
    s('s_waitcnt vmcnt(0)')

def helper_common(s):
    s(f'v_lshrrev_b32 v4, 2, v1\nv_and_b32 v5, 3, v1\nv_lshlrev_b32 v5, 4, v5')
    s(f'v_mul_u32_u24 v{vOQ}, 3072, v4\nv_add_u32 v{vOQ}, v{vOQ}, v5'.replace('3072', '0xc00'))
    s(f'v_mul_u32_u24 v{vOG}, 0xe00, v4\nv_add_u32 v{vOG}, v{vOG}, v5')
    s(f's_lshl_b32 s{sL4}, s{sW4}, 11\ns_lshl_b32 s{sL2}, s{sW4}, 12')
    s(f's_mul_i32 s6, s{sW4}, {32*3584}\ns_lshl_b32 s7, s5, 1\ns_add_u32 s{sC0}, s6, s7')

def get_nonce(s, lab):
    s(f's_cmp_lg_u32 s2, 0\ns_cbranch_scc1 {lab}_np\ns_cmp_lg_u32 s{sW}, 4\ns_cbranch_scc1 {lab}_np')
    s('s_memrealtime s[76:77]\ns_waitcnt lgkmcnt(0)\ns_or_b32 s76, s76, 1')
    s('v_mov_b32 v4, s76\nv_mov_b32 v5, s77\nv_mov_b32 v6, 0\ns_mov_b64 exec, 1')
    s(f'buffer_store_dwordx2 v[4:5], v6, {srd(SDBG)}, 0 offen sc1', tag='raw')
    s('s_mov_b64 exec, -1')
    s(f'{lab}_np:')

def read_nonce(s, lab, vt):
    s('s_waitcnt vmcnt(0) lgkmcnt(0)')
    s(f'v_mov_b32 v{vt}, 0')
    s('s_mov_b32 s75, 0')
    s(f'{lab}:')
    s(f'buffer_load_dwordx2 v[{vt+1}:{vt+2}], v{vt}, {srd(SDBG)}, 0 offen sc1')
    s(f's_add_u32 s75, s75, 1\ns_cmp_gt_u32 s75, {SPIN}\ns_cbranch_scc1 {lab}_x')
    s(f'v_cmp_eq_u32 vcc, 0, v{vt+1}')
    s(f's_cbranch_vccnz {lab}')
    s(f'{lab}_x:')
    s('s_waitcnt vmcnt(0)')
    s(f'v_readfirstlane_b32 s{sNON}, v{vt+1}\nv_readfirstlane_b32 s{sNON+1}, v{vt+2}')

def helperY():
    s = S(); X = False
    helper_common(s)
    s(f's_mul_i32 s6, s{sW4}, {32*3584}\ns_lshl_b32 s7, s3, 1\ns_add_u32 s{sA0}, s6, s7')
    s(f's_mul_i32 s6, s{sW4}, {64*3584}\ns_lshl_b32 s7, s4, 1\ns_add_u32 s{sM0}, s6, s7')
    tok = {0: dma_stage(s, 0, X)}
    stamp(s, 0)
    s('s_waitcnt vmcnt(8)\ns_barrier')
    stamp(s, 1)
    s('s_barrier', needs=[tok[0]])
    tok[1] = dma_stage(s, 1, X); tok[2] = dma_stage(s, 2, X)
    for st in range(1, 10):
        s('s_barrier', needs=[tok[st]])
        if st + 2 <= 9: tok[st+2] = dma_stage(s, st + 2, X)
        if st == 7: pass
    read_nonce(s, 'L_nonY', 5)
    stamp(s, 7)
    s('s_branch L_endA')
    return s

def helperX():
    s = S(); X = True
    helper_common(s)
    s(f's_mul_i32 s6, s{sW4}, {32*3072}\ns_lshl_b32 s7, s{sJ}, 7\ns_add_u32 s6, s6, s7\ns_add_u32 s{sA0}, s6, 1024\ns_add_u32 s{sA1}, s6, 2048')
    s(f's_mul_i32 s6, s{sW4}, {64*3072}\ns_add_u32 s{sM0}, s6, s7')
    tok = {0: dma_stage(s, 0, X)}
    get_nonce(s, 'L_pub')
    WK, WQ, Cc, RS, KF, KVA = 8, 12, 16, 20, 24, 40
    PHK, TM = 56, 4
    PT = 72
    PHQ = 136
    vA1, vA2, vB1, vPW, vRD, vKVA, vFL, vEXP, vL16h = 168, 169, 170, 171, 172, 173, 174, 175, 176
    FR = 180
    KVL = 128
    head = 67
    s(f's_lshl_b32 s{head}, s{sJ}, 2\ns_add_u32 s{head}, s{head}, s{sW4}')
    s('v_lshrrev_b32 v4, 5, v1\nv_lshlrev_b32 v4, 7, v4')
    s('v_and_b32 v5, 15, v1\nv_lshl_add_u32 v6, v5, 1, v4')
    s('v_and_b32 v7, 3, v1\nv_bfe_u32 v5, v1, 2, 1\nv_lshl_add_u32 v7, v5, 3, v7\nv_bfe_u32 v5, v1, 3, 1\nv_lshl_add_u32 v7, v5, 2, v7')
    s('v_lshl_add_u32 v7, v7, 1, v4')
    s(f's_lshl_b32 s{sT2}, s{head}, 9')
    for k, (va, dst) in enumerate(((6, PT), (7, PT + 8))):
        for i in range(8):
            d = 8*(i >> 2) + (i & 3)
            s(f'buffer_load_ushort v{dst+i}, v{va}, {srd(SPHI)}, s{sT2} offen offset:{d*32}')
    stamp(s, 0)
    s('s_waitcnt vmcnt(24)\ns_barrier')
    stamp(s, 1)
    s('v_bfe_u32 v4, v1, 4, 1\nv_mul_u32_u24 v4, 0x8000, v4\nv_lshl_or_b32 v4, v4, 16, v4')
    for k, (dst, src) in enumerate(((WK, PT), (WQ, PT + 8))):
        for r in range(4):
            s(f'v_lshl_or_b32 v{dst+r}, v{src+2*r+1}, 16, v{src+2*r}\nv_xor_b32 v{dst+r}, v4, v{dst+r}')
    XB = 72
    s(f's_mov_b32 s{sONES}, 0x3f803f80')
    s(f'v_lshrrev_b32 v4, 5, v1\nv_and_b32 v5, 31, v1\nv_and_b32 v6, 15, v1\nv_xor_b32 v6, v4, v6\nv_lshlrev_b32 v6, 4, v6')
    s(f'v_lshl_add_u32 v6, v5, 10, v6\ns_lshl_b32 s6, s{sW4}, 15\nv_add_u32 v24, s6, v6')
    for u in range(1, 8): s(f'v_xor_b32 v{24+u}, {u<<5}, v24')
    s('s_sleep 4')
    def st_dot(t):
        for r in range(4*t, 4*t+4):
            s(f'v_dot2_f32_bf16 v{32+(r&1)}, v{XB+r}, s{sONES}, ' + ('0' if r < 2 else f'v{32+(r&1)}'))
            s(f'v_dot2_f32_bf16 v{34+(r&1)}, v{XB+r}, v{XB+r}, ' + ('0' if r < 2 else f'v{34+(r&1)}'))
    for t in range(32):
        s(f'ds_read_b128 {vr(XB+4*t,4)}, v{24 + (t&7)} offset:{(t>>3)*256}')
        if t >= 12: st_dot(t - 12)
    for t in range(20, 32): st_dot(t)
    s('s_barrier', needs=[tok[0]])
    tok[1] = dma_stage(s, 1, X); tok[2] = dma_stage(s, 2, X)
    s('v_add_f32 v32, v32, v33\nv_add_f32 v34, v34, v35')
    s('v_permlane32_swap_b32 v32, v34\nv_add_f32 v32, v32, v34\nv_mul_f32 v32, 0x3b000000, v32\nv_mov_b32 v34, v32\nv_permlane32_swap_b32 v32, v34')
    s('v_fma_f32 v34, -v32, v32, v34\nv_max_f32 v34, 0, v34')
    s('v_cvt_pk_bf16_f32 v34, v34, v34\nv_and_b32 v34, 0xffff0000, v34\nv_add_f32 v34, 0x3727c5ac, v34')
    s('v_cvt_pk_bf16_f32 v34, v34, v34\nv_and_b32 v34, 0xffff0000, v34\nv_sqrt_f32 v34, v34')
    s('v_cvt_pk_bf16_f32 v36, v34, v34\nv_mov_b32 v37, v36\nv_and_b32 v34, 0xffff0000, v36\nv_rcp_f32 v34, v34')
    s(f's_lshl_b32 s6, s{sW4}, 5\nv_add_u32 v5, s6, v5')
    s(f'v_lshlrev_b32 v6, 3, v5\nv_add_u32 v6, {STDB}, v6\nds_write_b64 v6, v[36:37]')
    s(f'v_lshlrev_b32 v6, 2, v5\nv_add_u32 v7, {RSB}, v6\nds_write_b32 v7, v34')
    s(f's_cmp_lg_u32 s{sJ}, 0\ns_cbranch_scc1 L_nors')
    s(f'v_mul_f32 v35, v34, v34\ns_lshl_b32 s6, s{sRB}, 9\ns_add_u32 s6, s6, {RS_OFF}')
    s(f'buffer_store_dword v35, v6, {srd(SWS)}, s6 offen sc1', tag='raw')
    s('L_nors:')
    s(f'v_lshlrev_b32 v{vL16h}, 4, v1\ns_lshl_b32 s6, s{sW4}, 12\ns_add_u32 s6, s6, {KB}\nv_add_u32 v{vRD}, s6, v{vL16h}')
    s(f'v_and_b32 v5, 31, v1\nv_bfe_u32 v6, v1, 1, 2\nv_xor_b32 v6, v4, v6\nv_lshlrev_b32 v6, 4, v6\nv_lshl_add_u32 v6, v5, 6, v6\nv_add_u32 v{vPW}, s6, v6')
    s(f'v_xor_b32 v{vPW+6}, 32, v{vPW}')
    s('v_bfe_u32 v5, v1, 2, 2\nv_lshl_add_u32 v5, v4, 3, v5')
    s('v_bfe_u32 v6, v1, 4, 1\nv_bfe_u32 v7, v1, 1, 1\nv_lshl_add_u32 v6, v6, 1, v7\nv_bfe_u32 v7, v1, 3, 1\nv_xor_b32 v6, v6, v7')
    s(f'v_lshlrev_b32 v6, 4, v6\nv_lshl_add_u32 v6, v5, 6, v6\nv_and_b32 v7, 1, v1\nv_lshl_add_u32 v6, v7, 3, v6\nv_add_u32 v{vA1}, s6, v6')
    s(f'v_xor_b32 v{vA2}, 32, v{vA1}\nv_add_u32 v{vA2}, 256, v{vA2}')
    s(f's_add_u32 s6, s6, {VB-KB}\nv_and_b32 v7, 3, v1\nv_lshlrev_b32 v7, 3, v7\nv_lshl_add_u32 v7, v5, 5, v7\nv_add_u32 v7, s6, v7')
    s(f'v_lshlrev_b32 v6, 3, v5\nv_add_u32 v6, {STDB}, v6')
    s(f'v_bfe_u32 v5, v1, 4, 1\nv_cmp_eq_u32 vcc, 1, v5\nv_cndmask_b32 v{vB1}, v7, v6, vcc')
    s(f'v_mov_b32 v6, 128\nv_mov_b32 v7, 32\nv_cndmask_b32 v178, v6, v7, vcc')
    s(f'v_and_b32 v5, 31, v1\nv_min_u32 v5, 16, v5\nv_mul_u32_u24 v6, 17, v4\nv_add_u32 v5, v5, v6\nv_lshlrev_b32 v{vKVA}, 4, v5')
    s(f'v_and_b32 v5, 31, v1\nv_lshlrev_b32 v5, 2, v5\ns_lshl_b32 s6, s{head}, 8\ns_add_u32 s6, s6, {FKV_OFF}\nv_add_u32 v{vFL}, s6, v5')
    work = []
    def seg(minb):
        w = S(); work.append((minb, w)); return w
    w = seg(1)
    w(f'v_and_b32 v5, 31, v1\nv_lshlrev_b32 v5, 2, v5\nv_add_u32 v5, {RSB}, v5')
    for rt in range(4): w(f'ds_read_b32 v{RS+rt}, v5 offset:{rt*128}')
    for rt in range(4): w(f'v_mul_f32 v{Cc+rt}, 0x3fb8aa3b, v{RS+rt}')
    w = seg(3)
    read_nonce(w, 'L_nonX', 5)
    w(f'v_and_b32 v5, 1, v1\nv_cmp_eq_u32 vcc, 1, v5\nv_mov_b32 v6, s{sNON}\nv_mov_b32 v7, s{sNON+1}\nv_cndmask_b32 v{vEXP}, v6, v7, vcc')
    w = seg(4)
    for rt in range(4): w(f'ds_read_b128 {vr(KF+4*rt,4)}, v{vRD} offset:{rt*1024}')
    for rt in range(4): w(f'v_mfma_f32_32x32x16_bf16 {vr(PT+16*rt,16)}, {vr(WK,4)}, {vr(KF+4*rt,4)}, 0')
    T4 = (4, 5, 6, 7)
    softmax(w, PT, Cc, RS, PHK, T4)
    softmax(w, PT + 16, Cc + 1, RS + 1, PHK + 8, T4)
    w = seg(5)
    def kvstep(w, rt, ph):
        o = (rt & 1) * 2048
        w(f'ds_write_b128 v{vPW}, {vr(ph,4)} offset:{o}\nds_write_b128 v{vPW+6}, {vr(ph+4,4)} offset:{o}')
        for ks in range(2):
            f = FR + 8*ks
            w(f'ds_read_b64_tr_b16 {vr(f,2)}, v{vA1} offset:{o+ks*1024}\nds_read_b64_tr_b16 {vr(f+2,2)}, v{vA2} offset:{o+ks*1024}')
            for wh in range(2):
                w(f'ds_read_b64_tr_b16 {vr(f+4+2*wh,2)}, v{vB1}')
                w(f'v_add_u32 v{vB1}, v{vB1}, v178')
            w(f'v_lshl_add_u32 v{vB1}, v178, 1, v{vB1}')
        for ks in range(2):
            f = FR + 8*ks
            w(f'v_mfma_f32_32x32x16_bf16 {vr(KVA,16)}, {vr(f,4)}, {vr(f+4,4)}, ' + ('0' if rt == 0 and ks == 0 else vr(KVA,16)))
    kvstep(w, 0, PHK); kvstep(w, 1, PHK + 8)
    softmax(w, PT + 32, Cc + 2, RS + 2, PHK, T4); kvstep(w, 2, PHK)
    softmax(w, PT + 48, Cc + 3, RS + 3, PHK + 8, T4); kvstep(w, 3, PHK + 8)
    w(f's_lshl_b32 s6, s{head}, 4\ns_add_u32 s6, s6, s{sRB}\ns_mul_i32 s6, s6, {KV_STRIDE}\ns_add_u32 s6, s6, {KV_OFF}')
    w('s_mov_b32 s76, 0x1ffff\ns_mov_b32 s77, 0x1ffff\ns_mov_b64 exec, s[76:77]')
    st_tok = None
    for q in range(4): st_tok = w(f'buffer_store_dwordx4 {vr(KVA+4*q,4)}, v{vKVA}, {srd(SWS)}, s6 offen offset:{q*544} sc1')
    w('s_mov_b64 exec, -1')
    w = seg(5)
    w(f'v_mov_b32 v4, s{sNON}\nv_mov_b32 v5, s{sNON+1}\ns_lshl_b32 s6, s{head}, 8\ns_lshl_b32 s7, s{sRB}, 3\ns_add_u32 s6, s6, s7\ns_add_u32 s6, s6, {FKV_OFF}\nv_mov_b32 v6, s6')
    w('s_mov_b64 exec, 1')
    w(f'buffer_store_dwordx2 v[4:5], v6, {srd(SWS)}, 0 offen sc1', needs=[st_tok])
    w('s_mov_b64 exec, -1')
    w = seg(7)
    for rt in range(4): w(f'ds_read_b128 {vr(KF+4*rt,4)}, v{vRD} offset:{QB-KB+rt*1024}')
    for rt in range(4): w(f'v_mfma_f32_32x32x16_bf16 {vr(PT+16*rt,16)}, {vr(WQ,4)}, {vr(KF+4*rt,4)}, 0')
    PQ = [200, 208, 24, 32]
    softmax(w, PT, Cc, None, PQ[0], T4)
    softmax(w, PT + 16, Cc + 1, None, PQ[1], T4)
    w = seg(8)
    stamp(w, 4)
    poll(w, 'L_pollkv', vFL, SWS, 4, vEXP)
    stamp(w, 5)
    w(f's_mul_i32 s6, s{head}, {16*KV_STRIDE}\ns_add_u32 s6, s6, {KV_OFF}')
    Z = [72, 88, 136, 152, 180, 216, 232, 56]
    def kvload(w, p, z):
        w(f's_add_u32 s7, s6, {p*KV_STRIDE}')
        for q in range(4): w(f'buffer_load_dwordx4 {vr(z+4*q,4)}, v{vKVA}, {srd(SWS)}, s7 offen offset:{q*544} sc1')
    for p in range(8): kvload(w, p, Z[p])
    softmax(w, PT + 32, Cc + 2, None, PQ[2], T4)
    for p in range(8):
        for r in range(16):
            if p == 0: continue
            w(f'v_add_f32 v{KVA+r}, ' + (f'v{Z[0]+r}' if p == 1 else f'v{KVA+r}') + f', v{Z[p]+r}')
        if p >= 1:
            if p == 1: kvload(w, 8, Z[0])
            kvload(w, 8 + p, Z[p])
    softmax(w, PT + 48, Cc + 3, None, PQ[3], T4)
    for p in range(8):
        for r in range(16): w(f'v_add_f32 v{KVA+r}, v{KVA+r}, v{Z[p]+r}')
    for r in range(8): w(f'v_cvt_pk_bf16_f32 v{KVA+r}, v{KVA+2*r}, v{KVA+2*r+1}')
    OT = [72, 88, 104, 120]
    for rt in range(4):
        w(f'v_mfma_f32_32x32x16_bf16 {vr(OT[rt],16)}, {vr(KVA,4)}, {vr(PQ[rt],4)}, 0')
        w(f'v_mfma_f32_32x32x16_bf16 {vr(OT[rt],16)}, {vr(KVA+4,4)}, {vr(PQ[rt]+4,4)}, {vr(OT[rt],16)}')
    w(f's_lshl_b32 s6, s{sRB}, 2\ns_mul_i32 s6, s6, 144\ns_add_u32 s6, s6, s{head}\ns_add_u32 s6, s6, 112\ns_lshl_b32 s6, s6, 10')
    for rt in range(4):
        o = OT[rt]
        w(f'v_add_f32 v{o+8}, 0x358637bd, v{o+8}\nv_rcp_f32 v{o+8}, v{o+8}')
        for j in range(0, 8, 2):
            w(f'v_mul_f32 v{o+j}, v{o+j}, v{o+8}\nv_mul_f32 v{o+j+1}, v{o+j+1}, v{o+8}\nv_cvt_pk_bf16_f32 v{o+12+j//2}, v{o+j}, v{o+j+1}')
        w(f'buffer_store_dwordx4 {vr(o+12,4)}, v{vL16h}, {srd(SWS)}, s6 offen sc1')
        if rt < 3: w(f's_add_u32 s6, s6, {144*1024}')
    def cost(i):
        if i.op in ('v_exp_f32', 'v_rcp_f32') or i.op.startswith('v_permlane'): return 9
        if i.kind == 'mfma': return 40
        if i.kind in ('vm', 'vmst'): return 30
        return 5
    flat = []
    for minb, w in work:
        atomic = any(i.kind == 'label' or ('s', 'exec') in i.wr for i in w.l)
        flat.append((minb, w.l))
    qi = 0; qpos = 0; inloop = False
    BUD = 800
    for st in range(1, 10):
        s('s_waitcnt lgkmcnt(0)')
        s('s_barrier', needs=[tok[st]])
        if st + 2 <= 9: tok[st+2] = dma_stage(s, st + 2, X)
        used = 200 if st + 2 <= 9 else 0
        inexec = False
        while qi < len(flat) and flat[qi][0] <= st:
            ins = flat[qi][1][qpos]
            if st < 9 and used >= BUD and not inexec and not inloop: break
            s.l.append(ins); used += cost(ins)
            if ('s', 'exec') in ins.wr: inexec = '-1' not in ins.text
            if ins.kind == 'label': inloop = not ins.op.endswith('_x:')
            qpos += 1
            if qpos == len(flat[qi][1]): qi += 1; qpos = 0
    assert qi == len(flat)
    s('s_waitcnt vmcnt(0)')
    stamp(s, 7)
    s('s_branch L_endA')
    return s

def phaseB_head():
    s = S()
    s('s_barrier')
    s('s_setprio 0')
    stamp(s, 8)
    s('v_and_b32 v1, 63, v0' if False else 's_nop 0')
    s('v_mbcnt_lo_u32_b32 v1, -1, 0\nv_mbcnt_hi_u32_b32 v1, -1, v1')
    s(f's_cmp_lg_u32 s{sW}, 4\ns_cbranch_scc1 L_nopub')
    s(f's_lshl_b32 s6, s{sTY}, 3\ns_add_u32 s6, s6, s{sJ}\ns_lshl_b32 s6, s6, 3\ns_lshl_b32 s7, s{sRB}, 8\ns_add_u32 s6, s6, s7\ns_add_u32 s6, s6, {FFIN_OFF}')
    s(f'v_mov_b32 v4, s{sNON}\nv_mov_b32 v5, s{sNON+1}\nv_mov_b32 v6, s6\ns_mov_b64 exec, 1')
    s(f'buffer_store_dwordx2 v[4:5], v6, {srd(SWS)}, 0 offen sc1')
    s('s_mov_b64 exec, -1')
    s('L_nopub:')
    if cfg.stop_after_A:
        s('s_branch L_fin'); return s
    s(f's_mov_b32 s6, 0\ns_cmp_eq_u32 s{sW}, 1\ns_cselect_b32 s6, 18, s6\ns_cmp_eq_u32 s{sW}, 4\ns_cselect_b32 s6, 36, s6\ns_cmp_eq_u32 s{sW}, 5\ns_cselect_b32 s6, 54, s6')
    s(f's_cmp_eq_u32 s{sW}, 2\ns_cselect_b32 s6, 72, s6\ns_cmp_eq_u32 s{sW}, 3\ns_cselect_b32 s6, 92, s6\ns_cmp_eq_u32 s{sW}, 6\ns_cselect_b32 s6, 112, s6\ns_cmp_eq_u32 s{sW}, 7\ns_cselect_b32 s6, 128, s6')
    s(f's_cmp_ge_u32 s{sW}, 6\ns_cselect_b32 s7, 112, 0\ns_sub_u32 s7, s6, s7\ns_lshl_b32 s54, s7, 14\ns_lshl_b32 s7, s{sNB}, 7\ns_add_u32 s54, s54, s7')
    s(f's_mul_i32 s55, s{sW}, 20480')
    s(f's_mul_i32 s56, s{sSB}, 288\ns_add_u32 s56, s56, s6\ns_lshl_b32 s56, s56, 10\ns_add_u32 s57, s56, {144*1024}')
    s('v_lshrrev_b32 v4, 2, v1\nv_and_b32 v5, 3, v1\nv_lshlrev_b32 v5, 4, v5\nv_lshl_add_u32 v2, v4, 10, v5')
    s('v_lshlrev_b32 v3, 4, v1')
    s(f's_cmp_ge_u32 s{sW}, 6\ns_cbranch_scc1 L_B16')
    s(f's_and_b32 s7, s{sW}, 2\ns_cmp_eq_u32 s7, 0\ns_cbranch_scc1 L_B18\ns_branch L_B20')
    return s

BACC = [8, 24, 40, 56]; BH = 72; BW = 232; vBX = 248
def phaseB_body(n, wo):
    s = S(); lab = f'L_B{n}'
    sr = SO if wo else SD
    def wdma(i):
        t = None
        for c in range(2):
            s(f's_add_u32 s{sT}, s54, {i*16384 + 64*c}\ns_add_u32 m0, s55, {(i%10)*2048 + c*1024}')
            t = s(f'buffer_load_dwordx4 v2, {srd(sr)}, s{sT} offen lds')
        return t
    wt = {}
    for i in range(10): wt[i] = wdma(i)
    s(f'v_lshrrev_b32 v4, 3, v1\nv_and_b32 v5, 7, v1\nv_lshlrev_b32 v5, 4, v5\nv_lshl_add_u32 v7, v4, 10, v5')
    s(f's_lshl_b32 s58, s{sSB}, 3\ns_add_u32 s58, s58, s{sW}\ns_lshl_b32 s59, s58, 5\ns_lshl_b32 s58, s58, 13\ns_lshl_b32 s7, s{sNB}, 7\ns_add_u32 s58, s58, s7')
    s(f'buffer_load_dwordx4 {vr(vBX,4)}, v7, {srd(SX)}, s58 offen')
    s('v_lshrrev_b32 v5, 5, v1\nv_bfe_u32 v6, v1, 2, 2')
    s(f'v_lshl_add_u32 v6, v5, {3 if wo else 2}, v6\nv_lshlrev_b32 v6, 6, v6')
    s('v_bfe_u32 v5, v1, 4, 1\nv_lshl_add_u32 v6, v5, 5, v6\nv_and_b32 v5, 3, v1\nv_lshl_add_u32 v6, v5, 3, v6\nv_add_u32 v6, s55, v6')
    second = 256 if wo else 512
    if n == 18:
        s(f's_cmp_lg_u32 s{sW}, 4\ns_cbranch_scc1 {lab}_go')
        s(f's_lshr_b32 s7, s{sSB}, 1\ns_lshl_b32 s7, s7, 8\ns_add_u32 s7, s7, {FFIN_OFF}\nv_and_b32 v5, 31, v1\nv_lshl_add_u32 v8, v5, 2, s7')
        s(f'v_and_b32 v5, 1, v1\nv_cmp_eq_u32 vcc, 1, v5\nv_mov_b32 v9, s{sNON}\nv_mov_b32 v10, s{sNON+1}\nv_cndmask_b32 v9, v9, v10, vcc')
        s('s_mov_b32 s75, 0')
        s(f'{lab}_poll:')
        s(f'buffer_load_dword v10, v8, {srd(SWS)}, 0 offen sc1\ns_waitcnt vmcnt(0)', tag='raw')
        s(f's_add_u32 s75, s75, 1\ns_cmp_gt_u32 s75, {SPIN}\ns_cbranch_scc1 {lab}_go')
        s(f'v_cmp_ne_u32 vcc, v10, v9\ns_cbranch_vccnz {lab}_poll', tag='raw')
        s(f'{lab}_go:')
    s('s_barrier')
    stamp(s, 9)
    s(f'v_lshlrev_b32 v4, 2, v4\ns_add_u32 s59, s59, {RS_OFF}')
    s(f'buffer_load_dword v{vBX+4}, v4, {srd(SWS)}, s59 offen sc1')
    for i in range(n):
        for c in range(2):
            s(f'buffer_load_dwordx4 {vr(BH+8*i+4*c,4)}, v3, {srd(SWS)}, s{56+c} offen offset:{(i%4)*1024} sc1')
        if i % 4 == 3: s('s_add_u32 s56, s56, 4096\ns_add_u32 s57, s57, 4096')
    def rd(i):
        f = BW + 8*(i % 2); t = None
        for c in range(2):
            o = (i % 10)*2048 + c*1024
            s(f'ds_read_b64_tr_b16 {vr(f+4*c,2)}, v6 offset:{o}', needs=[wt[i]])
            t = s(f'ds_read_b64_tr_b16 {vr(f+4*c+2,2)}, v6 offset:{o+second}')
        return t
    rt = {0: rd(0)}
    for i in range(n):
        if i + 1 < n: rt[i+1] = rd(i + 1)
        f = BW + 8*(i % 2)
        for nt in range(2):
            for st in range(2):
                a = BACC[2*nt+st]
                s(f'v_mfma_f32_32x32x16_bf16 {vr(a,16)}, {vr(f+4*nt,4)}, {vr(BH+8*i+4*st,4)}, ' + ('0' if i == 0 else vr(a,16)))
        if i + 10 < n: wt[i+10] = wdma(i + 10)
    stamp(s, 10)
    s('s_branch L_red' if n != 16 else 's_nop 0')
    return s

def phaseB_tail():
    s = S()
    s('v_and_b32 v4, 31, v1\nv_lshrrev_b32 v5, 5, v1\nv_and_b32 v6, 7, v1\nv_xor_b32 v6, v5, v6\nv_lshlrev_b32 v6, 4, v6\nv_lshl_add_u32 v6, v4, 8, v6\nv_add_u32 v72, s55, v6')
    for k in range(1, 4): s(f'v_xor_b32 v{72+k}, {k<<5}, v72')
    s('s_nop 7')
    for nt in range(2):
        for st in range(2):
            for q in range(4):
                s(f'ds_write_b128 v{72+q}, {vr(BACC[2*nt+st]+4*q,4)} offset:{st*8192 + nt*128}')
    s(f'v_lshrrev_b32 v4, 3, v1\nv_and_b32 v5, 7, v1\nv_lshlrev_b32 v5, 1, v5\nv_xor_b32 v5, v4, v5\nv_lshlrev_b32 v5, 4, v5\nv_lshl_add_u32 v5, v4, 8, v5\ns_lshl_b32 s7, s{sW}, 11\nv_add_u32 v76, s7, v5')
    s('v_xor_b32 v77, 16, v76')
    s('v_add_u32 v78, 61440, v76\nv_add_u32 v79, 61440, v77\nv_add_u32 v80, 122880, v76\nv_add_u32 v81, 122880, v77')
    s('s_waitcnt lgkmcnt(0)\ns_barrier')
    stamp(s, 11)
    R = 84
    for p in range(8):
        g, o = p // 3, (p % 3)*20480
        if p == 7: s('s_waitcnt lgkmcnt(8)')
        s(f'ds_read_b128 {vr(R+8*p,4)}, v{76+2*g} offset:{o}\nds_read_b128 {vr(R+8*p+4,4)}, v{77+2*g} offset:{o}')
    for j in range(8):
        s(f'v_add_f32 v{R+j}, v{R+j}, v{R+8+j}')
    for p in range(2, 6):
        for j in range(8): s(f'v_add_f32 v{R+j}, v{R+j}, v{R+8*p+j}')
    for j in range(8): s(f'v_mul_f32 v{R+j}, v{R+j}, v{vBX+4}')
    for j in range(8): s(f'v_mul_f32 v{R+8+j}, 0xbfb8aa3b, v{R+j}')
    for j in range(8): s(f'v_exp_f32 v{R+8+j}, v{R+8+j}')
    for j in range(8): s(f'v_add_f32 v{R+48+j}, v{R+48+j}, v{R+56+j}')
    for j in range(8): s(f'v_add_f32 v{R+8+j}, 1.0, v{R+8+j}')
    for j in range(8): s(f'v_rcp_f32 v{R+8+j}, v{R+8+j}')
    for j in range(8): s(f'v_mul_f32 v{R+j}, v{R+j}, v{R+48+j}')
    for j in range(4):
        s(f'v_lshlrev_b32 v{R+16+2*j}, 16, v{vBX+j}\nv_and_b32 v{R+17+2*j}, 0xffff0000, v{vBX+j}')
    for j in range(8): s(f'v_fma_f32 v{R+j}, v{R+j}, v{R+8+j}, v{R+16+j}')
    for j in range(4): s(f'v_cvt_pk_bf16_f32 v{R+24+j}, v{R+2*j}, v{R+2*j+1}')
    s(f'buffer_store_dwordx4 {vr(R+24,4)}, v7, {srd(SOUT)}, s58 offen')
    return s

def fin():
    s = S()
    if cfg.stamps:
        s('s_waitcnt vmcnt(0)')
        stamp(s, 12)
        s(f's_lshl_b32 s6, s2, 3\ns_add_u32 s6, s6, s{sW}\ns_lshl_b32 s6, s6, 6\ns_add_u32 s6, s6, {TS_OFF}\nv_mov_b32 v8, s6')
        s('s_memrealtime s[76:77]\ns_waitcnt lgkmcnt(0)\ns_mov_b32 s99, s76')
        for q in range(4):
            for r in range(4): s(f'v_mov_b32 v{12+r}, s{sTS+4*q+r}')
            s('s_mov_b64 exec, 1')
            s(f'buffer_store_dwordx4 v[12:15], v8, {srd(SWS)}, 0 offen offset:{q*16}')
            s('s_mov_b64 exec, -1\ns_nop 2')
    return s

def build():
    out = []
    def put(lab, streams, name):
        l = []
        for x in streams: l += x.l
        if lab: out.append(lab + ':')
        out.extend('    ' + i.text if i.kind != 'label' else i.text for i in finalize(l, name))
    pro, xt = prologue()
    put(None, [pro], 'pro')
    out.append('.p2align 3'); put('L_compX', [compute('X')], 'cX')
    out.append('.p2align 3'); put('L_compY', [compute('Y')], 'cY')
    hs = S(); hs(f's_cmp_eq_u32 s{sTY}, 0\ns_cbranch_scc1 L_helpX')
    put('L_helper', [hs, helperY()], 'hY')
    put('L_helpX', [helperX()], 'hX')
    put('L_endA', [phaseB_head()], 'Bh')
    if not cfg.stop_after_A:
        put('L_B20', [phaseB_body(20, False)], 'B20')
        put('L_B18', [phaseB_body(18, False)], 'B18')
        put('L_B16', [phaseB_body(16, True)], 'B16')
        put('L_red', [phaseB_tail()], 'red')
    put('L_fin', [fin()], 'fin')
    hdr = open('cdna_kernels/' + KN[:-7] + '.s.ref').read().split('; Override')[0]
    txt = hdr + '; @launch grid=(256,1,1) block=(512,1,1) lds=163840\n'
    txt += f'.amdgcn_target "amdgcn-amd-amdhsa--gfx950"\n.text\n.globl {KN}\n.p2align 8\n.type {KN},@function\n{KN}:\n'
    txt += '\n'.join(out) + '\nL_end:\n    s_endpgm\n'
    txt += f'''.section .rodata,"a"
.p2align 6
.amdhsa_kernel {KN}
  .amdhsa_next_free_vgpr 256
  .amdhsa_next_free_sgpr 102
  .amdhsa_accum_offset 256
  .amdhsa_group_segment_fixed_size 0
  .amdhsa_kernarg_size 88
  .amdhsa_user_sgpr_count 2
  .amdhsa_user_sgpr_kernarg_segment_ptr 1
  .amdhsa_system_sgpr_workgroup_id_x 1
.end_amdhsa_kernel
'''
    return txt

if __name__ == '__main__':
    for a in sys.argv[2:]:
        k, v = a.split('='); setattr(cfg, k, int(v))
    open(sys.argv[1], 'w').write(build())
```

```python
import sys
from fw import S, I, finalize
KN = 'recurrent_scan__linear_kernel_hedgehog__glu_gated_reglu__prompt_kernel'

class Cfg:
    stamps = 0; hdbg = 0; rt = 0; span = 0
    pa = -1; pb = -1; pw = 0
    mx512 = 1
    prioC = 1; prioH = 0
    tp = 2; pro = 0
    bud = 1000; quiet = 450
    mid2 = 1
    pre = 3
    bonly = 0
cfg = Cfg()

SLOT = [131072, 0, 32768]
KB = 65536; VB = 65536; STDB = 129024; RSB = 130048
KV_OFF = 0x900000
Q_OFF = 0x940000
F_OFF = 0xB40000
FKV, FH, FE, FO, FQ = F_OFF, F_OFF + 0x1000, F_OFF + 0x3000, F_OFF + 0x5000, F_OFF + 0x6000
TS_OFF = 0xB50000
WS_BYTES = 0xC00000
SPIN = 30000
SX, SD, SO, SWS, SOUT, SQKV, SG, SU, SDBG, SPHI = 8, 12, 16, 20, 24, 28, 32, 36, 40, 44
SWH = SO
SP = 28
def srd(b): return f's[{b}:{b+3}]'
sW, sRB, sJ, sTY, sSB, sNB = 48, 49, 50, 51, 52, 53
sA0, sM0, sLBc, sC0, sL4, sL2 = 54, 56, 57, 58, 59, 60
sNON = 62
sT, sT2, sHEAD = 64, 65, 67
sHA, sHM, sHC, sW4 = 68, 69, 70, 71
sQ, sONES, sKV = 72, 74, 78
sWB, sLB, sH0, sH1, sXO, sWBc = 80, 81, 82, 83, 84, 85
sTS = 86
def vr(b, n): return f'v[{b}:{b+n-1}]'
MF = 'v_mfma_f32_32x32x16_bf16'

def stamp(s, idx, force=False):
    if not cfg.stamps: return
    if (cfg.hdbg or cfg.span) and idx != 12 and not force: return
    s('s_memrealtime s[76:77]' if cfg.rt else 's_memtime s[76:77]'); s('s_waitcnt lgkmcnt(0)'); s(f's_mov_b32 s{sTS+idx}, s76')

def build_srd(s, b, lo, nbytes):
    s(f's_mov_b32 s{b}, s{lo}\ns_mov_b32 s{b+1}, s{lo+1}\ns_mov_b32 s{b+2}, {nbytes}\ns_mov_b32 s{b+3}, 0x00020000')

BSTART = [32, 52, 72, 92, 0, 16, 112, 128]
CORDER = [0, 1, 2, 3, 12, 13, 14, 15, 8, 9, 10, 11, 4, 5, 6, 7, 16, 17, 18, 19]
NX0 = 8
def xpieces():
    a, b = (96, 97) if not cfg.stamps else (62, 63)
    r = []
    for c in range(4):
        for g in range(8):
            t = 66 if c*8 + g >= NX0 else 7
            p = S()
            p(f's_add_u32 m0, s{b}, {c*8192+g*1024}\ns_add_u32 s{t}, s{a}, {g*4096+c*256}')
            p(f'buffer_load_dwordx4 v{10+(g&3)}, {srd(SX)}, s{t} offen lds')
            r.append(p.l)
    return r

def merge(w, main, side, every):
    side = list(side)
    for n, i in enumerate(main.l):
        w.l.append(i)
        if side and n % every == every - 1: w.l.extend(side.pop(0))
    for x in side: w.l.extend(x)

def piece(lds_s, lds_o, g_s, g_o, voff, sr):
    p = S()
    p(f's_add_u32 m0, s{lds_s}, {lds_o}\ns_add_u32 s{sT}, s{g_s}, {g_o}')
    p(f'buffer_load_dwordx4 v{voff}, {srd(sr)}, s{sT} offen lds')
    return p.l

def sbase(s, soff): s(f's_add_u32 s4, s{SWS}, s{soff}\ns_addc_u32 s5, s{SWS+1}, 0')
def sload(s, z, n, two):
    sfx = {1: '', 2: 'x2', 4: 'x4', 8: 'x8', 16: 'x16'}[n]
    rg = lambda b: f's{b}' if n == 1 else f's[{b}:{b+n-1}]'
    s(f's_load_dword{sfx} {rg(z)}, s[4:5], 0 glc')
    if two: s(f's_load_dword{sfx} {rg(z+n)}, s[4:5], 128 glc')
def scheck(s, label, z, n, two):
    tot = n * (2 if two else 1)
    def test():
        s('s_waitcnt lgkmcnt(0)')
        if tot == 1: s(f's_cmp_eq_u32 s{z}, s{sNON}'); return
        s(f's_xor_b64 s[6:7], s[{z}:{z+1}], s[{sNON}:{sNON+1}]')
        for k in range(1, tot // 2):
            s(f's_xor_b64 s[76:77], s[{z+2*k}:{z+2*k+1}], s[{sNON}:{sNON+1}]\ns_or_b64 s[6:7], s[6:7], s[76:77]')
        s('s_cmp_eq_u64 s[6:7], 0')
    test()
    if cfg.bonly: return
    s(f's_cbranch_scc1 {label}_x')
    s('s_mov_b32 s75, 0')
    s(f'{label}:')
    if cfg.slp: s(f's_sleep {cfg.slp}')
    sload(s, z, n, two)
    s(f's_add_u32 s75, s75, 1\ns_cmp_gt_u32 s75, {SPIN}\ns_cbranch_scc1 {label}_y')
    test()
    s(f's_cbranch_scc0 {label}')
    s(f'{label}_y:')
    s('s_waitcnt lgkmcnt(0)')
    s(f'{label}_x:')
def post(s, vdat, vaddr, soff='0', needs=None):
    s('s_mov_b64 exec, 1', needs=needs)
    s(f'buffer_store_dword v{vdat}, v{vaddr}, {srd(SWS)}, {soff} offen sc1')
    s('s_mov_b64 exec, -1')

def prologue():
    s = S()
    s('s_cmp_ge_u32 s2, 256\ns_cbranch_scc1 L_end')
    s('s_load_dwordx16 s[64:79], s[0:1], 0\ns_load_dwordx4 s[80:83], s[0:1], 64\ns_load_dwordx2 s[84:85], s[0:1], 80')
    if cfg.stamps: s('s_memtime s[86:87]\ns_memrealtime s[88:89]')
    s('v_lshrrev_b32 v2, 6, v0\nv_and_b32 v1, 63, v0')
    s(f'v_readfirstlane_b32 s{sW}, v2')
    s('s_and_b32 s3, s2, 7\ns_lshr_b32 s4, s2, 3')
    s(f's_cmp_lg_u32 s{sW}, 7\ns_cbranch_scc1 L_nocode')
    s('s_getpc_b64 s[6:7]')
    s('L_pc:')
    s('s_and_b32 s5, s4, 7\ns_lshl_b32 s5, s5, 13\nv_lshl_add_u32 v3, v1, 7, s5\nv_min_u32 v3, L_end-L_pc, v3')
    s('global_load_dword v9, v3, s[6:7]', tag='raw')
    s('L_nocode:')
    s(f's_and_b32 s5, s3, 1\ns_lshl_b32 s5, s5, 3\ns_and_b32 s6, s4, 7\ns_add_u32 s{sRB}, s5, s6')
    s(f's_lshl_b32 s6, s{sW}, 15\ns_lshl_b32 s5, s{sRB}, 17\ns_add_u32 s5, s5, s6')
    s('v_lshrrev_b32 v3, 4, v1\nv_and_b32 v4, 15, v1\nv_xor_b32 v4, v3, v4\nv_lshlrev_b32 v4, 4, v4\nv_lshl_add_u32 v10, v3, 10, v4')
    s('v_xor_b32 v11, 64, v10\nv_xor_b32 v12, 128, v10\nv_xor_b32 v13, 192, v10')
    s('s_waitcnt lgkmcnt(0)')
    if cfg.stamps:
        s('s_mov_b32 s101, s86\ns_mov_b32 s100, s88')
        for q in range(13): s(f's_mov_b32 s{86+q}, s101')
    build_srd(s, SX, 64, 2097152)
    s('s_mov_b32 s96, s5\ns_mov_b32 s97, s6' if not cfg.stamps else 's_mov_b32 s62, s5\ns_mov_b32 s63, s6')
    s(f's_cmp_ge_u32 s{sW}, 4\ns_cbranch_scc1 L_nox')
    for p in xpieces()[:NX0]: s.l.extend(p)
    s('L_nox:')
    build_srd(s, SQKV, 66, 1572864); build_srd(s, SG, 74, 1835008); build_srd(s, SU, 76, 1835008)
    s(f's_lshr_b32 s5, s4, 3\ns_lshr_b32 s{sTY}, s5, 1\ns_and_b32 s5, s5, 1\ns_and_b32 s6, s3, 6\ns_add_u32 s{sJ}, s6, s5')
    if cfg.mx512:
        s(f's_lshr_b32 s5, s3, 1\ns_lshl_b32 s5, s5, 3\ns_lshr_b32 s6, s4, 2\ns_add_u32 s{sSB}, s5, s6')
        s(f's_and_b32 s5, s3, 1\ns_lshl_b32 s5, s5, 2\ns_and_b32 s6, s4, 3\ns_add_u32 s{sNB}, s5, s6')
    else:
        s(f's_lshl_b32 s5, s3, 2\ns_lshr_b32 s6, s4, 3\ns_add_u32 s{sSB}, s5, s6\ns_and_b32 s{sNB}, s4, 7')
    build_srd(s, SPHI, 68, 16384); build_srd(s, SO, 70, 524288); build_srd(s, SD, 78, 1835008)
    build_srd(s, SOUT, 80, 2097152); build_srd(s, SDBG, 82, 256); build_srd(s, SWS, 84, WS_BYTES)
    s(f's_and_b32 s{sW4}, s{sW}, 3')
    s(f's_mul_i32 s6, s{sJ}, 160\ns_add_u32 s6, s6, 512\ns_and_b32 s7, s{sJ}, 1')
    s('s_lshl_b32 s3, s7, 5\ns_add_u32 s3, s3, s6')
    s('s_xor_b32 s7, s7, 1\ns_lshl_b32 s4, s7, 7\ns_add_u32 s4, s4, s6')
    s(f's_add_u32 s5, s3, 64\ns_lshl_b32 s6, s{sJ}, 6\ns_cmp_eq_u32 s{sTY}, 0\ns_cselect_b32 s5, s6, s5')
    s(f's_mov_b32 s6, {BSTART[0]}')
    for w in range(1, 8): s(f's_cmp_eq_u32 s{sW}, {w}\ns_cselect_b32 s6, {BSTART[w]}, s6')
    s(f's_add_u32 s{sLB}, s{sW}, 4\ns_sub_u32 s7, s{sW}, 2\ns_cmp_ge_u32 s{sW}, 4\ns_cselect_b32 s{sLB}, s7, s{sLB}\ns_add_u32 s7, s{sW}, 2\ns_cmp_ge_u32 s{sW}, 6\ns_cselect_b32 s{sLB}, s7, s{sLB}\ns_cselect_b32 s7, 112, 0\ns_lshl_b32 s{sLB}, s{sLB}, 14')
    s(f's_sub_u32 s7, s6, s7\ns_lshl_b32 s{sWB}, s7, 14\ns_lshl_b32 s7, s{sNB}, 7\ns_add_u32 s{sWB}, s{sWB}, s7')
    s(f's_mul_i32 s{sH0}, s{sSB}, 288\ns_add_u32 s{sH0}, s{sH0}, s6\ns_lshl_b32 s{sH0}, s{sH0}, 10\ns_add_u32 s{sH1}, s{sH0}, {144*1024}')
    s(f's_lshl_b32 s6, s{sSB}, 3\ns_add_u32 s6, s6, s{sW}\ns_lshl_b32 s6, s6, 13\ns_add_u32 s{sXO}, s6, s7')
    if cfg.bonly: s('s_branch L_bonly')
    s(f's_cmp_ge_u32 s{sW}, 4\ns_cbranch_scc1 L_helper')
    s(f's_cmp_eq_u32 s{sTY}, 0\ns_cbranch_scc0 L_compY\ns_branch L_compX')
    return s

XN = 0; ACC = [128, 144, 160, 176]; WF = 192; NRING = 8; PK = 224
vTRL, vTRH, vL16, vKW, vVW, vVW2, vXA, vT = 240, 241, 242, 243, 244, 245, 246, 254
vC, vR2, vNON, vFA, vZ = 246, 247, 248, 252, 251

def compute(ty):
    X = ty == 'X'
    s = S()
    s(f's_setprio {cfg.prioC}')
    s(f'v_lshlrev_b32 v{vL16}, 4, v1')
    s(f'v_lshrrev_b32 v2, 5, v1\nv_lshlrev_b32 v{vTRL}, 9, v2')
    s(f'v_bfe_u32 v3, v1, 2, 2\nv_lshl_add_u32 v{vTRL}, v3, 6, v{vTRL}')
    s(f'v_bfe_u32 v3, v1, 4, 1\nv_lshl_add_u32 v{vTRL}, v3, 5, v{vTRL}')
    s(f'v_and_b32 v3, 3, v1\nv_lshl_add_u32 v{vTRL}, v3, 3, v{vTRL}')
    s(f'v_add_u32 v{vTRH}, 0x20000, v{vTRL}')
    s('v_and_b32 v4, 15, v1\nv_xor_b32 v4, v2, v4\nv_lshlrev_b32 v4, 4, v4\nv_lshl_add_u32 v4, v3, 8, v4')
    s(f'v_bfe_u32 v5, v1, 2, 3\nv_lshl_add_u32 v4, v5, 10, v4\ns_lshl_b32 s6, s{sW}, 15\nv_add_u32 v{vXA}, s6, v4')
    for u in range(1, 8): s(f'v_xor_b32 v{vXA+u}, {u<<5}, v{vXA}')
    s('v_and_b32 v3, 31, v1')
    if X:
        s(f's_lshl_b32 s6, s{sW}, 10\ns_add_u32 s6, s6, {KB}\nv_lshlrev_b32 v4, 3, v1\nv_add_u32 v{vKW}, s6, v4')
        s(f'v_bfe_u32 v4, v1, 2, 2\nv_xor_b32 v4, v2, v4\nv_lshlrev_b32 v4, 3, v4\nv_lshl_add_u32 v4, v3, 5, v4\nv_add_u32 v{vVW}, s6, v4')
        s(f'v_xor_b32 v{vVW2}, 16, v{vVW}')
        s(f's_lshl_b32 s6, s{sRB}, 3\ns_add_u32 s6, s6, s{sJ}\ns_lshl_b32 s6, s6, 4\ns_add_u32 s6, s6, s{sW}\ns_lshl_b32 s6, s6, 10\ns_add_u32 s{sQ}, s6, {Q_OFF}')
    E = PK
    s('v_bfe_u32 v4, v1, 3, 1\nv_and_b32 v5, 3, v1\nv_lshl_add_u32 v4, v4, 2, v5')
    s('v_and_b32 v5, 1, v4\nv_lshlrev_b32 v5, 4, v5\nv_mov_b32 v6, 0x3f80\nv_lshlrev_b32 v6, v5, v6')
    s('v_bfe_u32 v5, v1, 2, 1\nv_cmp_eq_u32 vcc, v5, v2\nv_cndmask_b32 v6, 0, v6, vcc')
    s('v_lshrrev_b32 v4, 1, v4\nv_bfe_u32 v5, v1, 4, 1\nv_lshl_add_u32 v4, v5, 2, v4')
    for r in range(8): s(f'v_cmp_eq_u32 vcc, {r}, v4\nv_cndmask_b32 v{E+r}, 0, v6, vcc')
    s(f's_lshl_b32 s6, s{sRB}, 2\ns_add_u32 s6, s6, s{sW}\ns_mul_i32 s6, s6, {144*1024}')
    s(f's_lshl_b32 s7, s3, 6\ns_add_u32 s{sHA}, s6, s7\ns_lshl_b32 s7, s4, 6\ns_add_u32 s{sHM}, s6, s7\ns_lshl_b32 s7, s5, 6\ns_add_u32 s{sHC}, s6, s7')
    s(f's_mov_b32 s{sONES}, 0x3f803f80')
    setup = s; s = S()
    merge(s, setup, xpieces()[NX0:], 3)
    s('s_barrier')
    stamp(s, 0)
    S1, S2 = vT, 232
    def sumdot(tt):
        for r in range(4):
            z = tt == 0 and r < 2
            for a, b in ((S1 + (r & 1), f's{sONES}'), (S2 + (r & 1), f'v{XN+4*tt+r}')):
                s(f'v_dot2_f32_bf16 v{a}, v{XN+4*tt+r}, {b}, ' + ('0' if z else f'v{a}'))
    for c in range(4):
        s(f's_waitcnt vmcnt({8*(3-c)})')
        if c == 3: stamp(s, 1)
        for u in range(8): s(f'ds_read_b128 {vr(XN+32*c+4*u,4)}, v{vXA+u} offset:{c*8192}')
        for u in range(8): sumdot(8*c + u)
    s('s_barrier')
    s(f'v_add_f32 v{S1}, v{S1}, v{S1+1}\nv_add_f32 v{S2}, v{S2}, v{S2+1}')
    s(f'v_permlane32_swap_b32 v{S1}, v{S2}\nv_add_f32 v{S1}, v{S1}, v{S2}\nv_mul_f32 v{S1}, 0x3b000000, v{S1}\nv_mov_b32 v{S2}, v{S1}\nv_permlane32_swap_b32 v{S1}, v{S2}')
    CM = ACC[3]
    s(f'v_cvt_pk_bf16_f32 v{CM}, -v{S1}, -v{S1}\nv_and_b32 v{CM}, 0xffff0000, v{CM}')
    for r in range(1, 16): s(f'v_mov_b32 v{CM+r}, v{CM}')
    stamp(s, 2)
    side = S()
    side(f'v_mov_b32 v{vZ}, 0')
    side(f'v_fma_f32 v{S2}, -v{S1}, v{S1}, v{S2}\nv_max_f32 v{S2}, 0, v{S2}')
    side(f'v_cvt_pk_bf16_f32 v{S2}, v{S2}, v{S2}\nv_and_b32 v{S2}, 0xffff0000, v{S2}\nv_add_f32 v{S2}, 0x3727c5ac, v{S2}')
    side(f'v_cvt_pk_bf16_f32 v{S2}, v{S2}, v{S2}\nv_and_b32 v{S2}, 0xffff0000, v{S2}\nv_sqrt_f32 v{S2}, v{S2}')
    if X: side(f'v_lshrrev_b32 v{vC}, 2, v{vL16}\nv_and_b32 v{vC}, 0x7c, v{vC}\ns_lshl_b32 s6, s{sW}, 7\nv_add_u32 v250, s6, v{vC}\nv_add_u32 v252, {RSB}, v250')
    side(f'v_cvt_pk_bf16_f32 v234, v{S2}, v{S2}\nv_mov_b32 v235, v234\nv_and_b32 v{S2}, 0xffff0000, v234\nv_rcp_f32 v{S2}, v{S2}')
    if X:
        side(f'v_lshlrev_b32 v253, 1, v250\nv_add_u32 v253, {STDB}, v253\nds_write_b64 v253, v[234:235]\nds_write_b32 v252, v{S2}')
        side(f'v_mul_f32 v{vC}, 0x3fb8aa3b, v{S2}')
    else: side('s_nop 0')
    side(f'v_mul_f32 v{vR2}, v{S2}, v{S2}')
    side = side.l
    cv = []
    for p in range(18):
        if p < 16:
            D = ACC[(p + 2) % 3]
            s(f'{MF} {vr(D,16)}, {vr(E,4)}, {vr(XN+8*p,4)}, {vr(CM,16)}')
        for x in cv[:4]: s(x)
        if side: s.l.append(side.pop(0))
        if p < 16: s(f'{MF} {vr(D,16)}, {vr(E+4,4)}, {vr(XN+8*p+4,4)}, {vr(D,16)}')
        for x in cv[4:]: s(x)
        for _ in range(2):
            if side: s.l.append(side.pop(0))
        q = p - 1
        cv = [f'v_cvt_pk_bf16_f32 v{XN+8*q+j}, v{ACC[(q+2)%3]+2*j}, v{ACC[(q+2)%3]+2*j+1}' for j in range(8)] if 0 <= q < 16 else []
        if p == 14: s('s_waitcnt lgkmcnt(0)\ns_barrier')
        if p == 15: pre_reads_at = len(s.l)
    assert not side
    stamp(s, 3)
    mf = []
    for st in range(10):
        base = SLOT[st % 3]
        if not ((4 <= st < 6) or (X and st < 4)):
            sl = st if st < 4 else st - 6
            accs = [0, 1, 2, 3] if st < 4 else [2, 3, 0, 1]
            for p in range(2):
                for t in range(8):
                    for c in range(2):
                        mf.append((st, accs[2*p+c], 8*sl + t, base + (2*p+c)*8192 + t*1024, sl == 0 and t == 0))
        else:
            sl = st & 1; a0 = 2 if st in (2, 3) else 0
            for t in range(16):
                for c in range(2):
                    mf.append((st, a0 + c, 16*sl + t, base + c*16384 + t*1024, sl == 0 and t == 0))
    N = len(mf)
    def ep_h(g, u, sbase, off, PK=PK, defer=None):
        e = []
        for j in range(0, 16, 2):
            for jj in (j, j+1): e.append(f'v_max_f32 v{g+jj}, 0, v{g+jj}')
            for jj in (j, j+1): e.append(f'v_mul_f32 v{u+jj}, v{u+jj}, v{vR2}')
            for jj in (j, j+1): e.append(f'v_mul_f32 v{g+jj}, v{g+jj}, v{u+jj}')
            e.append(f'v_cvt_pk_bf16_f32 v{PK+j//2}, v{g+j}, v{g+j+1}')
            dst = e if defer is None else defer
            if j == 6: dst.append(f'buffer_store_dwordx4 {vr(PK,4)}, v{vL16}, {srd(SWS)}, s{sbase} offen offset:{off} sc1')
            if j == 14: dst.append(f'buffer_store_dwordx4 {vr(PK+4,4)}, v{vL16}, {srd(SWS)}, s{sbase} offen offset:{off+1024} sc1')
        return e
    def ep_hand(a0, a1, kind):
        e = []; k = 0
        for ti, a in enumerate((a0, a1)):
            for hh in range(2):
                hd = 2*ti + hh
                for ee in range(2):
                    b = a + 8*hh + 4*ee; pk = PK + 2*(k % 8); k += 1
                    if kind != 'v':
                        for j in range(4): e.append(f'v_mul_f32 v{b+j}, v{b+j}, v{vC}')
                    e.append(f'v_cvt_pk_bf16_f32 v{pk}, v{b}, v{b+1}')
                    e.append(f'v_cvt_pk_bf16_f32 v{pk+1}, v{b+2}, v{b+3}')
                    if kind == 'v': e.append(f'ds_write_b64 v{vVW2 if ee else vVW}, {vr(pk,2)} offset:{hd*4096}')
                    if kind == 'k': e.append(f'ds_write_b64 v{vKW}, {vr(pk,2)} offset:{hd*4096 + ee*512}')
                if kind == 'q':
                    e.append(f'buffer_store_dwordx4 {vr(PK+4*hd,4)}, v{vL16}, {srd(SWS)}, s{sQ} offen sc1')
                    if hd < 3: e.append(f's_add_u32 s{sQ}, s{sQ}, 4096')
        return e
    A = ACC
    fill = {}; late = {}; posts = {}; mids = []
    skip = ({7} if X else {8}) if cfg.skip else set()
    fa = f's_lshl_b32 s6, s{sRB}, 2\ns_add_u32 s6, s6, s{sW}\ns_lshl_b32 s6, s6, 5\ns_add_u32 s6, s6, s{sJ}' + ('' if X else '\ns_add_u32 s6, s6, 8') + f'\ns_lshl_b32 s6, s6, 2\ns_add_u32 s6, s6, {FH}\nv_mov_b32 v{vFA}, s6'
    extra = ''
    if X:
        fill[2*32] = (ep_hand(A[0], A[1], 'k'), 2*32 + 17); mids.append(2*32 + 19)
        fill[4*32] = (ep_hand(A[2], A[3], 'q'), 4*32 + 20)
        fill[6*32] = (ep_hand(A[0], A[1], 'v'), 6*32 + 10)
        mids.append(6*32 + 12)
        extra = f'\ns_lshl_b32 s6, s{sRB}, 3\ns_add_u32 s6, s6, s{sJ}\ns_lshl_b32 s6, s6, 5\ns_add_u32 s6, s6, s{sW}\ns_lshl_b32 s6, s6, 2\ns_add_u32 s6, s6, {FQ}\nv_mov_b32 v253, s6'
        posts[5*32 + 10] = (253, '0')
    else:
        d1 = []; d2 = []
        fill[3*32+16] = (ep_h(A[0], A[1], sHA, 0, PK, d1), 3*32 + 31)
        fill[4*32] = (ep_h(A[2], A[3], sHA, 2048, PK + 8, d1), 4*32 + 17)
        fill[6*32] = (ep_h(A[0], A[1], sHM, 0, PK, d2), 6*32 + 15)
        for k, x in enumerate(d1): late[4*32 + 19 + 2*k] = x
        for k, x in enumerate(d2): late[6*32 + 21 + 3*k] = x
        extra = f'\ns_mov_b32 s{sQ}, {FE-FH}'
        posts[7*32 + 20] = (vFA, f's{sQ}')
    fill[1*32+2] = ([f'buffer_load_dword v{vNON}, v{vZ}, {srd(SDBG)}, 0 offen sc1'] + (fa + extra).split('\n'), 1*32 + 22)
    fill[9*32+16] = (ep_h(A[2], A[3], sHC, 0), 9*32 + 31)
    tail = ep_h(A[0], A[1], sHC, 2048, PK + 8)
    def rd(n):
        st, a, xf, off, first = mf[n]
        va, o = (vTRH, off - 131072) if off >= 131072 else (vTRL, off)
        r = WF + 4*(n % NRING)
        return [f'ds_read_b64_tr_b16 {vr(r,2)}, v{va} offset:{o}', f'ds_read_b64_tr_b16 {vr(r+2,2)}, v{va} offset:{o+256}']
    nxt = 0; half = []; pend = []; rdtok = {}
    def issue_reads(limit_frag, maxn):
        nonlocal nxt, half
        k = 0
        while k < maxn:
            if not half:
                if nxt > limit_frag or nxt >= N: break
                half = [(nxt, x) for x in rd(nxt)]; nxt += 1
            f, x = half.pop(0); rdtok[f] = s(x); k += 1
        return k
    passed = 0
    keep = s.l[pre_reads_at:]; del s.l[pre_reads_at:]
    issue_reads(6, 14)
    s.l.extend(keep)
    delay = 0; dead = 0
    for n in range(N):
        st, a, xf, off, first = mf[n]
        if n in fill:
            assert not pend
            pend = list(fill[n][0]); dead = fill[n][1]; delay = 2
        needs = []
        if n % 2 == 0 and (n + 1) in rdtok and not (half and half[0][0] == n + 1): needs = [rdtok[n+1]]
        r = WF + 4*(n % NRING)
        s(f'{MF} {vr(A[a],16)}, {vr(r,4)}, {vr(XN+4*xf,4)}, ' + ('0' if first else vr(A[a],16)), needs=needs)
        lim = min(n + NRING - 1, 32*(passed+1) - 1)
        if n % 32 == 27 and st + 1 not in skip:
            assert nxt == 32*(st+1) and not half
            s('s_waitcnt lgkmcnt(0)')
            if cfg.hdbg and 4 <= st <= 9: stamp(s, 2*(st-4), True)
            s('s_barrier'); passed = st + 1
            if passed + 1 in skip and not X: passed += 1
            if cfg.hdbg and 4 <= st <= 9: stamp(s, 2*(st-4)+1, True)
            if st in (3, 5): stamp(s, 4 if st == 3 else 5)
            issue_reads(min(n + NRING - 1, N - 1), 6)
            if st == 9:
                s(f'v_readfirstlane_b32 s{sNON}, v{vNON}\ns_lshl_b32 s6, s{sSB}, 8\ns_lshl_b32 s7, s{sW}, 3\ns_add_u32 s6, s6, s7\ns_add_u32 s6, s6, {FE+32}')
                sbase(s, 6); sload(s, SP, 2, True); s(f's_mov_b32 s{sNON+1}, s{sNON}')
            continue
        if n in mids:
            assert not pend
            s('s_barrier', needs=[[i for i in s.l if i.op == 'ds_write_b64'][-1]])
            if st + 1 in skip: passed = st + 1
        behind = (lim - nxt + 1) * 2 + len(half)
        issue_reads(lim, 3 if behind > 2 else 2)
        if n in late: s(late[n])
        if n == 3*32 + 4:
            s(f'v_cmp_eq_u32 vcc, 0, v{vNON}\ns_cbranch_vccz L_non{ty}c_x')
            s('s_mov_b32 s75, 0')
            s(f'L_non{ty}c:')
            s(f'buffer_load_dword v{vNON}, v{vZ}, {srd(SDBG)}, 0 offen sc1\ns_waitcnt vmcnt(0)', tag='raw')
            s(f's_add_u32 s75, s75, 1\ns_cmp_gt_u32 s75, {SPIN}\ns_cbranch_scc1 L_non{ty}c_x')
            s(f'v_cmp_eq_u32 vcc, 0, v{vNON}\ns_cbranch_vccnz L_non{ty}c')
            s(f'L_non{ty}c_x:')
        if n in posts: post(s, vNON, posts[n][0], posts[n][1], [[i for i in s.l if i.kind == 'vmst'][-1]])
        if delay > 0: delay -= 1
        elif pend:
            gaps = sum(1 for m in range(n, dead + 1) if m % 32 != 27 or m // 32 + 1 in skip)
            budget = -(-len(pend) // gaps)
            nw = 0
            while pend and budget > 0:
                if pend[0].startswith('ds_write'):
                    if nw and gaps > 1: break
                    nw += 1
                s(pend.pop(0)); budget -= 1
    assert not pend
    stamp(s, 6)
    for x in tail: s(x)
    stamp(s, 7)
    s('s_branch L_BC')
    return s

vOQ, vOG, vW2 = 2, 3, 252
WRB = 72
def dma_stage(st, X):
    base = SLOT[st % 3]; r = []
    if X and st < 6:
        col = [1024, 0, 2048][st >> 1]
        for b in range(4):
            row = 256*(st & 1) + 16*b
            for pos in range(2): r.append(piece(sL2, base + pos*16384 + b*1024, sM0, row*3072 + col + 64*pos, vOQ, SQKV))
    elif st < 4 or st >= 6:
        sl = st if st < 4 else st - 6
        sb = sA0 if st < 4 else sC0
        for b in range(2):
            row = 128*sl + 16*b
            for sr, cb, pos in [(SG, 0, 0), (SG, 64, 2), (SU, 0, 1), (SU, 64, 3)]:
                r.append(piece(sL4, base + pos*8192 + b*1024, sb, row*3584 + cb, vOG, sr))
    else:
        for b in range(4):
            row = 256*(st & 1) + 16*b
            for pos, sr in enumerate((SG, SU)): r.append(piece(sL2, base + pos*16384 + b*1024, sM0, row*3584, vOG, sr))
    return r
def cwpieces(w):
    return [piece(sLBc, (w+4)*16384 + k*8192 + c*1024, sWBc, (BSTART[w]+12*k)*16384 + 64*c, vW2, SD) for k in range(2) for c in range(2)]
def cwpieces2():
    return [piece(sLBc, w*8192 + c*1024, sWBc, (BSTART[w]+16)*16384 + 64*c, vW2, SD) for w in range(4) for c in range(2)]
def ownpieces(steps, sbase, offs, voff=vW2, sr=SWH, rel=None):
    return [piece(sbase, o + c*1024, sWB, (rel[i] if rel else i)*16384 + 64*c, voff, sr) for i, o in zip(steps, offs) for c in range(2)]
def emit(s, pieces, raw=False):
    for p in pieces:
        for x in p:
            if raw: x.tag = 'raw'
            s.l.append(x)
    return pieces[-1][-1]
def b_traddr(s, dst, sbase, t, lane=1):
    s(f'v_lshrrev_b32 v{t}, 5, v{lane}\nv_bfe_u32 v{dst}, v{lane}, 2, 2')
    s(f'v_lshl_add_u32 v{dst}, v{t}, 2, v{dst}\nv_lshlrev_b32 v{dst}, 6, v{dst}')
    s(f'v_bfe_u32 v{t}, v{lane}, 4, 1\nv_lshl_add_u32 v{dst}, v{t}, 5, v{dst}\nv_and_b32 v{t}, 3, v{lane}\nv_lshl_add_u32 v{dst}, v{t}, 3, v{dst}')
    if sbase is not None: s(f'v_add_u32 v{dst}, s{sbase}, v{dst}')
O8 = [2048*k for k in range(8)]

def softmax_k(s, P, rs, out, t):
    m0, m1, n0, n1 = t
    s(f'v_max3_f32 v{m0}, v{P}, v{P+1}, v{P+2}\nv_max3_f32 v{m1}, v{P+3}, v{P+4}, v{P+5}')
    s(f'v_max3_f32 v{n0}, v{P+6}, v{P+7}, v{P+8}\nv_max3_f32 v{n1}, v{P+9}, v{P+10}, v{P+11}')
    s(f'v_max3_f32 v{m0}, v{m0}, v{P+12}, v{P+13}\nv_max3_f32 v{m1}, v{m1}, v{P+14}, v{P+15}')
    s(f'v_max3_f32 v{m0}, v{m0}, v{n0}, v{n1}\nv_max_f32 v{m0}, v{m0}, v{m1}')
    for j in range(16): s(f'v_sub_f32 v{P+j}, v{P+j}, v{m0}')
    for j in range(16): s(f'v_exp_f32 v{P+j}, v{P+j}')
    s(f'v_add_f32 v{n0}, v{P}, v{P+1}\nv_add_f32 v{n1}, v{P+2}, v{P+3}\nv_add_f32 v{m0}, v{P+4}, v{P+5}\nv_add_f32 v{m1}, v{P+6}, v{P+7}')
    for j in range(8, 16): s(f'v_add_f32 v{t[j%4]}, v{t[j%4]}, v{P+j}')
    s(f'v_add_f32 v{m0}, v{m0}, v{m1}\nv_add_f32 v{n0}, v{n0}, v{n1}\nv_add_f32 v{n0}, v{n0}, v{m0}')
    s(f'v_rcp_f32 v{n0}, v{n0}')
    s(f'v_mul_f32 v{n0}, v{n0}, v{rs}')
    for j in range(0, 16, 2):
        s(f'v_mul_f32 v{P+j}, v{P+j}, v{n0}\nv_mul_f32 v{P+j+1}, v{P+j+1}, v{n0}')
        if j >= 2: s(f'v_cvt_pk_bf16_f32 v{out+j//2-1}, v{P+j-2}, v{P+j-1}')
    s(f'v_cvt_pk_bf16_f32 v{out+7}, v{P+14}, v{P+15}')

def softmax_q(s, P, out, t):
    m0, m1, n0, n1 = t
    s(f'v_max3_f32 v{m0}, v{P}, v{P+1}, v{P+2}\nv_max3_f32 v{m1}, v{P+8}, v{P+9}, v{P+10}')
    s(f'v_max3_f32 v{n0}, v{P+3}, v{P+4}, v{P+5}\nv_max3_f32 v{n1}, v{P+11}, v{P+12}, v{P+13}')
    s(f'v_max3_f32 v{m0}, v{m0}, v{P+6}, v{P+7}\nv_max3_f32 v{m1}, v{m1}, v{P+14}, v{P+15}')
    s(f'v_max_f32 v{m0}, v{m0}, v{n0}\nv_max_f32 v{m1}, v{m1}, v{n1}')
    s(f'v_permlane32_swap_b32 v{m0}, v{m1}')
    s(f'v_max_f32 v{m0}, v{m0}, v{m1}')
    s(f'v_mov_b32 v{m1}, v{m0}')
    s(f'v_permlane32_swap_b32 v{m0}, v{m1}')
    for j in range(16): s(f'v_sub_f32 v{P+j}, v{P+j}, v{m0 if j < 8 else m1}')
    for j in range(16):
        s(f'v_exp_f32 v{P+j}, v{P+j}')
        if j >= 3 and j % 2 == 1: s(f'v_cvt_pk_bf16_f32 v{out+(j-3)//2}, v{P+j-3}, v{P+j-2}')
    s(f'v_cvt_pk_bf16_f32 v{out+7}, v{P+14}, v{P+15}')

def w1touch(s, X, part):
    s(f's_and_b32 s6, s{sRB}, 7\ns_lshl_b32 s6, s6, 6\nv_add_u32 v8, s6, v1')
    s('v_mul_u32_u24 v9, 0xe00, v8')
    d = 253 if part != 2 else 249
    if X:
        s('v_mul_u32_u24 v8, 0xc00, v8')
        s(f's_lshl_b32 s6, s{sJ}, 7\ns_xor_b32 s7, s{sW4}, 1\ns_cmp_eq_u32 s{sW4}, 2\ns_cselect_b32 s7, 2, s7\ns_lshl_b32 s7, s7, 10\ns_add_u32 s6, s6, s7\ns_lshl_b32 s7, s5, 1')
        s(f's_cmp_eq_u32 s{sW4}, 3\ns_cselect_b32 s6, 0x200000, s6\ns_cselect_b32 s7, s7, 0x200000')
        if part == 1: s(f's_cmp_ge_u32 s{sW4}, 2\ns_cselect_b32 s6, 0x200000, s6\ns_mov_b32 s7, 0x200000')
        if part == 2: s(f's_cmp_lt_u32 s{sW4}, 2\ns_cselect_b32 s6, 0x200000, s6')
        s(f'buffer_load_dword v{d}, v8, {srd(SQKV)}, s6 offen')
        if part != 1: s(f'buffer_load_dword v{d+1}, v9, {srd(SG)}, s7 offen\nbuffer_load_dword v{d+2}, v9, {srd(SU)}, s7 offen')
    else:
        s(f's_cmp_eq_u32 s{sW4}, 1\ns_cselect_b32 s6, s4, s3\ns_cmp_eq_u32 s{sW4}, 2\ns_cselect_b32 s6, s5, s6\ns_lshl_b32 s6, s6, 1')
        s(f's_cmp_eq_u32 s{sW4}, 3\ns_cselect_b32 s6, 0x200000, s6')
        if part == 1: s(f's_cmp_ge_u32 s{sW4}, 1\ns_cselect_b32 s6, 0x200000, s6')
        if part == 2: s(f's_cmp_lt_u32 s{sW4}, 1\ns_cselect_b32 s6, 0x200000, s6')
        s(f'buffer_load_dword v{d}, v9, {srd(SG)}, s6 offen\nbuffer_load_dword v{d+1}, v9, {srd(SU)}, s6 offen')

def w2touch(s):
    if cfg.w2t == 1:
        s(f's_mul_i32 s6, s2, 7168\ns_lshl_b32 s7, s2, 11\ns_cmp_eq_u32 s{sW}, 7\ns_cselect_b32 s6, s6, 0x200000\ns_cselect_b32 s7, s7, 0x200000')
        s('v_lshlrev_b32 v8, 7, v1\nv_min_u32 v9, 1920, v8\nv_min_u32 v8, 7040, v8')
        s(f'buffer_load_dword v246, v8, {srd(SD)}, s6 offen\nbuffer_load_dword v247, v9, {srd(SO)}, s7 offen')
    if cfg.w2t == 2:
        s(f's_lshr_b32 s6, s2, 3\ns_lshl_b32 s6, s6, 2\ns_add_u32 s75, s6, s{sW4}')
        if cfg.mx512:
            s(f'v_lshrrev_b32 v8, 2, v1\nv_and_b32 v9, 3, v1\nv_lshlrev_b32 v9, 7, v9\nv_lshl_add_u32 v8, v8, 10, v9\ns_and_b32 s7, s{sNB}, 4\ns_lshl_b32 s7, s7, 7\nv_add_u32 v8, s7, v8')
            s(f's_mul_i32 s6, s75, {14*1024}\nbuffer_load_dword v246, v8, {srd(SD)}, s6 offen')
            s(f's_lshr_b32 s6, s75, 2\ns_lshl_b32 s6, s6, 1\ns_and_b32 s7, s{sW}, 1\ns_add_u32 s6, s6, s7\ns_lshl_b32 s6, s6, 13\ns_cmp_ge_u32 s{sW}, 6\ns_cselect_b32 s6, s6, 0x200000')
            s(f'v_min_u32 v9, {8*1024-128}, v8\nbuffer_load_dword v247, v9, {srd(SO)}, s6 offen')

def helper_head(s, X, wop, isq):
    if cfg.tp: w1touch(s, X, 1 if cfg.tp == 2 else 0)
    if X:
        s(f's_cmp_lg_u32 s2, 0\ns_cbranch_scc1 L_np\ns_cmp_lg_u32 s{sW}, 4\ns_cbranch_scc1 L_np')
        s('s_memrealtime s[76:77]\ns_waitcnt lgkmcnt(0)\ns_or_b32 s76, s76, 1')
        s('v_mov_b32 v4, s76\nv_mov_b32 v6, 0\ns_mov_b64 exec, 1')
        s(f'buffer_store_dword v4, v6, {srd(SDBG)}, 0 offen sc1', tag='raw')
        s('s_mov_b64 exec, -1')
        s('L_np:')
    s(f's_setprio {cfg.prioH}')
    s('v_lshrrev_b32 v4, 2, v1\nv_and_b32 v5, 3, v1\nv_lshlrev_b32 v5, 4, v5')
    s(f'v_mul_u32_u24 v{vOQ}, 0xc00, v4\nv_add_u32 v{vOQ}, v{vOQ}, v5')
    s(f'v_mul_u32_u24 v{vOG}, 0xe00, v4\nv_add_u32 v{vOG}, v{vOG}, v5')
    s(f'v_lshl_add_u32 v{vW2}, v4, 10, v5')
    s(f's_lshl_b32 s{sL4}, s{sW4}, 11\ns_lshl_b32 s{sL2}, s{sW4}, 12')
    s(f's_mul_i32 s6, s{sW4}, {32*3584}\ns_lshl_b32 s7, s5, 1\ns_add_u32 s{sC0}, s6, s7')
    if X: s(f's_mul_i32 s6, s{sW4}, {64*3072}\ns_lshl_b32 s7, s{sJ}, 7\ns_add_u32 s{sM0}, s6, s7')
    else:
        s(f's_lshl_b32 s7, s3, 1\ns_add_u32 s{sA0}, s6, s7')
        s(f's_mul_i32 s6, s{sW4}, {64*3584}\ns_lshl_b32 s7, s4, 1\ns_add_u32 s{sM0}, s6, s7')
    s(f's_lshl_b32 s{sLBc}, s{sW4}, 11\ns_lshl_b32 s6, s{sW4}, 14\ns_lshl_b32 s7, s{sNB}, 7\ns_add_u32 s{sWBc}, s6, s7')
    s(f's_lshl_b32 s{sHEAD}, s{sJ}, 2\ns_add_u32 s{sHEAD}, s{sHEAD}, s{sW4}')
    s(f's_lshl_b32 s{sKV}, s{sHEAD}, 12\ns_add_u32 s{sKV}, s{sKV}, {KV_OFF}')
    s(f's_cmp_lt_u32 s{sW}, 6\ns_cselect_b32 s{SO}, s{SD}, s{SO}\ns_cselect_b32 s{SO+1}, s{SD+1}, s{SO+1}\ns_cselect_b32 s{SO+2}, s{SD+2}, s{SO+2}')
    s('v_lshrrev_b32 v4, 5, v1\nv_lshlrev_b32 v7, 7, v4')
    if isq: s('v_and_b32 v6, 15, v1\nv_lshl_add_u32 v36, v6, 1, v7')
    else: s('v_bfe_u32 v6, v1, 3, 2\nv_and_b32 v36, 3, v1\nv_lshl_add_u32 v6, v6, 2, v36\nv_lshl_add_u32 v36, v6, 1, v7')
    s(f's_lshl_b32 s{sT2}, s{sHEAD}, 9')
    return

def helper_start(s, X, wop, isq):
    stamp(s, 0)
    s('s_barrier')
    stamp(s, 1)
    tok = {0: emit(s, dma_stage(0, X))}
    if cfg.tp != 1: w1touch(s, X, 2 if cfg.tp == 2 else 0)
    if cfg.w2at == 0: w2touch(s)
    s('s_barrier')
    s(f'v_mov_b32 v17, 0\nbuffer_load_dword v16, v17, {srd(SDBG)}, 0 offen sc1')
    if cfg.pro == 0: tok[1] = emit(s, dma_stage(1, X))
    s('s_barrier', needs=[tok[0]])
    if cfg.pro != 0: tok[1] = emit(s, dma_stage(1, X))
    tok[2] = emit(s, dma_stage(2, X))
    if cfg.w2at == 1: w2touch(s)
    for i in range(8):
        s(f'buffer_load_ushort v{200+i}, v36, {srd(SPHI)}, s{sT2} offen offset:{(8*(i >> 2) + (i & 3))*32}')
    return tok

def nonce_and_wphi(w, lab, wop, bit):
    w(f'v_cmp_eq_u32 vcc, 0, v16\ns_cbranch_vccz {lab}_x')
    w('s_mov_b32 s75, 0')
    w(f'{lab}:')
    w(f'buffer_load_dword v16, v17, {srd(SDBG)}, 0 offen sc1\ns_waitcnt vmcnt(0)', tag='raw')
    w(f's_add_u32 s75, s75, 1\ns_cmp_gt_u32 s75, {SPIN}\ns_cbranch_scc1 {lab}_x')
    w(f'v_cmp_eq_u32 vcc, 0, v16\ns_cbranch_vccnz {lab}')
    w(f'{lab}_x:')
    w(f'v_readfirstlane_b32 s{sNON}, v16\nv_readfirstlane_b32 s{sNON+1}, v16')
    w(f'v_bfe_u32 v6, v1, {bit}, 1\nv_mul_u32_u24 v6, 0x8000, v6\nv_lshl_or_b32 v6, v6, 16, v6')
    for r in range(4):
        w(f'v_lshl_or_b32 v{wop+r}, v{200+2*r+1}, 16, v{200+2*r}\nv_xor_b32 v{wop+r}, v6, v{wop+r}')

def cost(i):
    if i.op in ('v_exp_f32', 'v_rcp_f32') or i.op.startswith('v_permlane'): return 11
    if i.kind == 'mfma': return 36
    if i.kind in ('vm', 'vmst'): return 14
    if i.op in ('v_max3_f32', 'v_fma_f32', 'v_lshl_add_u32', 'v_lshl_or_b32'): return 8.3
    return 5.6

def pack(s, X, work, bars, tok, extra, need10, quiet, frac, late_hi, w1at=None, first=(), tneed={}):
    flat = [(m, w.l) for m, w in work]
    qi = 0; qpos = 0; inloop = False; where = {}
    pieces = []; lgfree = False
    for bi, st in enumerate(bars):
        whole = st == int(st)
        if not lgfree: s('s_waitcnt lgkmcnt(0)')
        lgfree = False
        nd = [tok[t] for t in tneed.get(st, [st] if whole and st <= 9 else [])] + (need10 if st == 10 else [])
        dbg = cfg.hdbg and whole and 5 <= st <= 10
        if dbg: stamp(s, 2*(st-5), True); s('s_nop 0', needs=nd)
        s('s_barrier', needs=nd)
        if dbg: stamp(s, 2*(st-5)+1, True)
        for tgt in range(3, 10):
            if (w1at or {}).get(tgt, tgt - 2) == st:
                p = dma_stage(tgt, X); tok[tgt] = p[-1][-1]
                if st in first: emit(s, p)
                else: pieces += p
        pieces += extra.get(st, [])
        last = bi + 1 == len(bars)
        BUD = 1e9 if last else cfg.bud * frac.get(st, 1.0)
        hold = []
        if quiet.get(st) == 'all': hold = pieces; pieces = []
        q = quiet.get(st, 0) if quiet.get(st) != 'all' else 0
        used = 0; inexec = False; since = 99 if not inloop and not (qi < len(flat) and qpos == 0 and flat[qi][1][0].op in ('s_waitcnt', 's_memrealtime', 's_memtime')) else 0
        inloop = False
        while qi < len(flat) and flat[qi][0] <= st:
            ins = flat[qi][1][qpos]
            free = not inexec and not inloop and ins.op not in ('s_addc_u32', 's_subb_u32', 's_cselect_b32') and not ins.op.startswith('s_cbranch')
            if pieces and free and ((since >= 6 and used >= q) or ins.tag == 'flush'):
                s.l.extend(pieces.pop(0)); used += 20; since = 0
                continue
            if used + 20*len(pieces) >= BUD and free and ins.tag != 'glue': break
            s.l.append(ins); used += cost(ins); since += 1
            where[id(ins)] = st
            if ('s', 'exec') in ins.wr: inexec = '-1' not in ins.text
            if ins.op.startswith('s_cbranch') and ins.text.split()[1].endswith('_x'): inloop = True
            if ins.kind == 'label' and ins.op.endswith('_x:'): inloop = False
            if ins.op.startswith('s_load') or ins.op.startswith('s_cmp') or ins.op in ('s_xor_b64', 's_or_b64'): inloop = True
            qpos += 1
            if qpos == len(flat[qi][1]): qi += 1; qpos = 0
        for p in pieces: s.l.extend(p)
        pieces = hold
        if whole and qi < len(flat) and qpos == 0 and flat[qi][0] == st + 0.5 and (st + 0.5) not in bars:
            s.l.extend(flat[qi][1]); qi += 1; lgfree = True
    assert qi == len(flat)
    l = []; hi = False
    bidx = [k for k, i in enumerate(s.l) if i.op == 's_barrier']
    for k, i in enumerate(s.l):
        want = i.kind == 'mfma' or (k > bidx[late_hi] and i.kind in ('vm', 'vmst'))
        if i.kind in ('mfma', 'valu', 'vm', 'vmst', 'vmlds', 'ds') and want != hi and i.tag != 'raw':
            l.append(I(f's_setprio {3 if want else cfg.prioH}')); hi = want
        l.append(i)
    s.l = l
    return where

def helperX():
    s = S(); X = True
    WK, RS, KF, KVA = 8, 20, 24, 40
    PT = 136; ID = 224; TT = 200; FR = 136
    vB1, vB2, vRD, vKVA, vL16h, vST = 232, 233, 234, 235, 238, 239
    helper_head(s, X, WK, False)
    s(f'v_lshlrev_b32 v{vL16h}, 4, v1\ns_lshl_b32 s6, s{sW4}, 12\ns_add_u32 s6, s6, {KB}\nv_lshlrev_b32 v5, 3, v1\nv_add_u32 v{vRD}, s6, v5')
    s('v_bfe_u32 v5, v1, 2, 2\nv_lshl_add_u32 v5, v4, 2, v5')
    s('v_and_b32 v7, 3, v1\nv_xor_b32 v7, v7, v4\nv_lshlrev_b32 v7, 3, v7\nv_lshl_add_u32 v7, v5, 5, v7\nv_add_u32 v7, s6, v7')
    s(f'v_lshlrev_b32 v6, 3, v5\nv_add_u32 v6, {STDB}, v6')
    s(f'v_bfe_u32 v5, v1, 4, 1\nv_cmp_eq_u32 vcc, 1, v5\nv_cndmask_b32 v{vB1}, v7, v6, vcc')
    s(f'v_xor_b32 v7, 16, v7\nv_add_u32 v7, 256, v7\nv_add_u32 v6, 64, v6\nv_cndmask_b32 v{vB2}, v7, v6, vcc')
    s(f'v_mov_b32 v6, 512\nv_mov_b32 v7, 128\nv_cndmask_b32 v{vST}, v6, v7, vcc')
    s(f'v_and_b32 v5, 31, v1\nv_min_u32 v5, 16, v5\nv_lshl_add_u32 v5, v4, 5, v5\nv_lshlrev_b32 v{vKVA}, 2, v5')
    s('v_and_b32 v5, 1, v1\nv_lshlrev_b32 v5, 4, v5\nv_mov_b32 v6, 0x3f80\nv_lshlrev_b32 v6, v5, v6')
    s('v_bfe_u32 v5, v1, 4, 1\nv_cmp_eq_u32 vcc, v5, v4\nv_cndmask_b32 v6, 0, v6, vcc\nv_bfe_u32 v5, v1, 1, 3')
    for r in range(8): s(f'v_cmp_eq_u32 vcc, {r}, v5\nv_cndmask_b32 v{ID+r}, 0, v6, vcc')
    tok = helper_start(s, X, WK, False)
    work = []
    def seg(minb):
        w = S(); work.append((minb, w)); return w
    w = seg(1)
    w(f'v_and_b32 v5, 31, v1\nv_lshlrev_b32 v5, 2, v5\nv_add_u32 v5, {RSB}, v5')
    for rt in range(4): w(f'ds_read_b32 v{RS+rt}, v5 offset:{rt*128}')
    nonce_and_wphi(w, 'L_nonX', WK, 2)
    w(f's_lshl_b32 s6, s{sHEAD}, 7\ns_add_u32 s6, s6, {FKV+64}\nv_mov_b32 v17, s6')
    sbase(w, 6)
    w(f's_lshl_b32 s7, s{sRB}, 2\ns_sub_u32 s6, s6, 64\ns_add_u32 s6, s6, s7\nv_mov_b32 v18, s6')
    w(f's_cmp_lg_u32 s{sRB}, 0\ns_cbranch_scc1 L_zero_x')
    for r in range(4): w(f'v_mov_b32 v{FR+r}, 0')
    for q in range(4): w(f'buffer_store_dwordx4 {vr(FR,4)}, v{vL16h}, {srd(SWS)}, s{sKV} offen offset:{q*1024} sc1', tag='raw')
    w('s_waitcnt vmcnt(0)', tag='raw')
    w('s_mov_b64 exec, 1')
    w(f'buffer_store_dword v16, v17, {srd(SWS)}, 0 offen sc1', tag='raw')
    w('s_mov_b64 exec, -1')
    w('L_zero_x:')
    w = seg(2.5)
    for rt in range(4):
        w(f'ds_read_b64 {vr(KF+4*rt,2)}, v{vRD} offset:{rt*1024}\nds_read_b64 {vr(KF+4*rt+2,2)}, v{vRD} offset:{rt*1024+512}')
    for rt in range(4): w(f'{MF} {vr(PT+16*rt,16)}, {vr(WK,4)}, {vr(KF+4*rt,4)}, 0')
    T4 = (4, 5, 6, 7)
    PH = [56, 64, 24, 32]; TP = [216, 56, 64, 24]
    tr_mm = lambda rt: [[I(f'{MF} {vr(TT,16)}, {vr(PH[rt],4)}, {vr(ID,4)}, 0')], [I(f'{MF} {vr(TT,16)}, {vr(PH[rt]+4,4)}, {vr(ID+4,4)}, {vr(TT,16)}')]]
    tr_cv = lambda rt: [I(f'v_cvt_pk_bf16_f32 v{TP[rt]+j}, v{TT+2*j}, v{TT+2*j+1}') for j in range(8)]
    softmax_k(w, PT, RS, PH[0], T4)
    for rt in range(1, 4):
        m = S(); softmax_k(m, PT + 16*rt, RS + rt, PH[rt], T4)
        merge(w, m, tr_mm(rt - 1) + [[], tr_cv(rt - 1)], 8)
    for x in tr_mm(3): w.l.extend(x)
    sload(w, 44, 1, False); scheck(w, 'L_pollz', 44, 1, False)
    w.l.extend(tr_cv(3))
    w = seg(6.5)
    for rt in range(4):
        for ks in range(2):
            f = FR + 8*rt + 4*ks
            lastv = w(f'ds_read_b64_tr_b16 {vr(f,2)}, v{vB1}\nds_read_b64_tr_b16 {vr(f+2,2)}, v{vB2}')
            if rt < 3 or ks < 1: w(f'v_add_u32 v{vB1}, v{vB1}, v{vST}\nv_add_u32 v{vB2}, v{vB2}, v{vST}')
        if rt == 2: w('s_waitcnt lgkmcnt(8)')
    for rt in range(4):
        for ks in range(2):
            w(f'{MF} {vr(KVA,16)}, {vr(TP[rt]+4*ks,4)}, {vr(FR+8*rt+4*ks,4)}, ' + ('0' if rt == 0 and ks == 0 else vr(KVA,16)))
    for i in w.l: i.tag = i.tag or 'glue'
    if not cfg.skip: w = seg(7)
    w('s_mov_b32 s76, 0x1ffff\ns_mov_b32 s77, 0x1ffff')
    w('s_mov_b64 exec, s[76:77]')
    for r in range(16): at = w(f'buffer_atomic_add_f32 v{KVA+r}, v{vKVA}, {srd(SWS)}, s{sKV} offen offset:{r*256}')
    w('s_mov_b64 exec, -1')
    for i in w.l: i.tag = i.tag or 'glue'
    stamp(w, 2)
    w = seg(6.5 if cfg.skip and cfg.kvf < 8 else 8)
    post(w, 16, 18, '0', [at])
    for i in w.l: i.tag = 'glue'
    stamp(w, 3)
    bars = [1, 2, 2.5, 3, 4, 5, 6, 6.5] + ([] if cfg.skip else [7]) + [8, 9, 10]
    c9 = cwpieces2()
    extra = {1: cwpieces(1), 3: cwpieces(2), 8: cwpieces(0) + cwpieces(3), 9: c9}
    if cfg.skip:
        where = pack(s, X, work, bars, tok, extra, [c9[-1][-1]], {2: 'all', 4: cfg.quiet, 8: 30},
                     {2.5: 0.3, 3: cfg.fk, 4: cfg.fk, 5: cfg.fk, 6: 0.45}, -4, {8: 6.5, 9: 8}, (6.5,), {6.5: [7]})
    else:
        where = pack(s, X, work, bars, tok, extra, [c9[-1][-1]], {2: 'all', 4: cfg.quiet, 8: 100},
                     {2.5: 0.3, 3: cfg.fk, 4: cfg.fk, 5: cfg.fk, 6: 0.45, 6.5: 0.4}, -4, {8: 7, 9: 8}, (7, 8))
    assert where[id(lastv)] < 8
    return s

def own_first(s, lab):
    pass

def helperY():
    s = S(); X = False
    WQ, QF, KVA = 8, 24, 40
    PT = 136; vKVA, vL16h, vSA = 235, 238, 240
    helper_head(s, X, WQ, True)
    s(f'v_lshlrev_b32 v{vL16h}, 4, v1')
    s(f'v_and_b32 v5, 31, v1\nv_min_u32 v5, 16, v5\nv_lshl_add_u32 v5, v4, 5, v5\nv_lshlrev_b32 v{vKVA}, 2, v5')
    s(f's_lshl_b32 s79, s{sW4}, 14\ns_add_u32 s79, s79, 65536')
    b_traddr(s, vSA, 79, 11)
    tok = helper_start(s, X, WQ, True)
    work = []
    def seg(minb):
        w = S(); work.append((minb, w)); return w
    w = seg(1)
    nonce_and_wphi(w, 'L_nonY', WQ, 4)
    w(f's_lshl_b32 s6, s{sRB}, 3\ns_add_u32 s6, s6, s{sJ}\ns_lshl_b32 s{sQ}, s6, 14\ns_lshl_b32 s7, s{sW4}, 12\ns_add_u32 s{sQ}, s{sQ}, s7\ns_add_u32 s{sQ}, s{sQ}, {Q_OFF}')
    w(f's_lshl_b32 s6, s6, 7\ns_add_u32 s6, s6, {FQ}')
    sbase(w, 6)
    w(f's_lshl_b32 s6, s{sRB}, 5\ns_add_u32 s6, s6, s{sHEAD}\ns_lshl_b32 s6, s6, 2\ns_add_u32 s6, s6, {FO}\nv_mov_b32 v18, s6')
    stg = ownpieces(range(8), 79, O8)
    w = seg(cfg.ystg + 2)
    for i in range(8):
        for c in range(2):
            f = WRB + 8*i + 4*c
            w(f'ds_read_b64_tr_b16 {vr(f,2)}, v{vSA} offset:{2048*i + c*1024}', needs=[stg[-1][-1]])
            lasts = w(f'ds_read_b64_tr_b16 {vr(f+2,2)}, v{vSA} offset:{2048*i + c*1024 + 512}')
        if i % 2 == 1 and i >= 3: w('s_waitcnt lgkmcnt(8)')
    for i in w.l: i.tag = 'glue'
    w = seg(cfg.qat - 0.5)
    sload(w, 44, 4, False)
    w = seg(cfg.qat)
    stamp(w, 2)
    scheck(w, 'L_pollq', 44, 4, False)
    stamp(w, 3)
    for rt in range(4): w(f'buffer_load_dwordx4 {vr(QF+4*rt,4)}, v{vL16h}, {srd(SWS)}, s{sQ} offen offset:{rt*1024} sc1')
    w(f's_lshl_b32 s6, s{sHEAD}, 7\ns_add_u32 s6, s6, {FKV}')
    sbase(w, 6)
    w('s_mov_b32 s73, 0', tag='flush')
    for rt in range(4): w(f'{MF} {vr(PT+16*rt,16)}, {vr(WQ,4)}, {vr(QF+4*rt,4)}, 0')
    T4 = (4, 5, 6, 7)
    PQ = [56, 64, 200, 208]
    for rt in range(4): softmax_q(w, PT + 16*rt, PQ[rt], T4)
    def kvloads(w):
        for r in range(16): w(f'buffer_load_dword v{KVA+r}, v{vKVA}, {srd(SWS)}, s{sKV} offen offset:{r*256} sc1', tag='raw')
    if cfg.ktry:
        w = seg(9)
        sload(w, SP, 16, False)
        w('s_waitcnt lgkmcnt(0)')
        w(f's_xor_b64 s[6:7], s[{SP}:{SP+1}], s[{sNON}:{sNON+1}]')
        for k in range(1, 8): w(f's_xor_b64 s[76:77], s[{SP+2*k}:{SP+2*k+1}], s[{sNON}:{sNON+1}]\ns_or_b64 s[6:7], s[6:7], s[76:77]')
        w('s_cmp_eq_u64 s[6:7], 0\ns_cbranch_scc0 L_try_x')
        kvloads(w)
        w('s_mov_b32 s73, 1')
        w('L_try_x:')
    w = seg(9.5)
    sload(w, SP, 16, False)
    w = seg(10)
    stamp(w, 4)
    w('s_cmp_eq_u32 s73, 1\ns_cbranch_scc1 L_kv_x')
    scheck(w, 'L_pollkv', SP, 16, False)
    kvloads(w)
    w('L_kv_x:')
    stamp(w, 5)
    w('s_waitcnt vmcnt(0) lgkmcnt(0)')
    w('v_and_b32 v4, 27, v1\nv_cmp_eq_u32 vcc, 17, v4\nv_mov_b32 v4, 0x3f803f80')
    for r in range(8): w(f'v_cvt_pk_bf16_f32 v{KVA+r}, v{KVA+2*r}, v{KVA+2*r+1}')
    for r in range(8): w(f'v_cndmask_b32 v{KVA+r}, v{KVA+r}, v4, vcc')
    OT = [136, 168, 24, 216]; ON = [152, 184, 48 - 0, 232]
    ON[2] = 0
    w(f'v_mov_b32 v3, v{vL16h}\nv_mov_b32 v248, v16\nv_mov_b32 v249, v18')
    ON = [152, 184, 8, 232]
    for rt in range(4):
        w(f'{MF} {vr(OT[rt],16)}, {vr(KVA,4)}, {vr(PQ[rt],4)}, 0')
        w(f'{MF} {vr(ON[rt],16)}, {vr(KVA+4,4)}, {vr(PQ[rt]+4,4)}, 0')
    w(f's_lshl_b32 s6, s{sRB}, 2\ns_mul_i32 s6, s6, 144\ns_add_u32 s6, s6, s{sHEAD}\ns_add_u32 s6, s6, 112\ns_lshl_b32 s79, s6, 10')
    w('v_mov_b32 v4, 0x358637bd')
    for rt in range(4):
        o = OT[rt]; n = ON[rt]
        w(f'v_rcp_f32 v{o+9}, v{o+9}\nv_rcp_f32 v{n+9}, v{n+9}')
        w(f'v_fma_f32 v{o+8}, v{o+8}, v{o+9}, v4\nv_fma_f32 v{o+8}, v{n+8}, v{n+9}, v{o+8}\nv_rcp_f32 v{o+8}, v{o+8}')
        w(f'v_mul_f32 v{o+9}, v{o+9}, v{o+8}\nv_mul_f32 v{n+9}, v{n+9}, v{o+8}')
        for j in range(8): w(f'v_mul_f32 v{o+j}, v{o+j}, v{o+9}')
        for j in range(8): w(f'v_fma_f32 v{o+j}, v{n+j}, v{n+9}, v{o+j}')
        for j in range(0, 8, 2): w(f'v_cvt_pk_bf16_f32 v{o+12+j//2}, v{o+j}, v{o+j+1}')
        ost = w(f'buffer_store_dwordx4 {vr(o+12,4)}, v3, {srd(SWS)}, s79 offen sc1')
        if rt < 3: w(f's_add_u32 s79, s79, {144*1024}')
    stamp(w, 6)
    post(w, 248, 249, '0', [ost])
    stamp(w, 7)
    c2 = cwpieces2()
    if cfg.skip:
        extra = {cfg.ystg: stg, 4: cwpieces(0) + cwpieces(1), 5: cwpieces(2), 7: cwpieces(3), 9: c2}
        where = pack(s, X, work, [1, 2, 3, 4, 5, 6, 7, 9, 10], tok, extra, [c2[-1][-1]], {}, {7: cfg.f7 + 1, 9: cfg.f9}, -3, None, (), {7: [7, 8]})
    else:
        extra = {cfg.ystg: stg, 4: cwpieces(0), 5: cwpieces(1), 6: cwpieces(2), 8: cwpieces(3) + c2[:4], 9: c2[4:]}
        where = pack(s, X, work, list(range(1, 11)), tok, extra, [c2[-1][-1]], {}, {7: cfg.f7, 9: cfg.f9}, -3)
    assert where[id(lasts)] < 4
    s('s_branch L_BHY')
    return s

BACC = [8, 24, 40, 56]; BW = 232; vBX = 248
def red_write(s, acc, t):
    s(f'v_and_b32 v4, 31, v1\nv_lshrrev_b32 v5, 5, v1\nv_and_b32 v6, 7, v1\nv_xor_b32 v6, v5, v6\nv_lshlrev_b32 v6, 4, v6\nv_lshl_add_u32 v6, v4, 8, v6\nv_add_u32 v{t}, s{sLB}, v6')
    for k in range(1, 4): s(f'v_xor_b32 v{t+k}, {k<<5}, v{t}')
    for nt in range(2):
        for st in range(2):
            for q in range(4):
                if q == 3 and nt == 1 and st == 1: s('s_waitcnt lgkmcnt(8)')
                s(f'ds_write_b128 v{t+q}, {vr(acc[2*nt+st]+4*q,4)} offset:{st*8192 + nt*128}')
    s('s_waitcnt vmcnt(0)')

def phaseB_body(kind):
    s = S(); lab = f'L_B{kind}'
    C = kind == 'C'; n = 20 if C else 16
    order = CORDER if C else list(range(16))
    if C:
        acc = [160, 176, 192, 208]; bw = 224; vl, v16, vd, vtr, vxo, wr = 240, 242, 243, 244, 245, 96
        hreg = lambda i: 8*i if i < 12 else 8*(i - 12)
    else:
        acc = BACC; bw = BW; vl, v16, vd, vtr, vxo, wr = 1, 3, vW2, 6, 7, WRB
        hreg = lambda i: 136 + 8*i if i < 12 else WRB + 8*(i - 12)
    hoff = [0]
    def hload(i):
        rel = order[i]
        if rel // 4 != hoff[0]:
            d = (rel // 4 - hoff[0]) * 4096; hoff[0] = rel // 4
            op = 's_add_u32' if d > 0 else 's_sub_u32'
            s(f'{op} s{sH0}, s{sH0}, {abs(d)}\n{op} s{sH1}, s{sH1}, {abs(d)}')
        for c in range(2):
            s(f'buffer_load_dwordx4 {vr(hreg(i)+4*c,4)}, v{v16}, {srd(SWS)}, s{sH0+c} offen offset:{(rel%4)*1024}' + (' sc1' if not cfg.nosc else ''))
    wt = {}; rt_ = {}
    def rd(i, f):
        va, o0 = (vtr, (i % 8)*2048) if i < 16 else (241, (i - 16)*2048)
        for c in range(2):
            s(f'ds_read_b64_tr_b16 {vr(f+4*c,2)}, v{va} offset:{o0 + c*1024}', needs=[wt[i]] if i in wt else [])
            rt_[i] = s(f'ds_read_b64_tr_b16 {vr(f+4*c+2,2)}, v{va} offset:{o0 + c*1024 + 512}')
    def wdma(i):
        if cfg.now: return
        for p in ownpieces([i], sLB, [(i % 8)*2048], vd, SD if C else SWH, order):
            if i - 8 in rt_: p[-1].needs = [rt_[i-8]]
            s.l.extend(p); wt[i] = p[-1]
    def preread():
        for i in range(8):
            rd(i, wr + 8*i)
            if i % 2 == 1 and i >= 3: s('s_waitcnt lgkmcnt(8)')
    def step(i):
        if 8 <= i + 1 < n: rd(i + 1, bw + 8*((i + 1) % 2))
        f = wr + 8*i if i < 8 else bw + 8*(i % 2)
        for nt in range(2):
            for st in range(2):
                a = acc[2*nt+st]
                if cfg.nomf: s(f'v_xor_b32 v{a}, v{f+4*nt}, v{hreg(i)+4*st}'); continue
                s(f'{MF} {vr(a,16)}, {vr(f+4*nt,4)}, {vr(hreg(i)+4*st,4)}, ' + ('0' if i == 0 else vr(a,16)))
        if cfg.cdbg and i in (0, 3, 7, 11, 15): stamp(s, (0, 3, 7, 11, 15).index(i))
    def xload(t):
        s(f'v_lshrrev_b32 v{t}, 3, v{vl}\nv_and_b32 v{vxo}, 7, v{vl}\nv_lshlrev_b32 v{vxo}, 4, v{vxo}\nv_lshl_add_u32 v{vxo}, v{t}, 10, v{vxo}')
        s(f'buffer_load_dwordx4 {vr(vBX,4)}, v{vxo}, {srd(SX)}, s{sXO} offen')
    if C:
        s('s_setprio 3')
        scheck(s, lab + '_e', SP, 2, True)
        for i in range(cfg.pre): hload(i)
        s(f'v_lshrrev_b32 v{vl}, 4, v{v16}')
        b_traddr(s, 241, None, vd, vl)
        s(f'v_add_u32 v{vtr}, s{sLB}, v241\ns_lshl_b32 s6, s{sW}, 13\nv_add_u32 v241, s6, v241')
        preread()
        s(f'v_lshlrev_b32 v{vd}, 4, v{vd}\nv_lshrrev_b32 v{vxo}, 2, v{vl}\nv_lshl_add_u32 v{vd}, v{vxo}, 10, v{vd}')
        s(f's_sub_u32 s4, s4, {FE-FH}\ns_subb_u32 s5, s5, 0')
        s(f's_waitcnt vmcnt({2*cfg.pre})')
        post(s, vNON, vFA)
        stamp(s, 8)
        s('s_setprio 0')
        LA = cfg.la
        for i in range(cfg.pre, LA): hload(i)
        for i in range(8):
            step(i)
            if i + LA < 12: hload(i + LA)
            wdma(8 + i)
            if i == cfg.sl: sload(s, SP, 2, True)
        scheck(s, lab + '_f', SP, 2, True)
        stamp(s, 9)
        nl = 12
        for k in range(cfg.lb): hload(nl); nl += 1
        for i in range(8, n):
            step(i)
            for k in range(2):
                if nl < 20: hload(nl); nl += 1
            if i == 12: xload(252)
        stamp(s, 10)
        s(f'v_mov_b32 v1, v{vl}\nv_mov_b32 v7, v{vxo}')
        red_write(s, acc, 72)
        s('s_branch L_red')
        return s
    s('s_setprio 0')
    s('v_lshlrev_b32 v3, 4, v1')
    b_traddr(s, 6, sLB, 7)
    if kind == 'HX':
        for i in range(8): wdma(i)
        preread()
    for i in range(8, 16): wdma(i)
    xload(8)
    s(f's_lshr_b32 s6, s{sSB}, 1\ns_lshl_b32 s6, s6, 7\ns_and_b32 s78, s{sW}, 1\ns_lshl_b32 s7, s78, 6\ns_add_u32 s6, s6, s7\ns_add_u32 s6, s6, {FO}')
    s(f's_lshl_b32 s7, s{sSB}, 8\ns_lshl_b32 s78, s78, 4\ns_add_u32 s7, s7, s78\ns_add_u32 s7, s7, {FH}')
    s(f's_cmp_ge_u32 s{sW}, 6\ns_cselect_b32 s6, s6, s7')
    sbase(s, 6)
    stamp(s, 8)
    s('s_waitcnt lgkmcnt(0)')
    s(f's_cmp_ge_u32 s{sW}, 6\ns_cbranch_scc1 {lab}_o')
    sload(s, SP, 4, True); scheck(s, lab + '_ph', SP, 4, True)
    s(f's_branch {lab}_go')
    s(f'{lab}_o:')
    sload(s, SP, 16, False); scheck(s, lab + '_po', SP, 16, False)
    s(f'{lab}_go:')
    stamp(s, 9)
    nl = 0
    for k in range(cfg.lh): hload(nl); nl += 1
    for i in range(n):
        step(i)
        for k in range(2):
            if nl < n and (nl < 12 or nl - 12 <= i): hload(nl); nl += 1
    stamp(s, 10)
    red_write(s, acc, 72)
    if kind != 'HX': s('s_branch L_red')
    return s

def phaseB_tail():
    s = S()
    s(f'v_lshrrev_b32 v4, 3, v1\nv_and_b32 v5, 7, v1\nv_lshlrev_b32 v5, 1, v5\nv_xor_b32 v5, v4, v5\nv_lshlrev_b32 v5, 4, v5\nv_lshl_add_u32 v5, v4, 8, v5\ns_lshl_b32 s7, s{sW}, 11\nv_add_u32 v76, s7, v5')
    s('v_xor_b32 v77, 16, v76')
    s('v_add_u32 v78, 0x10000, v76\nv_add_u32 v79, 0x10000, v77\nv_add_u32 v80, 0x20000, v76\nv_add_u32 v81, 0x20000, v77')
    R = 84
    for j in range(4):
        s(f'v_lshlrev_b32 v{R+64+2*j}, 16, v{vBX+j}\nv_and_b32 v{R+65+2*j}, 0xffff0000, v{vBX+j}')
    s('s_waitcnt lgkmcnt(0)\ns_barrier')
    stamp(s, 11)
    for p in range(8):
        g, o = [(1, 0), (1, 16384), (1, 32768), (1, 49152), (0, 32768), (0, 49152), (2, 0), (2, 16384)][p]
        if p == 7: s('s_waitcnt lgkmcnt(8)')
        s(f'ds_read_b128 {vr(R+8*p,4)}, v{76+2*g} offset:{o}\nds_read_b128 {vr(R+8*p+4,4)}, v{77+2*g} offset:{o}')
    for p in range(1, 6):
        for j in range(8): s(f'v_add_f32 v{R+j}, v{R+j}, v{R+8*p+j}')
    for j in range(8): s(f'v_mul_f32 v{R+8+j}, 0xbfb8aa3b, v{R+j}')
    for j in range(8): s(f'v_exp_f32 v{R+8+j}, v{R+8+j}')
    for j in range(8): s(f'v_add_f32 v{R+48+j}, v{R+48+j}, v{R+56+j}')
    for j in range(8): s(f'v_add_f32 v{R+8+j}, 1.0, v{R+8+j}')
    for j in range(8): s(f'v_rcp_f32 v{R+8+j}, v{R+8+j}')
    for j in range(8): s(f'v_mul_f32 v{R+j}, v{R+j}, v{R+48+j}')
    for j in range(8): s(f'v_fma_f32 v{R+j}, v{R+j}, v{R+8+j}, v{R+64+j}')
    for j in range(4): s(f'v_cvt_pk_bf16_f32 v{R+24+j}, v{R+2*j}, v{R+2*j+1}')
    s(f'buffer_store_dwordx4 {vr(R+24,4)}, v7, {srd(SOUT)}, s{sXO} offen' + ['', ' sc1', ' nt', ' sc0 sc1', ' sc1 nt'][cfg.ost])
    return s

def fin():
    s = S()
    if cfg.stamps:
        s('s_waitcnt vmcnt(0)')
        stamp(s, 12)
        if cfg.pb >= 0:
            s(f's_cmp_lg_u32 s{sW}, {cfg.pw}\ns_cbranch_scc1 L_nospin\ns_cmp_lg_u32 s2, {cfg.pwg}\ns_cbranch_scc1 L_nospin')
            s(f's_sub_u32 s6, s{sTS+cfg.pb}, s{sTS+cfg.pa}\ns_lshl_b32 s6, s6, 3\ns_min_u32 s6, s6, 40000\ns_add_u32 s6, s6, s{sTS+12}')
            s('L_spin:\ns_memrealtime s[76:77]\ns_waitcnt lgkmcnt(0)\ns_cmp_lt_u32 s76, s6\ns_cbranch_scc1 L_spin\nL_nospin:')
        s(f's_lshl_b32 s6, s2, 3\ns_add_u32 s6, s6, s{sW}\ns_lshl_b32 s6, s6, 6\ns_add_u32 s6, s6, {TS_OFF}\nv_mov_b32 v8, s6')
        s('s_memrealtime s[76:77]\ns_waitcnt lgkmcnt(0)\ns_mov_b32 s99, s76')
        for q in range(4):
            for r in range(4): s(f'v_mov_b32 v{12+r}, s{sTS+4*q+r}')
            s('s_mov_b64 exec, 1')
            s(f'buffer_store_dwordx4 v[12:15], v8, {srd(SWS)}, 0 offen offset:{q*16}')
            s('s_mov_b64 exec, -1\ns_nop 2')
    return s

Cfg.w2t = 1; Cfg.w2at = 0; Cfg.ktry = 0; Cfg.xl = 1; Cfg.fk = 1.0; Cfg.skip = 1; Cfg.f7 = 0.65; Cfg.nomf = 0; Cfg.nosc = 0; Cfg.now = 0; Cfg.slp = 2; Cfg.la = 4; Cfg.lb = 2; Cfg.lh = 4; Cfg.ost = 2; Cfg.pwg = 72; Cfg.cdbg = 0; Cfg.sl = 6; Cfg.kvf = 8; Cfg.ystg = 1; Cfg.qat = 7; Cfg.f9 = 0.8

def build():
    out = []
    def put(lab, streams, name):
        l = []
        for x in streams: l += x.l
        if lab: out.append(lab + ':')
        out.extend('    ' + i.text if i.kind != 'label' else i.text for i in finalize(l, name))
    put(None, [prologue()], 'pro')
    if cfg.bonly:
        b = S()
        b('s_waitcnt vmcnt(0)')
        b(f'v_lshrrev_b32 v4, 2, v1\nv_and_b32 v5, 3, v1\nv_lshlrev_b32 v5, 4, v5\nv_lshl_add_u32 v252, v4, 10, v5\nv_lshlrev_b32 v242, 4, v1\nv_mov_b32 v248, 0\ns_lshl_b32 s6, s{sSB}, 8\ns_add_u32 s6, s6, {FE}')
        sbase(b, 6)
        b(f's_cmp_lt_u32 s{sW}, 6\ns_cselect_b32 s{SO}, s{SD}, s{SO}\ns_cselect_b32 s{SO+1}, s{SD+1}, s{SO+1}\ns_cselect_b32 s{SO+2}, s{SD+2}, s{SO+2}')
        b(f's_cmp_ge_u32 s{sW}, 4\ns_cbranch_scc1 L_bh')
        b(f'v_mov_b32 v252, {WS_BYTES}')
        b('s_barrier'); stamp(b, 7); b('s_branch L_BC\nL_bh:')
        b('s_barrier'); stamp(b, 7); b('s_branch L_BHY' if cfg.bonly == 1 else 's_branch L_BHX')
        put('L_bonly', [b], 'bo')
    put('L_compX', [compute('X')], 'cX')
    put('L_compY', [compute('Y')], 'cY')
    put('L_BC', [phaseB_body('C')], 'BC')
    hs = S(); hs(f's_cmp_eq_u32 s{sTY}, 0\ns_cbranch_scc1 L_helpX')
    put('L_helper', [hs, helperY()], 'hY')
    put('L_BHY', [phaseB_body('HY')], 'BHY')
    lx = S(); lx('L_BHX:')
    put('L_helpX', [helperX(), lx, phaseB_body('HX')], 'hX')
    put('L_red', [phaseB_tail()], 'red')
    put('L_fin', [fin()], 'fin')
    hdr = open('cdna_kernels/' + KN[:-7] + '.s.ref').read().split('; Override')[0]
    txt = hdr + '; @launch grid=(256,1,1) block=(512,1,1) lds=163840\n'
    txt += f'.amdgcn_target "amdgcn-amd-amdhsa--gfx950"\n.text\n.globl {KN}\n.p2align 8\n.type {KN},@function\n{KN}:\n'
    txt += '\n'.join(out) + '\nL_end:\n    s_endpgm\n'
    txt += f'''.section .rodata,"a"
.p2align 6
.amdhsa_kernel {KN}
  .amdhsa_next_free_vgpr 256
  .amdhsa_next_free_sgpr 102
  .amdhsa_accum_offset 256
  .amdhsa_group_segment_fixed_size 0
  .amdhsa_kernarg_size 88
  .amdhsa_user_sgpr_count 2
  .amdhsa_user_sgpr_kernarg_segment_ptr 1
  .amdhsa_system_sgpr_workgroup_id_x 1
.end_amdhsa_kernel
'''
    return txt

if __name__ == '__main__':
    for a in sys.argv[2:]:
        k, v = a.split('='); setattr(cfg, k, float(v) if '.' in v else int(v))
    open(sys.argv[1], 'w').write(build())
```

```python
import sys
from fw import S, I, finalize
KN = 'recurrent_scan__linear_kernel_hedgehog__glu_gated_reglu__prompt_kernel'

class Cfg:
    stamps = 0; hdbg = 0; rt = 0; span = 0
    pa = -1; pb = -1; pw = 0
    mx512 = 1
    prioC = 1; prioH = 0
    tp = 2; pro = 0
    bud = 1000; quiet = 450
    mid2 = 1
    pre = 3
    bonly = 0
cfg = Cfg()

SLOT = [131072, 0, 32768]
KB = 65536; VB = 65536; STDB = 129024; RSB = 130048
KV_OFF = 0x900000
Q_OFF = 0x940000
F_OFF = 0xB40000
FKV, FH, FE, FO, FQ = F_OFF, F_OFF + 0x1000, F_OFF + 0x3000, F_OFF + 0x5000, F_OFF + 0x6000
TS_OFF = 0xB50000
WS_BYTES = 0xC00000
SPIN = 1 << 20
SX, SD, SO, SWS, SOUT, SQKV, SG, SU, SDBG, SPHI = 8, 12, 16, 20, 24, 28, 32, 36, 40, 44
SWH = SO
SP = 28
def srd(b): return f's[{b}:{b+3}]'
sW, sRB, sJ, sTY, sSB, sNB = 48, 49, 50, 51, 52, 53
sA0, sM0, sLBc, sC0, sL4, sL2 = 54, 56, 57, 58, 59, 60
sNON = 62
sT, sT2, sHEAD = 64, 65, 67
sHA, sHM, sHC, sW4 = 68, 69, 70, 71
sQ, sONES, sKV = 72, 74, 78
sWB, sLB, sH0, sH1, sXO, sWBc = 80, 81, 82, 83, 84, 85
sTS = 86
def vr(b, n): return f'v[{b}:{b+n-1}]'
MF = 'v_mfma_f32_32x32x16_bf16'

def stamp(s, idx, force=False):
    if not cfg.stamps: return
    if (cfg.hdbg or cfg.span) and idx != 12 and not force: return
    s('s_memrealtime s[76:77]' if cfg.rt else 's_memtime s[76:77]'); s('s_waitcnt lgkmcnt(0)'); s(f's_mov_b32 s{sTS+idx}, s76')

def build_srd(s, b, lo, nbytes):
    s(f's_mov_b32 s{b}, s{lo}\ns_mov_b32 s{b+1}, s{lo+1}\ns_mov_b32 s{b+2}, {nbytes}\ns_mov_b32 s{b+3}, 0x00020000')

BSTART = [32, 52, 72, 92, 0, 16, 112, 128]
CORDER = [0, 1, 2, 3, 12, 13, 14, 15, 8, 9, 10, 11, 4, 5, 6, 7, 16, 17, 18, 19]
NX0 = 8
def xpieces():
    a, b = (96, 97) if not cfg.stamps else (62, 63)
    r = []
    for c in range(4):
        for g in range(8):
            t = 66 if c*8 + g >= NX0 else 7
            p = S()
            p(f's_add_u32 m0, s{b}, {c*8192+g*1024}\ns_add_u32 s{t}, s{a}, {g*4096+c*256}')
            p(f'buffer_load_dwordx4 v{10+(g&3)}, {srd(SX)}, s{t} offen lds')
            r.append(p.l)
    return r

def merge(w, main, side, every):
    side = list(side)
    for n, i in enumerate(main.l):
        w.l.append(i)
        if side and n % every == every - 1: w.l.extend(side.pop(0))
    for x in side: w.l.extend(x)

def piece(lds_s, lds_o, g_s, g_o, voff, sr):
    p = S()
    p(f's_add_u32 m0, s{lds_s}, {lds_o}\ns_add_u32 s{sT}, s{g_s}, {g_o}')
    p(f'buffer_load_dwordx4 v{voff}, {srd(sr)}, s{sT} offen lds')
    return p.l

def sbase(s, soff): s(f's_add_u32 s4, s{SWS}, s{soff}\ns_addc_u32 s5, s{SWS+1}, 0')
def sload(s, z, n, two):
    sfx = {1: '', 2: 'x2', 4: 'x4', 8: 'x8', 16: 'x16'}[n]
    rg = lambda b: f's{b}' if n == 1 else f's[{b}:{b+n-1}]'
    s(f's_load_dword{sfx} {rg(z)}, s[4:5], 0 glc')
    if two: s(f's_load_dword{sfx} {rg(z+n)}, s[4:5], 128 glc')
def scheck(s, label, z, n, two):
    tot = n * (2 if two else 1)
    def test():
        s('s_waitcnt lgkmcnt(0)')
        if tot == 1: s(f's_cmp_eq_u32 s{z}, s{sNON}'); return
        s(f's_xor_b64 s[6:7], s[{z}:{z+1}], s[{sNON}:{sNON+1}]')
        for k in range(1, tot // 2):
            s(f's_xor_b64 s[76:77], s[{z+2*k}:{z+2*k+1}], s[{sNON}:{sNON+1}]\ns_or_b64 s[6:7], s[6:7], s[76:77]')
        s('s_cmp_eq_u64 s[6:7], 0')
    test()
    if cfg.bonly: return
    s(f's_cbranch_scc1 {label}_x')
    s('s_mov_b32 s75, 0')
    s(f'{label}:')
    if cfg.slp: s(f's_sleep {cfg.slp}')
    sload(s, z, n, two)
    s(f's_add_u32 s75, s75, 1\ns_cmp_gt_u32 s75, {SPIN}\ns_cbranch_scc1 {label}_y')
    test()
    s(f's_cbranch_scc0 {label}')
    s(f'{label}_y:')
    s('s_waitcnt lgkmcnt(0)')
    s(f'{label}_x:')
def post(s, vdat, vaddr, soff='0', needs=None):
    s('s_mov_b64 exec, 1', needs=needs)
    s(f'buffer_store_dword v{vdat}, v{vaddr}, {srd(SWS)}, {soff} offen sc1')
    s('s_mov_b64 exec, -1')

def prologue():
    s = S()
    s('s_cmp_ge_u32 s2, 256\ns_cbranch_scc1 L_end')
    s('s_load_dwordx16 s[64:79], s[0:1], 0\ns_load_dwordx4 s[80:83], s[0:1], 64\ns_load_dwordx2 s[84:85], s[0:1], 80')
    if cfg.stamps: s('s_memtime s[86:87]\ns_memrealtime s[88:89]')
    s('v_lshrrev_b32 v2, 6, v0\nv_and_b32 v1, 63, v0')
    s(f'v_readfirstlane_b32 s{sW}, v2')
    s('s_and_b32 s3, s2, 7\ns_lshr_b32 s4, s2, 3')
    s(f's_cmp_lg_u32 s{sW}, 7\ns_cbranch_scc1 L_nocode')
    s('s_getpc_b64 s[6:7]')
    s('L_pc:')
    s('s_and_b32 s5, s4, 7\ns_lshl_b32 s5, s5, 13\nv_lshl_add_u32 v3, v1, 7, s5\nv_min_u32 v3, L_end-L_pc, v3')
    s('global_load_dword v9, v3, s[6:7]', tag='raw')
    s('L_nocode:')
    s(f's_and_b32 s5, s3, 1\ns_lshl_b32 s5, s5, 3\ns_and_b32 s6, s4, 7\ns_add_u32 s{sRB}, s5, s6')
    s(f's_lshl_b32 s6, s{sW}, 15\ns_lshl_b32 s5, s{sRB}, 17\ns_add_u32 s5, s5, s6')
    s('v_lshrrev_b32 v3, 4, v1\nv_and_b32 v4, 15, v1\nv_xor_b32 v4, v3, v4\nv_lshlrev_b32 v4, 4, v4\nv_lshl_add_u32 v10, v3, 10, v4')
    s('v_xor_b32 v11, 64, v10\nv_xor_b32 v12, 128, v10\nv_xor_b32 v13, 192, v10')
    s('s_waitcnt lgkmcnt(0)')
    if cfg.stamps:
        s('s_mov_b32 s101, s86\ns_mov_b32 s100, s88')
        for q in range(13): s(f's_mov_b32 s{86+q}, s101')
    build_srd(s, SX, 64, 2097152)
    s('s_mov_b32 s96, s5\ns_mov_b32 s97, s6' if not cfg.stamps else 's_mov_b32 s62, s5\ns_mov_b32 s63, s6')
    s(f's_cmp_ge_u32 s{sW}, 4\ns_cbranch_scc1 L_nox')
    for p in xpieces()[:NX0]: s.l.extend(p)
    s('L_nox:')
    build_srd(s, SQKV, 66, 1572864); build_srd(s, SG, 74, 1835008); build_srd(s, SU, 76, 1835008)
    s(f's_lshr_b32 s5, s4, 3\ns_lshr_b32 s{sTY}, s5, 1\ns_and_b32 s5, s5, 1\ns_and_b32 s6, s3, 6\ns_add_u32 s{sJ}, s6, s5')
    if cfg.mx512:
        if cfg.nbm:
            s(f's_lshr_b32 s5, s3, 1\ns_lshl_b32 s5, s5, 3\ns_and_b32 s6, s4, 7\ns_add_u32 s{sSB}, s5, s6')
            s(f's_and_b32 s5, s3, 1\ns_lshl_b32 s5, s5, 2\ns_lshr_b32 s6, s4, 3\ns_add_u32 s{sNB}, s5, s6')
        else:
            s(f's_lshr_b32 s5, s3, 1\ns_lshl_b32 s5, s5, 3\ns_lshr_b32 s6, s4, 2\ns_add_u32 s{sSB}, s5, s6')
            s(f's_and_b32 s5, s3, 1\ns_lshl_b32 s5, s5, 2\ns_and_b32 s6, s4, 3\ns_add_u32 s{sNB}, s5, s6')
    else:
        s(f's_lshl_b32 s5, s3, 2\ns_lshr_b32 s6, s4, 3\ns_add_u32 s{sSB}, s5, s6\ns_and_b32 s{sNB}, s4, 7')
    build_srd(s, SPHI, 68, 16384); build_srd(s, SO, 70, 524288); build_srd(s, SD, 78, 1835008)
    build_srd(s, SOUT, 80, 2097152); build_srd(s, SDBG, 82, 256); build_srd(s, SWS, 84, WS_BYTES)
    s(f's_and_b32 s{sW4}, s{sW}, 3')
    s(f's_mul_i32 s6, s{sJ}, 160\ns_add_u32 s6, s6, 512\ns_and_b32 s7, s{sJ}, 1')
    s('s_lshl_b32 s3, s7, 5\ns_add_u32 s3, s3, s6')
    s('s_xor_b32 s7, s7, 1\ns_lshl_b32 s4, s7, 7\ns_add_u32 s4, s4, s6')
    s(f's_add_u32 s5, s3, 64\ns_lshl_b32 s6, s{sJ}, 6\ns_cmp_eq_u32 s{sTY}, 0\ns_cselect_b32 s5, s6, s5')
    s(f's_mov_b32 s6, {BSTART[0]}')
    for w in range(1, 8): s(f's_cmp_eq_u32 s{sW}, {w}\ns_cselect_b32 s6, {BSTART[w]}, s6')
    s(f's_add_u32 s{sLB}, s{sW}, 4\ns_sub_u32 s7, s{sW}, 2\ns_cmp_ge_u32 s{sW}, 4\ns_cselect_b32 s{sLB}, s7, s{sLB}\ns_add_u32 s7, s{sW}, 2\ns_cmp_ge_u32 s{sW}, 6\ns_cselect_b32 s{sLB}, s7, s{sLB}\ns_cselect_b32 s7, 112, 0\ns_lshl_b32 s{sLB}, s{sLB}, 14')
    s(f's_sub_u32 s7, s6, s7\ns_lshl_b32 s{sWB}, s7, 14\ns_lshl_b32 s7, s{sNB}, 7\ns_add_u32 s{sWB}, s{sWB}, s7')
    s(f's_mul_i32 s{sH0}, s{sSB}, 288\ns_add_u32 s{sH0}, s{sH0}, s6\ns_lshl_b32 s{sH0}, s{sH0}, 10\ns_add_u32 s{sH1}, s{sH0}, {144*1024}')
    s(f's_lshl_b32 s6, s{sSB}, 3\ns_add_u32 s6, s6, s{sW}\ns_lshl_b32 s6, s6, 13\ns_add_u32 s{sXO}, s6, s7')
    if cfg.bonly: s('s_branch L_bonly')
    s(f's_cmp_ge_u32 s{sW}, 4\ns_cbranch_scc1 L_helper')
    s(f's_cmp_eq_u32 s{sTY}, 0\ns_cbranch_scc0 L_compY\ns_branch L_compX')
    return s

XN = 0; ACC = [128, 144, 160, 176]; WF = 192; NRING = 8; PK = 224
vTRL, vTRH, vL16, vKW, vVW, vVW2, vXA, vT = 240, 241, 242, 243, 244, 245, 246, 254
vC, vR2, vNON, vFA, vZ = 246, 247, 248, 252, 251

def compute(ty):
    X = ty == 'X'
    s = S()
    s(f's_setprio {cfg.prioC}')
    s(f'v_lshlrev_b32 v{vL16}, 4, v1')
    s('v_lshrrev_b32 v2, 5, v1\nv_bfe_u32 v3, v1, 2, 2\nv_lshl_add_u32 v4, v2, 3, v3')
    s('v_bfe_u32 v3, v1, 4, 1\nv_lshlrev_b32 v5, 5, v3\nv_and_b32 v3, 3, v1\nv_lshl_add_u32 v5, v3, 3, v5')
    if not X: s(f'v_lshl_add_u32 v{vKW}, v4, 6, v5')
    s(f'v_lshl_add_u32 v{vTRL}, v4, 7, v5\nv_bfe_u32 v4, v1, 3, 1\nv_lshl_add_u32 v{vTRL}, v4, 6, v{vTRL}')
    s(f'v_add_u32 v{vTRH}, 0x20000, v{vTRL}')
    s('v_and_b32 v4, 15, v1\nv_xor_b32 v4, v2, v4\nv_lshlrev_b32 v4, 4, v4\nv_lshl_add_u32 v4, v3, 8, v4')
    s(f'v_bfe_u32 v5, v1, 2, 3\nv_lshl_add_u32 v4, v5, 10, v4\ns_lshl_b32 s6, s{sW}, 15\nv_add_u32 v{vXA}, s6, v4')
    for u in range(1, 8): s(f'v_xor_b32 v{vXA+u}, {u<<5}, v{vXA}')
    s('v_and_b32 v3, 31, v1')
    if X:
        s(f's_lshl_b32 s6, s{sW}, 10\ns_add_u32 s6, s6, {KB}\nv_lshlrev_b32 v4, 3, v1\nv_add_u32 v{vKW}, s6, v4')
        s(f'v_bfe_u32 v4, v1, 2, 2\nv_xor_b32 v4, v2, v4\nv_lshlrev_b32 v4, 3, v4\nv_lshl_add_u32 v4, v3, 5, v4\nv_add_u32 v{vVW}, s6, v4')
        s(f'v_xor_b32 v{vVW2}, 16, v{vVW}')
        s(f's_lshl_b32 s6, s{sRB}, 3\ns_add_u32 s6, s6, s{sJ}\ns_lshl_b32 s6, s6, 4\ns_add_u32 s6, s6, s{sW}\ns_lshl_b32 s6, s6, 10\ns_add_u32 s{sQ}, s6, {Q_OFF}')
    E = PK
    s('v_bfe_u32 v4, v1, 3, 1\nv_and_b32 v5, 3, v1\nv_lshl_add_u32 v4, v4, 2, v5')
    s('v_and_b32 v5, 1, v4\nv_lshlrev_b32 v5, 4, v5\nv_mov_b32 v6, 0x3f80\nv_lshlrev_b32 v6, v5, v6')
    s('v_bfe_u32 v5, v1, 2, 1\nv_cmp_eq_u32 vcc, v5, v2\nv_cndmask_b32 v6, 0, v6, vcc')
    s('v_lshrrev_b32 v4, 1, v4\nv_bfe_u32 v5, v1, 4, 1\nv_lshl_add_u32 v4, v5, 2, v4')
    for r in range(8): s(f'v_cmp_eq_u32 vcc, {r}, v4\nv_cndmask_b32 v{E+r}, 0, v6, vcc')
    s(f's_lshl_b32 s6, s{sRB}, 2\ns_add_u32 s6, s6, s{sW}\ns_mul_i32 s6, s6, {144*1024}')
    s(f's_lshl_b32 s7, s3, 6\ns_add_u32 s{sHA}, s6, s7\ns_lshl_b32 s7, s4, 6\ns_add_u32 s{sHM}, s6, s7\ns_lshl_b32 s7, s5, 6\ns_add_u32 s{sHC}, s6, s7')
    s(f's_mov_b32 s{sONES}, 0x3f803f80')
    setup = s; s = S()
    merge(s, setup, xpieces()[NX0:], 3)
    s('s_barrier')
    stamp(s, 0)
    S1, S2 = vT, 232
    def sumdot(tt):
        for r in range(4):
            z = tt == 0 and r < 2
            for a, b in ((S1 + (r & 1), f's{sONES}'), (S2 + (r & 1), f'v{XN+4*tt+r}')):
                s(f'v_dot2_f32_bf16 v{a}, v{XN+4*tt+r}, {b}, ' + ('0' if z else f'v{a}'))
    for c in range(4):
        s(f's_waitcnt vmcnt({8*(3-c)})')
        if c == 3: stamp(s, 1)
        for u in range(8): s(f'ds_read_b128 {vr(XN+32*c+4*u,4)}, v{vXA+u} offset:{c*8192}')
        for u in range(8): sumdot(8*c + u)
    s('s_barrier')
    s(f'v_add_f32 v{S1}, v{S1}, v{S1+1}\nv_add_f32 v{S2}, v{S2}, v{S2+1}')
    s(f'v_permlane32_swap_b32 v{S1}, v{S2}\nv_add_f32 v{S1}, v{S1}, v{S2}\nv_mul_f32 v{S1}, 0x3b000000, v{S1}\nv_mov_b32 v{S2}, v{S1}\nv_permlane32_swap_b32 v{S1}, v{S2}')
    CM = ACC[3]
    s(f'v_cvt_pk_bf16_f32 v{CM}, -v{S1}, -v{S1}\nv_and_b32 v{CM}, 0xffff0000, v{CM}')
    for r in range(1, 16): s(f'v_mov_b32 v{CM+r}, v{CM}')
    stamp(s, 2)
    side = S()
    side(f'v_mov_b32 v{vZ}, 0')
    side(f'v_fma_f32 v{S2}, -v{S1}, v{S1}, v{S2}\nv_max_f32 v{S2}, 0, v{S2}')
    side(f'v_cvt_pk_bf16_f32 v{S2}, v{S2}, v{S2}\nv_and_b32 v{S2}, 0xffff0000, v{S2}\nv_add_f32 v{S2}, 0x3727c5ac, v{S2}')
    side(f'v_cvt_pk_bf16_f32 v{S2}, v{S2}, v{S2}\nv_and_b32 v{S2}, 0xffff0000, v{S2}\nv_sqrt_f32 v{S2}, v{S2}')
    if X: side(f'v_lshrrev_b32 v{vC}, 2, v{vL16}\nv_and_b32 v{vC}, 0x7c, v{vC}\ns_lshl_b32 s6, s{sW}, 7\nv_add_u32 v250, s6, v{vC}\nv_add_u32 v252, {RSB}, v250')
    side(f'v_cvt_pk_bf16_f32 v234, v{S2}, v{S2}\nv_mov_b32 v235, v234\nv_and_b32 v{S2}, 0xffff0000, v234\nv_rcp_f32 v{S2}, v{S2}')
    if X:
        side(f'v_lshlrev_b32 v253, 1, v250\nv_add_u32 v253, {STDB}, v253\nds_write_b64 v253, v[234:235]\nds_write_b32 v252, v{S2}')
        side(f'v_mul_f32 v{vC}, 0x3fb8aa3b, v{S2}')
    else: side('s_nop 0')
    side(f'v_mul_f32 v{vR2}, v{S2}, v{S2}')
    side(f'v_xor_b32 v254, 64, v{vTRL}\nv_xor_b32 v255, 64, v{vTRH}')
    side = side.l
    cv = []
    for p in range(18):
        if p < 16:
            D = ACC[(p + 2) % 3]
            s(f'{MF} {vr(D,16)}, {vr(E,4)}, {vr(XN+8*p,4)}, {vr(CM,16)}')
        for x in cv[:4]: s(x)
        if side: s.l.append(side.pop(0))
        if p < 16: s(f'{MF} {vr(D,16)}, {vr(E+4,4)}, {vr(XN+8*p+4,4)}, {vr(D,16)}')
        for x in cv[4:]: s(x)
        for _ in range(2):
            if side: s.l.append(side.pop(0))
        q = p - 1
        cv = [f'v_cvt_pk_bf16_f32 v{XN+8*q+j}, v{ACC[(q+2)%3]+2*j}, v{ACC[(q+2)%3]+2*j+1}' for j in range(8)] if 0 <= q < 16 else []
        if p == 14: s('s_waitcnt lgkmcnt(0)\ns_barrier')
        if p == 15: pre_reads_at = len(s.l)
    assert not side
    stamp(s, 3)
    mf = []
    for st in range(10):
        base = SLOT[st % 3]
        if not ((4 <= st < 6) or (X and st < 4)):
            sl = st if st < 4 else st - 6
            accs = [0, 1, 2, 3] if st < 4 else [2, 3, 0, 1]
            seq = [(p, t) for p in range(2) for t in range(8)] if (sl in (0, 3) or not cfg.tmaj) else [(p, t) for t in range(8) for p in range(2)]
            for p, t in seq:
                for c in range(2):
                    mf.append((st, accs[2*p+c], 8*sl + t, (base + c*16384 + t*2048, p), sl == 0 and t == 0))
        else:
            sl = st & 1; a0 = 2 if st in (2, 3) else 0
            for t in range(16):
                for c in range(2):
                    mf.append((st, a0 + c, 16*sl + t, (base + t*2048, c) if X else (base + c*16384 + t*1024, None), sl == 0 and t == 0))
    N = len(mf)
    def ep_h(g, u, sbase, off, PK=PK, defer=None):
        e = []
        for j in range(0, 16, 2):
            for jj in (j, j+1): e.append(f'v_max_f32 v{g+jj}, 0, v{g+jj}')
            for jj in (j, j+1): e.append(f'v_mul_f32 v{u+jj}, v{u+jj}, v{vR2}')
            for jj in (j, j+1): e.append(f'v_mul_f32 v{g+jj}, v{g+jj}, v{u+jj}')
            e.append(f'v_cvt_pk_bf16_f32 v{PK+j//2}, v{g+j}, v{g+j+1}')
            dst = e if defer is None else defer
            if j == 6: dst.append(f'buffer_store_dwordx4 {vr(PK,4)}, v{vL16}, {srd(SWS)}, s{sbase} offen offset:{off} sc1')
            if j == 14: dst.append(f'buffer_store_dwordx4 {vr(PK+4,4)}, v{vL16}, {srd(SWS)}, s{sbase} offen offset:{off+1024} sc1')
        return e
    def ep_hand(a0, a1, kind):
        e = []; k = 0
        for ti, a in enumerate((a0, a1)):
            for hh in range(2):
                hd = 2*ti + hh
                for ee in range(2):
                    b = a + 8*hh + 4*ee; pk = PK + 2*(k % 8); k += 1
                    if kind != 'v':
                        for j in range(4): e.append(f'v_mul_f32 v{b+j}, v{b+j}, v{vC}')
                    e.append(f'v_cvt_pk_bf16_f32 v{pk}, v{b}, v{b+1}')
                    e.append(f'v_cvt_pk_bf16_f32 v{pk+1}, v{b+2}, v{b+3}')
                    if kind == 'v': e.append(f'ds_write_b64 v{vVW2 if ee else vVW}, {vr(pk,2)} offset:{hd*4096}')
                    if kind == 'k': e.append(f'ds_write_b64 v{vKW}, {vr(pk,2)} offset:{hd*4096 + ee*512}')
                if kind == 'q':
                    e.append(f'buffer_store_dwordx4 {vr(PK+4*hd,4)}, v{vL16}, {srd(SWS)}, s{sQ} offen sc1')
                    if hd < 3: e.append(f's_add_u32 s{sQ}, s{sQ}, 4096')
        return e
    A = ACC
    fill = {}; late = {}; posts = {}; mids = []
    skip = ({7} if X else {8}) if cfg.skip else set()
    fa = f's_lshl_b32 s6, s{sRB}, 2\ns_add_u32 s6, s6, s{sW}\ns_lshl_b32 s6, s6, 5\ns_add_u32 s6, s6, s{sJ}' + ('' if X else '\ns_add_u32 s6, s6, 8') + f'\ns_lshl_b32 s6, s6, 2\ns_add_u32 s6, s6, {FH}\nv_mov_b32 v{vFA}, s6'
    extra = ''
    if X:
        fill[2*32] = (ep_hand(A[0], A[1], 'k'), 2*32 + 17); mids.append(2*32 + 19)
        fill[4*32] = (ep_hand(A[2], A[3], 'q'), 4*32 + 20)
        fill[6*32] = (ep_hand(A[0], A[1], 'v'), 6*32 + 10)
        mids.append(6*32 + 12)
        extra = f'\ns_lshl_b32 s6, s{sRB}, 3\ns_add_u32 s6, s6, s{sJ}\ns_lshl_b32 s6, s6, 5\ns_add_u32 s6, s6, s{sW}\ns_lshl_b32 s6, s6, 2\ns_add_u32 s6, s6, {FQ}\nv_mov_b32 v253, s6'
        posts[5*32 + 10] = (253, '0')
    else:
        d1 = []; d2 = []
        fill[3*32+16] = (ep_h(A[0], A[1], sHA, 0, PK, d1), 3*32 + 31)
        fill[4*32] = (ep_h(A[2], A[3], sHA, 2048, PK + 8, d1), 4*32 + 17)
        fill[6*32] = (ep_h(A[0], A[1], sHM, 0, PK, d2), 6*32 + 15)
        for k, x in enumerate(d1): late[4*32 + 19 + 2*k] = x
        for k, x in enumerate(d2): late[6*32 + 21 + 3*k] = x
        extra = f'\ns_mov_b32 s{sQ}, {FE-FH}'
        posts[7*32 + 20] = (vFA, f's{sQ}')
    fill[1*32+2] = ([f'buffer_load_dword v{vNON}, v{vZ}, {srd(SDBG)}, 0 offen sc1'] + (fa + extra).split('\n'), 1*32 + 22)
    fill[9*32+16] = (ep_h(A[2], A[3], sHC, 0), 9*32 + 31)
    tail = ep_h(A[0], A[1], sHC, 2048, PK + 8)
    def rd(n):
        st, a, xf, off, first = mf[n]
        off, nt = off
        if nt is None: va, o, d = vKW, off, 256
        elif off >= 131072: va, o, d = (vTRH, 255)[nt], off - 131072, 512
        else: va, o, d = (vTRL, 254)[nt], off, 512
        r = WF + 4*(n % NRING)
        return [f'ds_read_b64_tr_b16 {vr(r,2)}, v{va} offset:{o}', f'ds_read_b64_tr_b16 {vr(r+2,2)}, v{va} offset:{o+d}']
    nxt = 0; half = []; pend = []; rdtok = {}
    def issue_reads(limit_frag, maxn):
        nonlocal nxt, half
        k = 0
        while k < maxn:
            if not half:
                if nxt > limit_frag or nxt >= N: break
                half = [(nxt, x) for x in rd(nxt)]; nxt += 1
            f, x = half.pop(0); rdtok[f] = s(x); k += 1
        return k
    passed = 0
    keep = s.l[pre_reads_at:]; del s.l[pre_reads_at:]
    issue_reads(6, 14)
    s.l.extend(keep)
    delay = 0; dead = 0
    for n in range(N):
        st, a, xf, off, first = mf[n]
        if n in fill:
            assert not pend
            pend = list(fill[n][0]); dead = fill[n][1]; delay = 2
        needs = []
        if n % 2 == 0 and (n + 1) in rdtok and not (half and half[0][0] == n + 1): needs = [rdtok[n+1]]
        r = WF + 4*(n % NRING)
        s(f'{MF} {vr(A[a],16)}, {vr(r,4)}, {vr(XN+4*xf,4)}, ' + ('0' if first else vr(A[a],16)), needs=needs)
        lim = min(n + NRING - 1, 32*(passed+1) - 1)
        if n % 32 == 27 and st + 1 not in skip:
            assert nxt == 32*(st+1) and not half
            s('s_waitcnt lgkmcnt(0)')
            if cfg.hdbg and 4 <= st <= 9: stamp(s, 2*(st-4), True)
            s('s_barrier'); passed = st + 1
            if passed + 1 in skip and not X: passed += 1
            if cfg.hdbg and 4 <= st <= 9: stamp(s, 2*(st-4)+1, True)
            if st in (3, 5): stamp(s, 4 if st == 3 else 5)
            issue_reads(min(n + NRING - 1, N - 1), 6)
            if st == 9:
                s(f'v_readfirstlane_b32 s{sNON}, v{vNON}\ns_lshl_b32 s6, s{sSB}, 8\ns_lshl_b32 s7, s{sW}, 3\ns_add_u32 s6, s6, s7\ns_add_u32 s6, s6, {FE+32}')
                sbase(s, 6); sload(s, SP, 2, True); s(f's_mov_b32 s{sNON+1}, s{sNON}')
            continue
        if n in mids:
            assert not pend
            s('s_barrier', needs=[[i for i in s.l if i.op == 'ds_write_b64'][-1]])
            if st + 1 in skip: passed = st + 1
        behind = (lim - nxt + 1) * 2 + len(half)
        issue_reads(lim, 3 if behind > 2 else 2)
        if n in late: s(late[n])
        if n == 3*32 + 4:
            s(f'v_cmp_eq_u32 vcc, 0, v{vNON}\ns_cbranch_vccz L_non{ty}c_x')
            s('s_mov_b32 s75, 0')
            s(f'L_non{ty}c:')
            s(f'buffer_load_dword v{vNON}, v{vZ}, {srd(SDBG)}, 0 offen sc1\ns_waitcnt vmcnt(0)', tag='raw')
            s(f's_add_u32 s75, s75, 1\ns_cmp_gt_u32 s75, {SPIN}\ns_cbranch_scc1 L_non{ty}c_x')
            s(f'v_cmp_eq_u32 vcc, 0, v{vNON}\ns_cbranch_vccnz L_non{ty}c')
            s(f'L_non{ty}c_x:')
        if n in posts: post(s, vNON, posts[n][0], posts[n][1], [[i for i in s.l if i.kind == 'vmst'][-1]])
        if delay > 0: delay -= 1
        elif pend:
            gaps = sum(1 for m in range(n, dead + 1) if m % 32 != 27 or m // 32 + 1 in skip)
            budget = -(-len(pend) // gaps)
            nw = 0
            while pend and budget > 0:
                if pend[0].startswith('ds_write'):
                    if nw and gaps > 1: break
                    nw += 1
                s(pend.pop(0)); budget -= 1
    assert not pend
    stamp(s, 6)
    for x in tail: s(x)
    stamp(s, 7)
    s('s_branch L_BC')
    return s

vOQ, vOG, vW2 = 2, 3, 252
WRB = 72
vOM = 251
def dma_stage(st, X):
    base = SLOT[st % 3]; r = []
    if X and st < 6:
        col = [1024, 0, 2048][st >> 1]
        for b in range(8): r.append(piece(sL2, base + b*1024, sM0, (256*(st & 1) + 8*b)*3072 + col, vOQ, SQKV))
    elif st < 4 or st >= 6:
        sl = st if st < 4 else st - 6
        sb = sA0 if st < 4 else sC0
        for b in range(4):
            for pos, sr in enumerate((SG, SU)): r.append(piece(sL4, base + pos*16384 + b*1024, sb, (128*sl + 8*b)*3584, vOG, sr))
    else:
        for b in range(4):
            row = 256*(st & 1) + 16*b
            for pos, sr in enumerate((SG, SU)): r.append(piece(sL4, base + pos*16384 + b*1024, sM0, row*3584, vOM, sr))
    return r
def cwpieces(w):
    return [piece(sLBc, (w+4)*16384 + k*8192 + c*1024, sWBc, (BSTART[w]+12*k)*16384 + 8192*c, vW2, SD) for k in range(2) for c in range(2)]
def cwpieces2():
    return [piece(sLBc, w*8192 + c*1024, sWBc, (BSTART[w]+16)*16384 + 8192*c, vW2, SD) for w in range(4) for c in range(2)]
def ownpieces(steps, sbase, offs, voff=vW2, sr=SWH, rel=None):
    return [piece(sbase, o + c*1024, sWB, (rel[i] if rel else i)*16384 + 8192*c, voff, sr) for i, o in zip(steps, offs) for c in range(2)]
def emit(s, pieces, raw=False):
    for p in pieces:
        for x in p:
            if raw: x.tag = 'raw'
            s.l.append(x)
    return pieces[-1][-1]
def b_traddr(s, dst, sbase, t, lane=1):
    s(f'v_lshrrev_b32 v{t}, 5, v{lane}\nv_bfe_u32 v{dst}, v{lane}, 2, 2')
    s(f'v_lshl_add_u32 v{dst}, v{t}, 2, v{dst}\nv_lshlrev_b32 v{dst}, 7, v{dst}')
    s(f'v_bfe_u32 v{t}, v{lane}, 3, 1\nv_lshl_add_u32 v{dst}, v{t}, 6, v{dst}')
    s(f'v_bfe_u32 v{t}, v{lane}, 4, 1\nv_lshl_add_u32 v{dst}, v{t}, 5, v{dst}\nv_and_b32 v{t}, 3, v{lane}\nv_lshl_add_u32 v{dst}, v{t}, 3, v{dst}')
    if sbase is not None: s(f'v_add_u32 v{dst}, s{sbase}, v{dst}')
def line_voff(s, row, chunk, lane=1):
    s(f'v_lshrrev_b32 v{row}, 3, v{lane}\nv_bfe_u32 v{chunk}, v{lane}, 4, 1\nv_lshlrev_b32 v{chunk}, 2, v{chunk}\nv_xor_b32 v{chunk}, v{lane}, v{chunk}\nv_and_b32 v{chunk}, 7, v{chunk}\nv_lshlrev_b32 v{chunk}, 4, v{chunk}')
O8 = [2048*k for k in range(8)]

def softmax_k(s, P, rs, out, t):
    m0, m1, n0, n1 = t
    s(f'v_max3_f32 v{m0}, v{P}, v{P+1}, v{P+2}\nv_max3_f32 v{m1}, v{P+3}, v{P+4}, v{P+5}')
    s(f'v_max3_f32 v{n0}, v{P+6}, v{P+7}, v{P+8}\nv_max3_f32 v{n1}, v{P+9}, v{P+10}, v{P+11}')
    s(f'v_max3_f32 v{m0}, v{m0}, v{P+12}, v{P+13}\nv_max3_f32 v{m1}, v{m1}, v{P+14}, v{P+15}')
    s(f'v_max3_f32 v{m0}, v{m0}, v{n0}, v{n1}\nv_max_f32 v{m0}, v{m0}, v{m1}')
    for j in range(16): s(f'v_sub_f32 v{P+j}, v{P+j}, v{m0}')
    for j in range(16): s(f'v_exp_f32 v{P+j}, v{P+j}')
    s(f'v_add_f32 v{n0}, v{P}, v{P+1}\nv_add_f32 v{n1}, v{P+2}, v{P+3}\nv_add_f32 v{m0}, v{P+4}, v{P+5}\nv_add_f32 v{m1}, v{P+6}, v{P+7}')
    for j in range(8, 16): s(f'v_add_f32 v{t[j%4]}, v{t[j%4]}, v{P+j}')
    s(f'v_add_f32 v{m0}, v{m0}, v{m1}\nv_add_f32 v{n0}, v{n0}, v{n1}\nv_add_f32 v{n0}, v{n0}, v{m0}')
    s(f'v_rcp_f32 v{n0}, v{n0}')
    s(f'v_mul_f32 v{n0}, v{n0}, v{rs}')
    for j in range(0, 16, 2):
        s(f'v_mul_f32 v{P+j}, v{P+j}, v{n0}\nv_mul_f32 v{P+j+1}, v{P+j+1}, v{n0}')
        if j >= 2: s(f'v_cvt_pk_bf16_f32 v{out+j//2-1}, v{P+j-2}, v{P+j-1}')
    s(f'v_cvt_pk_bf16_f32 v{out+7}, v{P+14}, v{P+15}')

def softmax_q(s, P, out, t):
    m0, m1, n0, n1 = t
    s(f'v_max3_f32 v{m0}, v{P}, v{P+1}, v{P+2}\nv_max3_f32 v{m1}, v{P+8}, v{P+9}, v{P+10}')
    s(f'v_max3_f32 v{n0}, v{P+3}, v{P+4}, v{P+5}\nv_max3_f32 v{n1}, v{P+11}, v{P+12}, v{P+13}')
    s(f'v_max3_f32 v{m0}, v{m0}, v{P+6}, v{P+7}\nv_max3_f32 v{m1}, v{m1}, v{P+14}, v{P+15}')
    s(f'v_max_f32 v{m0}, v{m0}, v{n0}\nv_max_f32 v{m1}, v{m1}, v{n1}')
    s(f'v_permlane32_swap_b32 v{m0}, v{m1}')
    s(f'v_max_f32 v{m0}, v{m0}, v{m1}')
    s(f'v_mov_b32 v{m1}, v{m0}')
    s(f'v_permlane32_swap_b32 v{m0}, v{m1}')
    for j in range(16): s(f'v_sub_f32 v{P+j}, v{P+j}, v{m0 if j < 8 else m1}')
    for j in range(16):
        s(f'v_exp_f32 v{P+j}, v{P+j}')
        if j >= 3 and j % 2 == 1: s(f'v_cvt_pk_bf16_f32 v{out+(j-3)//2}, v{P+j-3}, v{P+j-2}')
    s(f'v_cvt_pk_bf16_f32 v{out+7}, v{P+14}, v{P+15}')

def w1touch(s, X, part):
    s(f's_and_b32 s6, s{sRB}, 7\ns_lshl_b32 s6, s6, 6\nv_add_u32 v8, s6, v1')
    s('v_mul_u32_u24 v9, 0xe00, v8')
    d = 253 if part != 2 else 243
    if X:
        s('v_mul_u32_u24 v8, 0xc00, v8')
        s(f's_lshl_b32 s6, s{sJ}, 7\ns_xor_b32 s7, s{sW4}, 1\ns_cmp_eq_u32 s{sW4}, 2\ns_cselect_b32 s7, 2, s7\ns_lshl_b32 s7, s7, 10\ns_add_u32 s6, s6, s7\ns_lshl_b32 s7, s5, 1')
        s(f's_cmp_eq_u32 s{sW4}, 3\ns_cselect_b32 s6, 0x200000, s6\ns_cselect_b32 s7, s7, 0x200000')
        if part == 1: s(f's_cmp_ge_u32 s{sW4}, 2\ns_cselect_b32 s6, 0x200000, s6\ns_mov_b32 s7, 0x200000')
        if part == 2: s(f's_cmp_lt_u32 s{sW4}, 2\ns_cselect_b32 s6, 0x200000, s6')
        s(f'buffer_load_dword v{d}, v8, {srd(SQKV)}, s6 offen')
        if part != 1: s(f'buffer_load_dword v{d+1}, v9, {srd(SG)}, s7 offen\nbuffer_load_dword v{d+2}, v9, {srd(SU)}, s7 offen')
    else:
        s(f's_cmp_eq_u32 s{sW4}, 1\ns_cselect_b32 s6, s4, s3\ns_cmp_eq_u32 s{sW4}, 2\ns_cselect_b32 s6, s5, s6\ns_lshl_b32 s6, s6, 1')
        s(f's_cmp_eq_u32 s{sW4}, 3\ns_cselect_b32 s6, 0x200000, s6')
        if part == 1: s(f's_cmp_ge_u32 s{sW4}, 1\ns_cselect_b32 s6, 0x200000, s6')
        if part == 2: s(f's_cmp_lt_u32 s{sW4}, 1\ns_cselect_b32 s6, 0x200000, s6')
        s(f'buffer_load_dword v{d}, v9, {srd(SG)}, s6 offen\nbuffer_load_dword v{d+1}, v9, {srd(SU)}, s6 offen')

def malltouch(s):
    s(f's_mul_i32 s6, s2, 6144\ns_mul_i32 s7, s2, 7168\nv_lshlrev_b32 v8, 7, v1\nv_min_u32 v9, 6016, v8\nv_min_u32 v8, 7040, v8')
    s(f's_cmp_eq_u32 s{sW}, 4\ns_cselect_b32 s6, s6, 0x200000\nbuffer_load_dword v236, v9, {srd(SQKV)}, s6 offen')
    s(f's_cmp_eq_u32 s{sW}, 5\ns_cselect_b32 s6, s7, 0x200000\nbuffer_load_dword v237, v8, {srd(SG)}, s6 offen')
    s(f's_cmp_eq_u32 s{sW}, 6\ns_cselect_b32 s6, s7, 0x200000\nbuffer_load_dword v242, v8, {srd(SU)}, s6 offen')

def w2touch(s):
    if cfg.w2t == 1:
        s(f's_mul_i32 s6, s2, 7168\ns_lshl_b32 s7, s2, 11\ns_cmp_eq_u32 s{sW}, 7\ns_cselect_b32 s6, s6, 0x200000\ns_cselect_b32 s7, s7, 0x200000')
        s('v_lshlrev_b32 v8, 7, v1\nv_min_u32 v9, 1920, v8\nv_min_u32 v8, 7040, v8')
        s(f'buffer_load_dword v246, v8, {srd(SD)}, s6 offen\nbuffer_load_dword v247, v9, {srd(SO)}, s7 offen')
    if cfg.w2t == 2:
        s(f's_lshr_b32 s6, s2, 3\ns_lshl_b32 s6, s6, 2\ns_add_u32 s75, s6, s{sW4}')
        if cfg.mx512:
            s(f'v_lshrrev_b32 v8, 2, v1\nv_and_b32 v9, 3, v1\nv_lshlrev_b32 v9, 7, v9\nv_lshl_add_u32 v8, v8, 10, v9\ns_and_b32 s7, s{sNB}, 4\ns_lshl_b32 s7, s7, 7\nv_add_u32 v8, s7, v8')
            s(f's_mul_i32 s6, s75, {14*1024}\nbuffer_load_dword v246, v8, {srd(SD)}, s6 offen')
            s(f's_lshr_b32 s6, s75, 2\ns_lshl_b32 s6, s6, 1\ns_and_b32 s7, s{sW}, 1\ns_add_u32 s6, s6, s7\ns_lshl_b32 s6, s6, 13\ns_cmp_ge_u32 s{sW}, 6\ns_cselect_b32 s6, s6, 0x200000')
            s(f'v_min_u32 v9, {8*1024-128}, v8\nbuffer_load_dword v247, v9, {srd(SO)}, s6 offen')

def helper_head(s, X, wop, isq):
    if cfg.mt: malltouch(s)
    if cfg.tp in (1, 2): w1touch(s, X, 1 if cfg.tp == 2 else 0)
    if X:
        s(f's_cmp_lg_u32 s2, 0\ns_cbranch_scc1 L_np\ns_cmp_lg_u32 s{sW}, 4\ns_cbranch_scc1 L_np')
        s('s_memrealtime s[76:77]\ns_waitcnt lgkmcnt(0)\ns_or_b32 s76, s76, 1')
        s('v_mov_b32 v4, s76\nv_mov_b32 v6, 0\ns_mov_b64 exec, 1')
        s(f'buffer_store_dword v4, v6, {srd(SDBG)}, 0 offen sc1', tag='raw')
        s('s_mov_b64 exec, -1')
        s('L_np:')
    s(f's_setprio {cfg.prioH}')
    if not X: s(f'v_lshrrev_b32 v4, 2, v1\nv_and_b32 v5, 3, v1\nv_lshlrev_b32 v5, 4, v5\nv_mul_u32_u24 v{vOM}, 0xe00, v4\nv_add_u32 v{vOM}, v{vOM}, v5')
    line_voff(s, 4, 5)
    s(f'v_mul_u32_u24 v{vOQ}, 0xc00, v4\nv_add_u32 v{vOQ}, v{vOQ}, v5')
    s(f'v_mul_u32_u24 v{vOG}, 0xe00, v4\nv_add_u32 v{vOG}, v{vOG}, v5')
    s(f'v_lshl_add_u32 v{vW2}, v4, 10, v5')
    s(f's_lshl_b32 s{sL4}, s{sW4}, 12\ns_lshl_b32 s{sL2}, s{sW4}, 13')
    s(f's_mul_i32 s6, s{sW4}, {32*3584}\ns_lshl_b32 s7, s5, 1\ns_add_u32 s{sC0}, s6, s7')
    if X: s(f's_mul_i32 s6, s{sW4}, {64*3072}\ns_lshl_b32 s7, s{sJ}, 7\ns_add_u32 s{sM0}, s6, s7')
    else:
        s(f's_lshl_b32 s7, s3, 1\ns_add_u32 s{sA0}, s6, s7')
        s(f's_mul_i32 s6, s{sW4}, {64*3584}\ns_lshl_b32 s7, s4, 1\ns_add_u32 s{sM0}, s6, s7')
    s(f's_lshl_b32 s{sLBc}, s{sW4}, 11\ns_lshl_b32 s6, s{sW4}, 14\ns_lshl_b32 s7, s{sNB}, 7\ns_add_u32 s{sWBc}, s6, s7')
    s(f's_lshl_b32 s{sHEAD}, s{sJ}, 2\ns_add_u32 s{sHEAD}, s{sHEAD}, s{sW4}')
    s(f's_lshl_b32 s{sKV}, s{sHEAD}, 12\ns_add_u32 s{sKV}, s{sKV}, {KV_OFF}')
    s(f's_cmp_lt_u32 s{sW}, 6\ns_cselect_b32 s{SO}, s{SD}, s{SO}\ns_cselect_b32 s{SO+1}, s{SD+1}, s{SO+1}\ns_cselect_b32 s{SO+2}, s{SD+2}, s{SO+2}')
    s('v_lshrrev_b32 v4, 5, v1\nv_lshlrev_b32 v7, 7, v4')
    if isq: s('v_and_b32 v6, 15, v1\nv_lshl_add_u32 v36, v6, 1, v7')
    else: s('v_bfe_u32 v6, v1, 3, 2\nv_and_b32 v36, 3, v1\nv_lshl_add_u32 v6, v6, 2, v36\nv_lshl_add_u32 v36, v6, 1, v7')
    s(f's_lshl_b32 s{sT2}, s{sHEAD}, 9')
    return

def helper_start(s, X, wop, isq):
    stamp(s, 0)
    s('s_barrier')
    stamp(s, 1)
    tok = {0: emit(s, dma_stage(0, X))}
    if cfg.tp in (0, 2): w1touch(s, X, 2 if cfg.tp == 2 else 0)
    if cfg.w2at == 0: w2touch(s)
    s('s_barrier')
    s(f'v_mov_b32 v17, 0\nbuffer_load_dword v16, v17, {srd(SDBG)}, 0 offen sc1')
    if cfg.pro == 0: tok[1] = emit(s, dma_stage(1, X))
    s('s_barrier', needs=[tok[0]])
    if cfg.pro != 0: tok[1] = emit(s, dma_stage(1, X))
    tok[2] = emit(s, dma_stage(2, X))
    if cfg.w2at == 1: w2touch(s)
    for i in range(8):
        s(f'buffer_load_ushort v{200+i}, v36, {srd(SPHI)}, s{sT2} offen offset:{(8*(i >> 2) + (i & 3))*32}')
    return tok

def nonce_and_wphi(w, lab, wop, bit):
    w(f'v_cmp_eq_u32 vcc, 0, v16\ns_cbranch_vccz {lab}_x')
    w('s_mov_b32 s75, 0')
    w(f'{lab}:')
    w(f'buffer_load_dword v16, v17, {srd(SDBG)}, 0 offen sc1\ns_waitcnt vmcnt(0)', tag='raw')
    w(f's_add_u32 s75, s75, 1\ns_cmp_gt_u32 s75, {SPIN}\ns_cbranch_scc1 {lab}_x')
    w(f'v_cmp_eq_u32 vcc, 0, v16\ns_cbranch_vccnz {lab}')
    w(f'{lab}_x:')
    w(f'v_readfirstlane_b32 s{sNON}, v16\nv_readfirstlane_b32 s{sNON+1}, v16')
    w(f'v_bfe_u32 v6, v1, {bit}, 1\nv_mul_u32_u24 v6, 0x8000, v6\nv_lshl_or_b32 v6, v6, 16, v6')
    for r in range(4):
        w(f'v_lshl_or_b32 v{wop+r}, v{200+2*r+1}, 16, v{200+2*r}\nv_xor_b32 v{wop+r}, v6, v{wop+r}')

def cost(i):
    if i.op in ('v_exp_f32', 'v_rcp_f32') or i.op.startswith('v_permlane'): return 11
    if i.kind == 'mfma': return 36
    if i.kind in ('vm', 'vmst'): return 14
    if i.op in ('v_max3_f32', 'v_fma_f32', 'v_lshl_add_u32', 'v_lshl_or_b32'): return 8.3
    return 5.6

def pack(s, X, work, bars, tok, extra, need10, quiet, frac, late_hi, w1at=None, first=(), tneed={}):
    flat = [(m, w.l) for m, w in work]
    qi = 0; qpos = 0; inloop = False; where = {}
    pieces = []; lgfree = False
    for bi, st in enumerate(bars):
        whole = st == int(st)
        if not lgfree: s('s_waitcnt lgkmcnt(0)')
        lgfree = False
        nd = [tok[t] for t in tneed.get(st, [st] if whole and st <= 9 else [])] + (need10 if st == 10 else [])
        dbg = cfg.hdbg and whole and 5 <= st <= 10
        if dbg: stamp(s, 2*(st-5), True); s('s_nop 0', needs=nd)
        s('s_barrier', needs=nd)
        if dbg: stamp(s, 2*(st-5)+1, True)
        for tgt in range(3, 10):
            if (w1at or {}).get(tgt, tgt - 2) == st:
                p = dma_stage(tgt, X); tok[tgt] = p[-1][-1]
                if st in first: emit(s, p)
                else: pieces += p
        pieces += extra.get(st, [])
        last = bi + 1 == len(bars)
        BUD = 1e9 if last else cfg.bud * frac.get(st, 1.0)
        hold = []
        if quiet.get(st) == 'all': hold = pieces; pieces = []
        q = quiet.get(st, 0) if quiet.get(st) != 'all' else 0
        used = 0; inexec = False; since = 99 if not inloop and not (qi < len(flat) and qpos == 0 and flat[qi][1][0].op in ('s_waitcnt', 's_memrealtime', 's_memtime')) else 0
        inloop = False
        while qi < len(flat) and flat[qi][0] <= st:
            ins = flat[qi][1][qpos]
            free = not inexec and not inloop and ins.op not in ('s_addc_u32', 's_subb_u32', 's_cselect_b32') and not ins.op.startswith('s_cbranch')
            if pieces and free and ((since >= 6 and used >= q) or ins.tag == 'flush'):
                s.l.extend(pieces.pop(0)); used += 20; since = 0
                continue
            if used + 20*len(pieces) >= BUD and free and ins.tag != 'glue': break
            s.l.append(ins); used += cost(ins); since += 1
            where[id(ins)] = st
            if ('s', 'exec') in ins.wr: inexec = '-1' not in ins.text
            if ins.op.startswith('s_cbranch') and ins.text.split()[1].endswith('_x'): inloop = True
            if ins.kind == 'label' and ins.op.endswith('_x:'): inloop = False
            if ins.op.startswith('s_load') or ins.op.startswith('s_cmp') or ins.op in ('s_xor_b64', 's_or_b64'): inloop = True
            qpos += 1
            if qpos == len(flat[qi][1]): qi += 1; qpos = 0
        for p in pieces: s.l.extend(p)
        pieces = hold
        if whole and qi < len(flat) and qpos == 0 and flat[qi][0] == st + 0.5 and (st + 0.5) not in bars:
            s.l.extend(flat[qi][1]); qi += 1; lgfree = True
    assert qi == len(flat)
    l = []; hi = False
    bidx = [k for k, i in enumerate(s.l) if i.op == 's_barrier']
    for k, i in enumerate(s.l):
        want = i.kind == 'mfma' or (k > bidx[late_hi] and i.kind in ('vm', 'vmst'))
        if i.kind in ('mfma', 'valu', 'vm', 'vmst', 'vmlds', 'ds') and want != hi and i.tag != 'raw':
            l.append(I(f's_setprio {3 if want else cfg.prioH}')); hi = want
        l.append(i)
    s.l = l
    return where

def helperX():
    s = S(); X = True
    WK, RS, KF, KVA = 8, 20, 24, 40
    PT = 136; ID = 224; TT = 200; FR = 136
    vB1, vB2, vRD, vKVA, vL16h, vST = 232, 233, 234, 235, 238, 239
    helper_head(s, X, WK, False)
    s(f'v_lshlrev_b32 v{vL16h}, 4, v1\ns_lshl_b32 s6, s{sW4}, 12\ns_add_u32 s6, s6, {KB}\nv_lshlrev_b32 v5, 3, v1\nv_add_u32 v{vRD}, s6, v5')
    s('v_bfe_u32 v5, v1, 2, 2\nv_lshl_add_u32 v5, v4, 2, v5')
    s('v_and_b32 v7, 3, v1\nv_xor_b32 v7, v7, v4\nv_lshlrev_b32 v7, 3, v7\nv_lshl_add_u32 v7, v5, 5, v7\nv_add_u32 v7, s6, v7')
    s(f'v_lshlrev_b32 v6, 3, v5\nv_add_u32 v6, {STDB}, v6')
    s(f'v_bfe_u32 v5, v1, 4, 1\nv_cmp_eq_u32 vcc, 1, v5\nv_cndmask_b32 v{vB1}, v7, v6, vcc')
    s(f'v_xor_b32 v7, 16, v7\nv_add_u32 v7, 256, v7\nv_add_u32 v6, 64, v6\nv_cndmask_b32 v{vB2}, v7, v6, vcc')
    s(f'v_mov_b32 v6, 512\nv_mov_b32 v7, 128\nv_cndmask_b32 v{vST}, v6, v7, vcc')
    s(f'v_and_b32 v5, 31, v1\nv_min_u32 v5, 16, v5\nv_lshl_add_u32 v5, v4, 5, v5\nv_lshlrev_b32 v{vKVA}, 2, v5')
    s('v_and_b32 v5, 1, v1\nv_lshlrev_b32 v5, 4, v5\nv_mov_b32 v6, 0x3f80\nv_lshlrev_b32 v6, v5, v6')
    s('v_bfe_u32 v5, v1, 4, 1\nv_cmp_eq_u32 vcc, v5, v4\nv_cndmask_b32 v6, 0, v6, vcc\nv_bfe_u32 v5, v1, 1, 3')
    for r in range(8): s(f'v_cmp_eq_u32 vcc, {r}, v5\nv_cndmask_b32 v{ID+r}, 0, v6, vcc')
    tok = helper_start(s, X, WK, False)
    work = []
    def seg(minb):
        w = S(); work.append((minb, w)); return w
    w = seg(1)
    w(f'v_and_b32 v5, 31, v1\nv_lshlrev_b32 v5, 2, v5\nv_add_u32 v5, {RSB}, v5')
    for rt in range(4): w(f'ds_read_b32 v{RS+rt}, v5 offset:{rt*128}')
    nonce_and_wphi(w, 'L_nonX', WK, 2)
    w(f's_lshl_b32 s6, s{sHEAD}, 7\ns_add_u32 s6, s6, {FKV+64}\nv_mov_b32 v17, s6')
    sbase(w, 6)
    w(f's_lshl_b32 s7, s{sRB}, 2\ns_sub_u32 s6, s6, 64\ns_add_u32 s6, s6, s7\nv_mov_b32 v18, s6')
    w(f's_cmp_lg_u32 s{sRB}, 0\ns_cbranch_scc1 L_zero_x')
    for r in range(4): w(f'v_mov_b32 v{FR+r}, 0')
    for q in range(4): w(f'buffer_store_dwordx4 {vr(FR,4)}, v{vL16h}, {srd(SWS)}, s{sKV} offen offset:{q*1024} sc1', tag='raw')
    w('s_waitcnt vmcnt(0)', tag='raw')
    w('s_mov_b64 exec, 1')
    w(f'buffer_store_dword v16, v17, {srd(SWS)}, 0 offen sc1', tag='raw')
    w('s_mov_b64 exec, -1')
    w('L_zero_x:')
    w = seg(2.5)
    for rt in range(4):
        w(f'ds_read_b64 {vr(KF+4*rt,2)}, v{vRD} offset:{rt*1024}\nds_read_b64 {vr(KF+4*rt+2,2)}, v{vRD} offset:{rt*1024+512}')
    for rt in range(4): w(f'{MF} {vr(PT+16*rt,16)}, {vr(WK,4)}, {vr(KF+4*rt,4)}, 0')
    T4 = (4, 5, 6, 7)
    PH = [56, 64, 24, 32]; TP = [216, 56, 64, 24]
    tr_mm = lambda rt: [[I(f'{MF} {vr(TT,16)}, {vr(PH[rt],4)}, {vr(ID,4)}, 0')], [I(f'{MF} {vr(TT,16)}, {vr(PH[rt]+4,4)}, {vr(ID+4,4)}, {vr(TT,16)}')]]
    tr_cv = lambda rt: [I(f'v_cvt_pk_bf16_f32 v{TP[rt]+j}, v{TT+2*j}, v{TT+2*j+1}') for j in range(8)]
    softmax_k(w, PT, RS, PH[0], T4)
    for rt in range(1, 4):
        m = S(); softmax_k(m, PT + 16*rt, RS + rt, PH[rt], T4)
        merge(w, m, tr_mm(rt - 1) + [[], tr_cv(rt - 1)], 8)
    for x in tr_mm(3): w.l.extend(x)
    sload(w, 44, 1, False); scheck(w, 'L_pollz', 44, 1, False)
    w.l.extend(tr_cv(3))
    w = seg(6.5)
    for rt in range(4):
        for ks in range(2):
            f = FR + 8*rt + 4*ks
            lastv = w(f'ds_read_b64_tr_b16 {vr(f,2)}, v{vB1}\nds_read_b64_tr_b16 {vr(f+2,2)}, v{vB2}')
            if rt < 3 or ks < 1: w(f'v_add_u32 v{vB1}, v{vB1}, v{vST}\nv_add_u32 v{vB2}, v{vB2}, v{vST}')
        if rt == 2: w('s_waitcnt lgkmcnt(8)')
    for rt in range(4):
        for ks in range(2):
            w(f'{MF} {vr(KVA,16)}, {vr(TP[rt]+4*ks,4)}, {vr(FR+8*rt+4*ks,4)}, ' + ('0' if rt == 0 and ks == 0 else vr(KVA,16)))
    for i in w.l: i.tag = i.tag or 'glue'
    if not cfg.skip: w = seg(7)
    w('s_mov_b32 s76, 0x1ffff\ns_mov_b32 s77, 0x1ffff')
    w('s_mov_b64 exec, s[76:77]')
    for r in range(16): at = w(f'buffer_atomic_add_f32 v{KVA+r}, v{vKVA}, {srd(SWS)}, s{sKV} offen offset:{r*256}')
    w('s_mov_b64 exec, -1')
    for i in w.l: i.tag = i.tag or 'glue'
    stamp(w, 2)
    w = seg(6.5 if cfg.skip and cfg.kvf < 8 else 8)
    post(w, 16, 18, '0', [at])
    for i in w.l: i.tag = 'glue'
    stamp(w, 3)
    bars = [1, 2, 2.5, 3, 4, 5, 6, 6.5] + ([] if cfg.skip else [7]) + [8, 9, 10]
    c9 = cwpieces2()
    extra = {1: cwpieces(1), 3: cwpieces(2), 8: cwpieces(0) + cwpieces(3), 9: c9}
    if cfg.skip:
        where = pack(s, X, work, bars, tok, extra, [c9[-1][-1]], {2: 'all', 4: cfg.quiet, 8: 30},
                     {2.5: 0.3, 3: cfg.fk, 4: cfg.fk, 5: cfg.fk, 6: 0.45}, -4, {8: 6.5, 9: 8}, (6.5,), {6.5: [7]})
    else:
        where = pack(s, X, work, bars, tok, extra, [c9[-1][-1]], {2: 'all', 4: cfg.quiet, 8: 100},
                     {2.5: 0.3, 3: cfg.fk, 4: cfg.fk, 5: cfg.fk, 6: 0.45, 6.5: 0.4}, -4, {8: 7, 9: 8}, (7, 8))
    assert where[id(lastv)] < 8
    return s

def own_first(s, lab):
    pass

def helperY():
    s = S(); X = False
    WQ, QF, KVA = 8, 24, 40
    PT = 136; vKVA, vL16h, vSA = 235, 238, 240
    helper_head(s, X, WQ, True)
    s(f'v_lshlrev_b32 v{vL16h}, 4, v1')
    s(f'v_and_b32 v5, 31, v1\nv_min_u32 v5, 16, v5\nv_lshl_add_u32 v5, v4, 5, v5\nv_lshlrev_b32 v{vKVA}, 2, v5')
    s(f's_lshl_b32 s79, s{sW4}, 14\ns_add_u32 s79, s79, 65536')
    b_traddr(s, vSA, 79, 11)
    s(f'v_xor_b32 v{vSA+1}, 64, v{vSA}')
    tok = helper_start(s, X, WQ, True)
    work = []
    def seg(minb):
        w = S(); work.append((minb, w)); return w
    w = seg(1)
    nonce_and_wphi(w, 'L_nonY', WQ, 4)
    w(f's_lshl_b32 s6, s{sRB}, 3\ns_add_u32 s6, s6, s{sJ}\ns_lshl_b32 s{sQ}, s6, 14\ns_lshl_b32 s7, s{sW4}, 12\ns_add_u32 s{sQ}, s{sQ}, s7\ns_add_u32 s{sQ}, s{sQ}, {Q_OFF}')
    w(f's_lshl_b32 s6, s6, 7\ns_add_u32 s6, s6, {FQ}')
    sbase(w, 6)
    w(f's_lshl_b32 s6, s{sRB}, 5\ns_add_u32 s6, s6, s{sHEAD}\ns_lshl_b32 s6, s6, 2\ns_add_u32 s6, s6, {FO}\nv_mov_b32 v18, s6')
    stg = ownpieces(range(8), 79, O8)
    w = seg(cfg.ystg + 2)
    for i in range(8):
        for c in range(2):
            f = WRB + 8*i + 4*c
            w(f'ds_read_b64_tr_b16 {vr(f,2)}, v{vSA+c} offset:{2048*i}', needs=[stg[-1][-1]])
            lasts = w(f'ds_read_b64_tr_b16 {vr(f+2,2)}, v{vSA+c} offset:{2048*i + 1024}')
        if i % 2 == 1 and i >= 3: w('s_waitcnt lgkmcnt(8)')
    for i in w.l: i.tag = 'glue'
    w = seg(cfg.qat - 0.5)
    sload(w, 44, 4, False)
    w = seg(cfg.qat)
    stamp(w, 2)
    scheck(w, 'L_pollq', 44, 4, False)
    stamp(w, 3)
    for rt in range(4): w(f'buffer_load_dwordx4 {vr(QF+4*rt,4)}, v{vL16h}, {srd(SWS)}, s{sQ} offen offset:{rt*1024} sc1')
    w(f's_lshl_b32 s6, s{sHEAD}, 7\ns_add_u32 s6, s6, {FKV}')
    sbase(w, 6)
    w('s_mov_b32 s73, 0', tag='flush')
    for rt in range(4): w(f'{MF} {vr(PT+16*rt,16)}, {vr(WQ,4)}, {vr(QF+4*rt,4)}, 0')
    T4 = (4, 5, 6, 7)
    PQ = [56, 64, 200, 208]
    for rt in range(4): softmax_q(w, PT + 16*rt, PQ[rt], T4)
    def kvloads(w):
        for r in range(16): w(f'buffer_load_dword v{KVA+r}, v{vKVA}, {srd(SWS)}, s{sKV} offen offset:{r*256} sc1', tag='raw')
    if cfg.ktry:
        w = seg(9)
        sload(w, SP, 16, False)
        w('s_waitcnt lgkmcnt(0)')
        w(f's_xor_b64 s[6:7], s[{SP}:{SP+1}], s[{sNON}:{sNON+1}]')
        for k in range(1, 8): w(f's_xor_b64 s[76:77], s[{SP+2*k}:{SP+2*k+1}], s[{sNON}:{sNON+1}]\ns_or_b64 s[6:7], s[6:7], s[76:77]')
        w('s_cmp_eq_u64 s[6:7], 0\ns_cbranch_scc0 L_try_x')
        kvloads(w)
        w('s_mov_b32 s73, 1')
        w('L_try_x:')
    w = seg(9.5)
    sload(w, SP, 16, False)
    w = seg(10)
    stamp(w, 4)
    w('s_cmp_eq_u32 s73, 1\ns_cbranch_scc1 L_kv_x')
    scheck(w, 'L_pollkv', SP, 16, False)
    kvloads(w)
    w('L_kv_x:')
    stamp(w, 5)
    w('s_waitcnt vmcnt(0) lgkmcnt(0)')
    w('v_and_b32 v4, 27, v1\nv_cmp_eq_u32 vcc, 17, v4\nv_mov_b32 v4, 0x3f803f80')
    for r in range(8): w(f'v_cvt_pk_bf16_f32 v{KVA+r}, v{KVA+2*r}, v{KVA+2*r+1}')
    for r in range(8): w(f'v_cndmask_b32 v{KVA+r}, v{KVA+r}, v4, vcc')
    OT = [136, 168, 24, 216]; ON = [152, 184, 48 - 0, 232]
    ON[2] = 0
    w(f'v_mov_b32 v3, v{vL16h}\nv_mov_b32 v248, v16\nv_mov_b32 v249, v18')
    ON = [152, 184, 8, 232]
    for rt in range(4):
        w(f'{MF} {vr(OT[rt],16)}, {vr(KVA,4)}, {vr(PQ[rt],4)}, 0')
        w(f'{MF} {vr(ON[rt],16)}, {vr(KVA+4,4)}, {vr(PQ[rt]+4,4)}, 0')
    w(f's_lshl_b32 s6, s{sRB}, 2\ns_mul_i32 s6, s6, 144\ns_add_u32 s6, s6, s{sHEAD}\ns_add_u32 s6, s6, 112\ns_lshl_b32 s79, s6, 10')
    w('v_mov_b32 v4, 0x358637bd')
    for rt in range(4):
        o = OT[rt]; n = ON[rt]
        w(f'v_rcp_f32 v{o+9}, v{o+9}\nv_rcp_f32 v{n+9}, v{n+9}')
        w(f'v_fma_f32 v{o+8}, v{o+8}, v{o+9}, v4\nv_fma_f32 v{o+8}, v{n+8}, v{n+9}, v{o+8}\nv_rcp_f32 v{o+8}, v{o+8}')
        w(f'v_mul_f32 v{o+9}, v{o+9}, v{o+8}\nv_mul_f32 v{n+9}, v{n+9}, v{o+8}')
        for j in range(8): w(f'v_mul_f32 v{o+j}, v{o+j}, v{o+9}')
        for j in range(8): w(f'v_fma_f32 v{o+j}, v{n+j}, v{n+9}, v{o+j}')
        for j in range(0, 8, 2): w(f'v_cvt_pk_bf16_f32 v{o+12+j//2}, v{o+j}, v{o+j+1}')
        ost = w(f'buffer_store_dwordx4 {vr(o+12,4)}, v3, {srd(SWS)}, s79 offen sc1')
        if rt < 3: w(f's_add_u32 s79, s79, {144*1024}')
    stamp(w, 6)
    post(w, 248, 249, '0', [ost])
    stamp(w, 7)
    c2 = cwpieces2()
    if cfg.skip:
        extra = {cfg.ystg: stg, 4: cwpieces(0) + cwpieces(1), 5: cwpieces(2), 7: cwpieces(3), 9: c2}
        where = pack(s, X, work, [1, 2, 3, 4, 5, 6, 7, 9, 10], tok, extra, [c2[-1][-1]], {}, {7: cfg.f7 + 1, 9: cfg.f9}, -3, None, (), {7: [7, 8]})
    else:
        extra = {cfg.ystg: stg, 4: cwpieces(0), 5: cwpieces(1), 6: cwpieces(2), 8: cwpieces(3) + c2[:4], 9: c2[4:]}
        where = pack(s, X, work, list(range(1, 11)), tok, extra, [c2[-1][-1]], {}, {7: cfg.f7, 9: cfg.f9}, -3)
    assert where[id(lasts)] < 4
    s('s_branch L_BHY')
    return s

BACC = [8, 24, 40, 56]; BW = 232; vBX = 248
def red_write(s, acc, t):
    s(f'v_and_b32 v4, 31, v1\nv_lshrrev_b32 v5, 5, v1\nv_and_b32 v6, 7, v1\nv_xor_b32 v6, v5, v6\nv_lshlrev_b32 v6, 4, v6\nv_lshl_add_u32 v6, v4, 8, v6\nv_add_u32 v{t}, s{sLB}, v6')
    for k in range(1, 4): s(f'v_xor_b32 v{t+k}, {k<<5}, v{t}')
    for nt in range(2):
        for st in range(2):
            for q in range(4):
                if q == 3 and nt == 1 and st == 1: s('s_waitcnt lgkmcnt(8)')
                s(f'ds_write_b128 v{t+q}, {vr(acc[2*nt+st]+4*q,4)} offset:{st*8192 + nt*128}')
    s('s_waitcnt vmcnt(0)')

def phaseB_body(kind):
    s = S(); lab = f'L_B{kind}'
    C = kind == 'C'; n = 20 if C else 16
    order = CORDER if C else list(range(16))
    if C:
        acc = [160, 176, 192, 208]; bw = 224; vl, v16, vd, vtr, vxo, wr, vtr2 = 240, 242, 243, 244, 245, 96, 246
        hreg = lambda i: 8*i if i < 12 else 8*(i - 12)
    else:
        acc = BACC; bw = BW; vl, v16, vd, vtr, vxo, wr, vtr2 = 1, 3, vW2, 6, 7, WRB, 5
        hreg = lambda i: 136 + 8*i if i < 12 else WRB + 8*(i - 12)
    hoff = [0]
    def hload(i):
        rel = order[i]
        if rel // 4 != hoff[0]:
            d = (rel // 4 - hoff[0]) * 4096; hoff[0] = rel // 4
            op = 's_add_u32' if d > 0 else 's_sub_u32'
            s(f'{op} s{sH0}, s{sH0}, {abs(d)}\n{op} s{sH1}, s{sH1}, {abs(d)}')
        for c in range(2):
            s(f'buffer_load_dwordx4 {vr(hreg(i)+4*c,4)}, v{v16}, {srd(SWS)}, s{sH0+c} offen offset:{(rel%4)*1024}' + (' sc1' if not cfg.nosc else ''))
    wt = {}; rt_ = {}
    def rd(i, f):
        va, o0 = ((vtr, vtr2), (i % 8)*2048) if i < 16 else ((241, 247), (i - 16)*2048)
        for c in range(2):
            s(f'ds_read_b64_tr_b16 {vr(f+4*c,2)}, v{va[c]} offset:{o0}', needs=[wt[i]] if i in wt else [])
            rt_[i] = s(f'ds_read_b64_tr_b16 {vr(f+4*c+2,2)}, v{va[c]} offset:{o0 + 1024}')
    def wdma(i):
        if cfg.now: return
        for p in ownpieces([i], sLB, [(i % 8)*2048], vd, SD if C else SWH, order):
            if i - 8 in rt_: p[-1].needs = [rt_[i-8]]
            s.l.extend(p); wt[i] = p[-1]
    def preread():
        for i in range(8):
            rd(i, wr + 8*i)
            if i % 2 == 1 and i >= 3: s('s_waitcnt lgkmcnt(8)')
    def step(i):
        if 8 <= i + 1 < n: rd(i + 1, bw + 8*((i + 1) % 2))
        f = wr + 8*i if i < 8 else bw + 8*(i % 2)
        for nt in range(2):
            for st in range(2):
                a = acc[2*nt+st]
                if cfg.nomf: s(f'v_xor_b32 v{a}, v{f+4*nt}, v{hreg(i)+4*st}'); continue
                s(f'{MF} {vr(a,16)}, {vr(f+4*nt,4)}, {vr(hreg(i)+4*st,4)}, ' + ('0' if i == 0 else vr(a,16)))
        if cfg.cdbg and i in (0, 3, 7, 11, 15): stamp(s, (0, 3, 7, 11, 15).index(i))
    def xload(t):
        s(f'v_lshrrev_b32 v{t}, 3, v{vl}\nv_and_b32 v{vxo}, 7, v{vl}\nv_lshlrev_b32 v{vxo}, 4, v{vxo}\nv_lshl_add_u32 v{vxo}, v{t}, 10, v{vxo}')
        s(f'buffer_load_dwordx4 {vr(vBX,4)}, v{vxo}, {srd(SX)}, s{sXO} offen')
    if C:
        s('s_setprio 3')
        scheck(s, lab + '_e', SP, 2, True)
        for i in range(cfg.pre): hload(i)
        s(f'v_lshrrev_b32 v{vl}, 4, v{v16}')
        b_traddr(s, 241, None, vd, vl)
        s(f'v_add_u32 v{vtr}, s{sLB}, v241\nv_xor_b32 v{vtr2}, 64, v{vtr}\ns_lshl_b32 s6, s{sW}, 13\nv_add_u32 v241, s6, v241\nv_xor_b32 v247, 64, v241')
        preread()
        line_voff(s, vxo, vd, vl)
        s(f'v_lshl_add_u32 v{vd}, v{vxo}, 10, v{vd}')
        s(f's_sub_u32 s4, s4, {FE-FH}\ns_subb_u32 s5, s5, 0')
        s(f's_waitcnt vmcnt({2*cfg.pre})')
        post(s, vNON, vFA)
        stamp(s, 8)
        s('s_setprio 0')
        LA = cfg.la
        for i in range(cfg.pre, LA): hload(i)
        for i in range(8):
            step(i)
            if i + LA < 12: hload(i + LA)
            wdma(8 + i)
            if i == cfg.sl: sload(s, SP, 2, True)
        scheck(s, lab + '_f', SP, 2, True)
        stamp(s, 9)
        nl = 12
        for k in range(cfg.lb): hload(nl); nl += 1
        for i in range(8, n):
            step(i)
            for k in range(2):
                if nl < 20: hload(nl); nl += 1
            if i == 12: xload(252)
        stamp(s, 10)
        s(f'v_mov_b32 v1, v{vl}\nv_mov_b32 v7, v{vxo}')
        red_write(s, acc, 72)
        s('s_branch L_red')
        return s
    s('s_setprio 0')
    s('v_lshlrev_b32 v3, 4, v1')
    b_traddr(s, 6, sLB, 7)
    s('v_xor_b32 v5, 64, v6')
    if kind == 'HX':
        for i in range(8): wdma(i)
        preread()
    npre = cfg.hw if kind == 'HY' else cfg.hwx
    for i in range(8, 8 + npre): wdma(i)
    xload(8)
    s(f's_lshr_b32 s6, s{sSB}, 1\ns_lshl_b32 s6, s6, 7\ns_and_b32 s78, s{sW}, 1\ns_lshl_b32 s7, s78, 6\ns_add_u32 s6, s6, s7\ns_add_u32 s6, s6, {FO}')
    s(f's_lshl_b32 s7, s{sSB}, 8\ns_lshl_b32 s78, s78, 4\ns_add_u32 s7, s7, s78\ns_add_u32 s7, s7, {FH}')
    s(f's_cmp_ge_u32 s{sW}, 6\ns_cselect_b32 s6, s6, s7')
    sbase(s, 6)
    stamp(s, 8)
    s('s_waitcnt lgkmcnt(0)')
    s(f's_cmp_ge_u32 s{sW}, 6\ns_cbranch_scc1 {lab}_o')
    sload(s, SP, 4, True); scheck(s, lab + '_ph', SP, 4, True)
    s(f's_branch {lab}_go')
    s(f'{lab}_o:')
    sload(s, SP, 16, False); scheck(s, lab + '_po', SP, 16, False)
    s(f'{lab}_go:')
    stamp(s, 9)
    nl = 0
    for k in range(cfg.lh): hload(nl); nl += 1
    for i in range(n):
        step(i)
        for k in range(2):
            if nl < n and (nl < 12 or nl - 12 <= i): hload(nl); nl += 1
        for k in (8 + npre + 2*i, 9 + npre + 2*i):
            if k < 16: wdma(k)
    stamp(s, 10)
    red_write(s, acc, 72)
    if kind != 'HX': s('s_branch L_red')
    return s

def phaseB_tail():
    s = S()
    s(f'v_lshrrev_b32 v4, 3, v1\nv_and_b32 v5, 7, v1\nv_lshlrev_b32 v5, 1, v5\nv_xor_b32 v5, v4, v5\nv_lshlrev_b32 v5, 4, v5\nv_lshl_add_u32 v5, v4, 8, v5\ns_lshl_b32 s7, s{sW}, 11\nv_add_u32 v76, s7, v5')
    s('v_xor_b32 v77, 16, v76')
    s('v_add_u32 v78, 0x10000, v76\nv_add_u32 v79, 0x10000, v77\nv_add_u32 v80, 0x20000, v76\nv_add_u32 v81, 0x20000, v77')
    R = 84
    for j in range(4):
        s(f'v_lshlrev_b32 v{R+64+2*j}, 16, v{vBX+j}\nv_and_b32 v{R+65+2*j}, 0xffff0000, v{vBX+j}')
    s('s_waitcnt lgkmcnt(0)\ns_barrier')
    stamp(s, 11)
    for p in range(8):
        g, o = [(1, 0), (1, 16384), (1, 32768), (1, 49152), (0, 32768), (0, 49152), (2, 0), (2, 16384)][p]
        if p == 7: s('s_waitcnt lgkmcnt(8)')
        s(f'ds_read_b128 {vr(R+8*p,4)}, v{76+2*g} offset:{o}\nds_read_b128 {vr(R+8*p+4,4)}, v{77+2*g} offset:{o}')
    for p in range(1, 6):
        for j in range(8): s(f'v_add_f32 v{R+j}, v{R+j}, v{R+8*p+j}')
    for j in range(8): s(f'v_mul_f32 v{R+8+j}, 0xbfb8aa3b, v{R+j}')
    for j in range(8): s(f'v_exp_f32 v{R+8+j}, v{R+8+j}')
    for j in range(8): s(f'v_add_f32 v{R+48+j}, v{R+48+j}, v{R+56+j}')
    for j in range(8): s(f'v_add_f32 v{R+8+j}, 1.0, v{R+8+j}')
    for j in range(8): s(f'v_rcp_f32 v{R+8+j}, v{R+8+j}')
    for j in range(8): s(f'v_mul_f32 v{R+j}, v{R+j}, v{R+48+j}')
    for j in range(8): s(f'v_fma_f32 v{R+j}, v{R+j}, v{R+8+j}, v{R+64+j}')
    for j in range(4): s(f'v_cvt_pk_bf16_f32 v{R+24+j}, v{R+2*j}, v{R+2*j+1}')
    s(f'buffer_store_dwordx4 {vr(R+24,4)}, v7, {srd(SOUT)}, s{sXO} offen' + ['', ' sc1', ' nt', ' sc0 sc1', ' sc1 nt'][cfg.ost])
    return s

def fin():
    s = S()
    if cfg.stamps:
        s('s_waitcnt vmcnt(0)')
        stamp(s, 12)
        if cfg.pb >= 0:
            s(f's_cmp_lg_u32 s{sW}, {cfg.pw}\ns_cbranch_scc1 L_nospin\ns_cmp_lg_u32 s2, {cfg.pwg}\ns_cbranch_scc1 L_nospin')
            s(f's_sub_u32 s6, s{sTS+cfg.pb}, s{sTS+cfg.pa}\ns_lshl_b32 s6, s6, 3\ns_min_u32 s6, s6, 40000\ns_add_u32 s6, s6, s{sTS+12}')
            s('L_spin:\ns_memrealtime s[76:77]\ns_waitcnt lgkmcnt(0)\ns_cmp_lt_u32 s76, s6\ns_cbranch_scc1 L_spin\nL_nospin:')
        s(f's_lshl_b32 s6, s2, 3\ns_add_u32 s6, s6, s{sW}\ns_lshl_b32 s6, s6, 6\ns_add_u32 s6, s6, {TS_OFF}\nv_mov_b32 v8, s6')
        s('s_memrealtime s[76:77]\ns_waitcnt lgkmcnt(0)\ns_mov_b32 s99, s76')
        for q in range(4):
            for r in range(4): s(f'v_mov_b32 v{12+r}, s{sTS+4*q+r}')
            s('s_mov_b64 exec, 1')
            s(f'buffer_store_dwordx4 v[12:15], v8, {srd(SWS)}, 0 offen offset:{q*16}')
            s('s_mov_b64 exec, -1\ns_nop 2')
    return s

Cfg.w2t = 1; Cfg.w2at = 0; Cfg.ktry = 0; Cfg.xl = 1; Cfg.fk = 1.0; Cfg.skip = 1; Cfg.f7 = 0.65; Cfg.nomf = 0; Cfg.nosc = 0; Cfg.now = 0; Cfg.slp = 2; Cfg.la = 4; Cfg.lb = 2; Cfg.lh = 4; Cfg.ost = 4; Cfg.pwg = 72; Cfg.cdbg = 0; Cfg.sl = 3; Cfg.nbm = 1; Cfg.hw = 8; Cfg.hwx = 8; Cfg.mt = 0; Cfg.tmaj = 0; Cfg.kvf = 8; Cfg.ystg = 1; Cfg.qat = 7; Cfg.f9 = 0.8

def build():
    out = []
    def put(lab, streams, name):
        l = []
        for x in streams: l += x.l
        if lab: out.append(lab + ':')
        out.extend('    ' + i.text if i.kind != 'label' else i.text for i in finalize(l, name))
    put(None, [prologue()], 'pro')
    if cfg.bonly:
        b = S()
        b('s_waitcnt vmcnt(0)')
        line_voff(b, 4, 5)
        b(f'v_lshl_add_u32 v252, v4, 10, v5\nv_lshlrev_b32 v242, 4, v1\nv_mov_b32 v248, 0\ns_lshl_b32 s6, s{sSB}, 8\ns_add_u32 s6, s6, {FE}')
        sbase(b, 6)
        b(f's_cmp_lt_u32 s{sW}, 6\ns_cselect_b32 s{SO}, s{SD}, s{SO}\ns_cselect_b32 s{SO+1}, s{SD+1}, s{SO+1}\ns_cselect_b32 s{SO+2}, s{SD+2}, s{SO+2}')
        b(f's_cmp_ge_u32 s{sW}, 4\ns_cbranch_scc1 L_bh')
        b(f'v_mov_b32 v252, {WS_BYTES}')
        b('s_barrier'); stamp(b, 7); b('s_branch L_BC\nL_bh:')
        b('s_barrier'); stamp(b, 7); b('s_branch L_BHY' if cfg.bonly == 1 else 's_branch L_BHX')
        put('L_bonly', [b], 'bo')
    put('L_compX', [compute('X')], 'cX')
    put('L_compY', [compute('Y')], 'cY')
    put('L_BC', [phaseB_body('C')], 'BC')
    hs = S(); hs(f's_cmp_eq_u32 s{sTY}, 0\ns_cbranch_scc1 L_helpX')
    put('L_helper', [hs, helperY()], 'hY')
    put('L_BHY', [phaseB_body('HY')], 'BHY')
    lx = S(); lx('L_BHX:')
    put('L_helpX', [helperX(), lx, phaseB_body('HX')], 'hX')
    put('L_red', [phaseB_tail()], 'red')
    put('L_fin', [fin()], 'fin')
    hdr = open('cdna_kernels/' + KN[:-7] + '.s.ref').read().split('; Override')[0]
    txt = hdr + '; @launch grid=(256,1,1) block=(512,1,1) lds=163840\n'
    txt += f'.amdgcn_target "amdgcn-amd-amdhsa--gfx950"\n.text\n.globl {KN}\n.p2align 8\n.type {KN},@function\n{KN}:\n'
    txt += '\n'.join(out) + '\nL_end:\n    s_endpgm\n'
    txt += f'''.section .rodata,"a"
.p2align 6
.amdhsa_kernel {KN}
  .amdhsa_next_free_vgpr 256
  .amdhsa_next_free_sgpr 102
  .amdhsa_accum_offset 256
  .amdhsa_group_segment_fixed_size 0
  .amdhsa_kernarg_size 88
  .amdhsa_user_sgpr_count 2
  .amdhsa_user_sgpr_kernarg_segment_ptr 1
  .amdhsa_system_sgpr_workgroup_id_x 1
.end_amdhsa_kernel
'''
    return txt

if __name__ == '__main__':
    for a in sys.argv[2:]:
        k, v = a.split('='); setattr(cfg, k, float(v) if '.' in v else int(v))
    d = getattr(cfg, 'fsh', 0)
    FKV += d; FH += d; FE += d; FO += d; FQ += d
    KV_OFF += getattr(cfg, 'ksh', 0)
    open(sys.argv[1], 'w').write(build())
```

```python
import sys
from fw import S, I, finalize
KN = 'recurrent_scan__linear_kernel_hedgehog__glu_gated_reglu__prompt_kernel'

class Cfg:
    stamps = 0; hdbg = 0; rt = 0; span = 0
    pa = -1; pb = -1; pw = 0
    mx512 = 1
    prioC = 1; prioH = 0
    tp = 2; pro = 0
    bud = 1000; quiet = 450
    mid2 = 1
    pre = 3
    bonly = 0
cfg = Cfg()

SLOT = [131072, 0, 32768]
KB = 65536; VB = 65536; STDB = 129024; RSB = 130048
KV_OFF = 0x900000
Q_OFF = 0x940000
F_OFF = 0xB40000
FKV, FH, FE, FO, FQ = F_OFF, F_OFF + 0x1000, F_OFF + 0x3000, F_OFF + 0x5000, F_OFF + 0x6000
TS_OFF = 0xB50000
WS_BYTES = 0xC00000
SPIN = 1 << 20
SX, SD, SO, SWS, SOUT, SQKV, SG, SU, SDBG, SPHI = 8, 12, 16, 20, 24, 28, 32, 36, 40, 44
SWH = SO
SP = 28
def srd(b): return f's[{b}:{b+3}]'
sW, sRB, sJ, sTY, sSB, sNB = 48, 49, 50, 51, 52, 53
sA0, sM0, sLBc, sC0, sL4, sL2 = 54, 56, 57, 58, 59, 60
sNON = 62
sT, sT2, sHEAD = 64, 65, 67
sHA, sHM, sHC, sW4 = 68, 69, 70, 71
sQ, sONES, sKV = 72, 74, 78
sWB, sLB, sH0, sH1, sXO, sWBc = 80, 81, 82, 83, 84, 85
sTS = 86
def vr(b, n): return f'v[{b}:{b+n-1}]'
MF = 'v_mfma_f32_32x32x16_bf16'

def stamp(s, idx, force=False):
    if not cfg.stamps: return
    if (cfg.hdbg or cfg.span) and idx != 12 and not force: return
    s('s_memrealtime s[76:77]' if cfg.rt else 's_memtime s[76:77]'); s('s_waitcnt lgkmcnt(0)'); s(f's_mov_b32 s{sTS+idx}, s76')

def build_srd(s, b, lo, nbytes):
    s(f's_mov_b32 s{b}, s{lo}\ns_mov_b32 s{b+1}, s{lo+1}\ns_mov_b32 s{b+2}, {nbytes}\ns_mov_b32 s{b+3}, 0x00020000')

BSTART = [32, 52, 72, 92, 0, 16, 112, 128]
CORDER = [0, 1, 2, 3, 12, 13, 14, 15, 8, 9, 10, 11, 4, 5, 6, 7, 16, 17, 18, 19]
NX0 = 8
def xpieces():
    a, b = (96, 97) if not cfg.stamps else (62, 63)
    r = []
    for c in range(4):
        for g in range(8):
            t = 66 if c*8 + g >= NX0 else 7
            p = S()
            p(f's_add_u32 m0, s{b}, {c*8192+g*1024}\ns_add_u32 s{t}, s{a}, {g*4096+c*256}')
            p(f'buffer_load_dwordx4 v{10+(g&3)}, {srd(SX)}, s{t} offen lds')
            r.append(p.l)
    return r

def merge(w, main, side, every):
    side = list(side)
    for n, i in enumerate(main.l):
        w.l.append(i)
        if side and n % every == every - 1: w.l.extend(side.pop(0))
    for x in side: w.l.extend(x)

def piece(lds_s, lds_o, g_s, g_o, voff, sr):
    p = S()
    p(f's_add_u32 m0, s{lds_s}, {lds_o}\ns_add_u32 s{sT}, s{g_s}, {g_o}')
    p(f'buffer_load_dwordx4 v{voff}, {srd(sr)}, s{sT} offen lds')
    return p.l

def sbase(s, soff): s(f's_add_u32 s4, s{SWS}, s{soff}\ns_addc_u32 s5, s{SWS+1}, 0')
def sload(s, z, n, two):
    sfx = {1: '', 2: 'x2', 4: 'x4', 8: 'x8', 16: 'x16'}[n]
    rg = lambda b: f's{b}' if n == 1 else f's[{b}:{b+n-1}]'
    s(f's_load_dword{sfx} {rg(z)}, s[4:5], 0 glc')
    if two: s(f's_load_dword{sfx} {rg(z+n)}, s[4:5], 128 glc')
def scheck(s, label, z, n, two, pairs=None):
    tot = n * (2 if two else 1)
    pairs = pairs or list(range(tot // 2))
    def test():
        s('s_waitcnt lgkmcnt(0)')
        if tot == 1: s(f's_cmp_eq_u32 s{z}, s{sNON}'); return
        s(f's_xor_b64 s[6:7], s[{z+2*pairs[0]}:{z+2*pairs[0]+1}], s[{sNON}:{sNON+1}]')
        for k in pairs[1:]:
            s(f's_xor_b64 s[76:77], s[{z+2*k}:{z+2*k+1}], s[{sNON}:{sNON+1}]\ns_or_b64 s[6:7], s[6:7], s[76:77]')
        s('s_cmp_eq_u64 s[6:7], 0')
    test()
    if cfg.bonly: return
    s(f's_cbranch_scc1 {label}_x')
    s('s_mov_b32 s75, 0')
    s(f'{label}:')
    if cfg.slp: s(f's_sleep {cfg.slp}')
    sload(s, z, n, two)
    s(f's_add_u32 s75, s75, 1\ns_cmp_gt_u32 s75, {SPIN}\ns_cbranch_scc1 {label}_y')
    test()
    s(f's_cbranch_scc0 {label}')
    s(f'{label}_y:')
    s('s_waitcnt lgkmcnt(0)')
    s(f'{label}_x:')
def post(s, vdat, vaddr, soff='0', needs=None):
    s('s_mov_b64 exec, 1', needs=needs)
    s(f'buffer_store_dword v{vdat}, v{vaddr}, {srd(SWS)}, {soff} offen sc1')
    s('s_mov_b64 exec, -1')

def prologue():
    s = S()
    s('s_cmp_ge_u32 s2, 256\ns_cbranch_scc1 L_end')
    s('s_load_dwordx16 s[64:79], s[0:1], 0\ns_load_dwordx4 s[80:83], s[0:1], 64\ns_load_dwordx2 s[84:85], s[0:1], 80')
    if cfg.stamps: s('s_memtime s[86:87]\ns_memrealtime s[88:89]')
    s('v_lshrrev_b32 v2, 6, v0\nv_and_b32 v1, 63, v0')
    s(f'v_readfirstlane_b32 s{sW}, v2')
    s('s_and_b32 s3, s2, 7\ns_lshr_b32 s4, s2, 3')
    s(f's_cmp_lg_u32 s{sW}, 7\ns_cbranch_scc1 L_nocode')
    s('s_getpc_b64 s[6:7]')
    s('L_pc:')
    s('s_and_b32 s5, s4, 7\ns_lshl_b32 s5, s5, 13\nv_lshl_add_u32 v3, v1, 7, s5\nv_min_u32 v3, L_end-L_pc, v3')
    s('global_load_dword v9, v3, s[6:7]', tag='raw')
    s('L_nocode:')
    s(f's_and_b32 s5, s3, 1\ns_lshl_b32 s5, s5, 3\ns_and_b32 s6, s4, 7\ns_add_u32 s{sRB}, s5, s6')
    s(f's_lshl_b32 s6, s{sW}, 15\ns_lshl_b32 s5, s{sRB}, 17\ns_add_u32 s5, s5, s6')
    s('v_lshrrev_b32 v3, 4, v1\nv_and_b32 v4, 15, v1\nv_xor_b32 v4, v3, v4\nv_lshlrev_b32 v4, 4, v4\nv_lshl_add_u32 v10, v3, 10, v4')
    s('v_xor_b32 v11, 64, v10\nv_xor_b32 v12, 128, v10\nv_xor_b32 v13, 192, v10')
    s('s_waitcnt lgkmcnt(0)')
    if cfg.stamps:
        s('s_mov_b32 s101, s86\ns_mov_b32 s100, s88')
        for q in range(13): s(f's_mov_b32 s{86+q}, s101')
    build_srd(s, SX, 64, 2097152)
    s('s_mov_b32 s96, s5\ns_mov_b32 s97, s6' if not cfg.stamps else 's_mov_b32 s62, s5\ns_mov_b32 s63, s6')
    s(f's_cmp_ge_u32 s{sW}, 4\ns_cbranch_scc1 L_nox')
    for p in xpieces()[:NX0]: s.l.extend(p)
    s('L_nox:')
    build_srd(s, SQKV, 66, 1572864); build_srd(s, SG, 74, 1835008); build_srd(s, SU, 76, 1835008)
    s(f's_lshr_b32 s5, s4, 3\ns_lshr_b32 s{sTY}, s5, 1\ns_and_b32 s5, s5, 1\ns_and_b32 s6, s3, 6\ns_add_u32 s{sJ}, s6, s5')
    if cfg.mx512:
        if cfg.nbm:
            s(f's_lshr_b32 s5, s3, 1\ns_lshl_b32 s5, s5, 3\ns_and_b32 s6, s4, 7\ns_add_u32 s{sSB}, s5, s6')
            s(f's_and_b32 s5, s3, 1\ns_lshl_b32 s5, s5, 2\ns_lshr_b32 s6, s4, 3\ns_add_u32 s{sNB}, s5, s6')
        else:
            s(f's_lshr_b32 s5, s3, 1\ns_lshl_b32 s5, s5, 3\ns_lshr_b32 s6, s4, 2\ns_add_u32 s{sSB}, s5, s6')
            s(f's_and_b32 s5, s3, 1\ns_lshl_b32 s5, s5, 2\ns_and_b32 s6, s4, 3\ns_add_u32 s{sNB}, s5, s6')
    else:
        s(f's_lshl_b32 s5, s3, 2\ns_lshr_b32 s6, s4, 3\ns_add_u32 s{sSB}, s5, s6\ns_and_b32 s{sNB}, s4, 7')
    build_srd(s, SPHI, 68, 16384); build_srd(s, SO, 70, 524288); build_srd(s, SD, 78, 1835008)
    build_srd(s, SOUT, 80, 2097152); build_srd(s, SDBG, 82, 256); build_srd(s, SWS, 84, WS_BYTES)
    s(f's_and_b32 s{sW4}, s{sW}, 3')
    s(f's_mul_i32 s6, s{sJ}, 160\ns_add_u32 s6, s6, 512\ns_and_b32 s7, s{sJ}, 1')
    s('s_lshl_b32 s3, s7, 5\ns_add_u32 s3, s3, s6')
    s('s_xor_b32 s7, s7, 1\ns_lshl_b32 s4, s7, 7\ns_add_u32 s4, s4, s6')
    s(f's_add_u32 s5, s3, 64\ns_lshl_b32 s6, s{sJ}, 6\ns_cmp_eq_u32 s{sTY}, 0\ns_cselect_b32 s5, s6, s5')
    s(f's_mov_b32 s6, {BSTART[0]}')
    for w in range(1, 8): s(f's_cmp_eq_u32 s{sW}, {w}\ns_cselect_b32 s6, {BSTART[w]}, s6')
    s(f's_add_u32 s{sLB}, s{sW}, 4\ns_sub_u32 s7, s{sW}, 2\ns_cmp_ge_u32 s{sW}, 4\ns_cselect_b32 s{sLB}, s7, s{sLB}\ns_add_u32 s7, s{sW}, 2\ns_cmp_ge_u32 s{sW}, 6\ns_cselect_b32 s{sLB}, s7, s{sLB}\ns_cselect_b32 s7, 112, 0\ns_lshl_b32 s{sLB}, s{sLB}, 14')
    s(f's_sub_u32 s7, s6, s7\ns_lshl_b32 s{sWB}, s7, 14\ns_lshl_b32 s7, s{sNB}, 7\ns_add_u32 s{sWB}, s{sWB}, s7')
    s(f's_mul_i32 s{sH0}, s{sSB}, 288\ns_add_u32 s{sH0}, s{sH0}, s6\ns_lshl_b32 s{sH0}, s{sH0}, 10\ns_add_u32 s{sH1}, s{sH0}, {144*1024}')
    s(f's_lshl_b32 s6, s{sSB}, 3\ns_add_u32 s6, s6, s{sW}\ns_lshl_b32 s6, s6, 13\ns_add_u32 s{sXO}, s6, s7')
    if cfg.bonly: s('s_branch L_bonly')
    s(f's_cmp_ge_u32 s{sW}, 4\ns_cbranch_scc1 L_helper')
    s(f's_cmp_eq_u32 s{sTY}, 0\ns_cbranch_scc0 L_compY\ns_branch L_compX')
    return s

XN = 0; ACC = [128, 144, 160, 176]; WF = 192; NRING = 8; PK = 224
vTRL, vTRH, vL16, vKW, vVW, vVW2, vXA, vT = 240, 241, 242, 243, 244, 245, 246, 254
vC, vR2, vNON, vFA, vZ = 246, 247, 248, 252, 251

def compute(ty):
    X = ty == 'X'
    s = S()
    s(f's_setprio {cfg.prioC}')
    s(f'v_lshlrev_b32 v{vL16}, 4, v1')
    s('v_lshrrev_b32 v2, 5, v1\nv_bfe_u32 v3, v1, 2, 2\nv_lshl_add_u32 v4, v2, 3, v3')
    s('v_bfe_u32 v3, v1, 4, 1\nv_lshlrev_b32 v5, 5, v3\nv_and_b32 v3, 3, v1\nv_lshl_add_u32 v5, v3, 3, v5')
    if not X: s(f'v_lshl_add_u32 v{vKW}, v4, 6, v5')
    s(f'v_lshl_add_u32 v{vTRL}, v4, 7, v5\nv_bfe_u32 v4, v1, 3, 1\nv_lshl_add_u32 v{vTRL}, v4, 6, v{vTRL}')
    s(f'v_add_u32 v{vTRH}, 0x20000, v{vTRL}')
    s('v_and_b32 v4, 15, v1\nv_xor_b32 v4, v2, v4\nv_lshlrev_b32 v4, 4, v4\nv_lshl_add_u32 v4, v3, 8, v4')
    s(f'v_bfe_u32 v5, v1, 2, 3\nv_lshl_add_u32 v4, v5, 10, v4\ns_lshl_b32 s6, s{sW}, 15\nv_add_u32 v{vXA}, s6, v4')
    for u in range(1, 8): s(f'v_xor_b32 v{vXA+u}, {u<<5}, v{vXA}')
    s('v_and_b32 v3, 31, v1')
    if X:
        s(f's_lshl_b32 s6, s{sW}, 10\ns_add_u32 s6, s6, {KB}\nv_lshlrev_b32 v4, 3, v1\nv_add_u32 v{vKW}, s6, v4')
        s(f'v_bfe_u32 v4, v1, 2, 2\nv_xor_b32 v4, v2, v4\nv_lshlrev_b32 v4, 3, v4\nv_lshl_add_u32 v4, v3, 5, v4\nv_add_u32 v{vVW}, s6, v4')
        s(f'v_xor_b32 v{vVW2}, 16, v{vVW}')
        s(f's_lshl_b32 s6, s{sRB}, 3\ns_add_u32 s6, s6, s{sJ}\ns_lshl_b32 s6, s6, 4\ns_add_u32 s6, s6, s{sW}\ns_lshl_b32 s6, s6, 10\ns_add_u32 s{sQ}, s6, {Q_OFF}')
    E = PK
    s('v_bfe_u32 v4, v1, 3, 1\nv_and_b32 v5, 3, v1\nv_lshl_add_u32 v4, v4, 2, v5')
    s('v_and_b32 v5, 1, v4\nv_lshlrev_b32 v5, 4, v5\nv_mov_b32 v6, 0x3f80\nv_lshlrev_b32 v6, v5, v6')
    s('v_bfe_u32 v5, v1, 2, 1\nv_cmp_eq_u32 vcc, v5, v2\nv_cndmask_b32 v6, 0, v6, vcc')
    s('v_lshrrev_b32 v4, 1, v4\nv_bfe_u32 v5, v1, 4, 1\nv_lshl_add_u32 v4, v5, 2, v4')
    for r in range(8): s(f'v_cmp_eq_u32 vcc, {r}, v4\nv_cndmask_b32 v{E+r}, 0, v6, vcc')
    s(f's_lshl_b32 s6, s{sRB}, 2\ns_add_u32 s6, s6, s{sW}\ns_mul_i32 s6, s6, {144*1024}')
    s(f's_lshl_b32 s7, s3, 6\ns_add_u32 s{sHA}, s6, s7\ns_lshl_b32 s7, s4, 6\ns_add_u32 s{sHM}, s6, s7\ns_lshl_b32 s7, s5, 6\ns_add_u32 s{sHC}, s6, s7')
    s(f's_mov_b32 s{sONES}, 0x3f803f80')
    setup = s; s = S()
    merge(s, setup, xpieces()[NX0:], 3)
    s('s_barrier')
    stamp(s, 0)
    S1, S2 = vT, 232
    def sumdot(tt):
        for r in range(4):
            z = tt == 0 and r < 2
            for a, b in ((S1 + (r & 1), f's{sONES}'), (S2 + (r & 1), f'v{XN+4*tt+r}')):
                s(f'v_dot2_f32_bf16 v{a}, v{XN+4*tt+r}, {b}, ' + ('0' if z else f'v{a}'))
    for c in range(4):
        s(f's_waitcnt vmcnt({8*(3-c)})')
        if c == 3: stamp(s, 1)
        for u in range(8): s(f'ds_read_b128 {vr(XN+32*c+4*u,4)}, v{vXA+u} offset:{c*8192}')
        for u in range(8): sumdot(8*c + u)
    s('s_barrier')
    s(f'v_add_f32 v{S1}, v{S1}, v{S1+1}\nv_add_f32 v{S2}, v{S2}, v{S2+1}')
    s(f'v_permlane32_swap_b32 v{S1}, v{S2}\nv_add_f32 v{S1}, v{S1}, v{S2}\nv_mul_f32 v{S1}, 0x3b000000, v{S1}\nv_mov_b32 v{S2}, v{S1}\nv_permlane32_swap_b32 v{S1}, v{S2}')
    CM = ACC[3]
    s(f'v_cvt_pk_bf16_f32 v{CM}, -v{S1}, -v{S1}\nv_and_b32 v{CM}, 0xffff0000, v{CM}')
    for r in range(1, 16): s(f'v_mov_b32 v{CM+r}, v{CM}')
    stamp(s, 2)
    side = S()
    side(f'v_mov_b32 v{vZ}, 0')
    side(f'v_fma_f32 v{S2}, -v{S1}, v{S1}, v{S2}\nv_max_f32 v{S2}, 0, v{S2}')
    side(f'v_cvt_pk_bf16_f32 v{S2}, v{S2}, v{S2}\nv_and_b32 v{S2}, 0xffff0000, v{S2}\nv_add_f32 v{S2}, 0x3727c5ac, v{S2}')
    side(f'v_cvt_pk_bf16_f32 v{S2}, v{S2}, v{S2}\nv_and_b32 v{S2}, 0xffff0000, v{S2}\nv_sqrt_f32 v{S2}, v{S2}')
    if X: side(f'v_lshrrev_b32 v{vC}, 2, v{vL16}\nv_and_b32 v{vC}, 0x7c, v{vC}\ns_lshl_b32 s6, s{sW}, 7\nv_add_u32 v250, s6, v{vC}\nv_add_u32 v252, {RSB}, v250')
    side(f'v_cvt_pk_bf16_f32 v234, v{S2}, v{S2}\nv_mov_b32 v235, v234\nv_and_b32 v{S2}, 0xffff0000, v234\nv_rcp_f32 v{S2}, v{S2}')
    if X:
        side(f'v_lshlrev_b32 v253, 1, v250\nv_add_u32 v253, {STDB}, v253\nds_write_b64 v253, v[234:235]\nds_write_b32 v252, v{S2}')
        side(f'v_mul_f32 v{vC}, 0x3fb8aa3b, v{S2}')
    else: side('s_nop 0')
    side(f'v_mul_f32 v{vR2}, v{S2}, v{S2}')
    side(f'v_xor_b32 v254, 64, v{vTRL}\nv_xor_b32 v255, 64, v{vTRH}')
    side = side.l
    cv = []
    for p in range(18):
        if p < 16:
            D = ACC[(p + 2) % 3]
            s(f'{MF} {vr(D,16)}, {vr(E,4)}, {vr(XN+8*p,4)}, {vr(CM,16)}')
        for x in cv[:4]: s(x)
        if side: s.l.append(side.pop(0))
        if p < 16: s(f'{MF} {vr(D,16)}, {vr(E+4,4)}, {vr(XN+8*p+4,4)}, {vr(D,16)}')
        for x in cv[4:]: s(x)
        for _ in range(2):
            if side: s.l.append(side.pop(0))
        q = p - 1
        cv = [f'v_cvt_pk_bf16_f32 v{XN+8*q+j}, v{ACC[(q+2)%3]+2*j}, v{ACC[(q+2)%3]+2*j+1}' for j in range(8)] if 0 <= q < 16 else []
        if p == 14: s('s_waitcnt lgkmcnt(0)\ns_barrier')
        if p == 15: pre_reads_at = len(s.l)
    assert not side
    stamp(s, 3)
    mf = []
    for st in range(10):
        base = SLOT[st % 3]
        if not ((4 <= st < 6) or (X and st < 4)):
            sl = st if st < 4 else st - 6
            accs = [0, 1, 2, 3] if st < 4 else [2, 3, 0, 1]
            seq = [(p, t) for p in range(2) for t in range(8)] if (sl in (0, 3) or not cfg.tmaj) else [(p, t) for t in range(8) for p in range(2)]
            for p, t in seq:
                for c in range(2):
                    mf.append((st, accs[2*p+c], 8*sl + t, (base + c*16384 + t*2048, p), sl == 0 and t == 0))
        else:
            sl = st & 1; a0 = 2 if st in (2, 3) else 0
            for t in range(16):
                for c in range(2):
                    mf.append((st, a0 + c, 16*sl + t, (base + t*2048, c) if X else (base + c*16384 + t*1024, None), sl == 0 and t == 0))
    N = len(mf)
    def ep_h(g, u, sbase, off, PK=PK, defer=None):
        e = []
        for j in range(0, 16, 2):
            for jj in (j, j+1): e.append(f'v_max_f32 v{g+jj}, 0, v{g+jj}')
            for jj in (j, j+1): e.append(f'v_mul_f32 v{u+jj}, v{u+jj}, v{vR2}')
            for jj in (j, j+1): e.append(f'v_mul_f32 v{g+jj}, v{g+jj}, v{u+jj}')
            e.append(f'v_cvt_pk_bf16_f32 v{PK+j//2}, v{g+j}, v{g+j+1}')
            dst = e if defer is None else defer
            if j == 6: dst.append(f'buffer_store_dwordx4 {vr(PK,4)}, v{vL16}, {srd(SWS)}, s{sbase} offen offset:{off} sc1')
            if j == 14: dst.append(f'buffer_store_dwordx4 {vr(PK+4,4)}, v{vL16}, {srd(SWS)}, s{sbase} offen offset:{off+1024} sc1')
        return e
    def ep_hand(a0, a1, kind):
        e = []; k = 0
        for ti, a in enumerate((a0, a1)):
            for hh in range(2):
                hd = 2*ti + hh
                for ee in range(2):
                    b = a + 8*hh + 4*ee; pk = PK + 2*(k % 8); k += 1
                    if kind != 'v':
                        for j in range(4): e.append(f'v_mul_f32 v{b+j}, v{b+j}, v{vC}')
                    e.append(f'v_cvt_pk_bf16_f32 v{pk}, v{b}, v{b+1}')
                    e.append(f'v_cvt_pk_bf16_f32 v{pk+1}, v{b+2}, v{b+3}')
                    if kind == 'v': e.append(f'ds_write_b64 v{vVW2 if ee else vVW}, {vr(pk,2)} offset:{hd*4096}')
                    if kind == 'k': e.append(f'ds_write_b64 v{vKW}, {vr(pk,2)} offset:{hd*4096 + ee*512}')
                if kind == 'q':
                    e.append(f'buffer_store_dwordx4 {vr(PK+4*hd,4)}, v{vL16}, {srd(SWS)}, s{sQ} offen sc1')
                    if hd < 3: e.append(f's_add_u32 s{sQ}, s{sQ}, 4096')
        return e
    A = ACC
    fill = {}; late = {}; posts = {}; mids = []
    skip = (({0: set(), 1: {7}, 2: {8}}[cfg.skip]) if X else ({8} if cfg.skipy else set()))
    fa = f's_lshl_b32 s6, s{sRB}, 2\ns_add_u32 s6, s6, s{sW}\ns_lshl_b32 s6, s6, 5\ns_add_u32 s6, s6, s{sJ}' + ('' if X else '\ns_add_u32 s6, s6, 8') + f'\ns_lshl_b32 s6, s6, 2\ns_add_u32 s6, s6, {FH}\nv_mov_b32 v{vFA}, s6'
    extra = ''
    if X:
        fill[2*32] = (ep_hand(A[0], A[1], 'k'), 2*32 + 17); mids.append(2*32 + 19)
        fill[4*32] = (ep_hand(A[2], A[3], 'q'), 4*32 + 20)
        fill[6*32] = (ep_hand(A[0], A[1], 'v'), 6*32 + 10)
        mids.append(6*32 + 12)
        extra = f'\ns_lshl_b32 s6, s{sRB}, 3\ns_add_u32 s6, s6, s{sJ}\ns_lshl_b32 s6, s6, 5\ns_add_u32 s6, s6, s{sW}\ns_lshl_b32 s6, s6, 2\ns_add_u32 s6, s6, {FQ}\nv_mov_b32 v253, s6'
        posts[5*32 + 10] = (253, '0')
    else:
        d1 = []; d2 = []
        fill[3*32+16] = (ep_h(A[0], A[1], sHA, 0, PK, d1), 3*32 + 31)
        fill[4*32] = (ep_h(A[2], A[3], sHA, 2048, PK + 8, d1), 4*32 + 17)
        fill[6*32] = (ep_h(A[0], A[1], sHM, 0, PK, d2), 6*32 + 15)
        for k, x in enumerate(d1): late[4*32 + 19 + 2*k] = x
        for k, x in enumerate(d2): late[6*32 + 21 + 3*k] = x
        extra = f'\ns_mov_b32 s{sQ}, {FE-FH}'
        posts[7*32 + 20] = (vFA, f's{sQ}')
    fill[1*32+2] = ([f'buffer_load_dword v{vNON}, v{vZ}, {srd(SDBG)}, 0 offen sc1'] + (fa + extra).split('\n'), 1*32 + 22)
    pre9 = []
    if cfg.cpre:
        t = S()
        t(f'v_lshrrev_b32 v249, 4, v{vL16}')
        b_traddr(t, 244, sLB, 250, 249)
        t('v_xor_b32 v246, 64, v244')
        line_voff(t, 250, 243, 249)
        t('v_lshl_add_u32 v243, v250, 10, v243')
        fill[8*32+2] = ([i.text for i in t.l], 8*32 + 20)
        for i in range(8):
            g = []
            for c in range(2):
                g.append(I(f'ds_read_b64_tr_b16 {vr(8*i+4*c,2)}, v{(244, 246)[c]} offset:{2048*i}'))
                g.append(I(f'ds_read_b64_tr_b16 {vr(8*i+4*c+2,2)}, v{(244, 246)[c]} offset:{2048*i+1024}'))
            pre9.append(g)
        ref9 = ownpieces(range(8, 16), sLB, O8, 243, SD, CORDER)
        for k, p in enumerate(ref9): p[-1].needs = [pre9[k // 2][-1]]
    fill[9*32+16] = (ep_h(A[2], A[3], sHC, 0), 9*32 + 31)
    tail = ep_h(A[0], A[1], sHC, 2048, PK + 8)
    def rd(n):
        st, a, xf, off, first = mf[n]
        off, nt = off
        if nt is None: va, o, d = vKW, off, 256
        elif off >= 131072: va, o, d = (vTRH, 255)[nt], off - 131072, 512
        else: va, o, d = (vTRL, 254)[nt], off, 512
        r = WF + 4*(n % NRING)
        return [f'ds_read_b64_tr_b16 {vr(r,2)}, v{va} offset:{o}', f'ds_read_b64_tr_b16 {vr(r+2,2)}, v{va} offset:{o+d}']
    nxt = 0; half = []; pend = []; rdtok = {}
    def issue_reads(limit_frag, maxn):
        nonlocal nxt, half
        k = 0
        while k < maxn:
            if not half:
                if nxt > limit_frag or nxt >= N: break
                half = [(nxt, x) for x in rd(nxt)]; nxt += 1
            f, x = half.pop(0); rdtok[f] = s(x); k += 1
        return k
    passed = 0
    keep = s.l[pre_reads_at:]; del s.l[pre_reads_at:]
    issue_reads(6, 14)
    s.l.extend(keep)
    delay = 0; dead = 0
    for n in range(N):
        st, a, xf, off, first = mf[n]
        if n in fill:
            assert not pend
            pend = list(fill[n][0]); dead = fill[n][1]; delay = 2
        needs = []
        if n % 2 == 0 and (n + 1) in rdtok and not (half and half[0][0] == n + 1): needs = [rdtok[n+1]]
        r = WF + 4*(n % NRING)
        s(f'{MF} {vr(A[a],16)}, {vr(r,4)}, {vr(XN+4*xf,4)}, ' + ('0' if first else vr(A[a],16)), needs=needs)
        lim = min(n + NRING - 1, 32*(passed+1) - 1)
        if n % 32 == 27 and st + 1 not in skip:
            assert nxt == 32*(st+1) and not half
            s('s_waitcnt lgkmcnt(0)')
            if cfg.hdbg and cfg.hb <= st <= cfg.hb + 5: stamp(s, 2*(st-cfg.hb), True)
            s('s_barrier'); passed = st + 1
            if passed + 1 in skip and passed + 1 == 8: passed += 1
            if cfg.hdbg and cfg.hb <= st <= cfg.hb + 5: stamp(s, 2*(st-cfg.hb)+1, True)
            if st in (3, 5): stamp(s, 4 if st == 3 else 5)
            issue_reads(min(n + NRING - 1, N - 1), 6)
            if st == 9:
                s(f'v_readfirstlane_b32 s{sNON}, v{vNON}\ns_lshl_b32 s6, s{sSB}, 8\ns_lshl_b32 s7, s{sW}, 3\ns_add_u32 s6, s6, s7\ns_add_u32 s6, s6, {FE+32}')
                sbase(s, 6); sload(s, SP, 2, True); s(f's_mov_b32 s{sNON+1}, s{sNON}')
            continue
        if n in mids:
            assert not pend
            s('s_barrier', needs=[[i for i in s.l if i.op == 'ds_write_b64'][-1]])
            if st + 1 in skip and st + 1 == 7: passed = st + 1
        behind = (lim - nxt + 1) * 2 + len(half)
        issue_reads(lim, 3 if behind > 2 else 2)
        if n in late: s(late[n])
        if cfg.cpre and n >= 8*32 + 30:
            k = n - (8*32 + 30)
            if k < 16: s.l.extend(pre9[k // 2][2*(k % 2):2*(k % 2) + 2])
            k -= cfg.cpd
            if 0 <= k < 16*cfg.cps and k % cfg.cps == 0: s.l.extend(ref9[k // cfg.cps])
        if n == 3*32 + 4:
            s(f'v_cmp_eq_u32 vcc, 0, v{vNON}\ns_cbranch_vccz L_non{ty}c_x')
            s('s_mov_b32 s75, 0')
            s(f'L_non{ty}c:')
            s(f'buffer_load_dword v{vNON}, v{vZ}, {srd(SDBG)}, 0 offen sc1\ns_waitcnt vmcnt(0)', tag='raw')
            s(f's_add_u32 s75, s75, 1\ns_cmp_gt_u32 s75, {SPIN}\ns_cbranch_scc1 L_non{ty}c_x')
            s(f'v_cmp_eq_u32 vcc, 0, v{vNON}\ns_cbranch_vccnz L_non{ty}c')
            s(f'L_non{ty}c_x:')
        if n in posts: post(s, vNON, posts[n][0], posts[n][1], [[i for i in s.l if i.kind == 'vmst'][-1]])
        if delay > 0: delay -= 1
        elif pend:
            gaps = sum(1 for m in range(n, dead + 1) if m % 32 != 27 or m // 32 + 1 in skip)
            budget = -(-len(pend) // gaps)
            nw = 0
            while pend and budget > 0:
                if pend[0].startswith('ds_write'):
                    if nw and gaps > 1: break
                    nw += 1
                s(pend.pop(0)); budget -= 1
    assert not pend
    stamp(s, 6)
    for x in tail: s(x)
    stamp(s, 7)
    s('s_branch L_BC')
    return s

vOQ, vOG, vW2 = 2, 3, 252
WRB = 72
vOM = 251
def dma_stage(st, X):
    base = SLOT[st % 3]; r = []
    if X and st < 6:
        col = [1024, 0, 2048][st >> 1]
        for b in range(8): r.append(piece(sL2, base + b*1024, sM0, (256*(st & 1) + 8*b)*3072 + col, vOQ, SQKV))
    elif st < 4 or st >= 6:
        sl = st if st < 4 else st - 6
        sb = sA0 if st < 4 else sC0
        for b in range(4):
            for pos, sr in enumerate((SG, SU)): r.append(piece(sL4, base + pos*16384 + b*1024, sb, (128*sl + 8*b)*3584, vOG, sr))
    else:
        for b in range(4):
            row = 256*(st & 1) + 16*b
            for pos, sr in enumerate((SG, SU)): r.append(piece(sL4, base + pos*16384 + b*1024, sM0, row*3584, vOM, sr))
    return r
def cwpieces(w):
    return [piece(sLBc, (w+4)*16384 + k*8192 + c*1024, sWBc, (BSTART[w]+12*k)*16384 + 8192*c, vW2, SD) for k in range(2) for c in range(2)]
sLBx, sWBx = 54, 55
def cwpiecesx(w, es=(0, 1)):
    return [piece(sLBx, (w+4)*16384 + e*2048 + c*1024, sWBx, (BSTART[w]+e)*16384 + 8192*c, vW2, SD) for e in es for c in range(2)]
def cwpieces2():
    return [piece(sLBc, w*8192 + c*1024, sWBc, (BSTART[w]+16)*16384 + 8192*c, vW2, SD) for w in range(4) for c in range(2)]
def ownpieces(steps, sbase, offs, voff=vW2, sr=SWH, rel=None):
    return [piece(sbase, o + c*1024, sWB, (rel[i] if rel else i)*16384 + 8192*c, voff, sr) for i, o in zip(steps, offs) for c in range(2)]
def emit(s, pieces, raw=False):
    for p in pieces:
        for x in p:
            if raw: x.tag = 'raw'
            s.l.append(x)
    return pieces[-1][-1]
def b_traddr(s, dst, sbase, t, lane=1):
    s(f'v_lshrrev_b32 v{t}, 5, v{lane}\nv_bfe_u32 v{dst}, v{lane}, 2, 2')
    s(f'v_lshl_add_u32 v{dst}, v{t}, 2, v{dst}\nv_lshlrev_b32 v{dst}, 7, v{dst}')
    s(f'v_bfe_u32 v{t}, v{lane}, 3, 1\nv_lshl_add_u32 v{dst}, v{t}, 6, v{dst}')
    s(f'v_bfe_u32 v{t}, v{lane}, 4, 1\nv_lshl_add_u32 v{dst}, v{t}, 5, v{dst}\nv_and_b32 v{t}, 3, v{lane}\nv_lshl_add_u32 v{dst}, v{t}, 3, v{dst}')
    if sbase is not None: s(f'v_add_u32 v{dst}, s{sbase}, v{dst}')
def line_voff(s, row, chunk, lane=1):
    s(f'v_lshrrev_b32 v{row}, 3, v{lane}\nv_bfe_u32 v{chunk}, v{lane}, 4, 1\nv_lshlrev_b32 v{chunk}, 2, v{chunk}\nv_xor_b32 v{chunk}, v{lane}, v{chunk}\nv_and_b32 v{chunk}, 7, v{chunk}\nv_lshlrev_b32 v{chunk}, 4, v{chunk}')
O8 = [2048*k for k in range(8)]
def stg_offs(regions): return [(w + 4)*16384 + k*8192 for w in regions for k in range(2)]
def stg_reads(steps, offs, va, tok):
    w = S()
    for i, o in zip(steps, offs):
        for c in range(2):
            f = WRB + 8*i + 4*c
            w(f'ds_read_b64_tr_b16 {vr(f,2)}, v{va+c} offset:{o - 65536}', needs=[tok])
            w(f'ds_read_b64_tr_b16 {vr(f+2,2)}, v{va+c} offset:{o - 65536 + 1024}')
    w.l.insert(12, I('s_waitcnt lgkmcnt(4)'))
    w('s_waitcnt lgkmcnt(0)')
    return w

def softmax_k(s, P, rs, out, t):
    m0, m1, n0, n1 = t
    s(f'v_max3_f32 v{m0}, v{P}, v{P+1}, v{P+2}\nv_max3_f32 v{m1}, v{P+3}, v{P+4}, v{P+5}')
    s(f'v_max3_f32 v{n0}, v{P+6}, v{P+7}, v{P+8}\nv_max3_f32 v{n1}, v{P+9}, v{P+10}, v{P+11}')
    s(f'v_max3_f32 v{m0}, v{m0}, v{P+12}, v{P+13}\nv_max3_f32 v{m1}, v{m1}, v{P+14}, v{P+15}')
    s(f'v_max3_f32 v{m0}, v{m0}, v{n0}, v{n1}\nv_max_f32 v{m0}, v{m0}, v{m1}')
    for j in range(16): s(f'v_sub_f32 v{P+j}, v{P+j}, v{m0}')
    for j in range(16): s(f'v_exp_f32 v{P+j}, v{P+j}')
    s(f'v_add_f32 v{n0}, v{P}, v{P+1}\nv_add_f32 v{n1}, v{P+2}, v{P+3}\nv_add_f32 v{m0}, v{P+4}, v{P+5}\nv_add_f32 v{m1}, v{P+6}, v{P+7}')
    for j in range(8, 16): s(f'v_add_f32 v{t[j%4]}, v{t[j%4]}, v{P+j}')
    s(f'v_add_f32 v{m0}, v{m0}, v{m1}\nv_add_f32 v{n0}, v{n0}, v{n1}\nv_add_f32 v{n0}, v{n0}, v{m0}')
    s(f'v_rcp_f32 v{n0}, v{n0}')
    s(f'v_mul_f32 v{n0}, v{n0}, v{rs}')
    for j in range(0, 16, 2):
        s(f'v_mul_f32 v{P+j}, v{P+j}, v{n0}\nv_mul_f32 v{P+j+1}, v{P+j+1}, v{n0}')
        if j >= 2: s(f'v_cvt_pk_bf16_f32 v{out+j//2-1}, v{P+j-2}, v{P+j-1}')
    s(f'v_cvt_pk_bf16_f32 v{out+7}, v{P+14}, v{P+15}')

def softmax_q(s, P, out, t):
    m0, m1, n0, n1 = t
    s(f'v_max3_f32 v{m0}, v{P}, v{P+1}, v{P+2}\nv_max3_f32 v{m1}, v{P+8}, v{P+9}, v{P+10}')
    s(f'v_max3_f32 v{n0}, v{P+3}, v{P+4}, v{P+5}\nv_max3_f32 v{n1}, v{P+11}, v{P+12}, v{P+13}')
    s(f'v_max3_f32 v{m0}, v{m0}, v{P+6}, v{P+7}\nv_max3_f32 v{m1}, v{m1}, v{P+14}, v{P+15}')
    s(f'v_max_f32 v{m0}, v{m0}, v{n0}\nv_max_f32 v{m1}, v{m1}, v{n1}')
    s(f'v_permlane32_swap_b32 v{m0}, v{m1}')
    s(f'v_max_f32 v{m0}, v{m0}, v{m1}')
    s(f'v_mov_b32 v{m1}, v{m0}')
    s(f'v_permlane32_swap_b32 v{m0}, v{m1}')
    for j in range(16): s(f'v_sub_f32 v{P+j}, v{P+j}, v{m0 if j < 8 else m1}')
    for j in range(16):
        s(f'v_exp_f32 v{P+j}, v{P+j}')
        if j >= 3 and j % 2 == 1: s(f'v_cvt_pk_bf16_f32 v{out+(j-3)//2}, v{P+j-3}, v{P+j-2}')
    s(f'v_cvt_pk_bf16_f32 v{out+7}, v{P+14}, v{P+15}')

def w1touch(s, X, part):
    s(f's_and_b32 s6, s{sRB}, 7\ns_lshl_b32 s6, s6, 6\nv_add_u32 v8, s6, v1')
    s('v_mul_u32_u24 v9, 0xe00, v8')
    d = 253 if part != 2 else 243
    if X:
        s('v_mul_u32_u24 v8, 0xc00, v8')
        s(f's_lshl_b32 s6, s{sJ}, 7\ns_xor_b32 s7, s{sW4}, 1\ns_cmp_eq_u32 s{sW4}, 2\ns_cselect_b32 s7, 2, s7\ns_lshl_b32 s7, s7, 10\ns_add_u32 s6, s6, s7\ns_lshl_b32 s7, s5, 1')
        s(f's_cmp_eq_u32 s{sW4}, 3\ns_cselect_b32 s6, 0x200000, s6\ns_cselect_b32 s7, s7, 0x200000')
        if part == 1: s(f's_cmp_ge_u32 s{sW4}, 2\ns_cselect_b32 s6, 0x200000, s6\ns_mov_b32 s7, 0x200000')
        if part == 2: s(f's_cmp_lt_u32 s{sW4}, 2\ns_cselect_b32 s6, 0x200000, s6')
        s(f'buffer_load_dword v{d}, v8, {srd(SQKV)}, s6 offen')
        if part != 1: s(f'buffer_load_dword v{d+1}, v9, {srd(SG)}, s7 offen\nbuffer_load_dword v{d+2}, v9, {srd(SU)}, s7 offen')
    else:
        s(f's_cmp_eq_u32 s{sW4}, 1\ns_cselect_b32 s6, s4, s3\ns_cmp_eq_u32 s{sW4}, 2\ns_cselect_b32 s6, s5, s6\ns_lshl_b32 s6, s6, 1')
        s(f's_cmp_eq_u32 s{sW4}, 3\ns_cselect_b32 s6, 0x200000, s6')
        if part == 1: s(f's_cmp_ge_u32 s{sW4}, 1\ns_cselect_b32 s6, 0x200000, s6')
        if part == 2: s(f's_cmp_lt_u32 s{sW4}, 1\ns_cselect_b32 s6, 0x200000, s6')
        s(f'buffer_load_dword v{d}, v9, {srd(SG)}, s6 offen\nbuffer_load_dword v{d+1}, v9, {srd(SU)}, s6 offen')

def malltouch(s):
    s(f's_mul_i32 s6, s2, 6144\ns_mul_i32 s7, s2, 7168\nv_lshlrev_b32 v8, 7, v1\nv_min_u32 v9, 6016, v8\nv_min_u32 v8, 7040, v8')
    s(f's_cmp_eq_u32 s{sW}, 4\ns_cselect_b32 s6, s6, 0x200000\nbuffer_load_dword v236, v9, {srd(SQKV)}, s6 offen')
    s(f's_cmp_eq_u32 s{sW}, 5\ns_cselect_b32 s6, s7, 0x200000\nbuffer_load_dword v237, v8, {srd(SG)}, s6 offen')
    s(f's_cmp_eq_u32 s{sW}, 6\ns_cselect_b32 s6, s7, 0x200000\nbuffer_load_dword v242, v8, {srd(SU)}, s6 offen')

def w2touch(s):
    if cfg.w2t == 1:
        s(f's_mul_i32 s6, s2, 7168\ns_lshl_b32 s7, s2, 11\ns_cmp_eq_u32 s{sW}, 7\ns_cselect_b32 s6, s6, 0x200000\ns_cselect_b32 s7, s7, 0x200000')
        s('v_lshlrev_b32 v8, 7, v1\nv_min_u32 v9, 1920, v8\nv_min_u32 v8, 7040, v8')
        s(f'buffer_load_dword v246, v8, {srd(SD)}, s6 offen\nbuffer_load_dword v247, v9, {srd(SO)}, s7 offen')
    if cfg.w2t == 2:
        s(f's_lshr_b32 s6, s2, 3\ns_lshl_b32 s6, s6, 2\ns_add_u32 s75, s6, s{sW4}')
        if cfg.mx512:
            s(f'v_lshrrev_b32 v8, 2, v1\nv_and_b32 v9, 3, v1\nv_lshlrev_b32 v9, 7, v9\nv_lshl_add_u32 v8, v8, 10, v9\ns_and_b32 s7, s{sNB}, 4\ns_lshl_b32 s7, s7, 7\nv_add_u32 v8, s7, v8')
            s(f's_mul_i32 s6, s75, {14*1024}\nbuffer_load_dword v246, v8, {srd(SD)}, s6 offen')
            s(f's_lshr_b32 s6, s75, 2\ns_lshl_b32 s6, s6, 1\ns_and_b32 s7, s{sW}, 1\ns_add_u32 s6, s6, s7\ns_lshl_b32 s6, s6, 13\ns_cmp_ge_u32 s{sW}, 6\ns_cselect_b32 s6, s6, 0x200000')
            s(f'v_min_u32 v9, {8*1024-128}, v8\nbuffer_load_dword v247, v9, {srd(SO)}, s6 offen')

def l2touch():
    r = []
    p = S(); p(f's_lshr_b32 s6, s2, 3\ns_lshl_b32 s6, s6, 2\ns_add_u32 s55, s6, s{sW4}\nv_lshlrev_b32 v19, 7, v1\ns_mul_i32 s6, s55, 14336')
    p(f'buffer_load_dword v244, v19, {srd(SD)}, s6 offen'); r.append(p.l)
    p = S(); p(f'v_min_u32 v19, 6016, v19\ns_mul_i32 s6, s55, 14336\ns_add_u32 s6, s6, 8192\nbuffer_load_dword v245, v19, {srd(SD)}, s6 offen'); r.append(p.l)
    p = S(); p(f'v_lshlrev_b32 v19, 7, v1\ns_lshr_b32 s6, s55, 2\ns_lshl_b32 s6, s6, 1\ns_and_b32 s7, s{sW}, 1\ns_add_u32 s6, s6, s7\ns_lshl_b32 s6, s6, 13\ns_cmp_ge_u32 s{sW}, 6\ns_cselect_b32 s6, s6, 0x200000')
    p(f'buffer_load_dword v243, v19, {srd(SO)}, s6 offen'); r.append(p.l)
    return r

def helper_head(s, X, wop, isq):
    if cfg.mt: malltouch(s)
    if cfg.tp in (1, 2, 4): w1touch(s, X, 0 if cfg.tp == 1 else 1)
    if X:
        s(f's_cmp_lg_u32 s2, 0\ns_cbranch_scc1 L_np\ns_cmp_lg_u32 s{sW}, 4\ns_cbranch_scc1 L_np')
        s('s_memrealtime s[76:77]\ns_waitcnt lgkmcnt(0)\ns_or_b32 s76, s76, 1')
        s('v_mov_b32 v4, s76\nv_mov_b32 v6, 0\ns_mov_b64 exec, 1')
        s(f'buffer_store_dword v4, v6, {srd(SDBG)}, 0 offen sc1', tag='raw')
        s('s_mov_b64 exec, -1')
        s('L_np:')
    s(f's_setprio {cfg.prioH}')
    if not X: s(f'v_lshrrev_b32 v4, 2, v1\nv_and_b32 v5, 3, v1\nv_lshlrev_b32 v5, 4, v5\nv_mul_u32_u24 v{vOM}, 0xe00, v4\nv_add_u32 v{vOM}, v{vOM}, v5')
    line_voff(s, 4, 5)
    s(f'v_mul_u32_u24 v{vOQ}, 0xc00, v4\nv_add_u32 v{vOQ}, v{vOQ}, v5')
    s(f'v_mul_u32_u24 v{vOG}, 0xe00, v4\nv_add_u32 v{vOG}, v{vOG}, v5')
    s(f'v_lshl_add_u32 v{vW2}, v4, 10, v5')
    s(f's_lshl_b32 s{sL4}, s{sW4}, 12\ns_lshl_b32 s{sL2}, s{sW4}, 13')
    s(f's_mul_i32 s6, s{sW4}, {32*3584}\ns_lshl_b32 s7, s5, 1\ns_add_u32 s{sC0}, s6, s7')
    if X: s(f's_mul_i32 s6, s{sW4}, {64*3072}\ns_lshl_b32 s7, s{sJ}, 7\ns_add_u32 s{sM0}, s6, s7')
    else:
        s(f's_lshl_b32 s7, s3, 1\ns_add_u32 s{sA0}, s6, s7')
        s(f's_mul_i32 s6, s{sW4}, {64*3584}\ns_lshl_b32 s7, s4, 1\ns_add_u32 s{sM0}, s6, s7')
    s(f's_lshl_b32 s{sLBc}, s{sW4}, 11\ns_lshl_b32 s6, s{sW4}, 14\ns_lshl_b32 s7, s{sNB}, 7\ns_add_u32 s{sWBc}, s6, s7')
    s(f's_lshl_b32 s{sHEAD}, s{sJ}, 2\ns_add_u32 s{sHEAD}, s{sHEAD}, s{sW4}')
    s(f's_lshl_b32 s{sKV}, s{sHEAD}, 12\ns_add_u32 s{sKV}, s{sKV}, {KV_OFF}')
    s(f's_cmp_lt_u32 s{sW}, 6\ns_cselect_b32 s{SO}, s{SD}, s{SO}\ns_cselect_b32 s{SO+1}, s{SD+1}, s{SO+1}\ns_cselect_b32 s{SO+2}, s{SD+2}, s{SO+2}')
    s('v_lshrrev_b32 v4, 5, v1\nv_lshlrev_b32 v7, 7, v4')
    if isq: s('v_and_b32 v6, 15, v1\nv_lshl_add_u32 v36, v6, 1, v7')
    else: s('v_bfe_u32 v6, v1, 3, 2\nv_and_b32 v36, 3, v1\nv_lshl_add_u32 v6, v6, 2, v36\nv_lshl_add_u32 v36, v6, 1, v7')
    s(f's_lshl_b32 s{sT2}, s{sHEAD}, 9')
    return

def helper_start(s, X, wop, isq):
    stamp(s, 0)
    s('s_barrier')
    stamp(s, 1)
    tok = {0: emit(s, dma_stage(0, X))}
    if cfg.tp in (0, 2): w1touch(s, X, 2 if cfg.tp == 2 else 0)
    if cfg.w2at == 0: w2touch(s)
    s('s_barrier')
    s(f'v_mov_b32 v17, 0\nbuffer_load_dword v16, v17, {srd(SDBG)}, 0 offen sc1')
    if cfg.pro == 0: tok[1] = emit(s, dma_stage(1, X))
    s('s_barrier', needs=[tok[0]])
    if cfg.pro != 0: tok[1] = emit(s, dma_stage(1, X))
    tok[2] = emit(s, dma_stage(2, X))
    for i in range(8):
        s(f'buffer_load_ushort v{200+i}, v36, {srd(SPHI)}, s{sT2} offen offset:{(8*(i >> 2) + (i & 3))*32}')
    if cfg.tp == 4: w1touch(s, X, 2)
    if cfg.w2at == 1: w2touch(s)
    return tok

def nonce_and_wphi(w, lab, wop, bit):
    w(f'v_cmp_eq_u32 vcc, 0, v16\ns_cbranch_vccz {lab}_x')
    w('s_mov_b32 s75, 0')
    w(f'{lab}:')
    w(f'buffer_load_dword v16, v17, {srd(SDBG)}, 0 offen sc1\ns_waitcnt vmcnt(0)', tag='raw')
    w(f's_add_u32 s75, s75, 1\ns_cmp_gt_u32 s75, {SPIN}\ns_cbranch_scc1 {lab}_x')
    w(f'v_cmp_eq_u32 vcc, 0, v16\ns_cbranch_vccnz {lab}')
    w(f'{lab}_x:')
    w(f'v_readfirstlane_b32 s{sNON}, v16\nv_readfirstlane_b32 s{sNON+1}, v16')
    w(f'v_bfe_u32 v6, v1, {bit}, 1\nv_mul_u32_u24 v6, 0x8000, v6\nv_lshl_or_b32 v6, v6, 16, v6')
    for r in range(4):
        w(f'v_lshl_or_b32 v{wop+r}, v{200+2*r+1}, 16, v{200+2*r}\nv_xor_b32 v{wop+r}, v6, v{wop+r}')

def cost(i):
    if i.op in ('v_exp_f32', 'v_rcp_f32') or i.op.startswith('v_permlane'): return 11
    if i.kind == 'mfma': return 36
    if i.kind in ('vm', 'vmst'): return 14
    if i.op in ('v_max3_f32', 'v_fma_f32', 'v_lshl_add_u32', 'v_lshl_or_b32'): return 8.3
    return 5.6

def pack(s, X, work, bars, tok, extra, need10, quiet, frac, late_hi, w1at=None, first=(), tneed={}, pinned={}):
    flat = [(m, w.l) for m, w in work]
    qi = 0; qpos = 0; inloop = False; where = {}
    pieces = []; lgfree = False
    for bi, st in enumerate(bars):
        whole = st == int(st)
        if not lgfree: s('s_waitcnt lgkmcnt(0)')
        lgfree = False
        nd = [tok[t] for t in tneed.get(st, [st] if whole and st <= 9 else [])] + (need10 if st == 10 else [])
        dbg = cfg.hdbg and whole and cfg.hb + 1 <= st <= cfg.hb + 6
        if dbg: stamp(s, 2*(st-cfg.hb-1), True); s('s_nop 0', needs=nd)
        s('s_barrier', needs=nd)
        if dbg: stamp(s, 2*(st-cfg.hb-1)+1, True)
        for tgt in range(3, 10):
            if (w1at or {}).get(tgt, tgt - 2) == st:
                p = dma_stage(tgt, X); tok[tgt] = p[-1][-1]
                if st in first: emit(s, p)
                else: pieces += p
        pieces += extra.get(st, [])
        last = bi + 1 == len(bars)
        BUD = 1e9 if last else cfg.bud * frac.get(st, 1.0)
        hold = []
        if quiet.get(st) == 'all': hold = pieces; pieces = []
        q = quiet.get(st, 0) if quiet.get(st) != 'all' else 0
        if st in pinned: s.l.extend(pinned[st].l)
        used = 0; inexec = False; since = 99 if not inloop and not (qi < len(flat) and qpos == 0 and flat[qi][1][0].op in ('s_waitcnt', 's_memrealtime', 's_memtime')) else 0
        inloop = False
        while qi < len(flat) and flat[qi][0] <= st:
            ins = flat[qi][1][qpos]
            free = not inexec and not inloop and ins.op not in ('s_addc_u32', 's_subb_u32', 's_cselect_b32') and not ins.op.startswith('s_cbranch')
            if pieces and free and ((since >= 6 and used >= q) or ins.tag == 'flush'):
                s.l.extend(pieces.pop(0)); used += 20; since = 0
                continue
            if used + 20*len(pieces) >= BUD and free and ins.tag != 'glue': break
            s.l.append(ins); used += cost(ins); since += 1
            where[id(ins)] = st
            if ('s', 'exec') in ins.wr: inexec = '-1' not in ins.text
            if ins.op.startswith('s_cbranch') and ins.text.split()[1].endswith('_x'): inloop = True
            if ins.kind == 'label' and ins.op.endswith('_x:'): inloop = False
            if ins.op.startswith('s_load') or ins.op.startswith('s_cmp') or ins.op in ('s_xor_b64', 's_or_b64'): inloop = True
            qpos += 1
            if qpos == len(flat[qi][1]): qi += 1; qpos = 0
        for p in pieces: s.l.extend(p)
        pieces = hold
        if whole and qi < len(flat) and qpos == 0 and flat[qi][0] == st + 0.5 and (st + 0.5) not in bars:
            s.l.extend(flat[qi][1]); qi += 1; lgfree = True
    assert qi == len(flat)
    l = []; hi = False
    bidx = [k for k, i in enumerate(s.l) if i.op == 's_barrier']
    for k, i in enumerate(s.l):
        want = i.kind == 'mfma' or (k > bidx[late_hi] and i.kind in ('vm', 'vmst'))
        if i.kind in ('mfma', 'valu', 'vm', 'vmst', 'vmlds', 'ds') and want != hi and i.tag != 'raw':
            l.append(I(f's_setprio {3 if want else cfg.prioH}')); hi = want
        l.append(i)
    s.l = l
    return where

def helperX():
    s = S(); X = True
    WK, RS, KF, KVA = 8, 20, 24, 40
    PT = 136; ID = 224; TT = 200; FR = 136
    vB1, vB2, vRD, vKVA, vL16h, vST = 232, 233, 234, 235, 238, 239
    helper_head(s, X, WK, False)
    s(f'v_lshlrev_b32 v{vL16h}, 4, v1\ns_lshl_b32 s6, s{sW4}, 12\ns_add_u32 s6, s6, {KB}\nv_lshlrev_b32 v5, 3, v1\nv_add_u32 v{vRD}, s6, v5')
    s('v_bfe_u32 v5, v1, 2, 2\nv_lshl_add_u32 v5, v4, 2, v5')
    s('v_and_b32 v7, 3, v1\nv_xor_b32 v7, v7, v4\nv_lshlrev_b32 v7, 3, v7\nv_lshl_add_u32 v7, v5, 5, v7\nv_add_u32 v7, s6, v7')
    s(f'v_lshlrev_b32 v6, 3, v5\nv_add_u32 v6, {STDB}, v6')
    s(f'v_bfe_u32 v5, v1, 4, 1\nv_cmp_eq_u32 vcc, 1, v5\nv_cndmask_b32 v{vB1}, v7, v6, vcc')
    s(f'v_xor_b32 v7, 16, v7\nv_add_u32 v7, 256, v7\nv_add_u32 v6, 64, v6\nv_cndmask_b32 v{vB2}, v7, v6, vcc')
    s(f'v_mov_b32 v6, 512\nv_mov_b32 v7, 128\nv_cndmask_b32 v{vST}, v6, v7, vcc')
    s(f'v_and_b32 v5, 31, v1\nv_min_u32 v5, 16, v5\nv_lshl_add_u32 v5, v4, 5, v5\nv_lshlrev_b32 v{vKVA}, 2, v5')
    s('v_and_b32 v5, 1, v1\nv_lshlrev_b32 v5, 4, v5\nv_mov_b32 v6, 0x3f80\nv_lshlrev_b32 v6, v5, v6')
    s('v_bfe_u32 v5, v1, 4, 1\nv_cmp_eq_u32 vcc, v5, v4\nv_cndmask_b32 v6, 0, v6, vcc\nv_bfe_u32 v5, v1, 1, 3')
    for r in range(8): s(f'v_cmp_eq_u32 vcc, {r}, v5\nv_cndmask_b32 v{ID+r}, 0, v6, vcc')
    s(f's_lshl_b32 s{sLBx}, s{sW4}, 12\ns_lshl_b32 s6, s{sW4}, 1\ns_and_b32 s7, s{sW4}, 2\ns_lshl_b32 s7, s7, 2\ns_add_u32 s6, s6, s7\ns_lshl_b32 s6, s6, 14\ns_lshl_b32 s7, s{sNB}, 7\ns_add_u32 s{sWBx}, s6, s7')
    tok = helper_start(s, X, WK, False)
    work = []
    def seg(minb):
        w = S(); work.append((minb, w)); return w
    w = seg(1)
    w(f'v_and_b32 v5, 31, v1\nv_lshlrev_b32 v5, 2, v5\nv_add_u32 v5, {RSB}, v5')
    for rt in range(4): w(f'ds_read_b32 v{RS+rt}, v5 offset:{rt*128}')
    nonce_and_wphi(w, 'L_nonX', WK, 2)
    w(f's_lshl_b32 s6, s{sHEAD}, 7\ns_add_u32 s6, s6, {FKV+64}\nv_mov_b32 v17, s6')
    sbase(w, 6)
    w(f's_lshl_b32 s7, s{sRB}, 2\ns_sub_u32 s6, s6, 64\ns_add_u32 s6, s6, s7\nv_mov_b32 v18, s6')
    w(f's_cmp_lg_u32 s{sRB}, 0\ns_cbranch_scc1 L_zero_x')
    for r in range(4): w(f'v_mov_b32 v{FR+r}, 0')
    for q in range(4): w(f'buffer_store_dwordx4 {vr(FR,4)}, v{vL16h}, {srd(SWS)}, s{sKV} offen offset:{q*1024} sc1', tag='raw')
    w('s_waitcnt vmcnt(0)', tag='raw')
    w('s_mov_b64 exec, 1')
    w(f'buffer_store_dword v16, v17, {srd(SWS)}, 0 offen sc1', tag='raw')
    w('s_mov_b64 exec, -1')
    w('L_zero_x:')
    w = seg(2.5)
    for rt in range(4):
        w(f'ds_read_b64 {vr(KF+4*rt,2)}, v{vRD} offset:{rt*1024}\nds_read_b64 {vr(KF+4*rt+2,2)}, v{vRD} offset:{rt*1024+512}')
    for rt in range(4): w(f'{MF} {vr(PT+16*rt,16)}, {vr(WK,4)}, {vr(KF+4*rt,4)}, 0')
    T4 = (4, 5, 6, 7)
    PH = [56, 64, 24, 32]; TP = [216, 56, 64, 24]
    tr_mm = lambda rt: [[I(f'{MF} {vr(TT,16)}, {vr(PH[rt],4)}, {vr(ID,4)}, 0')], [I(f'{MF} {vr(TT,16)}, {vr(PH[rt]+4,4)}, {vr(ID+4,4)}, {vr(TT,16)}')]]
    tr_cv = lambda rt: [I(f'v_cvt_pk_bf16_f32 v{TP[rt]+j}, v{TT+2*j}, v{TT+2*j+1}') for j in range(8)]
    softmax_k(w, PT, RS, PH[0], T4)
    for rt in range(1, 4):
        m = S(); softmax_k(m, PT + 16*rt, RS + rt, PH[rt], T4)
        merge(w, m, tr_mm(rt - 1) + [[], tr_cv(rt - 1)], 8)
    for x in tr_mm(3): w.l.extend(x)
    sload(w, 44, 1, False); scheck(w, 'L_pollz', 44, 1, False)
    w.l.extend(tr_cv(3))
    w = seg(6.5)
    for rt in range(4):
        for ks in range(2):
            f = FR + 8*rt + 4*ks
            lastv = w(f'ds_read_b64_tr_b16 {vr(f,2)}, v{vB1}\nds_read_b64_tr_b16 {vr(f+2,2)}, v{vB2}')
            if rt < 3 or ks < 1: w(f'v_add_u32 v{vB1}, v{vB1}, v{vST}\nv_add_u32 v{vB2}, v{vB2}, v{vST}')
        if rt == 2: w('s_waitcnt lgkmcnt(8)')
    for rt in range(4):
        for ks in range(2):
            w(f'{MF} {vr(KVA,16)}, {vr(TP[rt]+4*ks,4)}, {vr(FR+8*rt+4*ks,4)}, ' + ('0' if rt == 0 and ks == 0 else vr(KVA,16)))
    for i in w.l: i.tag = i.tag or 'glue'
    if cfg.skip != 1: w = seg(7)
    w('s_mov_b32 s76, 0x1ffff\ns_mov_b32 s77, 0x1ffff')
    w('s_mov_b64 exec, s[76:77]')
    for r in range(16): at = w(f'buffer_atomic_add_f32 v{KVA+r}, v{vKVA}, {srd(SWS)}, s{sKV} offen offset:{r*256}')
    w('s_mov_b64 exec, -1')
    if cfg.xcw:
        for p in cwpiecesx(0): w.l.extend(p); tok['cw0'] = p[-1]
    for i in w.l: i.tag = i.tag or 'glue'
    stamp(w, 2)
    w = seg(7 if cfg.skip == 2 else 8)
    post(w, 16, 18, '0', [at])
    for i in w.l: i.tag = 'glue'
    stamp(w, 3)
    bars = [1, 2, 2.5, 3, 4, 5, 6, 6.5] + [[7, 8], [8], [7]][cfg.skip] + [9, 10]
    c9 = cwpieces2()
    extra = {1: cwpieces(1), 3: cwpieces(2), 8: cwpieces(0) + cwpieces(3), 9: c9}
    if cfg.xcw: extra = {1: cwpiecesx(1), 3: cwpiecesx(2), 5: cwpiecesx(3, (0,)), 8: cwpiecesx(3, (1,)), 9: c9}
    tok['cw'] = extra[8][-1][-1]
    if cfg.skip == 2:
        extra[7] = extra.pop(8)
        where = pack(s, X, work, bars, tok, extra, [c9[-1][-1]], {2: 'all', 4: cfg.quiet, 7: cfg.q7},
                     {2.5: cfg.f25, 3: cfg.fk, 4: cfg.fk, 5: cfg.fk, 6: 0.45, 6.5: 0.4, 7: 2}, -3, None, (6, 7) if cfg.f8 else (6,), {7: [7, 8], 9: [9, 'cw', 'cw0']})
    elif cfg.skip:
        where = pack(s, X, work, bars, tok, extra, [c9[-1][-1]], {2: 'all', 4: cfg.quiet, 8: 30},
                     {2.5: cfg.f25, 3: cfg.fk, 4: cfg.fk, 5: cfg.fk, 6: 0.45}, -4, {8: 6.5, 9: 8, 4: cfg.s4}, (6.5, 8) if cfg.f8 else (6.5,), {6.5: [7], 9: [9, 'cw', 'cw0']})
    else:
        where = pack(s, X, work, bars, tok, extra, [c9[-1][-1]], {2: 'all', 4: cfg.quiet, 7: 100, 8: 30},
                     {2.5: cfg.f25, 3: cfg.fk, 4: cfg.fk, 5: cfg.fk, 6: 0.45, 6.5: 0.4}, -4, None, (6,), {9: [9, 'cw', 'cw0']})
    assert where[id(lastv)] < 7
    return s

def own_first(s, lab):
    pass

def helperY():
    s = S(); X = False
    WQ, QF, KVA = 8, 24, 40
    PT = 136; vKVA, vL16h, vSA = 235, 238, 240
    helper_head(s, X, WQ, True)
    s(f'v_lshlrev_b32 v{vL16h}, 4, v1')
    s(f'v_and_b32 v5, 31, v1\nv_min_u32 v5, 16, v5\nv_lshl_add_u32 v5, v4, 5, v5\nv_lshlrev_b32 v{vKVA}, 2, v5')
    s(f's_add_u32 s79, s{sLBc}, 65536')
    b_traddr(s, vSA, 79, 11)
    s(f'v_xor_b32 v{vSA+1}, 64, v{vSA}')
    tok = helper_start(s, X, WQ, True)
    work = []
    def seg(minb):
        w = S(); work.append((minb, w)); return w
    w = seg(3)
    nonce_and_wphi(w, 'L_nonY', WQ, 4)
    w(f's_lshl_b32 s6, s{sRB}, 3\ns_add_u32 s6, s6, s{sJ}\ns_lshl_b32 s{sQ}, s6, 14\ns_lshl_b32 s7, s{sW4}, 12\ns_add_u32 s{sQ}, s{sQ}, s7\ns_add_u32 s{sQ}, s{sQ}, {Q_OFF}')
    w(f's_lshl_b32 s6, s6, 7\ns_add_u32 s6, s6, {FQ}')
    sbase(w, 6)
    w(f's_lshl_b32 s6, s{sRB}, 5\ns_add_u32 s6, s6, s{sHEAD}\ns_lshl_b32 s6, s6, 2\ns_add_u32 s6, s6, {FO}\nv_mov_b32 v18, s6')
    w = seg(cfg.qat - 0.5)
    sload(w, 44, 4, False)
    w = seg(cfg.qat)
    stamp(w, 2)
    scheck(w, 'L_pollq', 44, 4, False)
    stamp(w, 3)
    for rt in range(4): w(f'buffer_load_dwordx4 {vr(QF+4*rt,4)}, v{vL16h}, {srd(SWS)}, s{sQ} offen offset:{rt*1024} sc1')
    w(f's_lshl_b32 s6, s{sHEAD}, 7\ns_add_u32 s6, s6, {FKV}')
    sbase(w, 6)
    w('s_mov_b32 s73, 0', tag='flush')
    for rt in range(4): w(f'{MF} {vr(PT+16*rt,16)}, {vr(WQ,4)}, {vr(QF+4*rt,4)}, 0')
    T4 = (4, 5, 6, 7)
    PQ = [56, 64, 200, 208]
    for rt in range(4): softmax_q(w, PT + 16*rt, PQ[rt], T4)
    def kvloads(w):
        for r in range(16): w(f'buffer_load_dword v{KVA+r}, v{vKVA}, {srd(SWS)}, s{sKV} offen offset:{r*256} sc1', tag='raw')
    if cfg.ktry:
        w = seg(9)
        sload(w, SP, 16, False)
        w('s_waitcnt lgkmcnt(0)')
        w(f's_xor_b64 s[6:7], s[{SP}:{SP+1}], s[{sNON}:{sNON+1}]')
        for k in range(1, 8): w(f's_xor_b64 s[76:77], s[{SP+2*k}:{SP+2*k+1}], s[{sNON}:{sNON+1}]\ns_or_b64 s[6:7], s[6:7], s[76:77]')
        w('s_cmp_eq_u64 s[6:7], 0\ns_cbranch_scc0 L_try_x')
        kvloads(w)
        w('s_mov_b32 s73, 1')
        w('L_try_x:')
    w = seg(9.5)
    sload(w, SP, 16, False)
    w = seg(10)
    stamp(w, 4)
    if cfg.yw == 1: emit(w, ownpieces(range(8, 16), sLB, O8))
    w('s_cmp_eq_u32 s73, 1\ns_cbranch_scc1 L_kv_x')
    scheck(w, 'L_pollkv', SP, 16, False)
    kvloads(w)
    w('L_kv_x:')
    stamp(w, 5)
    if cfg.yw == 2:
        emit(w, ownpieces(range(8, 16), sLB, O8)); w('s_waitcnt vmcnt(16) lgkmcnt(0)')
    else: w('s_waitcnt vmcnt(0) lgkmcnt(0)')
    w('v_and_b32 v4, 27, v1\nv_cmp_eq_u32 vcc, 17, v4\nv_mov_b32 v4, 0x3f803f80')
    for r in range(8): w(f'v_cvt_pk_bf16_f32 v{KVA+r}, v{KVA+2*r}, v{KVA+2*r+1}')
    for r in range(8): w(f'v_cndmask_b32 v{KVA+r}, v{KVA+r}, v4, vcc')
    OT = [136, 168, 24, 216]; ON = [152, 184, 48 - 0, 232]
    ON[2] = 0
    w(f'v_mov_b32 v3, v{vL16h}\nv_mov_b32 v248, v16\nv_mov_b32 v249, v18')
    ON = [152, 184, 8, 232]
    for rt in range(4):
        w(f'{MF} {vr(OT[rt],16)}, {vr(KVA,4)}, {vr(PQ[rt],4)}, 0')
        w(f'{MF} {vr(ON[rt],16)}, {vr(KVA+4,4)}, {vr(PQ[rt]+4,4)}, 0')
    w(f's_lshl_b32 s6, s{sRB}, 2\ns_mul_i32 s6, s6, 144\ns_add_u32 s6, s6, s{sHEAD}\ns_add_u32 s6, s6, 112\ns_lshl_b32 s79, s6, 10')
    w('v_mov_b32 v4, 0x358637bd')
    for rt in range(4):
        o = OT[rt]; n = ON[rt]
        w(f'v_rcp_f32 v{o+9}, v{o+9}\nv_rcp_f32 v{n+9}, v{n+9}')
        w(f'v_fma_f32 v{o+8}, v{o+8}, v{o+9}, v4\nv_fma_f32 v{o+8}, v{n+8}, v{n+9}, v{o+8}\nv_rcp_f32 v{o+8}, v{o+8}')
        w(f'v_mul_f32 v{o+9}, v{o+9}, v{o+8}\nv_mul_f32 v{n+9}, v{n+9}, v{o+8}')
        for j in range(8): w(f'v_mul_f32 v{o+j}, v{o+j}, v{o+9}')
        for j in range(8): w(f'v_fma_f32 v{o+j}, v{n+j}, v{n+9}, v{o+j}')
        for j in range(0, 8, 2): w(f'v_cvt_pk_bf16_f32 v{o+12+j//2}, v{o+j}, v{o+j+1}')
        ost = w(f'buffer_store_dwordx4 {vr(o+12,4)}, v3, {srd(SWS)}, s79 offen sc1')
        if rt < 3: w(f's_add_u32 s79, s79, {144*1024}')
    stamp(w, 6)
    post(w, 248, 249, '0', [ost])
    stamp(w, 7)
    c2 = cwpieces2()
    oa, ob = stg_offs([0, 1]), stg_offs([2, 3])
    ga, gb = ownpieces(range(4), sLBc, oa), ownpieces(range(4, 8), sLBc, ob)
    ra, rb_ = stg_reads(range(4), oa, vSA, ga[-1][-1]), stg_reads(range(4, 8), ob, vSA, gb[-1][-1])
    extra = {1: ga, 4: gb + cwpieces(0), 5: cwpieces(1), 6: cwpieces(2), 7: cwpieces(3), 9: c2}
    if cfg.l2t:
        t = l2touch(); extra[5] += t[:2]; extra[6] += t[2:]
    tok['cw'] = [p for p in extra[7]][-1][-1]
    if cfg.skipy:
        pack(s, X, work, [1, 2, 3, 4, 5, 6, 7, 9, 10], tok, extra, [c2[-1][-1]], {}, {7: cfg.f7 + 1, 9: cfg.f9}, -3, None, (6,), {7: [7, 8], 9: [9, 'cw']}, {3: ra, 6: rb_})
    else:
        extra[8] = extra.pop(9)
        pack(s, X, work, list(range(1, 11)), tok, extra, [c2[-1][-1]], {}, {7: cfg.f7, 8: 0.9, 9: cfg.f9}, -3, None, (), {9: [9, 'cw']}, {3: ra, 6: rb_})
    s('s_branch L_BHY')
    return s

BACC = [8, 24, 40, 56]; BW = 232; vBX = 248
def red_write(s, acc, t):
    s(f'v_and_b32 v4, 31, v1\nv_lshrrev_b32 v5, 5, v1\nv_and_b32 v6, 7, v1\nv_xor_b32 v6, v5, v6\nv_lshlrev_b32 v6, 4, v6\nv_lshl_add_u32 v6, v4, 8, v6\nv_add_u32 v{t}, s{sLB}, v6')
    for k in range(1, 4): s(f'v_xor_b32 v{t+k}, {k<<5}, v{t}')
    for nt in range(2):
        for st in range(2):
            for q in range(4):
                if q == 3 and nt == 1 and st == 1: s('s_waitcnt lgkmcnt(8)')
                s(f'ds_write_b128 v{t+q}, {vr(acc[2*nt+st]+4*q,4)} offset:{st*8192 + nt*128}')
    s('s_waitcnt vmcnt(0)')

def phaseB_body(kind):
    s = S(); lab = f'L_B{kind}'
    C = kind == 'C'; n = 20 if C else 16
    order = CORDER if C else list(range(16))
    if C:
        acc = [160, 176, 192, 208]; bw = 224; vl, v16, vd, vtr, vxo, wr, vtr2 = 240, 242, 243, 244, 245, 96, 246
        hreg = lambda i: 8*i if i < 12 else 8*(i - 12)
        if cfg.cpre:
            wr = 0; hreg = lambda i: 64 + 8*i if i < 12 else 8*(i - 12)
    else:
        acc = BACC; bw = BW; vl, v16, vd, vtr, vxo, wr, vtr2 = 1, 3, vW2, 6, 7, WRB, 5
        hreg = lambda i: 136 + 8*i if i < 12 else WRB + 8*(i - 12)
    hoff = [0]
    def hload(i):
        rel = order[i]
        if rel // 4 != hoff[0]:
            d = (rel // 4 - hoff[0]) * 4096; hoff[0] = rel // 4
            op = 's_add_u32' if d > 0 else 's_sub_u32'
            s(f'{op} s{sH0}, s{sH0}, {abs(d)}\n{op} s{sH1}, s{sH1}, {abs(d)}')
        for c in range(2):
            s(f'buffer_load_dwordx4 {vr(hreg(i)+4*c,4)}, v{v16}, {srd(SWS)}, s{sH0+c} offen offset:{(rel%4)*1024}' + (' sc1' if not cfg.nosc else ''))
    wt = {}; rt_ = {}
    def rd(i, f):
        va, o0 = ((vtr, vtr2), (i % 8)*2048) if i < 16 else ((241, 247), (i - 16)*2048)
        for c in range(2):
            s(f'ds_read_b64_tr_b16 {vr(f+4*c,2)}, v{va[c]} offset:{o0}', needs=[wt[i]] if i in wt else [])
            rt_[i] = s(f'ds_read_b64_tr_b16 {vr(f+4*c+2,2)}, v{va[c]} offset:{o0 + 1024}')
    def wdma(i):
        if cfg.now: return
        for p in ownpieces([i], sLB, [(i % 8)*2048], vd, SD if C else SWH, order):
            if i - 8 in rt_: p[-1].needs = [rt_[i-8]]
            s.l.extend(p); wt[i] = p[-1]
    def preread():
        for i in range(8):
            rd(i, wr + 8*i)
            if i % 2 == 1 and i >= 3: s('s_waitcnt lgkmcnt(8)')
    def step(i):
        if 8 <= i + 1 < n: rd(i + 1, bw + 8*((i + 1) % 2))
        f = wr + 8*i if i < 8 else bw + 8*(i % 2)
        for nt in range(2):
            for st in range(2):
                a = acc[2*nt+st]
                if cfg.nomf: s(f'v_xor_b32 v{a}, v{f+4*nt}, v{hreg(i)+4*st}'); continue
                s(f'{MF} {vr(a,16)}, {vr(f+4*nt,4)}, {vr(hreg(i)+4*st,4)}, ' + ('0' if i == 0 else vr(a,16)))
        if cfg.cdbg and i in (0, 3, 7, 11, 15): stamp(s, (0, 3, 7, 11, 15).index(i))
    def xload(t):
        s(f'v_lshrrev_b32 v{t}, 3, v{vl}\nv_and_b32 v{vxo}, 7, v{vl}\nv_lshlrev_b32 v{vxo}, 4, v{vxo}\nv_lshl_add_u32 v{vxo}, v{t}, 10, v{vxo}')
        s(f'buffer_load_dwordx4 {vr(vBX,4)}, v{vxo}, {srd(SX)}, s{sXO} offen')
    if C:
        s('s_setprio 3')
        scheck(s, lab + '_e', SP, 2, True)
        for i in range(cfg.pre): hload(i)
        s(f'v_lshrrev_b32 v{vl}, 4, v{v16}')
        b_traddr(s, 241, None, vd, vl)
        s(f'v_add_u32 v{vtr}, s{sLB}, v241\nv_xor_b32 v{vtr2}, 64, v{vtr}\ns_lshl_b32 s6, s{sW}, 13\nv_add_u32 v241, s6, v241\nv_xor_b32 v247, 64, v241')
        if not cfg.cpre:
            preread()
            line_voff(s, vxo, vd, vl)
            s(f'v_lshl_add_u32 v{vd}, v{vxo}, 10, v{vd}')
        s(f's_sub_u32 s4, s4, {FE-FH}\ns_subb_u32 s5, s5, 0')
        s(f's_waitcnt vmcnt({2*cfg.pre})')
        post(s, vNON, vFA)
        if cfg.b11: s(f's_cmp_lg_u32 s{sTY}, 0\ns_cbranch_scc1 L_nb11\ns_barrier\nL_nb11:')
        stamp(s, 8)
        s('s_setprio 0')
        LA = cfg.la
        for i in range(cfg.pre, LA): hload(i)
        for i in range(8):
            step(i)
            if i + LA < 12: hload(i + LA)
            if not cfg.cpre: wdma(8 + i)
            if i == cfg.sl: sload(s, SP, 2, True)
        scheck(s, lab + '_f', SP, 2, True)
        stamp(s, 9)
        nl = 12
        for k in range(cfg.lb): hload(nl); nl += 1
        for i in range(8, n):
            step(i)
            for k in range(2):
                if nl < 20: hload(nl); nl += 1
            if i == 12: xload(252)
        stamp(s, 10)
        s(f'v_mov_b32 v1, v{vl}\nv_mov_b32 v7, v{vxo}')
        red_write(s, acc, 72)
        s('s_branch L_red')
        return s
    s('s_setprio 0')
    s('v_lshlrev_b32 v3, 4, v1')
    b_traddr(s, 6, sLB, 7)
    s('v_xor_b32 v5, 64, v6')
    s(f's_lshr_b32 s6, s{sSB}, 1\ns_lshl_b32 s6, s6, 7\ns_and_b32 s78, s{sW}, 1\ns_lshl_b32 s7, s78, 6\ns_add_u32 s6, s6, s7\ns_add_u32 s6, s6, {FO}')
    s(f's_lshl_b32 s7, s{sSB}, 8\ns_lshl_b32 s78, s78, 4\ns_add_u32 s7, s7, s78\ns_add_u32 s7, s7, {FH}')
    s(f's_cmp_ge_u32 s{sW}, 6\ns_cselect_b32 s6, s6, s7')
    sbase(s, 6)
    def snap():
        s(f's_cmp_ge_u32 s{sW}, 6\ns_cbranch_scc1 {lab}_so')
        sload(s, SP, 4, True); s(f's_branch {lab}_sx\n{lab}_so:'); sload(s, SP, 16, False); s(f'{lab}_sx:')
    if kind == 'HX':
        if cfg.b11 == 1: s('s_barrier')
        for i in range(8):
            if cfg.b11 == 2 and i == 3: s('s_barrier')
            wdma(i)
        preread()
    early = kind == 'HX' and cfg.esn
    if early: s('s_waitcnt lgkmcnt(0)'); snap()
    npre = cfg.hw if kind == 'HY' else cfg.hwx
    if kind == 'HY' and cfg.yw: npre = -100
    for i in range(8, 8 + npre): wdma(i)
    xload(8)
    stamp(s, 8)
    if not early: s('s_waitcnt lgkmcnt(0)')
    def gate(k, first):
        s(f's_cmp_ge_u32 s{sW}, 6\ns_cbranch_scc1 {lab}_o{k}')
        if first: sload(s, SP, 4, True)
        scheck(s, f'{lab}_ph{k}', SP, 4, True, [[0, 2], [1, 3], [0, 1, 2, 3]][k])
        s(f's_branch {lab}_go{k}')
        s(f'{lab}_o{k}:')
        if first: sload(s, SP, 16, False)
        scheck(s, f'{lab}_po{k}', SP, 16, False, [[0, 1, 2, 3], [4, 5, 6, 7], list(range(8))][k])
        s(f'{lab}_go{k}:')
    gate(0 if cfg.g2 >= 0 else 2, not early)
    stamp(s, 9)
    nl = 0
    for k in range(cfg.lh): hload(nl); nl += 1
    for i in range(n):
        step(i)
        if i == cfg.g2: gate(1, False)
        for k in range(2):
            if nl < n and (nl < 12 or nl - 12 <= i) and (nl < 8 or i >= cfg.g2): hload(nl); nl += 1
        for k in (8 + npre + 2*i, 9 + npre + 2*i):
            if 8 <= k < 16: wdma(k)
    stamp(s, 10)
    red_write(s, acc, 72)
    if kind != 'HX': s('s_branch L_red')
    return s

def phaseB_tail():
    s = S()
    s(f'v_lshrrev_b32 v4, 3, v1\nv_and_b32 v5, 7, v1\nv_lshlrev_b32 v5, 1, v5\nv_xor_b32 v5, v4, v5\nv_lshlrev_b32 v5, 4, v5\nv_lshl_add_u32 v5, v4, 8, v5\ns_lshl_b32 s7, s{sW}, 11\nv_add_u32 v76, s7, v5')
    s('v_xor_b32 v77, 16, v76')
    s('v_add_u32 v78, 0x10000, v76\nv_add_u32 v79, 0x10000, v77\nv_add_u32 v80, 0x20000, v76\nv_add_u32 v81, 0x20000, v77')
    R = 84
    for j in range(4):
        s(f'v_lshlrev_b32 v{R+64+2*j}, 16, v{vBX+j}\nv_and_b32 v{R+65+2*j}, 0xffff0000, v{vBX+j}')
    s('s_waitcnt lgkmcnt(0)\ns_barrier')
    stamp(s, 11)
    for p in range(8):
        g, o = [(1, 0), (1, 16384), (1, 32768), (1, 49152), (0, 32768), (0, 49152), (2, 0), (2, 16384)][p]
        if p == 7: s('s_waitcnt lgkmcnt(8)')
        s(f'ds_read_b128 {vr(R+8*p,4)}, v{76+2*g} offset:{o}\nds_read_b128 {vr(R+8*p+4,4)}, v{77+2*g} offset:{o}')
    for p in range(1, 6):
        for j in range(8): s(f'v_add_f32 v{R+j}, v{R+j}, v{R+8*p+j}')
    for j in range(8): s(f'v_mul_f32 v{R+8+j}, 0xbfb8aa3b, v{R+j}')
    for j in range(8): s(f'v_exp_f32 v{R+8+j}, v{R+8+j}')
    for j in range(8): s(f'v_add_f32 v{R+48+j}, v{R+48+j}, v{R+56+j}')
    for j in range(8): s(f'v_add_f32 v{R+8+j}, 1.0, v{R+8+j}')
    for j in range(8): s(f'v_rcp_f32 v{R+8+j}, v{R+8+j}')
    for j in range(8): s(f'v_mul_f32 v{R+j}, v{R+j}, v{R+48+j}')
    for j in range(8): s(f'v_fma_f32 v{R+j}, v{R+j}, v{R+8+j}, v{R+64+j}')
    for j in range(4): s(f'v_cvt_pk_bf16_f32 v{R+24+j}, v{R+2*j}, v{R+2*j+1}')
    s(f'buffer_store_dwordx4 {vr(R+24,4)}, v7, {srd(SOUT)}, s{sXO} offen' + ['', ' sc1', ' nt', ' sc0 sc1', ' sc1 nt'][cfg.ost])
    return s

def fin():
    s = S()
    if cfg.stamps:
        s('s_waitcnt vmcnt(0)')
        stamp(s, 12)
        if cfg.pb >= 0:
            s(f's_cmp_lg_u32 s{sW}, {cfg.pw}\ns_cbranch_scc1 L_nospin\ns_cmp_lg_u32 s2, {cfg.pwg}\ns_cbranch_scc1 L_nospin')
            s(f's_sub_u32 s6, s{sTS+cfg.pb}, s{sTS+cfg.pa}\ns_lshl_b32 s6, s6, 3\ns_min_u32 s6, s6, 40000\ns_add_u32 s6, s6, s{sTS+12}')
            s('L_spin:\ns_memrealtime s[76:77]\ns_waitcnt lgkmcnt(0)\ns_cmp_lt_u32 s76, s6\ns_cbranch_scc1 L_spin\nL_nospin:')
        s(f's_lshl_b32 s6, s2, 3\ns_add_u32 s6, s6, s{sW}\ns_lshl_b32 s6, s6, 6\ns_add_u32 s6, s6, {TS_OFF}\nv_mov_b32 v8, s6')
        s('s_memrealtime s[76:77]\ns_waitcnt lgkmcnt(0)\ns_mov_b32 s99, s76')
        for q in range(4):
            for r in range(4): s(f'v_mov_b32 v{12+r}, s{sTS+4*q+r}')
            s('s_mov_b64 exec, 1')
            s(f'buffer_store_dwordx4 v[12:15], v8, {srd(SWS)}, 0 offen offset:{q*16}')
            s('s_mov_b64 exec, -1\ns_nop 2')
    return s

Cfg.w2t = 1; Cfg.w2at = 0; Cfg.ktry = 0; Cfg.xl = 1; Cfg.fk = 1.0; Cfg.skip = 2; Cfg.f7 = 0.65; Cfg.nomf = 0; Cfg.nosc = 0; Cfg.now = 0; Cfg.slp = 2; Cfg.la = 4; Cfg.lb = 2; Cfg.lh = 4; Cfg.ost = 4; Cfg.pwg = 72; Cfg.cdbg = 0; Cfg.sl = 3; Cfg.nbm = 1; Cfg.hw = 0; Cfg.hwx = 8; Cfg.mt = 0; Cfg.tmaj = 0; Cfg.yw = 0; Cfg.b11 = 0; Cfg.hb = 4; Cfg.f25 = 0.3; Cfg.s4 = 2; Cfg.g2 = 3; Cfg.l2t = 0; Cfg.tlbw = 0; Cfg.cpre = 1; Cfg.cpd = 4; Cfg.cps = 1; Cfg.esn = 0; Cfg.xcw = 1; Cfg.f8 = 1; Cfg.skipy = 0; Cfg.q7 = 0; Cfg.kvf = 8; Cfg.ystg = 1; Cfg.qat = 7; Cfg.f9 = 0.8

def build():
    out = []
    def put(lab, streams, name):
        l = []
        for x in streams: l += x.l
        if lab: out.append(lab + ':')
        out.extend('    ' + i.text if i.kind != 'label' else i.text for i in finalize(l, name))
    put(None, [prologue()], 'pro')
    if cfg.bonly:
        b = S()
        b('s_waitcnt vmcnt(0)')
        line_voff(b, 4, 5)
        b(f'v_lshl_add_u32 v252, v4, 10, v5\nv_lshlrev_b32 v242, 4, v1\nv_mov_b32 v248, 0\ns_lshl_b32 s6, s{sSB}, 8\ns_add_u32 s6, s6, {FE}')
        sbase(b, 6)
        b(f's_cmp_lt_u32 s{sW}, 6\ns_cselect_b32 s{SO}, s{SD}, s{SO}\ns_cselect_b32 s{SO+1}, s{SD+1}, s{SO+1}\ns_cselect_b32 s{SO+2}, s{SD+2}, s{SO+2}')
        b(f's_cmp_ge_u32 s{sW}, 4\ns_cbranch_scc1 L_bh')
        b(f'v_mov_b32 v252, {WS_BYTES}')
        b('s_barrier'); stamp(b, 7); b('s_branch L_BC\nL_bh:')
        b('s_barrier'); stamp(b, 7); b('s_branch L_BHY' if cfg.bonly == 1 else 's_branch L_BHX')
        put('L_bonly', [b], 'bo')
    put('L_compX', [compute('X')], 'cX')
    put('L_compY', [compute('Y')], 'cY')
    put('L_BC', [phaseB_body('C')], 'BC')
    hs = S(); hs(f's_cmp_eq_u32 s{sTY}, 0\ns_cbranch_scc1 L_helpX')
    put('L_helper', [hs, helperY()], 'hY')
    put('L_BHY', [phaseB_body('HY')], 'BHY')
    lx = S(); lx('L_BHX:')
    put('L_helpX', [helperX(), lx, phaseB_body('HX')], 'hX')
    put('L_red', [phaseB_tail()], 'red')
    put('L_fin', [fin()], 'fin')
    hdr = open('cdna_kernels/' + KN[:-7] + '.s.ref').read().split('; Override')[0]
    txt = hdr + '; @launch grid=(256,1,1) block=(512,1,1) lds=163840\n'
    txt += f'.amdgcn_target "amdgcn-amd-amdhsa--gfx950"\n.text\n.globl {KN}\n.p2align 8\n.type {KN},@function\n{KN}:\n'
    txt += '\n'.join(out) + '\nL_end:\n    s_endpgm\n'
    txt += f'''.section .rodata,"a"
.p2align 6
.amdhsa_kernel {KN}
  .amdhsa_next_free_vgpr 256
  .amdhsa_next_free_sgpr 102
  .amdhsa_accum_offset 256
  .amdhsa_group_segment_fixed_size 0
  .amdhsa_kernarg_size 88
  .amdhsa_user_sgpr_count 2
  .amdhsa_user_sgpr_kernarg_segment_ptr 1
  .amdhsa_system_sgpr_workgroup_id_x 1
.end_amdhsa_kernel
'''
    return txt

if __name__ == '__main__':
    for a in sys.argv[2:]:
        k, v = a.split('='); setattr(cfg, k, float(v) if '.' in v else int(v))
    d = getattr(cfg, 'fsh', 0)
    FKV += d; FH += d; FE += d; FO += d; FQ += d
    KV_OFF += getattr(cfg, 'ksh', 0)
    open(sys.argv[1], 'w').write(build())
```

```python
import sys
from fw import S, I, finalize
KN = 'recurrent_scan__linear_kernel_hedgehog__glu_gated_reglu__prompt_kernel'

class Cfg:
    stamps = 0; hdbg = 0; rt = 0; span = 0
    pa = -1; pb = -1; pw = 0
    mx512 = 1
    prioC = 1; prioH = 0
    tp = 2; pro = 0
    bud = 1000; quiet = 450
    mid2 = 1
    pre = 2
    bonly = 0
cfg = Cfg()

SLOT = [131072, 0, 32768]
KB = 65536; VB = 65536; STDB = 129024; RSB = 130048
KV_OFF = 0x900000
Q_OFF = 0x940000
F_OFF = 0xB40000
FKV, FH, FE, FO, FQ = F_OFF, F_OFF + 0x1000, F_OFF + 0x3000, F_OFF + 0x5000, F_OFF + 0x6000
TS_OFF = 0xB50000
WS_BYTES = 0xC00000
SPIN = 1 << 20
SX, SD, SO, SWS, SOUT, SQKV, SG, SU, SDBG, SPHI = 8, 12, 16, 20, 24, 28, 32, 36, 40, 44
SWH = SO
SP = 28
def srd(b): return f's[{b}:{b+3}]'
sW, sRB, sJ, sTY, sSB, sNB = 48, 49, 50, 51, 52, 53
sA0, sM0, sLBc, sC0, sL4, sL2 = 54, 56, 57, 58, 59, 60
sNON = 62
sT, sT2, sHEAD = 64, 65, 67
sHA, sHM, sHC, sW4 = 68, 69, 70, 71
sQ, sONES, sKV = 72, 74, 78
sWB, sLB, sH0, sH1, sXO, sWBc = 80, 81, 82, 83, 84, 85
sTS = 86
def vr(b, n): return f'v[{b}:{b+n-1}]'
MF = 'v_mfma_f32_32x32x16_bf16'

def stamp(s, idx, force=False):
    if not cfg.stamps: return
    if (cfg.hdbg or cfg.span) and idx != 12 and not force: return
    s('s_memrealtime s[76:77]' if cfg.rt else 's_memtime s[76:77]'); s('s_waitcnt lgkmcnt(0)'); s(f's_mov_b32 s{sTS+idx}, s76')

def build_srd(s, b, lo, nbytes):
    s(f's_mov_b32 s{b}, s{lo}\ns_mov_b32 s{b+1}, s{lo+1}\ns_mov_b32 s{b+2}, {nbytes}\ns_mov_b32 s{b+3}, 0x00020000')

BSTART = [32, 52, 72, 92, 0, 16, 112, 128]
CORDER = [0, 1, 2, 3, 12, 13, 14, 15, 8, 9, 10, 11, 4, 5, 6, 7, 16, 17, 18, 19]
NX0 = 8
def xpieces():
    a, b = (96, 97) if not cfg.stamps else (62, 63)
    r = []
    for c in range(4):
        for g in range(8):
            t = 66 if c*8 + g >= NX0 else 7
            p = S()
            p(f's_add_u32 m0, s{b}, {c*8192+g*1024}\ns_add_u32 s{t}, s{a}, {g*4096+c*256}')
            p(f'buffer_load_dwordx4 v{10+(g&3)}, {srd(SX)}, s{t} offen lds')
            r.append(p.l)
    return r

def merge(w, main, side, every):
    side = list(side)
    for n, i in enumerate(main.l):
        w.l.append(i)
        if side and n % every == every - 1: w.l.extend(side.pop(0))
    for x in side: w.l.extend(x)

def piece(lds_s, lds_o, g_s, g_o, voff, sr):
    p = S()
    p(f's_add_u32 m0, s{lds_s}, {lds_o}\ns_add_u32 s{sT}, s{g_s}, {g_o}')
    p(f'buffer_load_dwordx4 v{voff}, {srd(sr)}, s{sT} offen lds')
    return p.l

def sbase(s, soff): s(f's_add_u32 s4, s{SWS}, s{soff}\ns_addc_u32 s5, s{SWS+1}, 0')
def sload(s, z, n, two):
    sfx = {1: '', 2: 'x2', 4: 'x4', 8: 'x8', 16: 'x16'}[n]
    rg = lambda b: f's{b}' if n == 1 else f's[{b}:{b+n-1}]'
    s(f's_load_dword{sfx} {rg(z)}, s[4:5], 0 glc')
    if two: s(f's_load_dword{sfx} {rg(z+n)}, s[4:5], 128 glc')
def scheck(s, label, z, n, two, pairs=None):
    tot = n * (2 if two else 1)
    pairs = pairs or list(range(tot // 2))
    def test():
        s('s_waitcnt lgkmcnt(0)')
        if tot == 1: s(f's_cmp_eq_u32 s{z}, s{sNON}'); return
        s(f's_xor_b64 s[6:7], s[{z+2*pairs[0]}:{z+2*pairs[0]+1}], s[{sNON}:{sNON+1}]')
        for k in pairs[1:]:
            s(f's_xor_b64 s[76:77], s[{z+2*k}:{z+2*k+1}], s[{sNON}:{sNON+1}]\ns_or_b64 s[6:7], s[6:7], s[76:77]')
        s('s_cmp_eq_u64 s[6:7], 0')
    test()
    if cfg.bonly: return
    s(f's_cbranch_scc1 {label}_x')
    s('s_mov_b32 s75, 0')
    s(f'{label}:')
    if cfg.slp: s(f's_sleep {cfg.slp}')
    sload(s, z, n, two)
    s(f's_add_u32 s75, s75, 1\ns_cmp_gt_u32 s75, {SPIN}\ns_cbranch_scc1 {label}_y')
    test()
    s(f's_cbranch_scc0 {label}')
    s(f'{label}_y:')
    s('s_waitcnt lgkmcnt(0)')
    s(f'{label}_x:')
def post(s, vdat, vaddr, soff='0', needs=None):
    s('s_mov_b64 exec, 1', needs=needs)
    s(f'buffer_store_dword v{vdat}, v{vaddr}, {srd(SWS)}, {soff} offen sc1')
    s('s_mov_b64 exec, -1')

def prologue():
    s = S()
    s('s_cmp_ge_u32 s2, 256\ns_cbranch_scc1 L_end')
    s('s_load_dwordx16 s[64:79], s[0:1], 0\ns_load_dwordx4 s[80:83], s[0:1], 64\ns_load_dwordx2 s[84:85], s[0:1], 80')
    if cfg.stamps: s('s_memtime s[86:87]\ns_memrealtime s[88:89]')
    s('v_lshrrev_b32 v2, 6, v0\nv_and_b32 v1, 63, v0')
    s(f'v_readfirstlane_b32 s{sW}, v2')
    s('s_and_b32 s3, s2, 7\ns_lshr_b32 s4, s2, 3')
    s(f's_cmp_lg_u32 s{sW}, 7\ns_cbranch_scc1 L_nocode')
    s('s_getpc_b64 s[6:7]')
    s('L_pc:')
    s('s_and_b32 s5, s4, 7\ns_lshl_b32 s5, s5, 13\nv_lshl_add_u32 v3, v1, 7, s5\nv_min_u32 v3, L_end-L_pc, v3')
    s('global_load_dword v9, v3, s[6:7]', tag='raw')
    s('L_nocode:')
    s(f's_and_b32 s5, s3, 1\ns_lshl_b32 s5, s5, 3\ns_and_b32 s6, s4, 7\ns_add_u32 s{sRB}, s5, s6')
    s(f's_lshl_b32 s6, s{sW}, 15\ns_lshl_b32 s5, s{sRB}, 17\ns_add_u32 s5, s5, s6')
    s('v_lshrrev_b32 v3, 4, v1\nv_and_b32 v4, 15, v1\nv_xor_b32 v4, v3, v4\nv_lshlrev_b32 v4, 4, v4\nv_lshl_add_u32 v10, v3, 10, v4')
    s('v_xor_b32 v11, 64, v10\nv_xor_b32 v12, 128, v10\nv_xor_b32 v13, 192, v10')
    s('s_waitcnt lgkmcnt(0)')
    if cfg.stamps:
        s('s_mov_b32 s101, s86\ns_mov_b32 s100, s88')
        for q in range(13): s(f's_mov_b32 s{86+q}, s101')
    build_srd(s, SX, 64, 2097152)
    s('s_mov_b32 s96, s5\ns_mov_b32 s97, s6' if not cfg.stamps else 's_mov_b32 s62, s5\ns_mov_b32 s63, s6')
    s(f's_cmp_ge_u32 s{sW}, 4\ns_cbranch_scc1 L_nox')
    for p in xpieces()[:NX0]: s.l.extend(p)
    s('L_nox:')
    build_srd(s, SQKV, 66, 1572864); build_srd(s, SG, 74, 1835008); build_srd(s, SU, 76, 1835008)
    s(f's_lshr_b32 s5, s4, 3\ns_lshr_b32 s{sTY}, s5, 1\ns_and_b32 s5, s5, 1\ns_and_b32 s6, s3, 6\ns_add_u32 s{sJ}, s6, s5')
    if cfg.mx512:
        if cfg.nbm:
            s(f's_lshr_b32 s5, s3, 1\ns_lshl_b32 s5, s5, 3\ns_and_b32 s6, s4, 7\ns_add_u32 s{sSB}, s5, s6')
            s(f's_and_b32 s5, s3, 1\ns_lshl_b32 s5, s5, 2\ns_lshr_b32 s6, s4, 3\ns_add_u32 s{sNB}, s5, s6')
        else:
            s(f's_lshr_b32 s5, s3, 1\ns_lshl_b32 s5, s5, 3\ns_lshr_b32 s6, s4, 2\ns_add_u32 s{sSB}, s5, s6')
            s(f's_and_b32 s5, s3, 1\ns_lshl_b32 s5, s5, 2\ns_and_b32 s6, s4, 3\ns_add_u32 s{sNB}, s5, s6')
    else:
        s(f's_lshl_b32 s5, s3, 2\ns_lshr_b32 s6, s4, 3\ns_add_u32 s{sSB}, s5, s6\ns_and_b32 s{sNB}, s4, 7')
    build_srd(s, SPHI, 68, 16384); build_srd(s, SO, 70, 524288); build_srd(s, SD, 78, 1835008)
    build_srd(s, SOUT, 80, 2097152); build_srd(s, SDBG, 82, 256); build_srd(s, SWS, 84, WS_BYTES)
    s(f's_and_b32 s{sW4}, s{sW}, 3')
    s(f's_mul_i32 s6, s{sJ}, 160\ns_add_u32 s6, s6, 512\ns_and_b32 s7, s{sJ}, 1')
    s('s_lshl_b32 s3, s7, 5\ns_add_u32 s3, s3, s6')
    s('s_xor_b32 s7, s7, 1\ns_lshl_b32 s4, s7, 7\ns_add_u32 s4, s4, s6')
    s(f's_add_u32 s5, s3, 64\ns_lshl_b32 s6, s{sJ}, 6\ns_cmp_eq_u32 s{sTY}, 0\ns_cselect_b32 s5, s6, s5')
    s(f's_mov_b32 s6, {BSTART[0]}')
    for w in range(1, 8): s(f's_cmp_eq_u32 s{sW}, {w}\ns_cselect_b32 s6, {BSTART[w]}, s6')
    s(f's_add_u32 s{sLB}, s{sW}, 4\ns_sub_u32 s7, s{sW}, 2\ns_cmp_ge_u32 s{sW}, 4\ns_cselect_b32 s{sLB}, s7, s{sLB}\ns_add_u32 s7, s{sW}, 2\ns_cmp_ge_u32 s{sW}, 6\ns_cselect_b32 s{sLB}, s7, s{sLB}\ns_cselect_b32 s7, 112, 0\ns_lshl_b32 s{sLB}, s{sLB}, 14')
    s(f's_sub_u32 s7, s6, s7\ns_lshl_b32 s{sWB}, s7, 14\ns_lshl_b32 s7, s{sNB}, 7\ns_add_u32 s{sWB}, s{sWB}, s7')
    s(f's_mul_i32 s{sH0}, s{sSB}, 288\ns_add_u32 s{sH0}, s{sH0}, s6\ns_lshl_b32 s{sH0}, s{sH0}, 10\ns_add_u32 s{sH1}, s{sH0}, {144*1024}')
    s(f's_lshl_b32 s6, s{sSB}, 3\ns_add_u32 s6, s6, s{sW}\ns_lshl_b32 s6, s6, 13\ns_add_u32 s{sXO}, s6, s7')
    if cfg.bonly: s('s_branch L_bonly')
    s(f's_cmp_ge_u32 s{sW}, 4\ns_cbranch_scc1 L_helper')
    s(f's_cmp_eq_u32 s{sTY}, 0\ns_cbranch_scc0 L_compY\ns_branch L_compX')
    return s

XN = 0; ACC = [128, 144, 160, 176]; WF = 192; NRING = 8; PK = 224
vTRL, vTRH, vL16, vKW, vVW, vVW2, vXA, vT = 240, 241, 242, 243, 244, 245, 246, 254
vC, vR2, vNON, vFA, vZ = 246, 247, 248, 252, 251

def compute(ty):
    X = ty == 'X'
    s = S()
    s(f's_setprio {cfg.prioC}')
    s(f'v_lshlrev_b32 v{vL16}, 4, v1')
    s('v_lshrrev_b32 v2, 5, v1\nv_bfe_u32 v3, v1, 2, 2\nv_lshl_add_u32 v4, v2, 3, v3')
    s('v_bfe_u32 v3, v1, 4, 1\nv_lshlrev_b32 v5, 5, v3\nv_and_b32 v3, 3, v1\nv_lshl_add_u32 v5, v3, 3, v5')
    if not X: s(f'v_lshl_add_u32 v{vKW}, v4, 6, v5')
    s(f'v_lshl_add_u32 v{vTRL}, v4, 7, v5\nv_bfe_u32 v4, v1, 3, 1\nv_lshl_add_u32 v{vTRL}, v4, 6, v{vTRL}')
    s(f'v_add_u32 v{vTRH}, 0x20000, v{vTRL}')
    s('v_and_b32 v4, 15, v1\nv_xor_b32 v4, v2, v4\nv_lshlrev_b32 v4, 4, v4\nv_lshl_add_u32 v4, v3, 8, v4')
    s(f'v_bfe_u32 v5, v1, 2, 3\nv_lshl_add_u32 v4, v5, 10, v4\ns_lshl_b32 s6, s{sW}, 15\nv_add_u32 v{vXA}, s6, v4')
    for u in range(1, 8): s(f'v_xor_b32 v{vXA+u}, {u<<5}, v{vXA}')
    s('v_and_b32 v3, 31, v1')
    if X:
        s(f's_lshl_b32 s6, s{sW}, 10\ns_add_u32 s6, s6, {KB}\nv_lshlrev_b32 v4, 3, v1\nv_add_u32 v{vKW}, s6, v4')
        s(f'v_bfe_u32 v4, v1, 2, 2\nv_xor_b32 v4, v2, v4\nv_lshlrev_b32 v4, 3, v4\nv_lshl_add_u32 v4, v3, 5, v4\nv_add_u32 v{vVW}, s6, v4')
        s(f'v_xor_b32 v{vVW2}, 16, v{vVW}')
        s(f's_lshl_b32 s6, s{sRB}, 3\ns_add_u32 s6, s6, s{sJ}\ns_lshl_b32 s6, s6, 4\ns_add_u32 s6, s6, s{sW}\ns_lshl_b32 s6, s6, 10\ns_add_u32 s{sQ}, s6, {Q_OFF}')
    E = PK
    s('v_bfe_u32 v4, v1, 3, 1\nv_and_b32 v5, 3, v1\nv_lshl_add_u32 v4, v4, 2, v5')
    s('v_and_b32 v5, 1, v4\nv_lshlrev_b32 v5, 4, v5\nv_mov_b32 v6, 0x3f80\nv_lshlrev_b32 v6, v5, v6')
    s('v_bfe_u32 v5, v1, 2, 1\nv_cmp_eq_u32 vcc, v5, v2\nv_cndmask_b32 v6, 0, v6, vcc')
    s('v_lshrrev_b32 v4, 1, v4\nv_bfe_u32 v5, v1, 4, 1\nv_lshl_add_u32 v4, v5, 2, v4')
    for r in range(8): s(f'v_cmp_eq_u32 vcc, {r}, v4\nv_cndmask_b32 v{E+r}, 0, v6, vcc')
    s(f's_lshl_b32 s6, s{sRB}, 2\ns_add_u32 s6, s6, s{sW}\ns_mul_i32 s6, s6, {144*1024}')
    s(f's_lshl_b32 s7, s3, 6\ns_add_u32 s{sHA}, s6, s7\ns_lshl_b32 s7, s4, 6\ns_add_u32 s{sHM}, s6, s7\ns_lshl_b32 s7, s5, 6\ns_add_u32 s{sHC}, s6, s7')
    s(f's_mov_b32 s{sONES}, 0x3f803f80')
    setup = s; s = S()
    merge(s, setup, xpieces()[NX0:], 3)
    s('s_barrier')
    stamp(s, 0)
    S1, S2 = vT, 232
    def sumdot(tt):
        for r in range(4):
            z = tt == 0 and r < 2
            for a, b in ((S1 + (r & 1), f's{sONES}'), (S2 + (r & 1), f'v{XN+4*tt+r}')):
                s(f'v_dot2_f32_bf16 v{a}, v{XN+4*tt+r}, {b}, ' + ('0' if z else f'v{a}'))
    for c in range(4):
        s(f's_waitcnt vmcnt({8*(3-c)})')
        if c == 3: stamp(s, 1)
        for u in range(8): s(f'ds_read_b128 {vr(XN+32*c+4*u,4)}, v{vXA+u} offset:{c*8192}')
        for u in range(8): sumdot(8*c + u)
    s('s_barrier')
    s(f'v_add_f32 v{S1}, v{S1}, v{S1+1}\nv_add_f32 v{S2}, v{S2}, v{S2+1}')
    s(f'v_permlane32_swap_b32 v{S1}, v{S2}\nv_add_f32 v{S1}, v{S1}, v{S2}\nv_mul_f32 v{S1}, 0x3b000000, v{S1}\nv_mov_b32 v{S2}, v{S1}\nv_permlane32_swap_b32 v{S1}, v{S2}')
    CM = ACC[3]
    s(f'v_cvt_pk_bf16_f32 v{CM}, -v{S1}, -v{S1}\nv_and_b32 v{CM}, 0xffff0000, v{CM}')
    for r in range(1, 16): s(f'v_mov_b32 v{CM+r}, v{CM}')
    stamp(s, 2)
    side = S()
    side(f'v_mov_b32 v{vZ}, 0')
    side(f'v_fma_f32 v{S2}, -v{S1}, v{S1}, v{S2}\nv_max_f32 v{S2}, 0, v{S2}')
    side(f'v_cvt_pk_bf16_f32 v{S2}, v{S2}, v{S2}\nv_and_b32 v{S2}, 0xffff0000, v{S2}\nv_add_f32 v{S2}, 0x3727c5ac, v{S2}')
    side(f'v_cvt_pk_bf16_f32 v{S2}, v{S2}, v{S2}\nv_and_b32 v{S2}, 0xffff0000, v{S2}\nv_sqrt_f32 v{S2}, v{S2}')
    if X: side(f'v_lshrrev_b32 v{vC}, 2, v{vL16}\nv_and_b32 v{vC}, 0x7c, v{vC}\ns_lshl_b32 s6, s{sW}, 7\nv_add_u32 v250, s6, v{vC}\nv_add_u32 v252, {RSB}, v250')
    side(f'v_cvt_pk_bf16_f32 v234, v{S2}, v{S2}\nv_mov_b32 v235, v234\nv_and_b32 v{S2}, 0xffff0000, v234\nv_rcp_f32 v{S2}, v{S2}')
    if X:
        side(f'v_lshlrev_b32 v253, 1, v250\nv_add_u32 v253, {STDB}, v253\nds_write_b64 v253, v[234:235]\nds_write_b32 v252, v{S2}')
        side(f'v_mul_f32 v{vC}, 0x3fb8aa3b, v{S2}')
    else: side('s_nop 0')
    side(f'v_mul_f32 v{vR2}, v{S2}, v{S2}')
    side(f'v_xor_b32 v254, 64, v{vTRL}\nv_xor_b32 v255, 64, v{vTRH}')
    side = side.l
    cv = []
    for p in range(18):
        if p < 16:
            D = ACC[(p + 2) % 3]
            s(f'{MF} {vr(D,16)}, {vr(E,4)}, {vr(XN+8*p,4)}, {vr(CM,16)}')
        for x in cv[:4]: s(x)
        if side: s.l.append(side.pop(0))
        if p < 16: s(f'{MF} {vr(D,16)}, {vr(E+4,4)}, {vr(XN+8*p+4,4)}, {vr(D,16)}')
        for x in cv[4:]: s(x)
        for _ in range(2):
            if side: s.l.append(side.pop(0))
        q = p - 1
        cv = [f'v_cvt_pk_bf16_f32 v{XN+8*q+j}, v{ACC[(q+2)%3]+2*j}, v{ACC[(q+2)%3]+2*j+1}' for j in range(8)] if 0 <= q < 16 else []
        if p == 14: s('s_waitcnt lgkmcnt(0)\ns_barrier')
        if p == 15: pre_reads_at = len(s.l)
    assert not side
    stamp(s, 3)
    mf = []
    for st in range(10):
        base = SLOT[st % 3]
        if not ((4 <= st < 6) or (X and st < 4)):
            sl = st if st < 4 else st - 6
            accs = [0, 1, 2, 3] if st < 4 else [2, 3, 0, 1]
            seq = [(p, t) for p in range(2) for t in range(8)] if (sl in (0, 3) or not cfg.tmaj) else [(p, t) for t in range(8) for p in range(2)]
            for p, t in seq:
                for c in range(2):
                    mf.append((st, accs[2*p+c], 8*sl + t, (base + c*16384 + t*2048, p), sl == 0 and t == 0))
        else:
            sl = st & 1; a0 = 2 if st in (2, 3) else 0
            for t in range(16):
                for c in range(2):
                    mf.append((st, a0 + c, 16*sl + t, (base + t*2048, c) if X else (base + c*16384 + t*1024, None), sl == 0 and t == 0))
    N = len(mf)
    def ep_h(g, u, sbase, off, PK=PK, defer=None):
        e = []
        for j in range(0, 16, 2):
            for jj in (j, j+1): e.append(f'v_max_f32 v{g+jj}, 0, v{g+jj}')
            for jj in (j, j+1): e.append(f'v_mul_f32 v{u+jj}, v{u+jj}, v{vR2}')
            for jj in (j, j+1): e.append(f'v_mul_f32 v{g+jj}, v{g+jj}, v{u+jj}')
            e.append(f'v_cvt_pk_bf16_f32 v{PK+j//2}, v{g+j}, v{g+j+1}')
            dst = e if defer is None else defer
            if j == 6: dst.append(f'buffer_store_dwordx4 {vr(PK,4)}, v{vL16}, {srd(SWS)}, s{sbase} offen offset:{off} sc1')
            if j == 14: dst.append(f'buffer_store_dwordx4 {vr(PK+4,4)}, v{vL16}, {srd(SWS)}, s{sbase} offen offset:{off+1024} sc1')
        return e
    def ep_hand(a0, a1, kind):
        e = []; k = 0
        for ti, a in enumerate((a0, a1)):
            for hh in range(2):
                hd = 2*ti + hh
                for ee in range(2):
                    b = a + 8*hh + 4*ee; pk = PK + 2*(k % 8); k += 1
                    if kind != 'v':
                        for j in range(4): e.append(f'v_mul_f32 v{b+j}, v{b+j}, v{vC}')
                    e.append(f'v_cvt_pk_bf16_f32 v{pk}, v{b}, v{b+1}')
                    e.append(f'v_cvt_pk_bf16_f32 v{pk+1}, v{b+2}, v{b+3}')
                    if kind == 'v': e.append(f'ds_write_b64 v{vVW2 if ee else vVW}, {vr(pk,2)} offset:{hd*4096}')
                    if kind == 'k': e.append(f'ds_write_b64 v{vKW}, {vr(pk,2)} offset:{hd*4096 + ee*512}')
                if kind == 'q':
                    e.append(f'buffer_store_dwordx4 {vr(PK+4*hd,4)}, v{vL16}, {srd(SWS)}, s{sQ} offen sc1')
                    if hd < 3: e.append(f's_add_u32 s{sQ}, s{sQ}, 4096')
        return e
    A = ACC
    fill = {}; late = {}; posts = {}; mids = []
    skip = (({0: set(), 1: {7}, 2: {8}}[cfg.skip]) if X else ({8} if cfg.skipy else set()))
    fa = f's_lshl_b32 s6, s{sRB}, 2\ns_add_u32 s6, s6, s{sW}\ns_lshl_b32 s6, s6, 5\ns_add_u32 s6, s6, s{sJ}' + ('' if X else '\ns_add_u32 s6, s6, 8') + f'\ns_lshl_b32 s6, s6, 2\ns_add_u32 s6, s6, {FH}\nv_mov_b32 v{vFA}, s6'
    extra = ''
    if X:
        fill[2*32] = (ep_hand(A[0], A[1], 'k'), 2*32 + 17); mids.append(2*32 + 19)
        fill[4*32] = (ep_hand(A[2], A[3], 'q'), 4*32 + 20)
        fill[6*32] = (ep_hand(A[0], A[1], 'v'), 6*32 + 10)
        mids.append(6*32 + 12)
        extra = f'\ns_lshl_b32 s6, s{sRB}, 3\ns_add_u32 s6, s6, s{sJ}\ns_lshl_b32 s6, s6, 5\ns_add_u32 s6, s6, s{sW}\ns_lshl_b32 s6, s6, 2\ns_add_u32 s6, s6, {FQ}\nv_mov_b32 v253, s6'
        posts[5*32 + 10] = (253, '0')
    else:
        d1 = []; d2 = []
        fill[3*32+16] = (ep_h(A[0], A[1], sHA, 0, PK, d1), 3*32 + 31)
        fill[4*32] = (ep_h(A[2], A[3], sHA, 2048, PK + 8, d1), 4*32 + 17)
        fill[6*32] = (ep_h(A[0], A[1], sHM, 0, PK, d2), 6*32 + 15)
        for k, x in enumerate(d1): late[4*32 + 19 + 2*k] = x
        for k, x in enumerate(d2): late[6*32 + 21 + 3*k] = x
        extra = f'\ns_mov_b32 s{sQ}, {FE-FH}'
        posts[7*32 + 20] = (vFA, f's{sQ}')
    fill[1*32+2] = ([f'buffer_load_dword v{vNON}, v{vZ}, {srd(SDBG)}, 0 offen sc1'] + (fa + extra).split('\n'), 1*32 + 22)
    pre9 = []
    if cfg.cpre:
        t = S()
        t(f'v_lshrrev_b32 v249, 4, v{vL16}')
        b_traddr(t, 244, sLB, 250, 249)
        t('v_xor_b32 v246, 64, v244')
        line_voff(t, 250, 243, 249)
        t('v_lshl_add_u32 v243, v250, 10, v243')
        if cfg.eh:
            t(f'v_and_b32 v250, 1, v249\nv_lshlrev_b32 v250, 2, v250\nv_bfe_u32 v253, v249, 1, 1\nv_lshl_add_u32 v253, v253, 7, v250')
            t(f's_lshl_b32 s6, s{sSB}, 8\ns_lshl_b32 s7, s{sW}, 3\ns_add_u32 s6, s6, s7\ns_add_u32 s6, s6, {FE+32}\nv_add_u32 v253, s6, v253')
            late[cfg.ehn - 10] = f'buffer_load_dword v250, v253, {srd(SWS)}, 0 offen sc1'
        fill[8*32+2] = ([i.text for i in t.l], 8*32 + 24)
        for i in range(8):
            g = []
            for c in range(2):
                g.append(I(f'ds_read_b64_tr_b16 {vr(8*i+4*c,2)}, v{(244, 246)[c]} offset:{2048*i}'))
                g.append(I(f'ds_read_b64_tr_b16 {vr(8*i+4*c+2,2)}, v{(244, 246)[c]} offset:{2048*i+1024}'))
            pre9.append(g)
        ref9 = ownpieces(range(8, 16), sLB, O8, 243, SD, CORDER)
        for k, p in enumerate(ref9): p[-1].needs = [pre9[k // 2][-1]]
    fill[9*32+16] = (ep_h(A[2], A[3], sHC, 0), 9*32 + 31)
    tail = ep_h(A[0], A[1], sHC, 2048, PK + 8)
    def rd(n):
        st, a, xf, off, first = mf[n]
        off, nt = off
        if nt is None: va, o, d = vKW, off, 256
        elif off >= 131072: va, o, d = (vTRH, 255)[nt], off - 131072, 512
        else: va, o, d = (vTRL, 254)[nt], off, 512
        r = WF + 4*(n % NRING)
        return [f'ds_read_b64_tr_b16 {vr(r,2)}, v{va} offset:{o}', f'ds_read_b64_tr_b16 {vr(r+2,2)}, v{va} offset:{o+d}']
    nxt = 0; half = []; pend = []; rdtok = {}
    def issue_reads(limit_frag, maxn):
        nonlocal nxt, half
        k = 0
        while k < maxn:
            if not half:
                if nxt > limit_frag or nxt >= N: break
                half = [(nxt, x) for x in rd(nxt)]; nxt += 1
            f, x = half.pop(0); rdtok[f] = s(x); k += 1
        return k
    passed = 0
    keep = s.l[pre_reads_at:]; del s.l[pre_reads_at:]
    issue_reads(6, 14)
    s.l.extend(keep)
    delay = 0; dead = 0
    for n in range(N):
        st, a, xf, off, first = mf[n]
        if n in fill:
            assert not pend
            pend = list(fill[n][0]); dead = fill[n][1]; delay = 2
        needs = []
        if n % 2 == 0 and (n + 1) in rdtok and not (half and half[0][0] == n + 1): needs = [rdtok[n+1]]
        r = WF + 4*(n % NRING)
        s(f'{MF} {vr(A[a],16)}, {vr(r,4)}, {vr(XN+4*xf,4)}, ' + ('0' if first else vr(A[a],16)), needs=needs)
        lim = min(n + NRING - 1, 32*(passed+1) - 1)
        if n % 32 == 27 and st + 1 not in skip:
            assert nxt == 32*(st+1) and not half
            s('s_waitcnt lgkmcnt(0)')
            if cfg.hdbg and cfg.hb <= st <= cfg.hb + 5: stamp(s, 2*(st-cfg.hb), True)
            s('s_barrier'); passed = st + 1
            if passed + 1 in skip and passed + 1 == 8: passed += 1
            if cfg.hdbg and cfg.hb <= st <= cfg.hb + 5: stamp(s, 2*(st-cfg.hb)+1, True)
            if st in (3, 5): stamp(s, 4 if st == 3 else 5)
            issue_reads(min(n + NRING - 1, N - 1), 6)
            if st == 9:
                s(f'v_readfirstlane_b32 s{sNON}, v{vNON}\ns_lshl_b32 s6, s{sSB}, 8\ns_lshl_b32 s7, s{sW}, 3\ns_add_u32 s6, s6, s7\ns_add_u32 s6, s6, {FE+32}')
                sbase(s, 6)
                if not cfg.eh: sload(s, SP, 2, True)
                s(f's_mov_b32 s{sNON+1}, s{sNON}')
            continue
        if n in mids:
            assert not pend
            s('s_barrier', needs=[[i for i in s.l if i.op == 'ds_write_b64'][-1]])
            if st + 1 in skip and st + 1 == 7: passed = st + 1
        behind = (lim - nxt + 1) * 2 + len(half)
        issue_reads(lim, 3 if behind > 2 else 2)
        if n in late: s(late[n])
        if cfg.cpre and n >= 8*32 + 30:
            k = n - (8*32 + 30)
            if k < 16: s.l.extend(pre9[k // 2][2*(k % 2):2*(k % 2) + 2])
            k -= cfg.cpd
            if 0 <= k < 16*cfg.cps and k % cfg.cps == 0: s.l.extend(ref9[k // cfg.cps])
        if cfg.eh and n == cfg.ehn:
            s(f'v_cmp_ne_u32 vcc, v250, v{vNON}\ns_cbranch_vccz L_e{ty}_x')
            s('s_mov_b32 s75, 0')
            s(f'L_e{ty}:')
            s(f'buffer_load_dword v250, v253, {srd(SWS)}, 0 offen sc1\ns_waitcnt vmcnt(0)', tag='raw')
            s(f's_add_u32 s75, s75, 1\ns_cmp_gt_u32 s75, {SPIN}\ns_cbranch_scc1 L_e{ty}_x')
            s(f'v_cmp_ne_u32 vcc, v250, v{vNON}\ns_cbranch_vccnz L_e{ty}')
            s(f'L_e{ty}_x:')
        if cfg.eh and 0 <= n - cfg.ehn < 8:
            k = n - cfg.ehn
            s(f'buffer_load_dwordx4 {vr(64 + 4*k, 4)}, v{vL16}, {srd(SWS)}, s{sH0 + (k & 1)} offen offset:{(k >> 1)*1024} sc1')
        if n == 3*32 + 4:
            s(f'v_cmp_eq_u32 vcc, 0, v{vNON}\ns_cbranch_vccz L_non{ty}c_x')
            s('s_mov_b32 s75, 0')
            s(f'L_non{ty}c:')
            s(f'buffer_load_dword v{vNON}, v{vZ}, {srd(SDBG)}, 0 offen sc1\ns_waitcnt vmcnt(0)', tag='raw')
            s(f's_add_u32 s75, s75, 1\ns_cmp_gt_u32 s75, {SPIN}\ns_cbranch_scc1 L_non{ty}c_x')
            s(f'v_cmp_eq_u32 vcc, 0, v{vNON}\ns_cbranch_vccnz L_non{ty}c')
            s(f'L_non{ty}c_x:')
        if n in posts: post(s, vNON, posts[n][0], posts[n][1], [[i for i in s.l if i.kind == 'vmst'][-1]])
        if delay > 0: delay -= 1
        elif pend:
            gaps = sum(1 for m in range(n, dead + 1) if m % 32 != 27 or m // 32 + 1 in skip)
            budget = -(-len(pend) // gaps)
            nw = 0
            while pend and budget > 0:
                if pend[0].startswith('ds_write'):
                    if nw and gaps > 1: break
                    nw += 1
                s(pend.pop(0)); budget -= 1
    assert not pend
    stamp(s, 6)
    for x in tail: s(x)
    vms = [i for i in s.l if i.kind in ('vm', 'vmst', 'vmlds')]
    assert not cfg.cf or all(i.kind == 'vmst' for i in vms[-4:])
    stamp(s, 7)
    s('s_branch L_BC')
    return s

vOQ, vOG, vW2 = 2, 3, 252
WRB = 72
vOM = 251
def dma_stage(st, X):
    base = SLOT[st % 3]; r = []
    if X and st < 6:
        col = [1024, 0, 2048][st >> 1]
        for b in range(8): r.append(piece(sL2, base + b*1024, sM0, (256*(st & 1) + 8*b)*3072 + col, vOQ, SQKV))
    elif st < 4 or st >= 6:
        sl = st if st < 4 else st - 6
        sb = sA0 if st < 4 else sC0
        for b in range(4):
            for pos, sr in enumerate((SG, SU)): r.append(piece(sL4, base + pos*16384 + b*1024, sb, (128*sl + 8*b)*3584, vOG, sr))
    else:
        for b in range(4):
            row = 256*(st & 1) + 16*b
            for pos, sr in enumerate((SG, SU)): r.append(piece(sL4, base + pos*16384 + b*1024, sM0, row*3584, vOM, sr))
    return r
def cwpieces(w):
    return [piece(sLBc, (w+4)*16384 + k*8192 + c*1024, sWBc, (BSTART[w]+12*k)*16384 + 8192*c, vW2, SD) for k in range(2) for c in range(2)]
sLBx, sWBx = 54, 55
def cwpiecesx(w, es=(0, 1)):
    return [piece(sLBx, (w+4)*16384 + e*2048 + c*1024, sWBx, (BSTART[w]+e)*16384 + 8192*c, vW2, SD) for e in es for c in range(2)]
def cwpieces2():
    return [piece(sLBc, w*8192 + c*1024, sWBc, (BSTART[w]+16)*16384 + 8192*c, vW2, SD) for w in range(4) for c in range(2)]
def ownpieces(steps, sbase, offs, voff=vW2, sr=SWH, rel=None):
    return [piece(sbase, o + c*1024, sWB, (rel[i] if rel else i)*16384 + 8192*c, voff, sr) for i, o in zip(steps, offs) for c in range(2)]
def emit(s, pieces, raw=False):
    for p in pieces:
        for x in p:
            if raw: x.tag = 'raw'
            s.l.append(x)
    return pieces[-1][-1]
def b_traddr(s, dst, sbase, t, lane=1):
    s(f'v_lshrrev_b32 v{t}, 5, v{lane}\nv_bfe_u32 v{dst}, v{lane}, 2, 2')
    s(f'v_lshl_add_u32 v{dst}, v{t}, 2, v{dst}\nv_lshlrev_b32 v{dst}, 7, v{dst}')
    s(f'v_bfe_u32 v{t}, v{lane}, 3, 1\nv_lshl_add_u32 v{dst}, v{t}, 6, v{dst}')
    s(f'v_bfe_u32 v{t}, v{lane}, 4, 1\nv_lshl_add_u32 v{dst}, v{t}, 5, v{dst}\nv_and_b32 v{t}, 3, v{lane}\nv_lshl_add_u32 v{dst}, v{t}, 3, v{dst}')
    if sbase is not None: s(f'v_add_u32 v{dst}, s{sbase}, v{dst}')
def line_voff(s, row, chunk, lane=1):
    s(f'v_lshrrev_b32 v{row}, 3, v{lane}\nv_bfe_u32 v{chunk}, v{lane}, 4, 1\nv_lshlrev_b32 v{chunk}, 2, v{chunk}\nv_xor_b32 v{chunk}, v{lane}, v{chunk}\nv_and_b32 v{chunk}, 7, v{chunk}\nv_lshlrev_b32 v{chunk}, 4, v{chunk}')
O8 = [2048*k for k in range(8)]
def stg_offs(regions): return [(w + 4)*16384 + k*8192 for w in regions for k in range(2)]
def stg_reads(steps, offs, va, tok):
    w = S()
    for i, o in zip(steps, offs):
        for c in range(2):
            f = WRB + 8*i + 4*c
            w(f'ds_read_b64_tr_b16 {vr(f,2)}, v{va+c} offset:{o - 65536}', needs=[tok])
            w(f'ds_read_b64_tr_b16 {vr(f+2,2)}, v{va+c} offset:{o - 65536 + 1024}')
    w.l.insert(12, I('s_waitcnt lgkmcnt(4)'))
    w('s_waitcnt lgkmcnt(0)')
    return w

def softmax_k(s, P, rs, out, t):
    m0, m1, n0, n1 = t
    s(f'v_max3_f32 v{m0}, v{P}, v{P+1}, v{P+2}\nv_max3_f32 v{m1}, v{P+3}, v{P+4}, v{P+5}')
    s(f'v_max3_f32 v{n0}, v{P+6}, v{P+7}, v{P+8}\nv_max3_f32 v{n1}, v{P+9}, v{P+10}, v{P+11}')
    s(f'v_max3_f32 v{m0}, v{m0}, v{P+12}, v{P+13}\nv_max3_f32 v{m1}, v{m1}, v{P+14}, v{P+15}')
    s(f'v_max3_f32 v{m0}, v{m0}, v{n0}, v{n1}\nv_max_f32 v{m0}, v{m0}, v{m1}')
    for j in range(16): s(f'v_sub_f32 v{P+j}, v{P+j}, v{m0}')
    for j in range(16): s(f'v_exp_f32 v{P+j}, v{P+j}')
    s(f'v_add_f32 v{n0}, v{P}, v{P+1}\nv_add_f32 v{n1}, v{P+2}, v{P+3}\nv_add_f32 v{m0}, v{P+4}, v{P+5}\nv_add_f32 v{m1}, v{P+6}, v{P+7}')
    for j in range(8, 16): s(f'v_add_f32 v{t[j%4]}, v{t[j%4]}, v{P+j}')
    s(f'v_add_f32 v{m0}, v{m0}, v{m1}\nv_add_f32 v{n0}, v{n0}, v{n1}\nv_add_f32 v{n0}, v{n0}, v{m0}')
    s(f'v_rcp_f32 v{n0}, v{n0}')
    s(f'v_mul_f32 v{n0}, v{n0}, v{rs}')
    for j in range(0, 16, 2):
        s(f'v_mul_f32 v{P+j}, v{P+j}, v{n0}\nv_mul_f32 v{P+j+1}, v{P+j+1}, v{n0}')
        if j >= 2: s(f'v_cvt_pk_bf16_f32 v{out+j//2-1}, v{P+j-2}, v{P+j-1}')
    s(f'v_cvt_pk_bf16_f32 v{out+7}, v{P+14}, v{P+15}')

def softmax_q(s, P, out, t):
    m0, m1, n0, n1 = t
    s(f'v_max3_f32 v{m0}, v{P}, v{P+1}, v{P+2}\nv_max3_f32 v{m1}, v{P+8}, v{P+9}, v{P+10}')
    s(f'v_max3_f32 v{n0}, v{P+3}, v{P+4}, v{P+5}\nv_max3_f32 v{n1}, v{P+11}, v{P+12}, v{P+13}')
    s(f'v_max3_f32 v{m0}, v{m0}, v{P+6}, v{P+7}\nv_max3_f32 v{m1}, v{m1}, v{P+14}, v{P+15}')
    s(f'v_max_f32 v{m0}, v{m0}, v{n0}\nv_max_f32 v{m1}, v{m1}, v{n1}')
    s(f'v_permlane32_swap_b32 v{m0}, v{m1}')
    s(f'v_max_f32 v{m0}, v{m0}, v{m1}')
    s(f'v_mov_b32 v{m1}, v{m0}')
    s(f'v_permlane32_swap_b32 v{m0}, v{m1}')
    for j in range(16): s(f'v_sub_f32 v{P+j}, v{P+j}, v{m0 if j < 8 else m1}')
    for j in range(16):
        s(f'v_exp_f32 v{P+j}, v{P+j}')
        if j >= 3 and j % 2 == 1: s(f'v_cvt_pk_bf16_f32 v{out+(j-3)//2}, v{P+j-3}, v{P+j-2}')
    s(f'v_cvt_pk_bf16_f32 v{out+7}, v{P+14}, v{P+15}')

def w1touch(s, X, part):
    s(f's_and_b32 s6, s{sRB}, 7\ns_lshl_b32 s6, s6, 6\nv_add_u32 v8, s6, v1')
    s('v_mul_u32_u24 v9, 0xe00, v8')
    d = 253 if part != 2 else 243
    if X:
        s('v_mul_u32_u24 v8, 0xc00, v8')
        s(f's_lshl_b32 s6, s{sJ}, 7\ns_xor_b32 s7, s{sW4}, 1\ns_cmp_eq_u32 s{sW4}, 2\ns_cselect_b32 s7, 2, s7\ns_lshl_b32 s7, s7, 10\ns_add_u32 s6, s6, s7\ns_lshl_b32 s7, s5, 1')
        s(f's_cmp_eq_u32 s{sW4}, 3\ns_cselect_b32 s6, 0x200000, s6\ns_cselect_b32 s7, s7, 0x200000')
        if part == 1: s(f's_cmp_ge_u32 s{sW4}, 2\ns_cselect_b32 s6, 0x200000, s6\ns_mov_b32 s7, 0x200000')
        if part == 2: s(f's_cmp_lt_u32 s{sW4}, 2\ns_cselect_b32 s6, 0x200000, s6')
        s(f'buffer_load_dword v{d}, v8, {srd(SQKV)}, s6 offen')
        if part != 1: s(f'buffer_load_dword v{d+1}, v9, {srd(SG)}, s7 offen\nbuffer_load_dword v{d+2}, v9, {srd(SU)}, s7 offen')
    else:
        s(f's_cmp_eq_u32 s{sW4}, 1\ns_cselect_b32 s6, s4, s3\ns_cmp_eq_u32 s{sW4}, 2\ns_cselect_b32 s6, s5, s6\ns_lshl_b32 s6, s6, 1')
        s(f's_cmp_eq_u32 s{sW4}, 3\ns_cselect_b32 s6, 0x200000, s6')
        if part == 1: s(f's_cmp_ge_u32 s{sW4}, 1\ns_cselect_b32 s6, 0x200000, s6')
        if part == 2: s(f's_cmp_lt_u32 s{sW4}, 1\ns_cselect_b32 s6, 0x200000, s6')
        s(f'buffer_load_dword v{d}, v9, {srd(SG)}, s6 offen\nbuffer_load_dword v{d+1}, v9, {srd(SU)}, s6 offen')

def malltouch(s):
    s(f's_mul_i32 s6, s2, 6144\ns_mul_i32 s7, s2, 7168\nv_lshlrev_b32 v8, 7, v1\nv_min_u32 v9, 6016, v8\nv_min_u32 v8, 7040, v8')
    s(f's_cmp_eq_u32 s{sW}, 4\ns_cselect_b32 s6, s6, 0x200000\nbuffer_load_dword v236, v9, {srd(SQKV)}, s6 offen')
    s(f's_cmp_eq_u32 s{sW}, 5\ns_cselect_b32 s6, s7, 0x200000\nbuffer_load_dword v237, v8, {srd(SG)}, s6 offen')
    s(f's_cmp_eq_u32 s{sW}, 6\ns_cselect_b32 s6, s7, 0x200000\nbuffer_load_dword v242, v8, {srd(SU)}, s6 offen')

def w2touch(s):
    if cfg.w2t == 1:
        s(f's_mul_i32 s6, s2, 7168\ns_lshl_b32 s7, s2, 11\ns_cmp_eq_u32 s{sW}, 7\ns_cselect_b32 s6, s6, 0x200000\ns_cselect_b32 s7, s7, 0x200000')
        s('v_lshlrev_b32 v8, 7, v1\nv_min_u32 v9, 1920, v8\nv_min_u32 v8, 7040, v8')
        s(f'buffer_load_dword v246, v8, {srd(SD)}, s6 offen\nbuffer_load_dword v247, v9, {srd(SO)}, s7 offen')
    if cfg.w2t == 2:
        s(f's_lshr_b32 s6, s2, 3\ns_lshl_b32 s6, s6, 2\ns_add_u32 s75, s6, s{sW4}')
        if cfg.mx512:
            s(f'v_lshrrev_b32 v8, 2, v1\nv_and_b32 v9, 3, v1\nv_lshlrev_b32 v9, 7, v9\nv_lshl_add_u32 v8, v8, 10, v9\ns_and_b32 s7, s{sNB}, 4\ns_lshl_b32 s7, s7, 7\nv_add_u32 v8, s7, v8')
            s(f's_mul_i32 s6, s75, {14*1024}\nbuffer_load_dword v246, v8, {srd(SD)}, s6 offen')
            s(f's_lshr_b32 s6, s75, 2\ns_lshl_b32 s6, s6, 1\ns_and_b32 s7, s{sW}, 1\ns_add_u32 s6, s6, s7\ns_lshl_b32 s6, s6, 13\ns_cmp_ge_u32 s{sW}, 6\ns_cselect_b32 s6, s6, 0x200000')
            s(f'v_min_u32 v9, {8*1024-128}, v8\nbuffer_load_dword v247, v9, {srd(SO)}, s6 offen')

def l2touch():
    r = []
    p = S(); p(f's_lshr_b32 s6, s2, 3\ns_lshl_b32 s6, s6, 2\ns_add_u32 s55, s6, s{sW4}\nv_lshlrev_b32 v19, 7, v1\ns_mul_i32 s6, s55, 14336')
    p(f'buffer_load_dword v244, v19, {srd(SD)}, s6 offen'); r.append(p.l)
    p = S(); p(f'v_min_u32 v19, 6016, v19\ns_mul_i32 s6, s55, 14336\ns_add_u32 s6, s6, 8192\nbuffer_load_dword v245, v19, {srd(SD)}, s6 offen'); r.append(p.l)
    p = S(); p(f'v_lshlrev_b32 v19, 7, v1\ns_lshr_b32 s6, s55, 2\ns_lshl_b32 s6, s6, 1\ns_and_b32 s7, s{sW}, 1\ns_add_u32 s6, s6, s7\ns_lshl_b32 s6, s6, 13\ns_cmp_ge_u32 s{sW}, 6\ns_cselect_b32 s6, s6, 0x200000')
    p(f'buffer_load_dword v243, v19, {srd(SO)}, s6 offen'); r.append(p.l)
    return r

def helper_head(s, X, wop, isq):
    if cfg.mt: malltouch(s)
    if cfg.tp in (1, 2, 4): w1touch(s, X, 0 if cfg.tp == 1 else 1)
    if X:
        s(f's_cmp_lg_u32 s2, 0\ns_cbranch_scc1 L_np\ns_cmp_lg_u32 s{sW}, 4\ns_cbranch_scc1 L_np')
        s('s_memrealtime s[76:77]\ns_waitcnt lgkmcnt(0)\ns_or_b32 s76, s76, 1')
        s('v_mov_b32 v4, s76\nv_mov_b32 v6, 0\ns_mov_b64 exec, 1')
        s(f'buffer_store_dword v4, v6, {srd(SDBG)}, 0 offen sc1', tag='raw')
        s('s_mov_b64 exec, -1')
        s('L_np:')
    s(f's_setprio {cfg.prioH}')
    if not X: s(f'v_lshrrev_b32 v4, 2, v1\nv_and_b32 v5, 3, v1\nv_lshlrev_b32 v5, 4, v5\nv_mul_u32_u24 v{vOM}, 0xe00, v4\nv_add_u32 v{vOM}, v{vOM}, v5')
    line_voff(s, 4, 5)
    s(f'v_mul_u32_u24 v{vOQ}, 0xc00, v4\nv_add_u32 v{vOQ}, v{vOQ}, v5')
    s(f'v_mul_u32_u24 v{vOG}, 0xe00, v4\nv_add_u32 v{vOG}, v{vOG}, v5')
    s(f'v_lshl_add_u32 v{vW2}, v4, 10, v5')
    s(f's_lshl_b32 s{sL4}, s{sW4}, 12\ns_lshl_b32 s{sL2}, s{sW4}, 13')
    s(f's_mul_i32 s6, s{sW4}, {32*3584}\ns_lshl_b32 s7, s5, 1\ns_add_u32 s{sC0}, s6, s7')
    if X: s(f's_mul_i32 s6, s{sW4}, {64*3072}\ns_lshl_b32 s7, s{sJ}, 7\ns_add_u32 s{sM0}, s6, s7')
    else:
        s(f's_lshl_b32 s7, s3, 1\ns_add_u32 s{sA0}, s6, s7')
        s(f's_mul_i32 s6, s{sW4}, {64*3584}\ns_lshl_b32 s7, s4, 1\ns_add_u32 s{sM0}, s6, s7')
    s(f's_lshl_b32 s{sLBc}, s{sW4}, 11\ns_lshl_b32 s6, s{sW4}, 14\ns_lshl_b32 s7, s{sNB}, 7\ns_add_u32 s{sWBc}, s6, s7')
    s(f's_lshl_b32 s{sHEAD}, s{sJ}, 2\ns_add_u32 s{sHEAD}, s{sHEAD}, s{sW4}')
    s(f's_lshl_b32 s{sKV}, s{sHEAD}, 12\ns_add_u32 s{sKV}, s{sKV}, {KV_OFF}')
    s(f's_cmp_lt_u32 s{sW}, 6\ns_cselect_b32 s{SO}, s{SD}, s{SO}\ns_cselect_b32 s{SO+1}, s{SD+1}, s{SO+1}\ns_cselect_b32 s{SO+2}, s{SD+2}, s{SO+2}')
    s('v_lshrrev_b32 v4, 5, v1\nv_lshlrev_b32 v7, 7, v4')
    if isq: s('v_and_b32 v6, 15, v1\nv_lshl_add_u32 v36, v6, 1, v7')
    else: s('v_bfe_u32 v6, v1, 3, 2\nv_and_b32 v36, 3, v1\nv_lshl_add_u32 v6, v6, 2, v36\nv_lshl_add_u32 v36, v6, 1, v7')
    s(f's_lshl_b32 s{sT2}, s{sHEAD}, 9')
    return

def helper_start(s, X, wop, isq):
    stamp(s, 0)
    s('s_barrier')
    stamp(s, 1)
    tok = {0: emit(s, dma_stage(0, X))}
    if cfg.tp in (0, 2): w1touch(s, X, 2 if cfg.tp == 2 else 0)
    if cfg.w2at == 0: w2touch(s)
    s('s_barrier')
    s(f'v_mov_b32 v17, 0\nbuffer_load_dword v16, v17, {srd(SDBG)}, 0 offen sc1')
    if cfg.pro == 0: tok[1] = emit(s, dma_stage(1, X))
    s('s_barrier', needs=[tok[0]])
    if cfg.pro != 0: tok[1] = emit(s, dma_stage(1, X))
    tok[2] = emit(s, dma_stage(2, X))
    for i in range(8):
        s(f'buffer_load_ushort v{200+i}, v36, {srd(SPHI)}, s{sT2} offen offset:{(8*(i >> 2) + (i & 3))*32}')
    if cfg.tp == 4: w1touch(s, X, 2)
    if cfg.w2at == 1: w2touch(s)
    return tok

def nonce_and_wphi(w, lab, wop, bit):
    w(f'v_cmp_eq_u32 vcc, 0, v16\ns_cbranch_vccz {lab}_x')
    w('s_mov_b32 s75, 0')
    w(f'{lab}:')
    w(f'buffer_load_dword v16, v17, {srd(SDBG)}, 0 offen sc1\ns_waitcnt vmcnt(0)', tag='raw')
    w(f's_add_u32 s75, s75, 1\ns_cmp_gt_u32 s75, {SPIN}\ns_cbranch_scc1 {lab}_x')
    w(f'v_cmp_eq_u32 vcc, 0, v16\ns_cbranch_vccnz {lab}')
    w(f'{lab}_x:')
    w(f'v_readfirstlane_b32 s{sNON}, v16\nv_readfirstlane_b32 s{sNON+1}, v16')
    w(f'v_bfe_u32 v6, v1, {bit}, 1\nv_mul_u32_u24 v6, 0x8000, v6\nv_lshl_or_b32 v6, v6, 16, v6')
    for r in range(4):
        w(f'v_lshl_or_b32 v{wop+r}, v{200+2*r+1}, 16, v{200+2*r}\nv_xor_b32 v{wop+r}, v6, v{wop+r}')

def cost(i):
    if i.op in ('v_exp_f32', 'v_rcp_f32') or i.op.startswith('v_permlane'): return 11
    if i.kind == 'mfma': return 36
    if i.kind in ('vm', 'vmst'): return 14
    if i.op in ('v_max3_f32', 'v_fma_f32', 'v_lshl_add_u32', 'v_lshl_or_b32'): return 8.3
    return 5.6

def pack(s, X, work, bars, tok, extra, need10, quiet, frac, late_hi, w1at=None, first=(), tneed={}, pinned={}):
    flat = [(m, w.l) for m, w in work]
    qi = 0; qpos = 0; inloop = False; where = {}
    pieces = []; lgfree = False
    for bi, st in enumerate(bars):
        whole = st == int(st)
        if not lgfree: s('s_waitcnt lgkmcnt(0)')
        lgfree = False
        nd = [tok[t] for t in tneed.get(st, [st] if whole and st <= 9 else [])] + (need10 if st == 10 else [])
        dbg = cfg.hdbg and whole and cfg.hb + 1 <= st <= cfg.hb + 6
        if dbg: stamp(s, 2*(st-cfg.hb-1), True); s('s_nop 0', needs=nd)
        s('s_barrier', needs=nd)
        if dbg: stamp(s, 2*(st-cfg.hb-1)+1, True)
        for tgt in range(3, 10):
            if (w1at or {}).get(tgt, tgt - 2) == st:
                p = dma_stage(tgt, X); tok[tgt] = p[-1][-1]
                if st in first: emit(s, p)
                else: pieces += p
        pieces += extra.get(st, [])
        last = bi + 1 == len(bars)
        BUD = 1e9 if last else cfg.bud * frac.get(st, 1.0)
        hold = []
        if quiet.get(st) == 'all': hold = pieces; pieces = []
        q = quiet.get(st, 0) if quiet.get(st) != 'all' else 0
        if st in pinned: s.l.extend(pinned[st].l)
        used = 0; inexec = False; since = 99 if not inloop and not (qi < len(flat) and qpos == 0 and flat[qi][1][0].op in ('s_waitcnt', 's_memrealtime', 's_memtime')) else 0
        inloop = False
        while qi < len(flat) and flat[qi][0] <= st:
            ins = flat[qi][1][qpos]
            free = not inexec and not inloop and ins.op not in ('s_addc_u32', 's_subb_u32', 's_cselect_b32') and not ins.op.startswith('s_cbranch')
            if pieces and free and ((since >= 6 and used >= q) or ins.tag == 'flush'):
                s.l.extend(pieces.pop(0)); used += 20; since = 0
                continue
            if used + 20*len(pieces) >= BUD and free and ins.tag != 'glue': break
            s.l.append(ins); used += cost(ins); since += 1
            where[id(ins)] = st
            if ('s', 'exec') in ins.wr: inexec = '-1' not in ins.text
            if ins.op.startswith('s_cbranch') and ins.text.split()[1].endswith('_x'): inloop = True
            if ins.kind == 'label' and ins.op.endswith('_x:'): inloop = False
            if ins.op.startswith('s_load') or ins.op.startswith('s_cmp') or ins.op in ('s_xor_b64', 's_or_b64'): inloop = True
            qpos += 1
            if qpos == len(flat[qi][1]): qi += 1; qpos = 0
        for p in pieces: s.l.extend(p)
        pieces = hold
        if whole and qi < len(flat) and qpos == 0 and flat[qi][0] == st + 0.5 and (st + 0.5) not in bars:
            s.l.extend(flat[qi][1]); qi += 1; lgfree = True
    assert qi == len(flat)
    l = []; hi = False
    bidx = [k for k, i in enumerate(s.l) if i.op == 's_barrier']
    for k, i in enumerate(s.l):
        want = i.kind == 'mfma' or (k > bidx[late_hi] and i.kind in ('vm', 'vmst'))
        if i.kind in ('mfma', 'valu', 'vm', 'vmst', 'vmlds', 'ds') and want != hi and i.tag != 'raw':
            l.append(I(f's_setprio {3 if want else cfg.prioH}')); hi = want
        l.append(i)
    s.l = l
    return where

def helperX():
    s = S(); X = True
    WK, RS, KF, KVA = 8, 20, 24, 40
    PT = 136; ID = 224; TT = 200; FR = 136
    vB1, vB2, vRD, vKVA, vL16h, vST = 232, 233, 234, 235, 238, 239
    helper_head(s, X, WK, False)
    s(f'v_lshlrev_b32 v{vL16h}, 4, v1\ns_lshl_b32 s6, s{sW4}, 12\ns_add_u32 s6, s6, {KB}\nv_lshlrev_b32 v5, 3, v1\nv_add_u32 v{vRD}, s6, v5')
    s('v_bfe_u32 v5, v1, 2, 2\nv_lshl_add_u32 v5, v4, 2, v5')
    s('v_and_b32 v7, 3, v1\nv_xor_b32 v7, v7, v4\nv_lshlrev_b32 v7, 3, v7\nv_lshl_add_u32 v7, v5, 5, v7\nv_add_u32 v7, s6, v7')
    s(f'v_lshlrev_b32 v6, 3, v5\nv_add_u32 v6, {STDB}, v6')
    s(f'v_bfe_u32 v5, v1, 4, 1\nv_cmp_eq_u32 vcc, 1, v5\nv_cndmask_b32 v{vB1}, v7, v6, vcc')
    s(f'v_xor_b32 v7, 16, v7\nv_add_u32 v7, 256, v7\nv_add_u32 v6, 64, v6\nv_cndmask_b32 v{vB2}, v7, v6, vcc')
    s(f'v_mov_b32 v6, 512\nv_mov_b32 v7, 128\nv_cndmask_b32 v{vST}, v6, v7, vcc')
    s(f'v_and_b32 v5, 31, v1\nv_min_u32 v5, 16, v5\nv_lshl_add_u32 v5, v4, 5, v5\nv_lshlrev_b32 v{vKVA}, 2, v5')
    s('v_and_b32 v5, 1, v1\nv_lshlrev_b32 v5, 4, v5\nv_mov_b32 v6, 0x3f80\nv_lshlrev_b32 v6, v5, v6')
    s('v_bfe_u32 v5, v1, 4, 1\nv_cmp_eq_u32 vcc, v5, v4\nv_cndmask_b32 v6, 0, v6, vcc\nv_bfe_u32 v5, v1, 1, 3')
    for r in range(8): s(f'v_cmp_eq_u32 vcc, {r}, v5\nv_cndmask_b32 v{ID+r}, 0, v6, vcc')
    s(f's_lshl_b32 s{sLBx}, s{sW4}, 12\ns_lshl_b32 s6, s{sW4}, 1\ns_and_b32 s7, s{sW4}, 2\ns_lshl_b32 s7, s7, 2\ns_add_u32 s6, s6, s7\ns_lshl_b32 s6, s6, 14\ns_lshl_b32 s7, s{sNB}, 7\ns_add_u32 s{sWBx}, s6, s7')
    tok = helper_start(s, X, WK, False)
    work = []
    def seg(minb):
        w = S(); work.append((minb, w)); return w
    w = seg(1)
    w(f'v_and_b32 v5, 31, v1\nv_lshlrev_b32 v5, 2, v5\nv_add_u32 v5, {RSB}, v5')
    for rt in range(4): w(f'ds_read_b32 v{RS+rt}, v5 offset:{rt*128}')
    nonce_and_wphi(w, 'L_nonX', WK, 2)
    w(f's_lshl_b32 s6, s{sHEAD}, 7\ns_add_u32 s6, s6, {FKV+64}\nv_mov_b32 v17, s6')
    sbase(w, 6)
    w(f's_lshl_b32 s7, s{sRB}, 2\ns_sub_u32 s6, s6, 64\ns_add_u32 s6, s6, s7\nv_mov_b32 v18, s6')
    w(f's_cmp_lg_u32 s{sRB}, 0\ns_cbranch_scc1 L_zero_x')
    for r in range(4): w(f'v_mov_b32 v{FR+r}, 0')
    for q in range(4): w(f'buffer_store_dwordx4 {vr(FR,4)}, v{vL16h}, {srd(SWS)}, s{sKV} offen offset:{q*1024} sc1', tag='raw')
    w('s_waitcnt vmcnt(0)', tag='raw')
    w('s_mov_b64 exec, 1')
    w(f'buffer_store_dword v16, v17, {srd(SWS)}, 0 offen sc1', tag='raw')
    w('s_mov_b64 exec, -1')
    w('L_zero_x:')
    w = seg(2.5)
    for rt in range(4):
        w(f'ds_read_b64 {vr(KF+4*rt,2)}, v{vRD} offset:{rt*1024}\nds_read_b64 {vr(KF+4*rt+2,2)}, v{vRD} offset:{rt*1024+512}')
    for rt in range(4): w(f'{MF} {vr(PT+16*rt,16)}, {vr(WK,4)}, {vr(KF+4*rt,4)}, 0')
    T4 = (4, 5, 6, 7)
    PH = [56, 64, 24, 32]; TP = [216, 56, 64, 24]
    tr_mm = lambda rt: [[I(f'{MF} {vr(TT,16)}, {vr(PH[rt],4)}, {vr(ID,4)}, 0')], [I(f'{MF} {vr(TT,16)}, {vr(PH[rt]+4,4)}, {vr(ID+4,4)}, {vr(TT,16)}')]]
    tr_cv = lambda rt: [I(f'v_cvt_pk_bf16_f32 v{TP[rt]+j}, v{TT+2*j}, v{TT+2*j+1}') for j in range(8)]
    softmax_k(w, PT, RS, PH[0], T4)
    for rt in range(1, 4):
        m = S(); softmax_k(m, PT + 16*rt, RS + rt, PH[rt], T4)
        merge(w, m, tr_mm(rt - 1) + [[], tr_cv(rt - 1)], 8)
    for x in tr_mm(3): w.l.extend(x)
    sload(w, 44, 1, False); scheck(w, 'L_pollz', 44, 1, False)
    w.l.extend(tr_cv(3))
    w = seg(6.5)
    for rt in range(4):
        for ks in range(2):
            f = FR + 8*rt + 4*ks
            lastv = w(f'ds_read_b64_tr_b16 {vr(f,2)}, v{vB1}\nds_read_b64_tr_b16 {vr(f+2,2)}, v{vB2}')
            if rt < 3 or ks < 1: w(f'v_add_u32 v{vB1}, v{vB1}, v{vST}\nv_add_u32 v{vB2}, v{vB2}, v{vST}')
        if rt == 2: w('s_waitcnt lgkmcnt(8)')
    for rt in range(4):
        for ks in range(2):
            w(f'{MF} {vr(KVA,16)}, {vr(TP[rt]+4*ks,4)}, {vr(FR+8*rt+4*ks,4)}, ' + ('0' if rt == 0 and ks == 0 else vr(KVA,16)))
    for i in w.l: i.tag = i.tag or 'glue'
    if cfg.skip != 1: w = seg(7)
    w('s_mov_b32 s76, 0x1ffff\ns_mov_b32 s77, 0x1ffff')
    w('s_mov_b64 exec, s[76:77]')
    for r in range(16): at = w(f'buffer_atomic_add_f32 v{KVA+r}, v{vKVA}, {srd(SWS)}, s{sKV} offen offset:{r*256}')
    w('s_mov_b64 exec, -1')
    if cfg.xcw:
        for p in cwpiecesx(0): w.l.extend(p); tok['cw0'] = p[-1]
    for i in w.l: i.tag = i.tag or 'glue'
    stamp(w, 2)
    w = seg(7 if cfg.skip == 2 else 8)
    post(w, 16, 18, '0', [at])
    for i in w.l: i.tag = 'glue'
    stamp(w, 3)
    bars = [1, 2, 2.5, 3, 4, 5, 6, 6.5] + [[7, 8], [8], [7]][cfg.skip] + [9, 10]
    c9 = cwpieces2()
    extra = {1: cwpieces(1), 3: cwpieces(2), 8: cwpieces(0) + cwpieces(3), 9: c9}
    if cfg.xcw: extra = {1: cwpiecesx(1), 3: cwpiecesx(2), 5: cwpiecesx(3, (0,)), 8: cwpiecesx(3, (1,)), 9: c9}
    tok['cw'] = extra[8][-1][-1]
    if cfg.skip == 2:
        extra[7] = extra.pop(8)
        where = pack(s, X, work, bars, tok, extra, [c9[-1][-1]], {2: 'all', 4: cfg.quiet, 7: cfg.q7},
                     {2.5: cfg.f25, 3: cfg.fk, 4: cfg.fk, 5: cfg.fk, 6: 0.45, 6.5: 0.4, 7: 2}, -3, None, (6, 7) if cfg.f8 else (6,), {7: [7, 8], 9: [9, 'cw', 'cw0']})
    elif cfg.skip:
        where = pack(s, X, work, bars, tok, extra, [c9[-1][-1]], {2: 'all', 4: cfg.quiet, 8: 30},
                     {2.5: cfg.f25, 3: cfg.fk, 4: cfg.fk, 5: cfg.fk, 6: 0.45}, -4, {8: 6.5, 9: 8, 4: cfg.s4}, (6.5, 8) if cfg.f8 else (6.5,), {6.5: [7], 9: [9, 'cw', 'cw0']})
    else:
        where = pack(s, X, work, bars, tok, extra, [c9[-1][-1]], {2: 'all', 4: cfg.quiet, 7: 100, 8: 30},
                     {2.5: cfg.f25, 3: cfg.fk, 4: cfg.fk, 5: cfg.fk, 6: 0.45, 6.5: 0.4}, -4, None, (6,), {9: [9, 'cw', 'cw0']})
    assert where[id(lastv)] < 7
    return s

def own_first(s, lab):
    pass

def helperY():
    s = S(); X = False
    WQ, QF, KVA = 8, 24, 40
    PT = 136; vKVA, vL16h, vSA = 235, 238, 240
    helper_head(s, X, WQ, True)
    s(f'v_lshlrev_b32 v{vL16h}, 4, v1')
    s(f'v_and_b32 v5, 31, v1\nv_min_u32 v5, 16, v5\nv_lshl_add_u32 v5, v4, 5, v5\nv_lshlrev_b32 v{vKVA}, 2, v5')
    s(f's_add_u32 s79, s{sLBc}, 65536')
    b_traddr(s, vSA, 79, 11)
    s(f'v_xor_b32 v{vSA+1}, 64, v{vSA}')
    tok = helper_start(s, X, WQ, True)
    work = []
    def seg(minb):
        w = S(); work.append((minb, w)); return w
    w = seg(3)
    nonce_and_wphi(w, 'L_nonY', WQ, 4)
    w(f's_lshl_b32 s6, s{sRB}, 3\ns_add_u32 s6, s6, s{sJ}\ns_lshl_b32 s{sQ}, s6, 14\ns_lshl_b32 s7, s{sW4}, 12\ns_add_u32 s{sQ}, s{sQ}, s7\ns_add_u32 s{sQ}, s{sQ}, {Q_OFF}')
    w(f's_lshl_b32 s6, s6, 7\ns_add_u32 s6, s6, {FQ}')
    sbase(w, 6)
    w(f's_lshl_b32 s6, s{sRB}, 5\ns_add_u32 s6, s6, s{sHEAD}\ns_lshl_b32 s6, s6, 2\ns_add_u32 s6, s6, {FO}\nv_mov_b32 v18, s6')
    w = seg(cfg.qat - 0.5)
    sload(w, 44, 4, False)
    w = seg(cfg.qat)
    stamp(w, 2)
    scheck(w, 'L_pollq', 44, 4, False)
    stamp(w, 3)
    for rt in range(4): w(f'buffer_load_dwordx4 {vr(QF+4*rt,4)}, v{vL16h}, {srd(SWS)}, s{sQ} offen offset:{rt*1024} sc1')
    w(f's_lshl_b32 s6, s{sHEAD}, 7\ns_add_u32 s6, s6, {FKV}')
    sbase(w, 6)
    w('s_mov_b32 s73, 0', tag='flush')
    for rt in range(4): w(f'{MF} {vr(PT+16*rt,16)}, {vr(WQ,4)}, {vr(QF+4*rt,4)}, 0')
    T4 = (4, 5, 6, 7)
    PQ = [56, 64, 200, 208]
    for rt in range(4): softmax_q(w, PT + 16*rt, PQ[rt], T4)
    def kvloads(w):
        for r in range(16): w(f'buffer_load_dword v{KVA+r}, v{vKVA}, {srd(SWS)}, s{sKV} offen offset:{r*256} sc1', tag='raw')
    if cfg.ktry:
        w = seg(9)
        sload(w, SP, 16, False)
        w('s_waitcnt lgkmcnt(0)')
        w(f's_xor_b64 s[6:7], s[{SP}:{SP+1}], s[{sNON}:{sNON+1}]')
        for k in range(1, 8): w(f's_xor_b64 s[76:77], s[{SP+2*k}:{SP+2*k+1}], s[{sNON}:{sNON+1}]\ns_or_b64 s[6:7], s[6:7], s[76:77]')
        w('s_cmp_eq_u64 s[6:7], 0\ns_cbranch_scc0 L_try_x')
        kvloads(w)
        w('s_mov_b32 s73, 1')
        w('L_try_x:')
    w = seg(9.5)
    sload(w, SP, 16, False)
    w = seg(10)
    stamp(w, 4)
    if cfg.yw == 1: emit(w, ownpieces(range(8, 16), sLB, O8))
    w('s_cmp_eq_u32 s73, 1\ns_cbranch_scc1 L_kv_x')
    scheck(w, 'L_pollkv', SP, 16, False)
    kvloads(w)
    w('L_kv_x:')
    stamp(w, 5)
    if cfg.yw == 2:
        emit(w, ownpieces(range(8, 16), sLB, O8)); w('s_waitcnt vmcnt(16) lgkmcnt(0)')
    else: w('s_waitcnt vmcnt(0) lgkmcnt(0)')
    w('v_and_b32 v4, 27, v1\nv_cmp_eq_u32 vcc, 17, v4\nv_mov_b32 v4, 0x3f803f80')
    for r in range(8): w(f'v_cvt_pk_bf16_f32 v{KVA+r}, v{KVA+2*r}, v{KVA+2*r+1}')
    for r in range(8): w(f'v_cndmask_b32 v{KVA+r}, v{KVA+r}, v4, vcc')
    OT = [136, 168, 24, 216]; ON = [152, 184, 48 - 0, 232]
    ON[2] = 0
    w(f'v_mov_b32 v3, v{vL16h}\nv_mov_b32 v248, v16\nv_mov_b32 v249, v18')
    ON = [152, 184, 8, 232]
    for rt in range(4):
        w(f'{MF} {vr(OT[rt],16)}, {vr(KVA,4)}, {vr(PQ[rt],4)}, 0')
        w(f'{MF} {vr(ON[rt],16)}, {vr(KVA+4,4)}, {vr(PQ[rt]+4,4)}, 0')
    w(f's_lshl_b32 s6, s{sRB}, 2\ns_mul_i32 s6, s6, 144\ns_add_u32 s6, s6, s{sHEAD}\ns_add_u32 s6, s6, 112\ns_lshl_b32 s79, s6, 10')
    w('v_mov_b32 v4, 0x358637bd')
    for rt in range(4):
        o = OT[rt]; n = ON[rt]
        w(f'v_rcp_f32 v{o+9}, v{o+9}\nv_rcp_f32 v{n+9}, v{n+9}')
        w(f'v_fma_f32 v{o+8}, v{o+8}, v{o+9}, v4\nv_fma_f32 v{o+8}, v{n+8}, v{n+9}, v{o+8}\nv_rcp_f32 v{o+8}, v{o+8}')
        w(f'v_mul_f32 v{o+9}, v{o+9}, v{o+8}\nv_mul_f32 v{n+9}, v{n+9}, v{o+8}')
        for j in range(8): w(f'v_mul_f32 v{o+j}, v{o+j}, v{o+9}')
        for j in range(8): w(f'v_fma_f32 v{o+j}, v{n+j}, v{n+9}, v{o+j}')
        for j in range(0, 8, 2): w(f'v_cvt_pk_bf16_f32 v{o+12+j//2}, v{o+j}, v{o+j+1}')
        ost = w(f'buffer_store_dwordx4 {vr(o+12,4)}, v3, {srd(SWS)}, s79 offen sc1')
        if rt < 3: w(f's_add_u32 s79, s79, {144*1024}')
    stamp(w, 6)
    post(w, 248, 249, '0', [ost])
    stamp(w, 7)
    c2 = cwpieces2()
    oa, ob = stg_offs([0, 1]), stg_offs([2, 3])
    ga, gb = ownpieces(range(4), sLBc, oa), ownpieces(range(4, 8), sLBc, ob)
    ra, rb_ = stg_reads(range(4), oa, vSA, ga[-1][-1]), stg_reads(range(4, 8), ob, vSA, gb[-1][-1])
    extra = {1: ga, 4: gb + cwpieces(0), 5: cwpieces(1), 6: cwpieces(2), 7: cwpieces(3), 9: c2}
    if cfg.l2t:
        t = l2touch(); extra[5] += t[:2]; extra[6] += t[2:]
    tok['cw'] = [p for p in extra[7]][-1][-1]
    if cfg.skipy:
        pack(s, X, work, [1, 2, 3, 4, 5, 6, 7, 9, 10], tok, extra, [c2[-1][-1]], {}, {7: cfg.f7 + 1, 9: cfg.f9}, -3, None, (6,), {7: [7, 8], 9: [9, 'cw']}, {3: ra, 6: rb_})
    else:
        extra[8] = extra.pop(9)
        pack(s, X, work, list(range(1, 11)), tok, extra, [c2[-1][-1]], {}, {7: cfg.f7, 8: 0.9, 9: cfg.f9}, -3, None, (), {9: [9, 'cw']}, {3: ra, 6: rb_})
    s('s_branch L_BHY')
    return s

BACC = [8, 24, 40, 56]; BW = 232; vBX = 248
def red_write(s, acc, t):
    s(f'v_and_b32 v4, 31, v1\nv_lshrrev_b32 v5, 5, v1\nv_and_b32 v6, 7, v1\nv_xor_b32 v6, v5, v6\nv_lshlrev_b32 v6, 4, v6\nv_lshl_add_u32 v6, v4, 8, v6\nv_add_u32 v{t}, s{sLB}, v6')
    for k in range(1, 4): s(f'v_xor_b32 v{t+k}, {k<<5}, v{t}')
    for nt in range(2):
        for st in range(2):
            for q in range(4):
                if q == 3 and nt == 1 and st == 1: s('s_waitcnt lgkmcnt(8)')
                s(f'ds_write_b128 v{t+q}, {vr(acc[2*nt+st]+4*q,4)} offset:{st*8192 + nt*128}')
    s('s_waitcnt vmcnt(0)')

def phaseB_body(kind):
    s = S(); lab = f'L_B{kind}'
    C = kind == 'C'; n = 20 if C else 16
    order = CORDER if C else list(range(16))
    if C:
        acc = [160, 176, 192, 208]; bw = 224; vl, v16, vd, vtr, vxo, wr, vtr2 = 240, 242, 243, 244, 245, 96, 246
        hreg = lambda i: 8*i if i < 12 else 8*(i - 12)
        if cfg.cpre:
            wr = 0; hreg = lambda i: 64 + 8*i if i < 12 else 8*(i - 12)
    else:
        acc = BACC; bw = BW; vl, v16, vd, vtr, vxo, wr, vtr2 = 1, 3, vW2, 6, 7, WRB, 5
        hreg = lambda i: 136 + 8*i if i < 12 else WRB + 8*(i - 12)
    hoff = [0]
    def hload(i):
        rel = order[i]
        if rel // 4 != hoff[0]:
            d = (rel // 4 - hoff[0]) * 4096; hoff[0] = rel // 4
            op = 's_add_u32' if d > 0 else 's_sub_u32'
            s(f'{op} s{sH0}, s{sH0}, {abs(d)}\n{op} s{sH1}, s{sH1}, {abs(d)}')
        for c in range(2):
            s(f'buffer_load_dwordx4 {vr(hreg(i)+4*c,4)}, v{v16}, {srd(SWS)}, s{sH0+c} offen offset:{(rel%4)*1024}' + (' sc1' if not cfg.nosc else ''))
    wt = {}; rt_ = {}
    def rd(i, f):
        va, o0 = ((vtr, vtr2), (i % 8)*2048) if i < 16 else ((241, 247), (i - 16)*2048)
        for c in range(2):
            s(f'ds_read_b64_tr_b16 {vr(f+4*c,2)}, v{va[c]} offset:{o0}', needs=[wt[i]] if i in wt else [])
            rt_[i] = s(f'ds_read_b64_tr_b16 {vr(f+4*c+2,2)}, v{va[c]} offset:{o0 + 1024}')
    def wdma(i):
        if cfg.now: return
        for p in ownpieces([i], sLB, [(i % 8)*2048], vd, SD if C else SWH, order):
            if i - 8 in rt_: p[-1].needs = [rt_[i-8]]
            s.l.extend(p); wt[i] = p[-1]
    def preread():
        for i in range(8):
            rd(i, wr + 8*i)
            if i % 2 == 1 and i >= 3: s('s_waitcnt lgkmcnt(8)')
    def step(i):
        if 8 <= i + 1 < n: rd(i + 1, bw + 8*((i + 1) % 2))
        f = wr + 8*i if i < 8 else bw + 8*(i % 2)
        for nt in range(2):
            for st in range(2):
                a = acc[2*nt+st]
                if cfg.nomf: s(f'v_xor_b32 v{a}, v{f+4*nt}, v{hreg(i)+4*st}'); continue
                s(f'{MF} {vr(a,16)}, {vr(f+4*nt,4)}, {vr(hreg(i)+4*st,4)}, ' + ('0' if i == 0 else vr(a,16)))
        if cfg.cdbg and i in (0, 3, 7, 11, 15): stamp(s, (0, 3, 7, 11, 15).index(i))
    def xload(t):
        s(f'v_lshrrev_b32 v{t}, 3, v{vl}\nv_and_b32 v{vxo}, 7, v{vl}\nv_lshlrev_b32 v{vxo}, 4, v{vxo}\nv_lshl_add_u32 v{vxo}, v{t}, 10, v{vxo}')
        s(f'buffer_load_dwordx4 {vr(vBX,4)}, v{vxo}, {srd(SX)}, s{sXO} offen')
    if C:
        s('s_setprio 3')
        p0 = 4 if cfg.eh else 0
        if not cfg.eh: scheck(s, lab + '_e', SP, 2, True)
        for i in range(p0, p0 + cfg.pre): hload(i)
        s(f'v_lshrrev_b32 v{vl}, 4, v{v16}')
        b_traddr(s, 241, None, vd, vl)
        s(f'v_add_u32 v{vtr}, s{sLB}, v241\nv_xor_b32 v{vtr2}, 64, v{vtr}\ns_lshl_b32 s6, s{sW}, 13\nv_add_u32 v241, s6, v241\nv_xor_b32 v247, 64, v241')
        if not cfg.cpre:
            preread()
            line_voff(s, vxo, vd, vl)
            s(f'v_lshl_add_u32 v{vd}, v{vxo}, 10, v{vd}')
        s(f's_sub_u32 s4, s4, {FE-FH}\ns_subb_u32 s5, s5, 0')
        cf = cfg.cf if cfg.eh else 0
        if cf: s(f's_waitcnt vmcnt({4 + 2*cfg.pre})')
        for i in range(cf): step(i)
        s(f's_waitcnt vmcnt({2*cfg.pre})')
        post(s, vNON, vFA)
        if cfg.b11: s(f's_cmp_lg_u32 s{sTY}, 0\ns_cbranch_scc1 L_nb11\ns_barrier\nL_nb11:')
        stamp(s, 8)
        s('s_setprio 0')
        LA = max(cfg.la, p0 + cfg.pre)
        for i in range(p0 + cfg.pre, min(12, LA + cf)): hload(i)
        for i in range(cf, 8):
            step(i)
            if i + LA < 12: hload(i + LA)
            if not cfg.cpre: wdma(8 + i)
            if i == cfg.sl: sload(s, SP, 2, True)
        scheck(s, lab + '_f', SP, 2, True)
        stamp(s, 9)
        nl = 12
        for k in range(cfg.lb): hload(nl); nl += 1
        for i in range(8, n):
            step(i)
            for k in range(2):
                if nl < 20: hload(nl); nl += 1
            if i == 12: xload(252)
        stamp(s, 10)
        s(f'v_mov_b32 v1, v{vl}\nv_mov_b32 v7, v{vxo}')
        red_write(s, acc, 72)
        s('s_branch L_red')
        return s
    s('s_setprio 0')
    s('v_lshlrev_b32 v3, 4, v1')
    b_traddr(s, 6, sLB, 7)
    s('v_xor_b32 v5, 64, v6')
    s(f's_lshr_b32 s6, s{sSB}, 1\ns_lshl_b32 s6, s6, 7\ns_and_b32 s78, s{sW}, 1\ns_lshl_b32 s7, s78, 6\ns_add_u32 s6, s6, s7\ns_add_u32 s6, s6, {FO}')
    s(f's_lshl_b32 s7, s{sSB}, 8\ns_lshl_b32 s78, s78, 4\ns_add_u32 s7, s7, s78\ns_add_u32 s7, s7, {FH}')
    s(f's_cmp_ge_u32 s{sW}, 6\ns_cselect_b32 s6, s6, s7')
    sbase(s, 6)
    def snap():
        s(f's_cmp_ge_u32 s{sW}, 6\ns_cbranch_scc1 {lab}_so')
        sload(s, SP, 4, True); s(f's_branch {lab}_sx\n{lab}_so:'); sload(s, SP, 16, False); s(f'{lab}_sx:')
    if kind == 'HX':
        if cfg.b11 == 1: s('s_barrier')
        for i in range(8):
            if cfg.b11 == 2 and i == 3: s('s_barrier')
            wdma(i)
        preread()
    early = kind == 'HX' and cfg.esn
    if early: s('s_waitcnt lgkmcnt(0)'); snap()
    npre = cfg.hw if kind == 'HY' else cfg.hwx
    if kind == 'HY' and cfg.yw: npre = -100
    for i in range(8, 8 + npre): wdma(i)
    xload(8)
    stamp(s, 8)
    if not early: s('s_waitcnt lgkmcnt(0)')
    def gate(k, first):
        s(f's_cmp_ge_u32 s{sW}, 6\ns_cbranch_scc1 {lab}_o{k}')
        if first: sload(s, SP, 4, True)
        scheck(s, f'{lab}_ph{k}', SP, 4, True, [[0, 2], [1, 3], [0, 1, 2, 3]][k])
        s(f's_branch {lab}_go{k}')
        s(f'{lab}_o{k}:')
        if first: sload(s, SP, 16, False)
        scheck(s, f'{lab}_po{k}', SP, 16, False, [[0, 1, 2, 3], [4, 5, 6, 7], list(range(8))][k])
        s(f'{lab}_go{k}:')
    gate(0 if cfg.g2 >= 0 else 2, not early)
    stamp(s, 9)
    nl = 0
    for k in range(cfg.lh): hload(nl); nl += 1
    for i in range(n):
        step(i)
        if i == cfg.g2: gate(1, False)
        for k in range(2):
            if nl < n and (nl < 12 or nl - 12 <= i) and (nl < 8 or i >= cfg.g2): hload(nl); nl += 1
        for k in (8 + npre + 2*i, 9 + npre + 2*i):
            if 8 <= k < 16: wdma(k)
    stamp(s, 10)
    red_write(s, acc, 72)
    if kind != 'HX': s('s_branch L_red')
    return s

def phaseB_tail():
    s = S()
    s(f'v_lshrrev_b32 v4, 3, v1\nv_and_b32 v5, 7, v1\nv_lshlrev_b32 v5, 1, v5\nv_xor_b32 v5, v4, v5\nv_lshlrev_b32 v5, 4, v5\nv_lshl_add_u32 v5, v4, 8, v5\ns_lshl_b32 s7, s{sW}, 11\nv_add_u32 v76, s7, v5')
    s('v_xor_b32 v77, 16, v76')
    s('v_add_u32 v78, 0x10000, v76\nv_add_u32 v79, 0x10000, v77\nv_add_u32 v80, 0x20000, v76\nv_add_u32 v81, 0x20000, v77')
    R = 84
    for j in range(4):
        s(f'v_lshlrev_b32 v{R+64+2*j}, 16, v{vBX+j}\nv_and_b32 v{R+65+2*j}, 0xffff0000, v{vBX+j}')
    s('s_waitcnt lgkmcnt(0)\ns_barrier')
    stamp(s, 11)
    for p in range(8):
        g, o = [(1, 0), (1, 16384), (1, 32768), (1, 49152), (0, 32768), (0, 49152), (2, 0), (2, 16384)][p]
        if p == 7: s('s_waitcnt lgkmcnt(8)')
        s(f'ds_read_b128 {vr(R+8*p,4)}, v{76+2*g} offset:{o}\nds_read_b128 {vr(R+8*p+4,4)}, v{77+2*g} offset:{o}')
    for p in range(1, 6):
        for j in range(8): s(f'v_add_f32 v{R+j}, v{R+j}, v{R+8*p+j}')
    for j in range(8): s(f'v_mul_f32 v{R+8+j}, 0xbfb8aa3b, v{R+j}')
    for j in range(8): s(f'v_exp_f32 v{R+8+j}, v{R+8+j}')
    for j in range(8): s(f'v_add_f32 v{R+48+j}, v{R+48+j}, v{R+56+j}')
    for j in range(8): s(f'v_add_f32 v{R+8+j}, 1.0, v{R+8+j}')
    for j in range(8): s(f'v_rcp_f32 v{R+8+j}, v{R+8+j}')
    for j in range(8): s(f'v_mul_f32 v{R+j}, v{R+j}, v{R+48+j}')
    for j in range(8): s(f'v_fma_f32 v{R+j}, v{R+j}, v{R+8+j}, v{R+64+j}')
    for j in range(4): s(f'v_cvt_pk_bf16_f32 v{R+24+j}, v{R+2*j}, v{R+2*j+1}')
    s(f'buffer_store_dwordx4 {vr(R+24,4)}, v7, {srd(SOUT)}, s{sXO} offen' + ['', ' sc1', ' nt', ' sc0 sc1', ' sc1 nt'][cfg.ost])
    return s

def fin():
    s = S()
    if cfg.stamps:
        s('s_waitcnt vmcnt(0)')
        stamp(s, 12)
        if cfg.pb >= 0:
            s(f's_cmp_lg_u32 s{sW}, {cfg.pw}\ns_cbranch_scc1 L_nospin\ns_cmp_lg_u32 s2, {cfg.pwg}\ns_cbranch_scc1 L_nospin')
            s(f's_sub_u32 s6, s{sTS+cfg.pb}, s{sTS+cfg.pa}\ns_lshl_b32 s6, s6, 3\ns_min_u32 s6, s6, 40000\ns_add_u32 s6, s6, s{sTS+12}')
            s('L_spin:\ns_memrealtime s[76:77]\ns_waitcnt lgkmcnt(0)\ns_cmp_lt_u32 s76, s6\ns_cbranch_scc1 L_spin\nL_nospin:')
        s(f's_lshl_b32 s6, s2, 3\ns_add_u32 s6, s6, s{sW}\ns_lshl_b32 s6, s6, 6\ns_add_u32 s6, s6, {TS_OFF}\nv_mov_b32 v8, s6')
        s('s_memrealtime s[76:77]\ns_waitcnt lgkmcnt(0)\ns_mov_b32 s99, s76')
        for q in range(4):
            for r in range(4): s(f'v_mov_b32 v{12+r}, s{sTS+4*q+r}')
            s('s_mov_b64 exec, 1')
            s(f'buffer_store_dwordx4 v[12:15], v8, {srd(SWS)}, 0 offen offset:{q*16}')
            s('s_mov_b64 exec, -1\ns_nop 2')
    return s

Cfg.w2t = 1; Cfg.w2at = 0; Cfg.ktry = 0; Cfg.xl = 1; Cfg.fk = 1.0; Cfg.skip = 2; Cfg.f7 = 0.65; Cfg.nomf = 0; Cfg.nosc = 0; Cfg.now = 0; Cfg.slp = 2; Cfg.la = 4; Cfg.lb = 2; Cfg.lh = 4; Cfg.ost = 4; Cfg.pwg = 72; Cfg.cdbg = 0; Cfg.sl = 3; Cfg.nbm = 1; Cfg.hw = 0; Cfg.hwx = 8; Cfg.mt = 0; Cfg.tmaj = 0; Cfg.yw = 0; Cfg.b11 = 0; Cfg.hb = 4; Cfg.f25 = 0.3; Cfg.s4 = 2; Cfg.g2 = 3; Cfg.l2t = 0; Cfg.tlbw = 0; Cfg.cpre = 1; Cfg.cpd = 4; Cfg.cps = 1; Cfg.esn = 0; Cfg.xcw = 1; Cfg.f8 = 1; Cfg.skipy = 0; Cfg.q7 = 0; Cfg.eh = 1; Cfg.ehn = 302; Cfg.cf = 3; Cfg.kvf = 8; Cfg.ystg = 1; Cfg.qat = 7; Cfg.f9 = 0.8

def build():
    out = []
    def put(lab, streams, name):
        l = []
        for x in streams: l += x.l
        if lab: out.append(lab + ':')
        out.extend('    ' + i.text if i.kind != 'label' else i.text for i in finalize(l, name))
    put(None, [prologue()], 'pro')
    if cfg.bonly:
        b = S()
        b('s_waitcnt vmcnt(0)')
        line_voff(b, 4, 5)
        b(f'v_lshl_add_u32 v252, v4, 10, v5\nv_lshlrev_b32 v242, 4, v1\nv_mov_b32 v248, 0\ns_lshl_b32 s6, s{sSB}, 8\ns_add_u32 s6, s6, {FE}')
        sbase(b, 6)
        b(f's_cmp_lt_u32 s{sW}, 6\ns_cselect_b32 s{SO}, s{SD}, s{SO}\ns_cselect_b32 s{SO+1}, s{SD+1}, s{SO+1}\ns_cselect_b32 s{SO+2}, s{SD+2}, s{SO+2}')
        b(f's_cmp_ge_u32 s{sW}, 4\ns_cbranch_scc1 L_bh')
        b(f'v_mov_b32 v252, {WS_BYTES}')
        b('s_barrier'); stamp(b, 7); b('s_branch L_BC\nL_bh:')
        b('s_barrier'); stamp(b, 7); b('s_branch L_BHY' if cfg.bonly == 1 else 's_branch L_BHX')
        put('L_bonly', [b], 'bo')
    put('L_compX', [compute('X')], 'cX')
    put('L_compY', [compute('Y')], 'cY')
    put('L_BC', [phaseB_body('C')], 'BC')
    hs = S(); hs(f's_cmp_eq_u32 s{sTY}, 0\ns_cbranch_scc1 L_helpX')
    put('L_helper', [hs, helperY()], 'hY')
    put('L_BHY', [phaseB_body('HY')], 'BHY')
    lx = S(); lx('L_BHX:')
    put('L_helpX', [helperX(), lx, phaseB_body('HX')], 'hX')
    put('L_red', [phaseB_tail()], 'red')
    put('L_fin', [fin()], 'fin')
    hdr = open('cdna_kernels/' + KN[:-7] + '.s.ref').read().split('; Override')[0]
    txt = hdr + '; @launch grid=(256,1,1) block=(512,1,1) lds=163840\n'
    txt += f'.amdgcn_target "amdgcn-amd-amdhsa--gfx950"\n.text\n.globl {KN}\n.p2align 8\n.type {KN},@function\n{KN}:\n'
    txt += '\n'.join(out) + '\nL_end:\n    s_endpgm\n'
    txt += f'''.section .rodata,"a"
.p2align 6
.amdhsa_kernel {KN}
  .amdhsa_next_free_vgpr 256
  .amdhsa_next_free_sgpr 102
  .amdhsa_accum_offset 256
  .amdhsa_group_segment_fixed_size 0
  .amdhsa_kernarg_size 88
  .amdhsa_user_sgpr_count 2
  .amdhsa_user_sgpr_kernarg_segment_ptr 1
  .amdhsa_system_sgpr_workgroup_id_x 1
.end_amdhsa_kernel
'''
    return txt

if __name__ == '__main__':
    for a in sys.argv[2:]:
        k, v = a.split('='); setattr(cfg, k, float(v) if '.' in v else int(v))
    d = getattr(cfg, 'fsh', 0)
    FKV += d; FH += d; FE += d; FO += d; FQ += d
    KV_OFF += getattr(cfg, 'ksh', 0)
    open(sys.argv[1], 'w').write(build())
```

```python
import re

def regs_of(op):
    op = op.strip()
    op = op.lstrip('-')
    if op.startswith('abs(') or op.startswith('|'):
        op = op.replace('abs(', '').replace(')', '').replace('|', '')
    m = re.fullmatch(r'([vs])(\d+)', op)
    if m: return [(m.group(1), int(m.group(2)))]
    m = re.fullmatch(r'([vs])\[(\d+):(\d+)\]', op)
    if m: return [(m.group(1), i) for i in range(int(m.group(2)), int(m.group(3)) + 1)]
    if op in ('vcc',): return [('s', 'vcc')]
    if op in ('vcc_lo', 'vcc_hi'): return [('s', 'vcc')]
    if op == 'exec': return [('s', 'exec')]
    if op == 'm0': return [('s', 'm0')]
    return []

TRANS = ('v_exp_f32', 'v_log_f32', 'v_rcp_f32', 'v_rsq_f32', 'v_sqrt_f32', 'v_sin_f32', 'v_cos_f32')

class I:
    __slots__ = ('text', 'op', 'rd', 'wr', 'kind', 'tok', 'needs', 'tag')
    def __init__(self, text, needs=None, tag=None):
        self.text = text; self.needs = list(needs or []); self.tok = None; self.tag = tag
        t = text.split(';')[0].strip()
        parts = t.split(None, 1)
        self.op = parts[0]
        rest = parts[1] if len(parts) > 1 else ''
        ops = [o.strip() for o in re.split(r',(?![^\[]*\])', rest)] if rest else []
        mods = ''
        if ops:
            l = ops[-1].split(None, 1)
            if len(l) > 1 and not ops[-1].startswith('hwreg'):
                ops[-1] = l[0]; mods = l[1]
        op = self.op
        rd, wr = [], []
        kind = 'other'
        R = regs_of
        if op.startswith('v_mfma'):
            kind = 'mfma'; wr = R(ops[0]); rd = R(ops[1]) + R(ops[2]) + R(ops[3])
        elif op.startswith('ds_read'):
            kind = 'ds'; wr = R(ops[0]); rd = R(ops[1])
        elif op.startswith('ds_write'):
            kind = 'ds'; rd = sum((R(o) for o in ops), [])
        elif op.startswith('buffer_load') or op.startswith('global_load'):
            kind = 'vm'
            if 'lds' in mods.split():
                rd = sum((R(o) for o in ops), []) + [('s', 'm0')]; kind = 'vmlds'
            else:
                wr = R(ops[0]); rd = sum((R(o) for o in ops[1:]), [])
        elif op.startswith('buffer_store') or op.startswith('global_store') or op.startswith('buffer_atomic'):
            kind = 'vmst'; rd = sum((R(o) for o in ops), [])
        elif op.startswith('s_load') or op in ('s_memtime', 's_memrealtime'):
            kind = 'smem'; wr = R(ops[0]); rd = sum((R(o) for o in ops[1:]), [])
        elif op.startswith('v_cmp'):
            kind = 'valu'; wr = R(ops[0]); rd = sum((R(o) for o in ops[1:]), [])
        elif op.startswith('v_permlane'):
            kind = 'valu'; wr = R(ops[0]) + R(ops[1]); rd = list(wr)
        elif op.startswith('v_readfirstlane') or op.startswith('v_readlane'):
            kind = 'valu'; wr = R(ops[0]); rd = sum((R(o) for o in ops[1:]), [])
        elif op.startswith('v_'):
            kind = 'valu'; wr = R(ops[0]); rd = sum((R(o) for o in ops[1:]), [])
            if op.startswith('v_fmac') or op.startswith('v_dot2c'): rd += wr
            if op.startswith('v_cndmask') and len(ops) == 3: rd += [('s', 'vcc')]
        elif op in ('s_waitcnt', 's_barrier', 's_nop', 's_endpgm', 's_setprio', 's_sleep') or op.startswith('s_cbranch') or op == 's_branch':
            kind = 'ctl'
            if op.startswith('s_cbranch_vcc'): rd = [('s', 'vcc')]
        elif op.startswith('s_cmp'):
            kind = 'salu'; rd = sum((R(o) for o in ops), [])
        elif op.startswith('s_'):
            kind = 'salu'; wr = R(ops[0]); rd = sum((R(o) for o in ops[1:]), [])
            if 'saveexec' in op: wr += [('s', 'exec')]
        elif op.endswith(':') or op.startswith('.'):
            kind = 'label'
        else:
            raise ValueError('unknown instr ' + text)
        self.rd, self.wr, self.kind = rd, wr, kind

class Tok:
    def __init__(self): self.i = None

def finalize(stream, name='', entry_lg=0, entry_vm=0, check_only=False):
    out = []
    lg = []; vm = []
    def emit_wait(nl, nv):
        parts = []
        if nv is not None: parts.append(f'vmcnt({nv})')
        if nl is not None: parts.append(f'lgkmcnt({nl})')
        out.append(I('s_waitcnt ' + ' '.join(parts)))
    for ins in stream:
        if ins.tag == 'raw':
            out.append(ins); continue
        if ins.op == 's_waitcnt':
            t = ins.text
            m = re.search(r'vmcnt\((\d+)\)', t)
            if m:
                n = int(m.group(1)); del vm[:max(0, len(vm) - n)]
            m = re.search(r'lgkmcnt\((\d+)\)', t)
            if m:
                n = int(m.group(1))
                if n == 0: lg.clear()
                elif not any(e.kind == 'smem' for e in lg): del lg[:max(0, len(lg) - n)]
            out.append(ins); continue
        touched = set(ins.rd) | set(ins.wr)
        needl = -1; needv = -1
        for q, e in enumerate(lg):
            if (set(e.wr) & touched) or e in ins.needs: needl = q
        for q, e in enumerate(vm):
            if (set(e.wr) & touched) or e in ins.needs: needv = q
        nl = nv = None
        if needl >= 0:
            if any(e.kind == 'smem' for e in lg): nl = 0; lg.clear()
            else:
                nl = len(lg) - 1 - needl
                nl = min(nl, 15)
                del lg[:len(lg) - nl]
        if needv >= 0:
            nv = len(vm) - 1 - needv
            assert nv <= 63, (name, ins.text, nv)
            del vm[:needv + 1]
        if nl is not None or nv is not None: emit_wait(nl, nv)
        out.append(ins)
        if ins.kind in ('ds', 'smem'): lg.append(ins)
        if ins.kind in ('vm', 'vmlds', 'vmst'):
            vm.append(ins)
            assert len(vm) <= 63, (name, 'vm overflow', ins.text)
    res = []
    def states_since(pred, maxn):
        n = 0
        for p in reversed(res):
            if p.kind == 'label':
                if p.op.startswith('.'): continue
                continue
            if pred(p): return n
            if p.op == 's_nop': n += int(p.text.split()[1]) + 1
            else: n += 1
            if n >= maxn: return None
        return None
    for ins in out:
        need = 0
        def req(pred, k):
            nonlocal need
            d = states_since(pred, k)
            if d is not None: need = max(need, k - d)
        rd = set(ins.rd); wr = set(ins.wr)
        vrd = {r for r in rd if r[0] == 'v'}; vwr = {r for r in wr if r[0] == 'v'}
        srd = {r for r in rd if r[0] == 's'}
        isdot = lambda p: p.op.startswith('v_dot2')
        if ins.kind == 'mfma':
            req(lambda p: p.kind == 'valu' and set(p.wr) & vrd, 2)
            ops = [o.strip() for o in re.split(r',(?![^\[]*\])', ins.text.split(None, 1)[1])]
            ab = set(regs_of(ops[1]) + regs_of(ops[2])); c = set(regs_of(ops[3]))
            for big, (d1, d2) in ((True, (12, 10)), (False, (8, 6))):
                isb = lambda p, big=big: p.kind == 'mfma' and ('32x32' in p.op) == big
                req(lambda p: isb(p) and set(p.wr) & ab, d1)
                req(lambda p: isb(p) and (set(p.wr) & c) and (set(p.wr) != c or p.op != ins.op), d2)
                req(lambda p: isb(p) and (set(p.wr) & vwr) and set(p.wr) != c, d1)
            req(lambda p: p.kind == 'valu' and ('s', 'exec') in p.wr, 4)
            req(lambda p: isdot(p) and set(p.wr) & (vrd | vwr), 3)
        if ins.kind in ('valu', 'ds', 'vm', 'vmlds', 'vmst'):
            req(lambda p: p.kind == 'mfma' and '32x32' in p.op and set(p.wr) & (vrd | vwr), 12)
            req(lambda p: p.kind == 'mfma' and '32x32' not in p.op and set(p.wr) & (vrd | vwr), 8)
            if not isdot(ins) : req(lambda p: isdot(p) and set(p.wr) & (vrd | vwr), 3)
        if ins.kind == 'valu':
            def srcC(p):
                ops = [o.strip() for o in re.split(r',(?![^\[]*\])', p.text.split(None, 1)[1])]
                return set(regs_of(ops[3]))
            req(lambda p: p.kind == 'mfma' and '32x32' in p.op and srcC(p) & vwr, 7)
            req(lambda p: p.kind == 'mfma' and '32x32' not in p.op and srcC(p) & vwr, 3)
            if ins.op not in TRANS: req(lambda p: p.op in TRANS and set(p.wr) & vrd, 1)
            if ins.op.startswith('v_permlane'): req(lambda p: p.kind == 'valu' and set(p.wr) & vrd, 2)
            if ins.op.startswith('v_readfirstlane') or ins.op.startswith('v_readlane'):
                req(lambda p: p.kind == 'valu' and set(p.wr) & vrd, 1)
            if 'dpp' in ins.text or 'row_' in ins.text or 'quad_perm' in ins.text:
                req(lambda p: p.kind == 'valu' and set(p.wr) & vrd, 2)
            req(lambda p: p.kind == 'valu' and set(p.wr) & srd, 2)
            req(lambda p: p.kind == 'vmst' and ('x4' in p.op or 'x3' in p.op) and set(p.rd) & vwr, 2)
            if isdot(ins):
                ops = [o.strip() for o in re.split(r',(?![^\[]*\])', ins.text.split(None, 1)[1])]
                ab = set(regs_of(ops[1]) + regs_of(ops[2].split()[0]))
                req(lambda p: isdot(p) and set(p.wr) & ab, 3)
        if ins.kind in ('vm', 'vmlds', 'vmst'):
            req(lambda p: p.kind == 'valu' and set(p.wr) & srd, 5)
        if ins.kind == 'vmlds':
            req(lambda p: p.kind == 'salu' and ('s', 'm0') in p.wr, 1)
        if ins.kind in ('vm', 'ds') :
            req(lambda p: p.kind == 'vmst' and ('x4' in p.op or 'x3' in p.op) and set(p.rd) & vwr, 1)
        if ins.kind == 'salu' or ins.op.startswith('s_cbranch_vcc'):
            req(lambda p: p.kind == 'valu' and set(p.wr) & srd, 1)
        while need > 0:
            k = min(need, 16); res.append(I(f's_nop {k-1}')); need -= k
        res.append(ins)
    return res

class S:
    def __init__(self): self.l = []
    def __call__(self, text, needs=None, tag=None):
        r = None
        for t in text.split('\n'):
            t = t.strip()
            if not t: continue
            r = I(t, needs, tag); self.l.append(r)
        return r
    def ext(self, other): self.l.extend(other.l if isinstance(other, S) else other)
```

```python
import sys
from fw import S, I, finalize
KN = 'recurrent_scan__linear_kernel_hedgehog__glu_gated_reglu__prompt_kernel'

class Cfg:
    stamps = 0; hdbg = 0; rt = 0; span = 0
    pa = -1; pb = -1; pw = 0
    mx512 = 1
    prioC = 1; prioH = 0
    tp = 2; pro = 0
    bud = 1000; quiet = 450
    mid2 = 1
    pre = 2
    bonly = 0
cfg = Cfg()

SLOT = [131072, 0, 32768]
KB = 65536; VB = 65536; STDB = 129024; RSB = 130048
KV_OFF = 0x900000
Q_OFF = 0x940000
F_OFF = 0xB40000
FKV, FH, FE, FO, FQ = F_OFF, F_OFF + 0x1000, F_OFF + 0x3000, F_OFF + 0x5000, F_OFF + 0x6000
TS_OFF = 0xB50000
WS_BYTES = 0xC00000
SPIN = 1 << 20
SX, SD, SO, SWS, SOUT, SQKV, SG, SU, SDBG, SPHI = 8, 12, 16, 20, 24, 28, 32, 36, 40, 44
SWH = SO
SP = 28
def srd(b): return f's[{b}:{b+3}]'
sW, sRB, sJ, sTY, sSB, sNB = 48, 49, 50, 51, 52, 53
sA0, sM0, sLBc, sC0, sL4, sL2 = 54, 56, 57, 58, 59, 60
sNON = 62
sT, sT2, sHEAD = 64, 65, 67
sHA, sHM, sHC, sW4 = 68, 69, 70, 71
sQ, sONES, sKV = 72, 74, 78
sWB, sLB, sH0, sH1, sXO, sWBc = 80, 81, 82, 83, 84, 85
sTS = 86
def vr(b, n): return f'v[{b}:{b+n-1}]'
MF = 'v_mfma_f32_32x32x16_bf16'

def stamp(s, idx, force=False):
    if not cfg.stamps: return
    if (cfg.hdbg or cfg.span) and idx != 12 and not force: return
    s('s_memrealtime s[76:77]' if cfg.rt else 's_memtime s[76:77]'); s('s_waitcnt lgkmcnt(0)'); s(f's_mov_b32 s{sTS+idx}, s76')

def build_srd(s, b, lo, nbytes):
    s(f's_mov_b32 s{b}, s{lo}\ns_mov_b32 s{b+1}, s{lo+1}\ns_mov_b32 s{b+2}, {nbytes}\ns_mov_b32 s{b+3}, 0x00020000')

BSTART = [32, 52, 72, 92, 0, 16, 112, 128]
CORDER = [0, 1, 2, 3, 12, 13, 14, 15, 8, 9, 10, 11, 4, 5, 6, 7, 16, 17, 18, 19]
NX0 = 8
def xpieces():
    a, b = (96, 97) if not cfg.stamps else (62, 63)
    r = []
    for c in range(4):
        for g in range(8):
            t = 66 if c*8 + g >= NX0 else 7
            p = S()
            p(f's_add_u32 m0, s{b}, {c*8192+g*1024}\ns_add_u32 s{t}, s{a}, {g*4096+c*256}')
            p(f'buffer_load_dwordx4 v{10+(g&3)}, {srd(SX)}, s{t} offen lds')
            r.append(p.l)
    return r

def merge(w, main, side, every):
    side = list(side)
    for n, i in enumerate(main.l):
        w.l.append(i)
        if side and n % every == every - 1: w.l.extend(side.pop(0))
    for x in side: w.l.extend(x)

def piece(lds_s, lds_o, g_s, g_o, voff, sr):
    p = S()
    p(f's_add_u32 m0, s{lds_s}, {lds_o}\ns_add_u32 s{sT}, s{g_s}, {g_o}')
    p(f'buffer_load_dwordx4 v{voff}, {srd(sr)}, s{sT} offen lds')
    return p.l

def sbase(s, soff): s(f's_add_u32 s4, s{SWS}, s{soff}\ns_addc_u32 s5, s{SWS+1}, 0')
def sload(s, z, n, two):
    sfx = {1: '', 2: 'x2', 4: 'x4', 8: 'x8', 16: 'x16'}[n]
    rg = lambda b: f's{b}' if n == 1 else f's[{b}:{b+n-1}]'
    s(f's_load_dword{sfx} {rg(z)}, s[4:5], 0 glc')
    if two: s(f's_load_dword{sfx} {rg(z+n)}, s[4:5], 128 glc')
def scheck(s, label, z, n, two, pairs=None):
    tot = n * (2 if two else 1)
    pairs = pairs or list(range(tot // 2))
    def test():
        s('s_waitcnt lgkmcnt(0)')
        if tot == 1: s(f's_cmp_eq_u32 s{z}, s{sNON}'); return
        s(f's_xor_b64 s[6:7], s[{z+2*pairs[0]}:{z+2*pairs[0]+1}], s[{sNON}:{sNON+1}]')
        for k in pairs[1:]:
            s(f's_xor_b64 s[76:77], s[{z+2*k}:{z+2*k+1}], s[{sNON}:{sNON+1}]\ns_or_b64 s[6:7], s[6:7], s[76:77]')
        s('s_cmp_eq_u64 s[6:7], 0')
    test()
    if cfg.bonly: return
    s(f's_cbranch_scc1 {label}_x')
    s('s_mov_b32 s75, 0')
    s(f'{label}:')
    if cfg.slp: s(f's_sleep {cfg.slp}')
    sload(s, z, n, two)
    s(f's_add_u32 s75, s75, 1\ns_cmp_gt_u32 s75, {SPIN}\ns_cbranch_scc1 {label}_y')
    test()
    s(f's_cbranch_scc0 {label}')
    s(f'{label}_y:')
    s('s_waitcnt lgkmcnt(0)')
    s(f'{label}_x:')
def post(s, vdat, vaddr, soff='0', needs=None):
    s('s_mov_b64 exec, 1', needs=needs)
    s(f'buffer_store_dword v{vdat}, v{vaddr}, {srd(SWS)}, {soff} offen sc1')
    s('s_mov_b64 exec, -1')

def prologue():
    s = S()
    s('s_cmp_ge_u32 s2, 256\ns_cbranch_scc1 L_end')
    s('s_load_dwordx16 s[64:79], s[0:1], 0\ns_load_dwordx4 s[80:83], s[0:1], 64\ns_load_dwordx2 s[84:85], s[0:1], 80')
    if cfg.stamps: s('s_memtime s[86:87]\ns_memrealtime s[88:89]')
    s('v_lshrrev_b32 v2, 6, v0\nv_and_b32 v1, 63, v0')
    s(f'v_readfirstlane_b32 s{sW}, v2')
    s('s_and_b32 s3, s2, 7\ns_lshr_b32 s4, s2, 3')
    s(f's_cmp_lg_u32 s{sW}, 7\ns_cbranch_scc1 L_nocode')
    s('s_getpc_b64 s[6:7]')
    s('L_pc:')
    s('s_and_b32 s5, s4, 7\ns_lshl_b32 s5, s5, 13\nv_lshl_add_u32 v3, v1, 7, s5\nv_min_u32 v3, L_end-L_pc, v3')
    s('global_load_dword v9, v3, s[6:7]', tag='raw')
    s('L_nocode:')
    s(f's_and_b32 s5, s3, 1\ns_lshl_b32 s5, s5, 3\ns_and_b32 s6, s4, 7\ns_add_u32 s{sRB}, s5, s6')
    s(f's_lshl_b32 s6, s{sW}, 15\ns_lshl_b32 s5, s{sRB}, 17\ns_add_u32 s5, s5, s6')
    s('v_lshrrev_b32 v3, 4, v1\nv_and_b32 v4, 15, v1\nv_xor_b32 v4, v3, v4\nv_lshlrev_b32 v4, 4, v4\nv_lshl_add_u32 v10, v3, 10, v4')
    s('v_xor_b32 v11, 64, v10\nv_xor_b32 v12, 128, v10\nv_xor_b32 v13, 192, v10')
    s('s_waitcnt lgkmcnt(0)')
    if cfg.stamps:
        s('s_mov_b32 s101, s86\ns_mov_b32 s100, s88')
        for q in range(13): s(f's_mov_b32 s{86+q}, s101')
    build_srd(s, SX, 64, 2097152)
    s('s_mov_b32 s96, s5\ns_mov_b32 s97, s6' if not cfg.stamps else 's_mov_b32 s62, s5\ns_mov_b32 s63, s6')
    s(f's_cmp_ge_u32 s{sW}, 4\ns_cbranch_scc1 L_nox')
    for p in xpieces()[:NX0]: s.l.extend(p)
    s('L_nox:')
    build_srd(s, SQKV, 66, 1572864); build_srd(s, SG, 74, 1835008); build_srd(s, SU, 76, 1835008)
    s(f's_lshr_b32 s5, s4, 3\ns_lshr_b32 s{sTY}, s5, 1\ns_and_b32 s5, s5, 1\ns_and_b32 s6, s3, 6\ns_add_u32 s{sJ}, s6, s5')
    if cfg.mx512:
        if cfg.nbm:
            s(f's_lshr_b32 s5, s3, 1\ns_lshl_b32 s5, s5, 3\ns_and_b32 s6, s4, 7\ns_add_u32 s{sSB}, s5, s6')
            s(f's_and_b32 s5, s3, 1\ns_lshl_b32 s5, s5, 2\ns_lshr_b32 s6, s4, 3\ns_add_u32 s{sNB}, s5, s6')
        else:
            s(f's_lshr_b32 s5, s3, 1\ns_lshl_b32 s5, s5, 3\ns_lshr_b32 s6, s4, 2\ns_add_u32 s{sSB}, s5, s6')
            s(f's_and_b32 s5, s3, 1\ns_lshl_b32 s5, s5, 2\ns_and_b32 s6, s4, 3\ns_add_u32 s{sNB}, s5, s6')
    else:
        s(f's_lshl_b32 s5, s3, 2\ns_lshr_b32 s6, s4, 3\ns_add_u32 s{sSB}, s5, s6\ns_and_b32 s{sNB}, s4, 7')
    build_srd(s, SPHI, 68, 16384); build_srd(s, SO, 70, 524288); build_srd(s, SD, 78, 1835008)
    build_srd(s, SOUT, 80, 2097152); build_srd(s, SDBG, 82, 256); build_srd(s, SWS, 84, WS_BYTES)
    s(f's_and_b32 s{sW4}, s{sW}, 3')
    s(f's_mul_i32 s6, s{sJ}, 160\ns_add_u32 s6, s6, 512\ns_and_b32 s7, s{sJ}, 1')
    s('s_lshl_b32 s3, s7, 5\ns_add_u32 s3, s3, s6')
    s('s_xor_b32 s7, s7, 1\ns_lshl_b32 s4, s7, 7\ns_add_u32 s4, s4, s6')
    s(f's_add_u32 s5, s3, 64\ns_lshl_b32 s6, s{sJ}, 6\ns_cmp_eq_u32 s{sTY}, 0\ns_cselect_b32 s5, s6, s5')
    s(f's_mov_b32 s6, {BSTART[0]}')
    for w in range(1, 8): s(f's_cmp_eq_u32 s{sW}, {w}\ns_cselect_b32 s6, {BSTART[w]}, s6')
    s(f's_add_u32 s{sLB}, s{sW}, 4\ns_sub_u32 s7, s{sW}, 2\ns_cmp_ge_u32 s{sW}, 4\ns_cselect_b32 s{sLB}, s7, s{sLB}\ns_add_u32 s7, s{sW}, 2\ns_cmp_ge_u32 s{sW}, 6\ns_cselect_b32 s{sLB}, s7, s{sLB}\ns_cselect_b32 s7, 112, 0\ns_lshl_b32 s{sLB}, s{sLB}, 14')
    s(f's_sub_u32 s7, s6, s7\ns_lshl_b32 s{sWB}, s7, 14\ns_lshl_b32 s7, s{sNB}, 7\ns_add_u32 s{sWB}, s{sWB}, s7')
    s(f's_mul_i32 s{sH0}, s{sSB}, 288\ns_add_u32 s{sH0}, s{sH0}, s6\ns_lshl_b32 s{sH0}, s{sH0}, 10\ns_add_u32 s{sH1}, s{sH0}, {144*1024}')
    s(f's_lshl_b32 s6, s{sSB}, 3\ns_add_u32 s6, s6, s{sW}\ns_lshl_b32 s6, s6, 13\ns_add_u32 s{sXO}, s6, s7')
    if cfg.bonly: s('s_branch L_bonly')
    s(f's_cmp_ge_u32 s{sW}, 4\ns_cbranch_scc1 L_helper')
    s(f's_cmp_eq_u32 s{sTY}, 0\ns_cbranch_scc0 L_compY\ns_branch L_compX')
    return s

M16 = 'v_mfma_f32_16x16x32_bf16'
XN = 0; ACC = [128, 144, 160, 176]; WF = 192; NRING = 6; PK = 224
vTL, vTH = 216, 220
vL16, vKW, vVW, vM2, vXA = 242, 243, 244, 245, 246
vC, vR2, vNON, vFA, vZ = 240, 254, 248, 252, 251

def compute(ty):
    X = ty == 'X'
    s = S()
    s(f's_setprio {cfg.prioC}')
    s(f'v_lshlrev_b32 v{vL16}, 4, v1')
    s('v_lshrrev_b32 v2, 4, v1\nv_and_b32 v3, 15, v1')
    s('v_bfe_u32 v4, v1, 2, 2\nv_lshl_add_u32 v4, v2, 3, v4\nv_and_b32 v5, 3, v1\nv_lshlrev_b32 v5, 3, v5')
    if not X:
        s(f'v_and_b32 v6, 1, v2\nv_lshl_add_u32 v6, v6, 5, v5\nv_lshl_add_u32 v{vKW}, v4, 6, v6\nv_xor_b32 v{vM2}, 32, v{vKW}')
    s(f'v_bfe_u32 v6, v1, 3, 1\nv_and_b32 v7, 1, v2\nv_lshl_add_u32 v6, v6, 1, v7\nv_lshl_add_u32 v5, v6, 5, v5\nv_lshl_add_u32 v{vTL}, v4, 7, v5')
    s(f'v_add_u32 v{vTH}, 0x20000, v{vTL}')
    for q in range(1, 4): s(f'v_xor_b32 v{vTL+q}, {32*q}, v{vTL}\nv_xor_b32 v{vTH+q}, {32*q}, v{vTH}')
    s('v_xor_b32 v4, v2, v3\nv_lshlrev_b32 v4, 4, v4\nv_and_b32 v5, 3, v1\nv_lshl_add_u32 v4, v5, 8, v4')
    s(f'v_bfe_u32 v5, v1, 2, 2\nv_lshl_add_u32 v4, v5, 10, v4\ns_lshl_b32 s6, s{sW}, 15\nv_add_u32 v{vXA}, s6, v4')
    for u in range(1, 4): s(f'v_xor_b32 v{vXA+u}, {u<<6}, v{vXA}')
    if X:
        s(f's_lshl_b32 s6, s{sW}, 10\ns_add_u32 s6, s6, {KB}\nv_lshlrev_b32 v4, 3, v1\nv_add_u32 v{vKW}, s6, v4')
        s(f'v_and_b32 v4, 1, v2\nv_lshrrev_b32 v6, 1, v2\nv_lshl_add_u32 v4, v4, 1, v6\nv_xor_b32 v4, v4, v5\nv_lshlrev_b32 v4, 3, v4\nv_lshl_add_u32 v4, v3, 5, v4\nv_add_u32 v{vVW}, s6, v4')
        s(f's_lshl_b32 s6, s{sRB}, 3\ns_add_u32 s6, s6, s{sJ}\ns_lshl_b32 s6, s6, 4\ns_add_u32 s6, s6, s{sW}\ns_lshl_b32 s6, s6, 10\ns_add_u32 s{sQ}, s6, {Q_OFF}')
    E = PK
    s('v_and_b32 v4, 1, v1\nv_lshlrev_b32 v4, 4, v4\nv_mov_b32 v6, 0x3f80\nv_lshlrev_b32 v6, v4, v6')
    s('v_cmp_eq_u32 vcc, v5, v2\nv_cndmask_b32 v6, 0, v6, vcc\nv_bfe_u32 v4, v1, 1, 1')
    s(f'v_cmp_eq_u32 vcc, 0, v4\nv_cndmask_b32 v{E}, 0, v6, vcc\nv_cndmask_b32 v{E+1}, v6, 0, vcc')
    s(f'v_mov_b32 v{E+2}, 0\nv_mov_b32 v{E+3}, 0\nv_mov_b32 v{E+4}, 0\nv_mov_b32 v{E+5}, 0\nv_mov_b32 v{E+6}, v{E}\nv_mov_b32 v{E+7}, v{E+1}')
    s(f's_lshl_b32 s6, s{sRB}, 2\ns_add_u32 s6, s6, s{sW}\ns_mul_i32 s6, s6, {144*1024}')
    s(f's_lshl_b32 s7, s3, 6\ns_add_u32 s{sHA}, s6, s7\ns_lshl_b32 s7, s4, 6\ns_add_u32 s{sHM}, s6, s7\ns_lshl_b32 s7, s5, 6\ns_add_u32 s{sHC}, s6, s7')
    s(f's_mov_b32 s{sONES}, 0x3f803f80')
    setup = s; s = S()
    merge(s, setup, xpieces()[NX0:], 3)
    s('s_barrier')
    stamp(s, 0)
    SA = ACC[0]
    xr = lambda tt, b: XN + 8*tt + 4*b
    for c in range(4):
        s(f's_waitcnt vmcnt({8*(3-c)})')
        if c == 3: stamp(s, 1)
        for u in range(4):
            for b in range(2): s(f'ds_read_b128 {vr(xr(4*c+u,b),4)}, v{vXA+u} offset:{c*8192 + b*4096}')
        for u in range(4):
            for r in range(4):
                for b in range(2):
                    z = c == 0 and u == 0 and r == 0; x = xr(4*c+u, b) + r
                    s(f'v_dot2_f32_bf16 v{SA+b}, v{x}, s{sONES}, ' + ('0' if z else f'v{SA+b}'))
                    s(f'v_dot2_f32_bf16 v{SA+2+b}, v{x}, v{x}, ' + ('0' if z else f'v{SA+2+b}'))
    s('s_barrier')
    A0, A1, Q0, Q1 = SA, SA + 1, SA + 2, SA + 3
    s(f'v_permlane32_swap_b32 v{A0}, v{Q0}\nv_permlane32_swap_b32 v{A1}, v{Q1}\nv_add_f32 v{A0}, v{A0}, v{Q0}\nv_add_f32 v{A1}, v{A1}, v{Q1}')
    s(f'v_permlane16_swap_b32 v{A0}, v{A1}\nv_add_f32 v{A0}, v{A0}, v{A1}\nv_mul_f32 v{A0}, 0x3b000000, v{A0}')
    s(f'v_mov_b32 v{A1}, v{A0}\nv_permlane16_swap_b32 v{A0}, v{A1}\nv_mov_b32 v{Q0}, v{A0}\nv_mov_b32 v{Q1}, v{A1}')
    s(f'v_permlane32_swap_b32 v{A0}, v{Q0}\nv_permlane32_swap_b32 v{A1}, v{Q1}')
    CM = ACC[0] + 8
    for b in range(2):
        s(f'v_cvt_pk_bf16_f32 v{CM+4*b}, -v{A0+b}, -v{A0+b}\nv_and_b32 v{CM+4*b}, 0xffff0000, v{CM+4*b}')
        for r in range(1, 4): s(f'v_mov_b32 v{CM+4*b+r}, v{CM+4*b}')
    stamp(s, 2)
    side = S()
    side(f'v_mov_b32 v{vZ}, 0')
    for b in range(2):
        q = Q0 + b
        side(f'v_fma_f32 v{q}, -v{A0+b}, v{A0+b}, v{q}\nv_max_f32 v{q}, 0, v{q}')
        side(f'v_cvt_pk_bf16_f32 v{q}, v{q}, v{q}\nv_and_b32 v{q}, 0xffff0000, v{q}\nv_add_f32 v{q}, 0x3727c5ac, v{q}')
        side(f'v_cvt_pk_bf16_f32 v{q}, v{q}, v{q}\nv_and_b32 v{q}, 0xffff0000, v{q}\nv_sqrt_f32 v{q}, v{q}')
        if X and b == 0: side(f'v_lshrrev_b32 v250, 2, v{vL16}\nv_and_b32 v250, 0x3c, v250\ns_lshl_b32 s6, s{sW}, 7\nv_add_u32 v250, s6, v250\nv_add_u32 v252, {RSB}, v250\nv_lshlrev_b32 v253, 1, v250\nv_add_u32 v253, {STDB}, v253')
        else: side('s_nop 0')
        side(f'v_cvt_pk_bf16_f32 v234, v{q}, v{q}\nv_mov_b32 v235, v234\nv_and_b32 v{q}, 0xffff0000, v234\nv_rcp_f32 v{q}, v{q}')
        if X:
            side(f'ds_write_b64 v253, v[234:235] offset:{128*b}\nds_write_b32 v252, v{q} offset:{64*b}')
            side(f'v_mul_f32 v{vC+b}, 0x3fb8aa3b, v{q}')
        else: side('s_nop 0')
        side(f'v_mul_f32 v{vR2+b}, v{q}, v{q}')
    side = side.l
    DT = ACC[1]; ND = 5
    LAG = 2
    for f in range(32 + LAG):
        g = f - LAG
        cv = [f'v_cvt_pk_bf16_f32 v{XN+4*g+j}, v{DT+8*(g%ND)+2*j}, v{DT+8*(g%ND)+2*j+1}' for j in range(4)] if g >= 0 else []
        for a_ in range(2):
            if f < 32: s(f'{M16} {vr(DT+8*(f%ND)+4*a_,4)}, {vr(E+4*a_,4)}, {vr(XN+4*f,4)}, {vr(CM+4*(f&1),4)}')
            for x in cv[2*a_:2*a_+2]: s(x)
            if side: s.l.append(side.pop(0))
        if f == 28: s('s_waitcnt lgkmcnt(0)\ns_barrier')
        if f == 30: pre_reads_at = len(s.l)
    assert not side
    stamp(s, 3)
    mf = []
    for st in range(10):
        base = SLOT[st % 3]
        if not ((4 <= st < 6) or (X and st < 4)):
            sl = st if st < 4 else st - 6
            accs = [0, 1, 2, 3] if st < 4 else [2, 3, 0, 1]
            for p in range(2):
                for t in range(4):
                    for c in range(2):
                        for a_ in range(2):
                            mf.append((st, ACC[accs[2*p+c]] + 8*a_, 4*sl + t, (base + c*16384 + t*4096, 2*p + a_), sl == 0 and t == 0))
        else:
            sl = st & 1; a0 = 2 if st in (2, 3) else 0
            for t in range(8):
                for c in range(2):
                    for a_ in range(2):
                        mf.append((st, ACC[a0 + c] + 8*a_, 8*sl + t, (base + t*4096, 2*c + a_) if X else (base + c*16384 + t*2048, -1 - a_), sl == 0 and t == 0))
    N = len(mf)
    def packswap(e, src, pk, mul):
        for b in range(2):
            if mul is not None:
                for r in range(4): e.append(f'v_mul_f32 v{src+4*b+r}, v{src+4*b+r}, v{mul+b}')
            e.append(f'v_cvt_pk_bf16_f32 v{pk+2*b}, v{src+4*b}, v{src+4*b+1}')
            e.append(f'v_cvt_pk_bf16_f32 v{pk+2*b+1}, v{src+4*b+2}, v{src+4*b+3}')
    def swaps(e, pk):
        e.append(f'v_permlane16_swap_b32 v{pk}, v{pk+2}'); e.append(f'v_permlane16_swap_b32 v{pk+1}, v{pk+3}')
    def ep_h(g, u, sbase, off, PK=PK, defer=None):
        e = []; dst = e if defer is None else defer
        for a_ in range(2):
            for j in range(8*a_, 8*a_ + 8): e.append(f'v_max_f32 v{g+j}, 0, v{g+j}')
            if a_ == 1:
                swaps(e, PK); dst.append(f'buffer_store_dwordx4 {vr(PK,4)}, v{vL16}, {srd(SWS)}, s{sbase} offen offset:{off} sc1')
            for j in range(8*a_, 8*a_ + 8): e.append(f'v_mul_f32 v{g+j}, v{g+j}, v{u+j}')
            packswap(e, g + 8*a_, PK + 4*a_, vR2)
        e.append('s_nop 0'); swaps(e, PK + 4)
        dst.append(f'buffer_store_dwordx4 {vr(PK+4,4)}, v{vL16}, {srd(SWS)}, s{sbase} offen offset:{off+1024} sc1')
        return e
    def ep_hand(a0, a1, kind):
        e = []; fin = []
        for hd in range(4):
            src = (a0, a1)[hd >> 1] + 8*(hd & 1); pk = PK + 4*hd
            t = []; packswap(t, src, pk, None if kind == 'v' else vC)
            if kind == 'v':
                e += t[:2] + [f'ds_write_b64 v{vVW}, {vr(pk,2)} offset:{hd*4096}'] + t[2:] + [f'ds_write_b64 v{vVW}, {vr(pk+2,2)} offset:{hd*4096+512}']
                continue
            e += t[:6] + fin + t[6:]; fin = []
            swaps(fin, pk)
            if kind == 'k': fin += [f'ds_write_b64 v{vKW}, {vr(pk,2)} offset:{hd*4096}', f'ds_write_b64 v{vKW}, {vr(pk+2,2)} offset:{hd*4096+512}']
            else:
                fin.append(f'buffer_store_dwordx4 {vr(pk,4)}, v{vL16}, {srd(SWS)}, s{sQ} offen sc1')
                if hd < 3: fin.append(f's_add_u32 s{sQ}, s{sQ}, 4096')
        return e + fin
    A = ACC
    fill = {}; late = {}; posts = {}; mids = []
    skip = (({0: set(), 1: {7}, 2: {8}}[cfg.skip]) if X else ({8} if cfg.skipy else set()))
    fa = f's_lshl_b32 s6, s{sRB}, 2\ns_add_u32 s6, s6, s{sW}\ns_lshl_b32 s6, s6, 5\ns_add_u32 s6, s6, s{sJ}' + ('' if X else '\ns_add_u32 s6, s6, 8') + f'\ns_lshl_b32 s6, s6, 2\ns_add_u32 s6, s6, {FH}\nv_mov_b32 v{vFA}, s6'
    if X:
        fill[2*32] = (ep_hand(A[0], A[1], 'k'), 2*32 + 17); mids.append(2*32 + 19)
        if cfg.kvq:
            fill[4*32] = (ep_hand(A[2], A[3], 'v'), 4*32 + 12); mids.append(4*32 + 14)
            fill[6*32] = (ep_hand(A[0], A[1], 'q'), 6*32 + 15); mids.append(7*32 + cfg.qp + 1)
            skip = {8}
        else:
            fill[4*32] = (ep_hand(A[2], A[3], 'q'), 4*32 + 24)
            fill[6*32] = (ep_hand(A[0], A[1], 'v'), 6*32 + 10)
            mids.append(6*32 + 12)
        extra = f'\ns_lshl_b32 s6, s{sRB}, 3\ns_add_u32 s6, s6, s{sJ}\ns_lshl_b32 s6, s6, 5\ns_add_u32 s6, s6, s{sW}\ns_lshl_b32 s6, s6, 2\ns_add_u32 s6, s6, {FQ}\nv_mov_b32 v253, s6'
        posts[7*32 + cfg.qp if cfg.kvq else 5*32 + 12] = (253, '0')
    else:
        d1 = []; d2 = []
        fill[3*32+16] = (ep_h(A[0], A[1], sHA, 0, PK, d1), 3*32 + 31)
        fill[4*32] = (ep_h(A[2], A[3], sHA, 2048, PK + 8, d1), 4*32 + cfg.e4)
        fill[6*32] = (ep_h(A[0], A[1], sHM, 0, PK, d2), 6*32 + 15)
        for k, x in enumerate(d1): late[4*32 + (19, 21, cfg.e4 + 1, cfg.e4 + 2)[k]] = x
        for k, x in enumerate(d2): late[6*32 + 21 + 3*k] = x
        extra = f'\ns_mov_b32 s{sQ}, {FE-FH}'
        posts[7*32 + 20] = (vFA, f's{sQ}')
    fill[1*32+2] = ([f'buffer_load_dword v{vNON}, v{vZ}, {srd(SDBG)}, 0 offen sc1'] + (fa + extra).split('\n'), 1*32 + 22)
    t = S()
    t(f'v_lshrrev_b32 v249, 4, v{vL16}')
    b_traddr(t, 244, sLB, 250, 249)
    t('v_xor_b32 v246, 64, v244')
    line_voff(t, 250, 243, 249)
    t('v_lshl_add_u32 v243, v250, 10, v243')
    t('v_and_b32 v250, 1, v249\nv_lshlrev_b32 v250, 2, v250\nv_bfe_u32 v253, v249, 1, 1\nv_lshl_add_u32 v253, v253, 7, v250')
    t(f's_lshl_b32 s6, s{sSB}, 8\ns_lshl_b32 s7, s{sW}, 3\ns_add_u32 s6, s6, s7\ns_add_u32 s6, s6, {FE+32}\nv_add_u32 v253, s6, v253')
    late[cfg.ehn - 10] = f'buffer_load_dword v250, v253, {srd(SWS)}, 0 offen sc1'
    if cfg.p8:
        fill[7*32+12] = ([i.text for i in t.l], 7*32 + 27)
        pstart = 8*32 + 2; rstart, rstep = (cfg.rsx, cfg.rtx) if X else (cfg.rsy, cfg.rty)
    else:
        fill[8*32+2] = ([i.text for i in t.l], 8*32 + 24)
        pstart = 8*32 + 30; rstart, rstep = pstart + cfg.cpd, 1
    pre9 = []
    for i in range(8):
        g = []
        for c in range(2):
            g.append(I(f'ds_read_b64_tr_b16 {vr(8*i+4*c,2)}, v{(244, 246)[c]} offset:{2048*i}'))
            g.append(I(f'ds_read_b64_tr_b16 {vr(8*i+4*c+2,2)}, v{(244, 246)[c]} offset:{2048*i+B2}'))
        pre9.append(g)
    ref9 = ownpieces(range(8, 16), sLB, O8, 243, SD, CORDER)
    for k, p in enumerate(ref9): p[-1].needs = [pre9[k // 2][-1]]
    ref9 = ref9[:2*cfg.nref]
    fill[9*32+16] = (ep_h(A[2], A[3], sHC, 0), 9*32 + 31)
    tail = ep_h(A[0], A[1], sHC, 2048, PK + 8)
    def rd(n):
        st, a, xf, (off, q), first = mf[n]
        if q < 0: va, o, d = (vKW, vM2)[-1 - q], off, 256
        elif off >= 131072: va, o, d = vTH + q, off - 131072, 512
        else: va, o, d = vTL + q, off, 512
        r = WF + 4*(n % NRING)
        return [f'ds_read_b64_tr_b16 {vr(r,2)}, v{va} offset:{o}', f'ds_read_b64_tr_b16 {vr(r+2,2)}, v{va} offset:{o+d}']
    nxt = 0; half = []; pend = []; rdtok = {}
    def issue_reads(limit_frag, maxn):
        nonlocal nxt, half
        k = 0
        while k < maxn:
            if not half:
                if nxt > limit_frag or nxt >= N: break
                half = [(nxt, x) for x in rd(nxt)]; nxt += 1
            f, x = half.pop(0); rdtok[f] = s(x); k += 1
        return k
    passed = 0
    keep = s.l[pre_reads_at:]; del s.l[pre_reads_at:]
    issue_reads(NRING - 2, 2*(NRING - 1))
    s.l.extend(keep)
    delay = 0; dead = 0
    BP = 28
    def fillers(k):
        nw = 0
        while pend and k > 0:
            if pend[0].startswith('ds_write'):
                if nw and not last_gap: break
                nw += 1
            s(pend.pop(0)); k -= 1
    for n in range(N):
        st, a, xf, off, first = mf[n]
        if n in fill:
            assert not pend
            pend = list(fill[n][0]); dead = fill[n][1]; delay = 1
        needs = []
        if n % 2 == 0 and (n + 1) in rdtok and not (half and half[0][0] == n + 1): needs = [rdtok[n+1]]
        r = WF + 4*(n % NRING)
        isbar = n % 32 == BP and st + 1 not in skip
        lim = min(n + NRING - 1, 32*(passed+1) - 1)
        budget = 0; last_gap = False
        if delay > 0: delay -= 1
        elif pend and not isbar:
            gaps = sum(1 for m in range(n, dead + 1) if m % 32 != BP or m // 32 + 1 in skip)
            budget = -(-len(pend) // gaps); last_gap = gaps == 1
        s(f'{M16} {vr(a,4)}, {vr(r,4)}, {vr(xr(xf,0),4)}, ' + ('0' if first else vr(a,4)), needs=needs)
        if not isbar:
            behind = (min(lim, n + NRING - 2) - nxt + 1) * 2 + len(half)
            issue_reads(min(lim, n + NRING - 2), 2 if behind > 2 else 1)
            fillers(budget // 2)
        s(f'{M16} {vr(a+4,4)}, {vr(r,4)}, {vr(xr(xf,1),4)}, ' + ('0' if first else vr(a+4,4)))
        if isbar:
            assert nxt == 32*(st+1) and not half, (n, nxt)
            s('s_waitcnt lgkmcnt(0)')
            if cfg.hdbg and cfg.hb <= st <= cfg.hb + 5: stamp(s, 2*(st-cfg.hb), True)
            s('s_barrier'); passed = st + 1
            if passed + 1 in skip and passed + 1 == 8 and not (X and cfg.kvq): passed += 1
            if cfg.hdbg and cfg.hb <= st <= cfg.hb + 5: stamp(s, 2*(st-cfg.hb)+1, True)
            if st in (3, 5): stamp(s, 4 if st == 3 else 5)
            issue_reads(min(n + NRING - 1, N - 1), 4)
            if st == 9:
                s(f'v_readfirstlane_b32 s{sNON}, v{vNON}\ns_lshl_b32 s6, s{sSB}, 8\ns_lshl_b32 s7, s{sW}, 3\ns_add_u32 s6, s6, s7\ns_add_u32 s6, s6, {FE+32}')
                sbase(s, 6)
                s(f's_mov_b32 s{sNON+1}, s{sNON}')
            continue
        if n in mids:
            assert not pend
            s('s_barrier', needs=[[i for i in s.l if i.op == 'ds_write_b64'][-1]])
            if st + 1 in skip and (st + 1 == 7 or cfg.kvq): passed = st + 1
        behind = (lim - nxt + 1) * 2 + len(half)
        issue_reads(lim, 2 if behind > 2 else 1)
        if n in late: s(late[n])
        if 0 <= n - pstart < 16:
            k = n - pstart; s.l.extend(pre9[k // 2][2*(k % 2):2*(k % 2) + 2])
        if n >= rstart and ref9 and (n - rstart) % rstep == 0: s.l.extend(ref9.pop(0))
        for lab_, at, dat, adr, sr, cond in ((f'L_e{ty}', cfg.ehn, 250, 253, SWS, f'v_cmp_ne_u32 vcc, v250, v{vNON}'),
                                             (f'L_non{ty}c', 3*32 + 4, vNON, vZ, SDBG, f'v_cmp_eq_u32 vcc, 0, v{vNON}')):
            if n == at:
                s(f'{cond}\ns_cbranch_vccz {lab_}_x')
                s('s_mov_b32 s75, 0')
                s(f'{lab_}:')
                s(f'buffer_load_dword v{dat}, v{adr}, {srd(sr)}, 0 offen sc1\ns_waitcnt vmcnt(0)', tag='raw')
                s(f's_add_u32 s75, s75, 1\ns_cmp_gt_u32 s75, {SPIN}\ns_cbranch_scc1 {lab_}_x')
                s(f'{cond}\ns_cbranch_vccnz {lab_}')
                s(f'{lab_}_x:')
        if 0 <= n - cfg.ehn < 8:
            k = n - cfg.ehn
            s(f'buffer_load_dwordx4 {vr(64 + 4*k, 4)}, v{vL16}, {srd(SWS)}, s{sH0 + (k & 1)} offen offset:{(k >> 1)*1024} sc1')
        if n in posts: post(s, vNON, posts[n][0], posts[n][1], [[i for i in s.l if i.kind == 'vmst'][-1]])
        fillers(budget - budget // 2 if not last_gap else 99)
    assert not pend and not ref9
    stamp(s, 6)
    for x in tail: s(x)
    vms = [i for i in s.l if i.kind in ('vm', 'vmst', 'vmlds')]
    assert all(i.kind == 'vmst' for i in vms[-4:])
    stamp(s, 7)
    s('s_branch L_BC')
    return s

vOQ, vOG, vW2 = 2, 3, 252
WRB = 72
vOQ2, vOG2 = 249, 250
vOM = 251
def dma_stage(st, X):
    base = SLOT[st % 3]; r = []
    if X and st < 6:
        col = ([1024, 2048, 0] if cfg.kvq else [1024, 0, 2048])[st >> 1]
        for b in range(8): r.append(piece(sL2, base + b*1024, sM0, (256*(st & 1) + 8*b)*3072 + col, (vOQ, vOQ2)[b & 1], SQKV))
    elif st < 4 or st >= 6:
        sl = st if st < 4 else st - 6
        sb = sA0 if st < 4 else sC0
        for b in range(4):
            for pos, sr in enumerate((SG, SU)): r.append(piece(sL4, base + pos*16384 + b*1024, sb, (128*sl + 8*b)*3584, (vOG, vOG2)[b & 1], sr))
    else:
        for b in range(4):
            row = 256*(st & 1) + 16*b
            for pos, sr in enumerate((SG, SU)): r.append(piece(sL4, base + pos*16384 + b*1024, sM0, row*3584, vOM, sr))
    return r
def cwpieces(w):
    return [piece(sLBc, (w+4)*16384 + k*8192 + c*1024, sWBc, (BSTART[w]+12*k)*16384 + 8192*c, vW2, SD) for k in range(2) for c in range(2)]
sLBx, sWBx = 54, 55
def cwpiecesx(w, es=(0, 1)):
    return [piece(sLBx, (w+4)*16384 + e*2048 + c*1024, sWBx, (BSTART[w]+e)*16384 + 8192*c, vW2, SD) for e in es for c in range(2)]
def cwpieces2():
    return [piece(sLBc, w*8192 + c*1024, sWBc, (BSTART[w]+16)*16384 + 8192*c, vW2, SD) for w in range(4) for c in range(2)]
def ownpieces(steps, sbase, offs, voff=vW2, sr=SWH, rel=None):
    return [piece(sbase, o + c*1024, sWB, (rel[i] if rel else i)*16384 + 8192*c, voff, sr) for i, o in zip(steps, offs) for c in range(2)]
def emit(s, pieces, raw=False):
    for p in pieces:
        for x in p:
            if raw: x.tag = 'raw'
            s.l.append(x)
    return pieces[-1][-1]
def b_traddr(s, dst, sbase, t, lane=1):
    s(f'v_lshrrev_b32 v{t}, 5, v{lane}\nv_bfe_u32 v{dst}, v{lane}, 2, 2')
    s(f'v_lshl_add_u32 v{dst}, v{t}, 3, v{dst}\nv_lshlrev_b32 v{dst}, 7, v{dst}')
    s(f'v_bfe_u32 v{t}, v{lane}, 3, 1\nv_lshl_add_u32 v{dst}, v{t}, 6, v{dst}')
    s(f'v_bfe_u32 v{t}, v{lane}, 4, 1\nv_lshl_add_u32 v{dst}, v{t}, 5, v{dst}\nv_and_b32 v{t}, 3, v{lane}\nv_lshl_add_u32 v{dst}, v{t}, 3, v{dst}')
    if sbase is not None: s(f'v_add_u32 v{dst}, s{sbase}, v{dst}')
def line_voff(s, row, chunk, lane=1):
    s(f'v_lshrrev_b32 v{row}, 3, v{lane}\nv_bfe_u32 v{chunk}, v{lane}, 4, 1\nv_lshlrev_b32 v{chunk}, 2, v{chunk}\nv_xor_b32 v{chunk}, v{lane}, v{chunk}\nv_and_b32 v{chunk}, 7, v{chunk}\nv_lshlrev_b32 v{chunk}, 4, v{chunk}')
O8 = [2048*k for k in range(8)]
B2 = 512
def stg_offs(regions): return [(w + 4)*16384 + k*8192 for w in regions for k in range(2)]
def stg_reads(steps, offs, va, tok):
    w = S()
    for i, o in zip(steps, offs):
        for c in range(2):
            f = WRB + 8*i + 4*c
            w(f'ds_read_b64_tr_b16 {vr(f,2)}, v{va+c} offset:{o - 65536}', needs=[tok])
            w(f'ds_read_b64_tr_b16 {vr(f+2,2)}, v{va+c} offset:{o - 65536 + B2}')
    w.l.insert(12, I('s_waitcnt lgkmcnt(4)'))
    w('s_waitcnt lgkmcnt(0)')
    return w

def softmax_k(s, P, rs, out, t):
    m0, m1, n0, n1 = t
    s(f'v_max3_f32 v{m0}, v{P}, v{P+1}, v{P+2}\nv_max3_f32 v{m1}, v{P+3}, v{P+4}, v{P+5}')
    s(f'v_max3_f32 v{n0}, v{P+6}, v{P+7}, v{P+8}\nv_max3_f32 v{n1}, v{P+9}, v{P+10}, v{P+11}')
    s(f'v_max3_f32 v{m0}, v{m0}, v{P+12}, v{P+13}\nv_max3_f32 v{m1}, v{m1}, v{P+14}, v{P+15}')
    s(f'v_max3_f32 v{m0}, v{m0}, v{n0}, v{n1}\nv_max_f32 v{m0}, v{m0}, v{m1}')
    for j in range(16): s(f'v_sub_f32 v{P+j}, v{P+j}, v{m0}')
    for j in range(16): s(f'v_exp_f32 v{P+j}, v{P+j}')
    s(f'v_add_f32 v{n0}, v{P}, v{P+1}\nv_add_f32 v{n1}, v{P+2}, v{P+3}\nv_add_f32 v{m0}, v{P+4}, v{P+5}\nv_add_f32 v{m1}, v{P+6}, v{P+7}')
    for j in range(8, 16): s(f'v_add_f32 v{t[j%4]}, v{t[j%4]}, v{P+j}')
    s(f'v_add_f32 v{m0}, v{m0}, v{m1}\nv_add_f32 v{n0}, v{n0}, v{n1}\nv_add_f32 v{n0}, v{n0}, v{m0}')
    s(f'v_rcp_f32 v{n0}, v{n0}')
    s(f'v_mul_f32 v{n0}, v{n0}, v{rs}')
    for j in range(0, 16, 2):
        s(f'v_mul_f32 v{P+j}, v{P+j}, v{n0}\nv_mul_f32 v{P+j+1}, v{P+j+1}, v{n0}')
        if j >= 2: s(f'v_cvt_pk_bf16_f32 v{out+j//2-1}, v{P+j-2}, v{P+j-1}')
    s(f'v_cvt_pk_bf16_f32 v{out+7}, v{P+14}, v{P+15}')

def softmax_q(s, P, out, t):
    m0, m1, n0, n1 = t
    s(f'v_max3_f32 v{m0}, v{P}, v{P+1}, v{P+2}\nv_max3_f32 v{m1}, v{P+8}, v{P+9}, v{P+10}')
    s(f'v_max3_f32 v{n0}, v{P+3}, v{P+4}, v{P+5}\nv_max3_f32 v{n1}, v{P+11}, v{P+12}, v{P+13}')
    s(f'v_max3_f32 v{m0}, v{m0}, v{P+6}, v{P+7}\nv_max3_f32 v{m1}, v{m1}, v{P+14}, v{P+15}')
    s(f'v_max_f32 v{m0}, v{m0}, v{n0}\nv_max_f32 v{m1}, v{m1}, v{n1}')
    s(f'v_permlane32_swap_b32 v{m0}, v{m1}')
    s(f'v_max_f32 v{m0}, v{m0}, v{m1}')
    s(f'v_mov_b32 v{m1}, v{m0}')
    s(f'v_permlane32_swap_b32 v{m0}, v{m1}')
    for j in range(16): s(f'v_sub_f32 v{P+j}, v{P+j}, v{m0 if j < 8 else m1}')
    for j in range(16):
        s(f'v_exp_f32 v{P+j}, v{P+j}')
        if j >= 3 and j % 2 == 1: s(f'v_cvt_pk_bf16_f32 v{out+(j-3)//2}, v{P+j-3}, v{P+j-2}')
    s(f'v_cvt_pk_bf16_f32 v{out+7}, v{P+14}, v{P+15}')

def w1touch(s, X, part):
    s(f's_and_b32 s6, s{sRB}, 7\ns_lshl_b32 s6, s6, 6\nv_add_u32 v8, s6, v1')
    s('v_mul_u32_u24 v9, 0xe00, v8')
    d = 253 if part != 2 else 243
    if X:
        s('v_mul_u32_u24 v8, 0xc00, v8')
        s(f's_lshl_b32 s6, s{sJ}, 7\n' + (f's_add_u32 s7, s{sW4}, 1\ns_cmp_eq_u32 s{sW4}, 2\ns_cselect_b32 s7, 0, s7' if cfg.kvq else f's_xor_b32 s7, s{sW4}, 1\ns_cmp_eq_u32 s{sW4}, 2\ns_cselect_b32 s7, 2, s7') + f'\ns_lshl_b32 s7, s7, 10\ns_add_u32 s6, s6, s7\ns_lshl_b32 s7, s5, 1')
        s(f's_cmp_eq_u32 s{sW4}, 3\ns_cselect_b32 s6, 0x200000, s6\ns_cselect_b32 s7, s7, 0x200000')
        if part == 1: s(f's_cmp_ge_u32 s{sW4}, 2\ns_cselect_b32 s6, 0x200000, s6\ns_mov_b32 s7, 0x200000')
        if part == 2: s(f's_cmp_lt_u32 s{sW4}, 2\ns_cselect_b32 s6, 0x200000, s6')
        s(f'buffer_load_dword v{d}, v8, {srd(SQKV)}, s6 offen')
        if part != 1: s(f'buffer_load_dword v{d+1}, v9, {srd(SG)}, s7 offen\nbuffer_load_dword v{d+2}, v9, {srd(SU)}, s7 offen')
    else:
        s(f's_cmp_eq_u32 s{sW4}, 1\ns_cselect_b32 s6, s4, s3\ns_cmp_eq_u32 s{sW4}, 2\ns_cselect_b32 s6, s5, s6\ns_lshl_b32 s6, s6, 1')
        s(f's_cmp_eq_u32 s{sW4}, 3\ns_cselect_b32 s6, 0x200000, s6')
        if part == 1: s(f's_cmp_ge_u32 s{sW4}, 1\ns_cselect_b32 s6, 0x200000, s6')
        if part == 2: s(f's_cmp_lt_u32 s{sW4}, 1\ns_cselect_b32 s6, 0x200000, s6')
        s(f'buffer_load_dword v{d}, v9, {srd(SG)}, s6 offen\nbuffer_load_dword v{d+1}, v9, {srd(SU)}, s6 offen')

def malltouch(s):
    s(f's_mul_i32 s6, s2, 6144\ns_mul_i32 s7, s2, 7168\nv_lshlrev_b32 v8, 7, v1\nv_min_u32 v9, 6016, v8\nv_min_u32 v8, 7040, v8')
    s(f's_cmp_eq_u32 s{sW}, 4\ns_cselect_b32 s6, s6, 0x200000\nbuffer_load_dword v236, v9, {srd(SQKV)}, s6 offen')
    s(f's_cmp_eq_u32 s{sW}, 5\ns_cselect_b32 s6, s7, 0x200000\nbuffer_load_dword v237, v8, {srd(SG)}, s6 offen')
    s(f's_cmp_eq_u32 s{sW}, 6\ns_cselect_b32 s6, s7, 0x200000\nbuffer_load_dword v242, v8, {srd(SU)}, s6 offen')

def w2touch(s):
    if cfg.w2t == 1:
        s(f's_mul_i32 s6, s2, 7168\ns_lshl_b32 s7, s2, 11\ns_cmp_eq_u32 s{sW}, 7\ns_cselect_b32 s6, s6, 0x200000\ns_cselect_b32 s7, s7, 0x200000')
        s('v_lshlrev_b32 v8, 7, v1\nv_min_u32 v9, 1920, v8\nv_min_u32 v8, 7040, v8')
        s(f'buffer_load_dword v246, v8, {srd(SD)}, s6 offen\nbuffer_load_dword v247, v9, {srd(SO)}, s7 offen')
    if cfg.w2t == 2:
        s(f's_lshr_b32 s6, s2, 3\ns_lshl_b32 s6, s6, 2\ns_add_u32 s75, s6, s{sW4}')
        if cfg.mx512:
            s(f'v_lshrrev_b32 v8, 2, v1\nv_and_b32 v9, 3, v1\nv_lshlrev_b32 v9, 7, v9\nv_lshl_add_u32 v8, v8, 10, v9\ns_and_b32 s7, s{sNB}, 4\ns_lshl_b32 s7, s7, 7\nv_add_u32 v8, s7, v8')
            s(f's_mul_i32 s6, s75, {14*1024}\nbuffer_load_dword v246, v8, {srd(SD)}, s6 offen')
            s(f's_lshr_b32 s6, s75, 2\ns_lshl_b32 s6, s6, 1\ns_and_b32 s7, s{sW}, 1\ns_add_u32 s6, s6, s7\ns_lshl_b32 s6, s6, 13\ns_cmp_ge_u32 s{sW}, 6\ns_cselect_b32 s6, s6, 0x200000')
            s(f'v_min_u32 v9, {8*1024-128}, v8\nbuffer_load_dword v247, v9, {srd(SO)}, s6 offen')

def l2touch():
    r = []
    p = S(); p(f's_lshr_b32 s6, s2, 3\ns_lshl_b32 s6, s6, 2\ns_add_u32 s55, s6, s{sW4}\nv_lshlrev_b32 v19, 7, v1\ns_mul_i32 s6, s55, 14336')
    p(f'buffer_load_dword v244, v19, {srd(SD)}, s6 offen'); r.append(p.l)
    p = S(); p(f'v_min_u32 v19, 6016, v19\ns_mul_i32 s6, s55, 14336\ns_add_u32 s6, s6, 8192\nbuffer_load_dword v245, v19, {srd(SD)}, s6 offen'); r.append(p.l)
    p = S(); p(f'v_lshlrev_b32 v19, 7, v1\ns_lshr_b32 s6, s55, 2\ns_lshl_b32 s6, s6, 1\ns_and_b32 s7, s{sW}, 1\ns_add_u32 s6, s6, s7\ns_lshl_b32 s6, s6, 13\ns_cmp_ge_u32 s{sW}, 6\ns_cselect_b32 s6, s6, 0x200000')
    p(f'buffer_load_dword v243, v19, {srd(SO)}, s6 offen'); r.append(p.l)
    return r

def helper_head(s, X, wop, isq):
    if cfg.mt: malltouch(s)
    if cfg.tp in (1, 2, 4): w1touch(s, X, 0 if cfg.tp == 1 else 1)
    if X:
        s(f's_cmp_lg_u32 s2, 0\ns_cbranch_scc1 L_np\ns_cmp_lg_u32 s{sW}, 4\ns_cbranch_scc1 L_np')
        s('s_memrealtime s[76:77]\ns_waitcnt lgkmcnt(0)\ns_or_b32 s76, s76, 1')
        s('v_mov_b32 v4, s76\nv_mov_b32 v6, 0\ns_mov_b64 exec, 1')
        s(f'buffer_store_dword v4, v6, {srd(SDBG)}, 0 offen sc1', tag='raw')
        s('s_mov_b64 exec, -1')
        s('L_np:')
    s(f's_setprio {cfg.prioH}')
    if not X: s(f'v_lshrrev_b32 v4, 2, v1\nv_lshrrev_b32 v5, 4, v1\nv_and_b32 v5, 2, v5\nv_xor_b32 v5, v1, v5\nv_and_b32 v5, 3, v5\nv_lshlrev_b32 v5, 4, v5\nv_mul_u32_u24 v{vOM}, 0xe00, v4\nv_add_u32 v{vOM}, v{vOM}, v5')
    line_voff(s, 4, 5)
    s(f'v_mul_u32_u24 v{vOQ}, 0xc00, v4\nv_add_u32 v{vOQ}, v{vOQ}, v5')
    s(f'v_mul_u32_u24 v{vOG}, 0xe00, v4\nv_add_u32 v{vOG}, v{vOG}, v5')
    s(f'v_lshl_add_u32 v{vW2}, v4, 10, v5')
    s(f'v_xor_b32 v5, 32, v5\nv_mul_u32_u24 v{vOQ2}, 0xc00, v4\nv_add_u32 v{vOQ2}, v{vOQ2}, v5\nv_mul_u32_u24 v{vOG2}, 0xe00, v4\nv_add_u32 v{vOG2}, v{vOG2}, v5')
    s(f's_lshl_b32 s{sL4}, s{sW4}, 12\ns_lshl_b32 s{sL2}, s{sW4}, 13')
    s(f's_mul_i32 s6, s{sW4}, {32*3584}\ns_lshl_b32 s7, s5, 1\ns_add_u32 s{sC0}, s6, s7')
    if X: s(f's_mul_i32 s6, s{sW4}, {64*3072}\ns_lshl_b32 s7, s{sJ}, 7\ns_add_u32 s{sM0}, s6, s7')
    else:
        s(f's_lshl_b32 s7, s3, 1\ns_add_u32 s{sA0}, s6, s7')
        s(f's_mul_i32 s6, s{sW4}, {64*3584}\ns_lshl_b32 s7, s4, 1\ns_add_u32 s{sM0}, s6, s7')
    s(f's_lshl_b32 s{sLBc}, s{sW4}, 11\ns_lshl_b32 s6, s{sW4}, 14\ns_lshl_b32 s7, s{sNB}, 7\ns_add_u32 s{sWBc}, s6, s7')
    s(f's_lshl_b32 s{sHEAD}, s{sJ}, 2\ns_add_u32 s{sHEAD}, s{sHEAD}, s{sW4}')
    s(f's_lshl_b32 s{sKV}, s{sHEAD}, 12\ns_add_u32 s{sKV}, s{sKV}, {KV_OFF}')
    s(f's_cmp_lt_u32 s{sW}, 6\ns_cselect_b32 s{SO}, s{SD}, s{SO}\ns_cselect_b32 s{SO+1}, s{SD+1}, s{SO+1}\ns_cselect_b32 s{SO+2}, s{SD+2}, s{SO+2}')
    s('v_lshrrev_b32 v4, 5, v1\nv_lshlrev_b32 v7, 8, v4')
    if isq: s('v_and_b32 v6, 15, v1\nv_lshl_add_u32 v36, v6, 1, v7')
    else: s('v_bfe_u32 v6, v1, 3, 2\nv_and_b32 v36, 3, v1\nv_lshl_add_u32 v6, v6, 2, v36\nv_lshl_add_u32 v36, v6, 1, v7')
    s(f's_lshl_b32 s{sT2}, s{sHEAD}, 9')
    return

def helper_start(s, X, wop, isq):
    stamp(s, 0)
    s('s_barrier')
    stamp(s, 1)
    tok = {0: emit(s, dma_stage(0, X))}
    if cfg.tp in (0, 2): w1touch(s, X, 2 if cfg.tp == 2 else 0)
    if cfg.w2at == 0: w2touch(s)
    s('s_barrier')
    s(f'v_mov_b32 v17, 0\nbuffer_load_dword v16, v17, {srd(SDBG)}, 0 offen sc1')
    if cfg.pro == 0: tok[1] = emit(s, dma_stage(1, X))
    s('s_barrier', needs=[tok[0]])
    if cfg.pro != 0: tok[1] = emit(s, dma_stage(1, X))
    tok[2] = emit(s, dma_stage(2, X))
    for i in range(8):
        s(f'buffer_load_ushort v{200+i}, v36, {srd(SPHI)}, s{sT2} offen offset:{i*32}')
    if cfg.tp == 4: w1touch(s, X, 2)
    if cfg.w2at == 1: w2touch(s)
    return tok

def nonce_and_wphi(w, lab, wop, bit):
    w(f'v_cmp_eq_u32 vcc, 0, v16\ns_cbranch_vccz {lab}_x')
    w('s_mov_b32 s75, 0')
    w(f'{lab}:')
    w(f'buffer_load_dword v16, v17, {srd(SDBG)}, 0 offen sc1\ns_waitcnt vmcnt(0)', tag='raw')
    w(f's_add_u32 s75, s75, 1\ns_cmp_gt_u32 s75, {SPIN}\ns_cbranch_scc1 {lab}_x')
    w(f'v_cmp_eq_u32 vcc, 0, v16\ns_cbranch_vccnz {lab}')
    w(f'{lab}_x:')
    w(f'v_readfirstlane_b32 s{sNON}, v16\nv_readfirstlane_b32 s{sNON+1}, v16')
    w(f'v_bfe_u32 v6, v1, {bit}, 1\nv_mul_u32_u24 v6, 0x8000, v6\nv_lshl_or_b32 v6, v6, 16, v6')
    for r in range(4):
        w(f'v_lshl_or_b32 v{wop+r}, v{200+2*r+1}, 16, v{200+2*r}\nv_xor_b32 v{wop+r}, v6, v{wop+r}')

def cost(i):
    if i.op in ('v_exp_f32', 'v_rcp_f32') or i.op.startswith('v_permlane'): return 11
    if i.kind == 'mfma': return 36
    if i.kind in ('vm', 'vmst'): return 14
    if i.op in ('v_max3_f32', 'v_fma_f32', 'v_lshl_add_u32', 'v_lshl_or_b32'): return 8.3
    return 5.6

def pack(s, X, work, bars, tok, extra, need10, quiet, frac, late_hi, w1at=None, first=(), tneed={}, pinned={}):
    flat = [(m, w.l) for m, w in work]
    qi = 0; qpos = 0; inloop = False; where = {}
    pieces = []; lgfree = False
    for bi, st in enumerate(bars):
        whole = st == int(st)
        if not lgfree: s('s_waitcnt lgkmcnt(0)')
        lgfree = False
        nd = [tok[t] for t in tneed.get(st, [st] if whole and st <= 9 else [])] + (need10 if st == 10 else [])
        dbg = cfg.hdbg and whole and cfg.hb + 1 <= st <= cfg.hb + 6
        if dbg: stamp(s, 2*(st-cfg.hb-1), True); s('s_nop 0', needs=nd)
        s('s_barrier', needs=nd)
        if dbg: stamp(s, 2*(st-cfg.hb-1)+1, True)
        for tgt in range(3, 10):
            if (w1at or {}).get(tgt, tgt - 2) == st:
                p = dma_stage(tgt, X); tok[tgt] = p[-1][-1]
                if st in first: emit(s, p)
                else: pieces += p
        pieces += extra.get(st, [])
        last = bi + 1 == len(bars)
        BUD = 1e9 if last else cfg.bud * frac.get(st, 1.0)
        hold = []
        if quiet.get(st) == 'all': hold = pieces; pieces = []
        q = quiet.get(st, 0) if quiet.get(st) != 'all' else 0
        if st in pinned: s.l.extend(pinned[st].l)
        used = 0; inexec = False; since = 99 if not inloop and not (qi < len(flat) and qpos == 0 and flat[qi][1][0].op in ('s_waitcnt', 's_memrealtime', 's_memtime')) else 0
        inloop = False
        while qi < len(flat) and flat[qi][0] <= st:
            ins = flat[qi][1][qpos]
            free = not inexec and not inloop and ins.op not in ('s_addc_u32', 's_subb_u32', 's_cselect_b32') and not ins.op.startswith('s_cbranch') and ins.kind != 'vmlds' and ('s', sT) not in ins.wr
            if pieces and free and ((since >= 6 and used >= q) or ins.tag == 'flush'):
                s.l.extend(pieces.pop(0)); used += 20; since = 0
                continue
            if used + 20*len(pieces) >= BUD and free and ins.tag != 'glue': break
            s.l.append(ins); used += cost(ins); since += 1
            where[id(ins)] = st
            if ('s', 'exec') in ins.wr: inexec = '-1' not in ins.text
            if ins.op.startswith('s_cbranch') and ins.text.split()[1].endswith('_x'): inloop = True
            if ins.kind == 'label' and ins.op.endswith('_x:'): inloop = False
            if ins.op.startswith('s_load') or ins.op.startswith('s_cmp') or ins.op in ('s_xor_b64', 's_or_b64'): inloop = True
            qpos += 1
            if qpos == len(flat[qi][1]): qi += 1; qpos = 0
        for p in pieces: s.l.extend(p)
        pieces = hold
        if whole and qi < len(flat) and qpos == 0 and flat[qi][0] == st + 0.5 and (st + 0.5) not in bars:
            s.l.extend(flat[qi][1]); qi += 1; lgfree = True
    assert qi == len(flat)
    l = []; hi = False
    bidx = [k for k, i in enumerate(s.l) if i.op == 's_barrier']
    for k, i in enumerate(s.l):
        want = i.kind == 'mfma' or (k > bidx[late_hi] and i.kind in ('vm', 'vmst'))
        if i.kind in ('mfma', 'valu', 'vm', 'vmst', 'vmlds', 'ds') and want != hi and i.tag != 'raw':
            l.append(I(f's_setprio {3 if want else cfg.prioH}')); hi = want
        l.append(i)
    s.l = l
    return where

def helperX():
    s = S(); X = True
    WK, RS, KF, KVA = 8, 20, 24, 40
    PT = 136; ID = 224; TT = 200; FR = 136
    vB1, vB2, vRD, vKVA, vL16h, vST = 232, 233, 234, 235, 238, 239
    helper_head(s, X, WK, False)
    s(f'v_lshlrev_b32 v{vL16h}, 4, v1\ns_lshl_b32 s6, s{sW4}, 12\ns_add_u32 s6, s6, {KB}\nv_lshlrev_b32 v5, 3, v1\nv_add_u32 v{vRD}, s6, v5')
    s('v_bfe_u32 v5, v1, 2, 2\nv_lshl_add_u32 v5, v4, 2, v5')
    s('v_and_b32 v7, 3, v1\nv_xor_b32 v7, v7, v4\nv_lshlrev_b32 v7, 3, v7\nv_lshl_add_u32 v7, v5, 5, v7\nv_add_u32 v7, s6, v7')
    s(f'v_lshlrev_b32 v6, 3, v5\nv_add_u32 v6, {STDB}, v6')
    s(f'v_bfe_u32 v5, v1, 4, 1\nv_cmp_eq_u32 vcc, 1, v5\nv_cndmask_b32 v{vB1}, v7, v6, vcc')
    s(f'v_xor_b32 v7, 16, v7\nv_add_u32 v7, 256, v7\nv_add_u32 v6, 64, v6\nv_cndmask_b32 v{vB2}, v7, v6, vcc')
    s(f'v_mov_b32 v6, 512\nv_mov_b32 v7, 128\nv_cndmask_b32 v{vST}, v6, v7, vcc')
    s(f'v_and_b32 v5, 31, v1\nv_min_u32 v5, 16, v5\nv_lshl_add_u32 v5, v4, 5, v5\nv_lshlrev_b32 v{vKVA}, 2, v5')
    s('v_and_b32 v5, 1, v1\nv_lshlrev_b32 v5, 4, v5\nv_mov_b32 v6, 0x3f80\nv_lshlrev_b32 v6, v5, v6')
    s('v_bfe_u32 v5, v1, 4, 1\nv_cmp_eq_u32 vcc, v5, v4\nv_cndmask_b32 v6, 0, v6, vcc\nv_bfe_u32 v5, v1, 1, 3')
    for r in range(8): s(f'v_cmp_eq_u32 vcc, {r}, v5\nv_cndmask_b32 v{ID+r}, 0, v6, vcc')
    s(f's_lshl_b32 s{sLBx}, s{sW4}, 12\ns_lshl_b32 s6, s{sW4}, 1\ns_and_b32 s7, s{sW4}, 2\ns_lshl_b32 s7, s7, 2\ns_add_u32 s6, s6, s7\ns_lshl_b32 s6, s6, 14\ns_lshl_b32 s7, s{sNB}, 7\ns_add_u32 s{sWBx}, s6, s7')
    tok = helper_start(s, X, WK, False)
    work = []
    def seg(minb):
        w = S(); work.append((minb, w)); return w
    w = seg(1)
    w(f'v_and_b32 v5, 31, v1\nv_lshlrev_b32 v5, 2, v5\nv_add_u32 v5, {RSB}, v5')
    for rt in range(4): w(f'ds_read_b32 v{RS+rt}, v5 offset:{rt*128}')
    nonce_and_wphi(w, 'L_nonX', WK, 2)
    w(f's_lshl_b32 s6, s{sHEAD}, 7\ns_add_u32 s6, s6, {FKV+64}\nv_mov_b32 v17, s6')
    sbase(w, 6)
    w(f's_lshl_b32 s7, s{sRB}, 2\ns_sub_u32 s6, s6, 64\ns_add_u32 s6, s6, s7\nv_mov_b32 v18, s6')
    w(f's_cmp_lg_u32 s{sRB}, 0\ns_cbranch_scc1 L_zero_x')
    for r in range(4): w(f'v_mov_b32 v{FR+r}, 0')
    for q in range(4): w(f'buffer_store_dwordx4 {vr(FR,4)}, v{vL16h}, {srd(SWS)}, s{sKV} offen offset:{q*1024} sc1', tag='raw')
    w('s_waitcnt vmcnt(0)', tag='raw')
    w('s_mov_b64 exec, 1')
    w(f'buffer_store_dword v16, v17, {srd(SWS)}, 0 offen sc1', tag='raw')
    w('s_mov_b64 exec, -1')
    w('L_zero_x:')
    w = seg(2.5)
    for rt in range(4):
        w(f'ds_read_b64 {vr(KF+4*rt,2)}, v{vRD} offset:{rt*1024}\nds_read_b64 {vr(KF+4*rt+2,2)}, v{vRD} offset:{rt*1024+512}')
    for rt in range(4): w(f'{MF} {vr(PT+16*rt,16)}, {vr(WK,4)}, {vr(KF+4*rt,4)}, 0')
    T4 = (4, 5, 6, 7)
    PH = [56, 64, 24, 32]; TP = [216, 56, 64, 24]
    tr_mm = lambda rt: [[I(f'{MF} {vr(TT,16)}, {vr(PH[rt],4)}, {vr(ID,4)}, 0')], [I(f'{MF} {vr(TT,16)}, {vr(PH[rt]+4,4)}, {vr(ID+4,4)}, {vr(TT,16)}')]]
    tr_cv = lambda rt: [I(f'v_cvt_pk_bf16_f32 v{TP[rt]+j}, v{TT+2*j}, v{TT+2*j+1}') for j in range(8)]
    softmax_k(w, PT, RS, PH[0], T4)
    for rt in range(1, 4):
        m = S(); softmax_k(m, PT + 16*rt, RS + rt, PH[rt], T4)
        merge(w, m, tr_mm(rt - 1) + [[], tr_cv(rt - 1)], 8)
    for x in tr_mm(3): w.l.extend(x)
    sload(w, 44, 1, False); scheck(w, 'L_pollz', 44, 1, False)
    w.l.extend(tr_cv(3))
    w = seg(4.5 if cfg.kvq else 6.5)
    for rt in range(4):
        for ks in range(2):
            f = FR + 8*rt + 4*ks
            lastv = w(f'ds_read_b64_tr_b16 {vr(f,2)}, v{vB1}\nds_read_b64_tr_b16 {vr(f+2,2)}, v{vB2}')
            if rt < 3 or ks < 1: w(f'v_add_u32 v{vB1}, v{vB1}, v{vST}\nv_add_u32 v{vB2}, v{vB2}, v{vST}')
        if rt == 2: w('s_waitcnt lgkmcnt(8)')
    for rt in range(4):
        for ks in range(2):
            w(f'{MF} {vr(KVA,16)}, {vr(TP[rt]+4*ks,4)}, {vr(FR+8*rt+4*ks,4)}, ' + ('0' if rt == 0 and ks == 0 else vr(KVA,16)))
    for i in w.l: i.tag = i.tag or 'glue'
    if cfg.kvq:
        for p in cwpiecesx(0):
            p[-1].needs = [lastv]; w.l.extend(p); tok['cw0'] = p[-1]
        w = seg(7.3)
    elif cfg.skip != 1: w = seg(7)
    if cfg.c0f:
        for p in cwpiecesx(0) + cwpiecesx(3, (1,)): w.l.extend(p); tok['cw0'] = p[-1]
    w('s_mov_b32 s76, 0x1ffff\ns_mov_b32 s77, 0x1ffff')
    w('s_mov_b64 exec, s[76:77]')
    for r in range(16): at = w(f'buffer_atomic_add_f32 v{KVA+r}, v{vKVA}, {srd(SWS)}, s{sKV} offen offset:{r*256}')
    w('s_mov_b64 exec, -1')
    if cfg.xcw and not cfg.c0f and not cfg.kvq:
        for p in cwpiecesx(0): w.l.extend(p); tok['cw0'] = p[-1]
    for i in w.l: i.tag = i.tag or 'glue'
    stamp(w, 2)
    w = seg(7.3 if cfg.kvq else cfg.pat if cfg.skip == 2 else 8)
    post(w, 16, 18, '0', [at])
    for i in w.l: i.tag = 'glue'
    stamp(w, 3)
    bars = [1, 2, 2.5, 3, 4, 5, 6, 6.5] + [[7, 8], [8], [7]][cfg.skip] + [9, 10]
    c9 = cwpieces2()
    extra = {1: cwpieces(1), 3: cwpieces(2), 8: cwpieces(0) + cwpieces(3), 9: c9}
    if cfg.xcw: extra = {1: cwpiecesx(1), 3: cwpiecesx(2), 5: cwpiecesx(3, (0,)), 8: cwpiecesx(3, (1,)), 9: c9}
    tok['cw'] = extra[8][-1][-1]
    if cfg.kvq:
        extra[7] = extra.pop(8)
        where = pack(s, X, work, [1, 2, 2.5, 3, 4, 4.5, 5, 6, 7, 7.3, 9, 10], tok, extra, [c9[-1][-1]], {2: 'all', 4: 'all'},
                     {2.5: cfg.f25, 3: cfg.fk, 4: 0.55*cfg.fk, 4.5: 0.45*cfg.fk, 5: cfg.fk, 6: cfg.fk, 7: 0.3, 7.3: 2}, -3, None, (7,), {7.3: [8, 'cw', 'cw0'] if cfg.p8 else [8], 9: [9, 'cw', 'cw0']})
    elif cfg.skip == 2:
        extra[7] = extra.pop(8)
        if cfg.c0f: del extra[7]; tok['cw'] = tok['cw0']
        where = pack(s, X, work, bars, tok, extra, [c9[-1][-1]], {2: 'all', 4: cfg.quiet, 7: cfg.q7, 9: cfg.q9},
                     {2.5: cfg.f25, 3: cfg.fk, 4: cfg.fk, 5: cfg.fk, 6: 0.45, 6.5: 0.4, 7: 2}, -3, None, (6, 7) if cfg.f8 else (6,), {7: [7, 8], 9: [9, 'cw', 'cw0']})
    elif cfg.skip:
        where = pack(s, X, work, bars, tok, extra, [c9[-1][-1]], {2: 'all', 4: cfg.quiet, 8: 30},
                     {2.5: cfg.f25, 3: cfg.fk, 4: cfg.fk, 5: cfg.fk, 6: 0.45}, -4, {8: 6.5, 9: 8, 4: cfg.s4}, (6.5, 8) if cfg.f8 else (6.5,), {6.5: [7], 9: [9, 'cw', 'cw0']})
    else:
        where = pack(s, X, work, bars, tok, extra, [c9[-1][-1]], {2: 'all', 4: cfg.quiet, 7: 100, 8: 30},
                     {2.5: cfg.f25, 3: cfg.fk, 4: cfg.fk, 5: cfg.fk, 6: 0.45, 6.5: 0.4}, -4, None, (6,), {9: [9, 'cw', 'cw0']})
    assert where[id(lastv)] < 7
    return s

def own_first(s, lab):
    pass

def helperY():
    s = S(); X = False
    WQ, QF, KVA = 8, 24, 40
    PT = 136; vKVA, vL16h, vSA = 235, 238, 240
    helper_head(s, X, WQ, True)
    s(f'v_lshlrev_b32 v{vL16h}, 4, v1')
    s(f'v_and_b32 v5, 31, v1\nv_min_u32 v5, 16, v5\nv_lshl_add_u32 v5, v4, 5, v5\nv_lshlrev_b32 v{vKVA}, 2, v5')
    s(f's_add_u32 s79, s{sLBc}, 65536')
    b_traddr(s, vSA, 79, 11)
    s(f'v_xor_b32 v{vSA+1}, 64, v{vSA}')
    tok = helper_start(s, X, WQ, True)
    work = []
    def seg(minb):
        w = S(); work.append((minb, w)); return w
    w = seg(3)
    nonce_and_wphi(w, 'L_nonY', WQ, 4)
    w(f's_lshl_b32 s6, s{sRB}, 3\ns_add_u32 s6, s6, s{sJ}\ns_lshl_b32 s{sQ}, s6, 14\ns_lshl_b32 s7, s{sW4}, 12\ns_add_u32 s{sQ}, s{sQ}, s7\ns_add_u32 s{sQ}, s{sQ}, {Q_OFF}')
    w(f's_lshl_b32 s6, s6, 7\ns_add_u32 s6, s6, {FQ}')
    sbase(w, 6)
    w(f's_lshl_b32 s6, s{sRB}, 5\ns_add_u32 s6, s6, s{sHEAD}\ns_lshl_b32 s6, s6, 2\ns_add_u32 s6, s6, {FO}\nv_mov_b32 v18, s6')
    w = seg(cfg.qat - 0.5)
    sload(w, 44, 4, False)
    w = seg(cfg.qat)
    stamp(w, 2)
    scheck(w, 'L_pollq', 44, 4, False)
    stamp(w, 3)
    for rt in range(4): w(f'buffer_load_dwordx4 {vr(QF+4*rt,4)}, v{vL16h}, {srd(SWS)}, s{sQ} offen offset:{rt*1024} sc1')
    w(f's_lshl_b32 s6, s{sHEAD}, 7\ns_add_u32 s6, s6, {FKV}')
    sbase(w, 6)
    w('s_mov_b32 s73, 0', tag='flush')
    for rt in range(4): w(f'{MF} {vr(PT+16*rt,16)}, {vr(WQ,4)}, {vr(QF+4*rt,4)}, 0')
    T4 = (4, 5, 6, 7)
    PQ = [56, 64, 200, 208]
    def kvloads(w):
        for r in range(16): w(f'buffer_load_dword v{KVA+r}, v{vKVA}, {srd(SWS)}, s{sKV} offen offset:{r*256} sc1', tag='raw')
    if cfg.kvq:
        for rt in range(4):
            if rt == cfg.kvr: sload(w, SP, 16, False)
            softmax_q(w, PT + 16*rt, PQ[rt], T4)
            if rt == cfg.kvr:
                stamp(w, 4); scheck(w, 'L_pollkv', SP, 16, False); kvloads(w); stamp(w, 5)
        w = seg(10)
    else:
        for rt in range(4): softmax_q(w, PT + 16*rt, PQ[rt], T4)
        w = seg(9.5)
        sload(w, SP, 16, False)
        w = seg(10)
        stamp(w, 4)
        scheck(w, 'L_pollkv', SP, 16, False)
        kvloads(w)
        stamp(w, 5)
    if cfg.yw == 2:
        emit(w, ownpieces(range(8, 16), sLB, O8)); w('s_waitcnt vmcnt(16) lgkmcnt(0)')
    else: w('s_waitcnt vmcnt(0) lgkmcnt(0)')
    w('v_and_b32 v4, 27, v1\nv_cmp_eq_u32 vcc, 17, v4\nv_mov_b32 v4, 0x3f803f80')
    for r in range(8): w(f'v_cvt_pk_bf16_f32 v{KVA+r}, v{KVA+2*r}, v{KVA+2*r+1}')
    for r in range(8): w(f'v_cndmask_b32 v{KVA+r}, v{KVA+r}, v4, vcc')
    OT = [136, 168, 24, 216]; ON = [152, 184, 48 - 0, 232]
    ON[2] = 0
    w(f'v_mov_b32 v3, v{vL16h}\nv_mov_b32 v248, v16\nv_mov_b32 v249, v18')
    ON = [152, 184, 8, 232]
    for rt in range(4):
        w(f'{MF} {vr(OT[rt],16)}, {vr(KVA,4)}, {vr(PQ[rt],4)}, 0')
        w(f'{MF} {vr(ON[rt],16)}, {vr(KVA+4,4)}, {vr(PQ[rt]+4,4)}, 0')
    w(f's_lshl_b32 s6, s{sRB}, 2\ns_mul_i32 s6, s6, 144\ns_add_u32 s6, s6, s{sHEAD}\ns_add_u32 s6, s6, 112\ns_lshl_b32 s79, s6, 10')
    w('v_mov_b32 v4, 0x358637bd')
    for rt in range(4):
        o = OT[rt]; n = ON[rt]
        w(f'v_rcp_f32 v{o+9}, v{o+9}\nv_rcp_f32 v{n+9}, v{n+9}')
        w(f'v_fma_f32 v{o+8}, v{o+8}, v{o+9}, v4\nv_fma_f32 v{o+8}, v{n+8}, v{n+9}, v{o+8}\nv_rcp_f32 v{o+8}, v{o+8}')
        w(f'v_mul_f32 v{o+9}, v{o+9}, v{o+8}\nv_mul_f32 v{n+9}, v{n+9}, v{o+8}')
        for j in range(8): w(f'v_mul_f32 v{o+j}, v{o+j}, v{o+9}')
        for j in range(8): w(f'v_fma_f32 v{o+j}, v{n+j}, v{n+9}, v{o+j}')
        for j in range(0, 8, 2): w(f'v_cvt_pk_bf16_f32 v{o+12+j//2}, v{o+j}, v{o+j+1}')
        ost = w(f'buffer_store_dwordx4 {vr(o+12,4)}, v3, {srd(SWS)}, s79 offen sc1')
        if rt < 3: w(f's_add_u32 s79, s79, {144*1024}')
    stamp(w, 6)
    post(w, 248, 249, '0', [ost])
    stamp(w, 7)
    c2 = cwpieces2()
    oa, ob = stg_offs([0, 1]), stg_offs([2, 3])
    ga, gb = ownpieces(range(4), sLBc, oa), ownpieces(range(4, 8), sLBc, ob)
    ra, rb_ = stg_reads(range(4), oa, vSA, ga[-1][-1]), stg_reads(range(4, 8), ob, vSA, gb[-1][-1])
    extra = {1: ga, 4: gb + cwpieces(0), 5: cwpieces(1), 6: cwpieces(2), 7: cwpieces(3), 9: c2}
    if cfg.l2t:
        t = l2touch(); extra[5] += t[:2]; extra[6] += t[2:]
    tok['cw'] = [p for p in extra[7]][-1][-1]
    if cfg.skipy:
        pack(s, X, work, [1, 2, 3, 4, 5, 6, 7, 9, 10], tok, extra, [c2[-1][-1]], {}, {7: cfg.f7 + 1, 9: cfg.f9}, -3, None, (6,), {7: [7, 8], 9: [9, 'cw']}, {3: ra, 6: rb_})
    else:
        extra[8] = extra.pop(9)
        pack(s, X, work, list(range(1, 11)), tok, extra, [c2[-1][-1]], {}, {7: cfg.f7, 8: 0.9, 9: cfg.f9}, -3, None, (), {8: [8, 'cw'] if cfg.p8 else [8], 9: [9, 'cw']}, {3: ra, 6: rb_})
    s('s_branch L_BHY')
    return s

BACC = [8, 24, 40, 56]; BW = 232; vBX = 248
def red_write(s, acc, t):
    s(f'v_and_b32 v4, 31, v1\nv_lshrrev_b32 v5, 5, v1\nv_and_b32 v6, 7, v1\nv_xor_b32 v6, v5, v6\nv_lshlrev_b32 v6, 4, v6\nv_lshl_add_u32 v6, v4, 8, v6\nv_add_u32 v{t}, s{sLB}, v6')
    for k in range(1, 4): s(f'v_xor_b32 v{t+k}, {k<<5}, v{t}')
    for nt in range(2):
        for st in range(2):
            for q in range(4):
                if q == 3 and nt == 1 and st == 1: s('s_waitcnt lgkmcnt(8)')
                s(f'ds_write_b128 v{t+q}, {vr(acc[2*nt+st]+4*q,4)} offset:{st*8192 + nt*128}')
    s('s_waitcnt vmcnt(0)')

def phaseB_body(kind):
    s = S(); lab = f'L_B{kind}'
    C = kind == 'C'; n = 20 if C else 16
    order = CORDER if C else list(range(16))
    if C:
        acc = [160, 176, 192, 208]; bw = 224; vl, v16, vd, vtr, vxo, wr, vtr2 = 240, 242, 243, 244, 245, 96, 246
        hreg = lambda i: 8*i if i < 12 else 8*(i - 12)
        if cfg.cpre:
            wr = 0; hreg = lambda i: 64 + 8*i if i < 12 else 8*(i - 12)
    else:
        acc = BACC; bw = BW; vl, v16, vd, vtr, vxo, wr, vtr2 = 1, 3, vW2, 6, 7, WRB, 5
        hreg = lambda i: 136 + 8*i if i < 12 else WRB + 8*(i - 12)
    hoff = [0]
    def hload(i):
        rel = order[i]
        if rel // 4 != hoff[0]:
            d = (rel // 4 - hoff[0]) * 4096; hoff[0] = rel // 4
            op = 's_add_u32' if d > 0 else 's_sub_u32'
            s(f'{op} s{sH0}, s{sH0}, {abs(d)}\n{op} s{sH1}, s{sH1}, {abs(d)}')
        for c in range(2):
            s(f'buffer_load_dwordx4 {vr(hreg(i)+4*c,4)}, v{v16}, {srd(SWS)}, s{sH0+c} offen offset:{(rel%4)*1024}' + (' sc1' if not cfg.nosc else ''))
    wt = {}; rt_ = {}
    def rd(i, f):
        va, o0 = ((vtr, vtr2), (i % 8)*2048) if i < 16 else ((241, 247), (i - 16)*2048)
        for c in range(2):
            s(f'ds_read_b64_tr_b16 {vr(f+4*c,2)}, v{va[c]} offset:{o0}', needs=[wt[i]] if i in wt else [])
            rt_[i] = s(f'ds_read_b64_tr_b16 {vr(f+4*c+2,2)}, v{va[c]} offset:{o0 + B2}')
    def wdma(i):
        if cfg.now: return
        for p in ownpieces([i], sLB, [(i % 8)*2048], vd, SD if C else SWH, order):
            if i - 8 in rt_: p[-1].needs = [rt_[i-8]]
            s.l.extend(p); wt[i] = p[-1]
    def preread():
        for i in range(8):
            rd(i, wr + 8*i)
            if i % 2 == 1 and i >= 3: s('s_waitcnt lgkmcnt(8)')
    def step(i):
        if 8 <= i + 1 < n: rd(i + 1, bw + 8*((i + 1) % 2))
        f = wr + 8*i if i < 8 else bw + 8*(i % 2)
        for nt in range(2):
            for st in range(2):
                a = acc[2*nt+st]
                if cfg.nomf: s(f'v_xor_b32 v{a}, v{f+4*nt}, v{hreg(i)+4*st}'); continue
                s(f'{MF} {vr(a,16)}, {vr(f+4*nt,4)}, {vr(hreg(i)+4*st,4)}, ' + ('0' if i == 0 else vr(a,16)))
        if cfg.cdbg and i in (0, 3, 7, 11, 15): stamp(s, (0, 3, 7, 11, 15).index(i))
    def xload(t):
        s(f'v_lshrrev_b32 v{t}, 3, v{vl}\nv_and_b32 v{vxo}, 7, v{vl}\nv_lshlrev_b32 v{vxo}, 4, v{vxo}\nv_lshl_add_u32 v{vxo}, v{t}, 10, v{vxo}')
        s(f'buffer_load_dwordx4 {vr(vBX,4)}, v{vxo}, {srd(SX)}, s{sXO} offen')
    if C:
        s('s_setprio 3')
        p0 = 4 if cfg.eh else 0
        if not cfg.eh: scheck(s, lab + '_e', SP, 2, True)
        for i in range(p0, p0 + cfg.pre): hload(i)
        s(f'v_lshrrev_b32 v{vl}, 4, v{v16}')
        b_traddr(s, 241, None, 247, vl)
        s(f'v_add_u32 v{vtr}, s{sLB}, v241\nv_xor_b32 v{vtr2}, 64, v{vtr}\ns_lshl_b32 s6, s{sW}, 13\nv_add_u32 v241, s6, v241\nv_xor_b32 v247, 64, v241')
        if not cfg.cpre:
            preread()
            line_voff(s, vxo, vd, vl)
            s(f'v_lshl_add_u32 v{vd}, v{vxo}, 10, v{vd}')
        s(f's_sub_u32 s4, s4, {FE-FH}\ns_subb_u32 s5, s5, 0')
        cf = cfg.cf if cfg.eh else 0
        if cf: s(f's_waitcnt vmcnt({4 + 2*cfg.pre})')
        for i in range(cf): step(i)
        s(f's_waitcnt vmcnt({2*cfg.pre})')
        post(s, vNON, vFA)
        if cfg.b11: s(f's_cmp_lg_u32 s{sTY}, 0\ns_cbranch_scc1 L_nb11\ns_barrier\nL_nb11:')
        stamp(s, 8)
        s('s_setprio 0')
        LA = max(cfg.la, p0 + cfg.pre)
        for i in range(p0 + cfg.pre, min(12, LA + cf)): hload(i)
        for i in range(cf, 8):
            step(i)
            if i + LA < 12: hload(i + LA)
            for k in (8 + cfg.nref + 2*(i - cf), 9 + cfg.nref + 2*(i - cf)):
                if k < 16: wdma(k)
            if i == cfg.sl: sload(s, SP, 2, True)
        scheck(s, lab + '_f', SP, 2, True)
        stamp(s, 9)
        nl = 12
        for k in range(cfg.lb): hload(nl); nl += 1
        for i in range(8, n):
            step(i)
            for k in range(2):
                if nl < 20: hload(nl); nl += 1
            if i == 12: xload(252)
        stamp(s, 10)
        s(f'v_mov_b32 v1, v{vl}\nv_mov_b32 v7, v{vxo}')
        red_write(s, acc, 72)
        s('s_branch L_red')
        return s
    s('s_setprio 0')
    s('v_lshlrev_b32 v3, 4, v1')
    b_traddr(s, 6, sLB, 7)
    s('v_xor_b32 v5, 64, v6')
    s(f's_lshr_b32 s6, s{sSB}, 1\ns_lshl_b32 s6, s6, 7\ns_and_b32 s78, s{sW}, 1\ns_lshl_b32 s7, s78, 6\ns_add_u32 s6, s6, s7\ns_add_u32 s6, s6, {FO}')
    s(f's_lshl_b32 s7, s{sSB}, 8\ns_lshl_b32 s78, s78, 4\ns_add_u32 s7, s7, s78\ns_add_u32 s7, s7, {FH}')
    s(f's_cmp_ge_u32 s{sW}, 6\ns_cselect_b32 s6, s6, s7')
    sbase(s, 6)
    def snap():
        s(f's_cmp_ge_u32 s{sW}, 6\ns_cbranch_scc1 {lab}_so')
        sload(s, SP, 4, True); s(f's_branch {lab}_sx\n{lab}_so:'); sload(s, SP, 16, False); s(f'{lab}_sx:')
    if kind == 'HX':
        if cfg.b11 == 1: s('s_barrier')
        for i in range(8):
            if cfg.b11 == 2 and i == 3: s('s_barrier')
            wdma(i)
        preread()
    early = kind == 'HX' and cfg.esn
    if early: s('s_waitcnt lgkmcnt(0)'); snap()
    npre = cfg.hw if kind == 'HY' else cfg.hwx
    if kind == 'HY' and cfg.yw: npre = -100
    for i in range(8, 8 + npre): wdma(i)
    xload(8)
    stamp(s, 8)
    if not early: s('s_waitcnt lgkmcnt(0)')
    def gate(k, first):
        s(f's_cmp_ge_u32 s{sW}, 6\ns_cbranch_scc1 {lab}_o{k}')
        if first: sload(s, SP, 4, True)
        scheck(s, f'{lab}_ph{k}', SP, 4, True, [[0, 2], [1, 3], [0, 1, 2, 3]][k])
        s(f's_branch {lab}_go{k}')
        s(f'{lab}_o{k}:')
        if first: sload(s, SP, 16, False)
        scheck(s, f'{lab}_po{k}', SP, 16, False, [[0, 1, 2, 3], [4, 5, 6, 7], list(range(8))][k])
        s(f'{lab}_go{k}:')
    gate(0 if cfg.g2 >= 0 else 2, not early)
    stamp(s, 9)
    nl = 0
    for k in range(cfg.lh): hload(nl); nl += 1
    for i in range(n):
        step(i)
        if i == cfg.g2: gate(1, False)
        for k in range(2):
            if nl < n and (nl < 12 or nl - 12 <= i) and (nl < 8 or i >= cfg.g2): hload(nl); nl += 1
        for k in (8 + npre + 2*i, 9 + npre + 2*i):
            if 8 <= k < 16: wdma(k)
    stamp(s, 10)
    red_write(s, acc, 72)
    if kind != 'HX': s('s_branch L_red')
    return s

def phaseB_tail():
    s = S()
    s(f'v_lshrrev_b32 v4, 3, v1\nv_and_b32 v5, 7, v1\nv_lshlrev_b32 v5, 1, v5\nv_xor_b32 v5, v4, v5\nv_lshlrev_b32 v5, 4, v5\nv_lshl_add_u32 v5, v4, 8, v5\ns_lshl_b32 s7, s{sW}, 11\nv_add_u32 v76, s7, v5')
    s('v_xor_b32 v77, 16, v76')
    s('v_add_u32 v78, 0x10000, v76\nv_add_u32 v79, 0x10000, v77\nv_add_u32 v80, 0x20000, v76\nv_add_u32 v81, 0x20000, v77')
    R = 84
    for j in range(4):
        s(f'v_lshlrev_b32 v{R+64+2*j}, 16, v{vBX+j}\nv_and_b32 v{R+65+2*j}, 0xffff0000, v{vBX+j}')
    s('s_waitcnt lgkmcnt(0)\ns_barrier')
    stamp(s, 11)
    for p in range(8):
        g, o = [(1, 0), (1, 16384), (1, 32768), (1, 49152), (0, 32768), (0, 49152), (2, 0), (2, 16384)][p]
        if p == 7: s('s_waitcnt lgkmcnt(8)')
        s(f'ds_read_b128 {vr(R+8*p,4)}, v{76+2*g} offset:{o}\nds_read_b128 {vr(R+8*p+4,4)}, v{77+2*g} offset:{o}')
    for p in range(1, 6):
        for j in range(8): s(f'v_add_f32 v{R+j}, v{R+j}, v{R+8*p+j}')
    for j in range(8): s(f'v_mul_f32 v{R+8+j}, 0xbfb8aa3b, v{R+j}')
    for j in range(8): s(f'v_exp_f32 v{R+8+j}, v{R+8+j}')
    for j in range(8): s(f'v_add_f32 v{R+48+j}, v{R+48+j}, v{R+56+j}')
    for j in range(8): s(f'v_add_f32 v{R+8+j}, 1.0, v{R+8+j}')
    for j in range(8): s(f'v_rcp_f32 v{R+8+j}, v{R+8+j}')
    for j in range(8): s(f'v_mul_f32 v{R+j}, v{R+j}, v{R+48+j}')
    for j in range(8): s(f'v_fma_f32 v{R+j}, v{R+j}, v{R+8+j}, v{R+64+j}')
    for j in range(4): s(f'v_cvt_pk_bf16_f32 v{R+24+j}, v{R+2*j}, v{R+2*j+1}')
    s(f'buffer_store_dwordx4 {vr(R+24,4)}, v7, {srd(SOUT)}, s{sXO} offen' + ['', ' sc1', ' nt', ' sc0 sc1', ' sc1 nt'][cfg.ost])
    return s

def fin():
    s = S()
    if cfg.stamps:
        s('s_waitcnt vmcnt(0)')
        stamp(s, 12)
        if cfg.pb >= 0:
            s(f's_cmp_lg_u32 s{sW}, {cfg.pw}\ns_cbranch_scc1 L_nospin\ns_cmp_lg_u32 s2, {cfg.pwg}\ns_cbranch_scc1 L_nospin')
            s(f's_sub_u32 s6, s{sTS+cfg.pb}, s{sTS+cfg.pa}\ns_lshl_b32 s6, s6, 3\ns_min_u32 s6, s6, 40000\ns_add_u32 s6, s6, s{sTS+12}')
            s('L_spin:\ns_memrealtime s[76:77]\ns_waitcnt lgkmcnt(0)\ns_cmp_lt_u32 s76, s6\ns_cbranch_scc1 L_spin\nL_nospin:')
        s(f's_lshl_b32 s6, s2, 3\ns_add_u32 s6, s6, s{sW}\ns_lshl_b32 s6, s6, 6\ns_add_u32 s6, s6, {TS_OFF}\nv_mov_b32 v8, s6')
        s('s_memrealtime s[76:77]\ns_waitcnt lgkmcnt(0)\ns_mov_b32 s99, s76')
        for q in range(4):
            for r in range(4): s(f'v_mov_b32 v{12+r}, s{sTS+4*q+r}')
            s('s_mov_b64 exec, 1')
            s(f'buffer_store_dwordx4 v[12:15], v8, {srd(SWS)}, 0 offen offset:{q*16}')
            s('s_mov_b64 exec, -1\ns_nop 2')
    return s

Cfg.w2t = 1; Cfg.w2at = 0; Cfg.ktry = 0; Cfg.xl = 1; Cfg.fk = 1.0; Cfg.skip = 2; Cfg.f7 = 0.55; Cfg.nomf = 0; Cfg.nosc = 0; Cfg.now = 0; Cfg.slp = 2; Cfg.la = 4; Cfg.lb = 2; Cfg.lh = 4; Cfg.ost = 4; Cfg.pwg = 72; Cfg.cdbg = 0; Cfg.sl = 3; Cfg.nbm = 1; Cfg.hw = 0; Cfg.hwx = 8; Cfg.mt = 0; Cfg.tmaj = 0; Cfg.yw = 0; Cfg.b11 = 0; Cfg.hb = 4; Cfg.f25 = 0.3; Cfg.s4 = 2; Cfg.g2 = 3; Cfg.l2t = 0; Cfg.tlbw = 0; Cfg.cpre = 1; Cfg.cpd = 4; Cfg.cps = 1; Cfg.esn = 0; Cfg.xcw = 1; Cfg.f8 = 1; Cfg.skipy = 0; Cfg.q7 = 0; Cfg.eh = 1; Cfg.ehn = 302; Cfg.cf = 3; Cfg.e4 = 22; Cfg.nref = 8; Cfg.c0f = 0; Cfg.p8 = 0; Cfg.rsx = 286; Cfg.rtx = 1; Cfg.rsy = 264; Cfg.rty = 2; Cfg.kvq = 1; Cfg.kvr = 2; Cfg.qp = 7; Cfg.pat = 7; Cfg.q9 = 0; Cfg.kvf = 8; Cfg.ystg = 1; Cfg.qat = 9; Cfg.f9 = 0.8

def build():
    out = []
    def put(lab, streams, name):
        l = []
        for x in streams: l += x.l
        if lab: out.append(lab + ':')
        out.extend('    ' + i.text if i.kind != 'label' else i.text for i in finalize(l, name))
    put(None, [prologue()], 'pro')
    if cfg.bonly:
        b = S()
        b('s_waitcnt vmcnt(0)')
        line_voff(b, 4, 5)
        b(f'v_lshl_add_u32 v252, v4, 10, v5\nv_lshlrev_b32 v242, 4, v1\nv_mov_b32 v248, 0\ns_lshl_b32 s6, s{sSB}, 8\ns_add_u32 s6, s6, {FE}')
        sbase(b, 6)
        b(f's_cmp_lt_u32 s{sW}, 6\ns_cselect_b32 s{SO}, s{SD}, s{SO}\ns_cselect_b32 s{SO+1}, s{SD+1}, s{SO+1}\ns_cselect_b32 s{SO+2}, s{SD+2}, s{SO+2}')
        b(f's_cmp_ge_u32 s{sW}, 4\ns_cbranch_scc1 L_bh')
        b(f'v_mov_b32 v252, {WS_BYTES}')
        b('s_barrier'); stamp(b, 7); b('s_branch L_BC\nL_bh:')
        b('s_barrier'); stamp(b, 7); b('s_branch L_BHY' if cfg.bonly == 1 else 's_branch L_BHX')
        put('L_bonly', [b], 'bo')
    put('L_compX', [compute('X')], 'cX')
    put('L_compY', [compute('Y')], 'cY')
    put('L_BC', [phaseB_body('C')], 'BC')
    hs = S(); hs(f's_cmp_eq_u32 s{sTY}, 0\ns_cbranch_scc1 L_helpX')
    put('L_helper', [hs, helperY()], 'hY')
    put('L_BHY', [phaseB_body('HY')], 'BHY')
    lx = S(); lx('L_BHX:')
    put('L_helpX', [helperX(), lx, phaseB_body('HX')], 'hX')
    put('L_red', [phaseB_tail()], 'red')
    put('L_fin', [fin()], 'fin')
    hdr = open('cdna_kernels/' + KN[:-7] + '.s.ref').read().split('; Override')[0]
    txt = hdr + '; @launch grid=(256,1,1) block=(512,1,1) lds=163840\n'
    txt += f'.amdgcn_target "amdgcn-amd-amdhsa--gfx950"\n.text\n.globl {KN}\n.p2align 8\n.type {KN},@function\n{KN}:\n'
    txt += '\n'.join(out) + '\nL_end:\n    s_endpgm\n'
    txt += f'''.section .rodata,"a"
.p2align 6
.amdhsa_kernel {KN}
  .amdhsa_next_free_vgpr 256
  .amdhsa_next_free_sgpr 102
  .amdhsa_accum_offset 256
  .amdhsa_group_segment_fixed_size 0
  .amdhsa_kernarg_size 88
  .amdhsa_user_sgpr_count 2
  .amdhsa_user_sgpr_kernarg_segment_ptr 1
  .amdhsa_system_sgpr_workgroup_id_x 1
.end_amdhsa_kernel
'''
    return txt

if __name__ == '__main__':
    for a in sys.argv[2:]:
        k, v = a.split('='); setattr(cfg, k, float(v) if '.' in v else int(v))
    d = getattr(cfg, 'fsh', 0)
    FKV += d; FH += d; FE += d; FO += d; FQ += d
    KV_OFF += getattr(cfg, 'ksh', 0)
    open(sys.argv[1], 'w').write(build())
```

```python
import sys
from fw import S, I, finalize
KN = 'recurrent_scan__linear_kernel_hedgehog__glu_gated_reglu__prompt_kernel'

class Cfg:
    stamps = 0; hdbg = 0; rt = 0; span = 0
    pa = -1; pb = -1; pw = 0
    mx512 = 1
    prioC = 1; prioH = 0
    tp = 2; pro = 0
    bud = 1000; quiet = 450
    mid2 = 1
    pre = 2
    bonly = 0
cfg = Cfg()

SLOT = [131072, 0, 32768]
KB = 65536; VB = 65536; STDB = 129024; RSB = 130048
KV_OFF = 0x900000
Q_OFF = 0x940000
F_OFF = 0xB40000
FKV, FH, FE, FO, FQ = F_OFF, F_OFF + 0x1000, F_OFF + 0x3000, F_OFF + 0x5000, F_OFF + 0x6000
TS_OFF = 0xB50000
WS_BYTES = 0xC00000
SPIN = 1 << 20
SX, SD, SO, SWS, SOUT, SQKV, SG, SU, SDBG, SPHI = 8, 12, 16, 20, 24, 28, 32, 36, 40, 44
SWH = SO
SP = 28
def srd(b): return f's[{b}:{b+3}]'
sW, sRB, sJ, sTY, sSB, sNB = 48, 49, 50, 51, 52, 53
sA0, sM0, sLBc, sC0, sL4, sL2 = 54, 56, 57, 58, 59, 60
sNON = 62
sT, sT2, sHEAD = 64, 65, 67
sHA, sHM, sHC, sW4 = 68, 69, 70, 71
sQ, sONES, sKV = 72, 74, 78
sWB, sLB, sH0, sH1, sXO, sWBc = 80, 81, 82, 83, 84, 85
sTS = 86
def vr(b, n): return f'v[{b}:{b+n-1}]'
MF = 'v_mfma_f32_32x32x16_bf16'

def stamp(s, idx, force=False):
    if not cfg.stamps: return
    if (cfg.hdbg or cfg.span) and idx != 12 and not force: return
    s('s_memrealtime s[76:77]' if cfg.rt else 's_memtime s[76:77]'); s('s_waitcnt lgkmcnt(0)'); s(f's_mov_b32 s{sTS+idx}, s76')

def build_srd(s, b, lo, nbytes):
    s(f's_mov_b32 s{b}, s{lo}\ns_mov_b32 s{b+1}, s{lo+1}\ns_mov_b32 s{b+2}, {nbytes}\ns_mov_b32 s{b+3}, 0x00020000')

BSTART = [32, 52, 72, 92, 0, 16, 112, 128]
CORDER = [0, 1, 2, 3, 12, 13, 14, 15, 8, 9, 10, 11, 4, 5, 6, 7, 16, 17, 18, 19]
NX0 = 8
def xpieces():
    a, b = (96, 97) if not cfg.stamps else (62, 63)
    r = []
    for c, g in ([(c, 4*b + g) for b in range(2) for c in range(4) for g in range(4)] if cfg.bm else [(c, g) for c in range(4) for g in range(8)]):
        if True:
            t = 66 if len(r) >= NX0 else 7
            p = S()
            p(f's_add_u32 m0, s{b}, {c*8192+g*1024}\ns_add_u32 s{t}, s{a}, {g*4096+c*256}')
            p(f'buffer_load_dwordx4 v{10+(g&3)}, {srd(SX)}, s{t} offen lds')
            r.append(p.l)
    return r

def merge(w, main, side, every):
    side = list(side)
    for n, i in enumerate(main.l):
        w.l.append(i)
        if side and n % every == every - 1: w.l.extend(side.pop(0))
    for x in side: w.l.extend(x)

def piece(lds_s, lds_o, g_s, g_o, voff, sr):
    p = S()
    p(f's_add_u32 m0, s{lds_s}, {lds_o}\ns_add_u32 s{sT}, s{g_s}, {g_o}')
    p(f'buffer_load_dwordx4 v{voff}, {srd(sr)}, s{sT} offen lds')
    return p.l

def sbase(s, soff): s(f's_add_u32 s4, s{SWS}, s{soff}\ns_addc_u32 s5, s{SWS+1}, 0')
def sload(s, z, n, two):
    sfx = {1: '', 2: 'x2', 4: 'x4', 8: 'x8', 16: 'x16'}[n]
    rg = lambda b: f's{b}' if n == 1 else f's[{b}:{b+n-1}]'
    s(f's_load_dword{sfx} {rg(z)}, s[4:5], 0 glc')
    if two: s(f's_load_dword{sfx} {rg(z+n)}, s[4:5], 128 glc')
def scheck(s, label, z, n, two, pairs=None):
    tot = n * (2 if two else 1)
    pairs = pairs or list(range(tot // 2))
    def test():
        s('s_waitcnt lgkmcnt(0)')
        if tot == 1: s(f's_cmp_eq_u32 s{z}, s{sNON}'); return
        s(f's_xor_b64 s[6:7], s[{z+2*pairs[0]}:{z+2*pairs[0]+1}], s[{sNON}:{sNON+1}]')
        for k in pairs[1:]:
            s(f's_xor_b64 s[76:77], s[{z+2*k}:{z+2*k+1}], s[{sNON}:{sNON+1}]\ns_or_b64 s[6:7], s[6:7], s[76:77]')
        s('s_cmp_eq_u64 s[6:7], 0')
    test()
    if cfg.bonly: return
    s(f's_cbranch_scc1 {label}_x')
    s('s_mov_b32 s75, 0')
    s(f'{label}:')
    if cfg.slp: s(f's_sleep {cfg.slp}')
    sload(s, z, n, two)
    s(f's_add_u32 s75, s75, 1\ns_cmp_gt_u32 s75, {SPIN}\ns_cbranch_scc1 {label}_y')
    test()
    s(f's_cbranch_scc0 {label}')
    s(f'{label}_y:')
    s('s_waitcnt lgkmcnt(0)')
    s(f'{label}_x:')
def post(s, vdat, vaddr, soff='0', needs=None):
    s('s_mov_b64 exec, 1', needs=needs)
    s(f'buffer_store_dword v{vdat}, v{vaddr}, {srd(SWS)}, {soff} offen sc1')
    s('s_mov_b64 exec, -1')

def prologue():
    s = S()
    s('s_cmp_ge_u32 s2, 256\ns_cbranch_scc1 L_end')
    s('s_load_dwordx16 s[64:79], s[0:1], 0\ns_load_dwordx4 s[80:83], s[0:1], 64\ns_load_dwordx2 s[84:85], s[0:1], 80')
    if cfg.stamps: s('s_memtime s[86:87]\ns_memrealtime s[88:89]')
    s('v_lshrrev_b32 v2, 6, v0\nv_and_b32 v1, 63, v0')
    s(f'v_readfirstlane_b32 s{sW}, v2')
    s('s_and_b32 s3, s2, 7\ns_lshr_b32 s4, s2, 3')
    s(f's_cmp_lg_u32 s{sW}, 7\ns_cbranch_scc1 L_nocode')
    s('s_getpc_b64 s[6:7]')
    s('L_pc:')
    s('s_and_b32 s5, s4, 7\ns_lshl_b32 s5, s5, 13\nv_lshl_add_u32 v3, v1, 7, s5\nv_min_u32 v3, L_end-L_pc, v3')
    s('global_load_dword v9, v3, s[6:7]', tag='raw')
    s('L_nocode:')
    s(f's_and_b32 s5, s3, 1\ns_lshl_b32 s5, s5, 3\ns_and_b32 s6, s4, 7\ns_add_u32 s{sRB}, s5, s6')
    s(f's_and_b32 s6, s{sW}, 3\ns_lshl_b32 s6, s6, 15\ns_lshl_b32 s5, s{sRB}, 17\ns_add_u32 s5, s5, s6')
    s('v_lshrrev_b32 v3, 4, v1\nv_and_b32 v4, 15, v1\nv_xor_b32 v4, v3, v4\nv_lshlrev_b32 v4, 4, v4\nv_lshl_add_u32 v10, v3, 10, v4')
    s('v_xor_b32 v11, 64, v10\nv_xor_b32 v12, 128, v10\nv_xor_b32 v13, 192, v10')
    s('s_waitcnt lgkmcnt(0)')
    if cfg.stamps:
        s('s_mov_b32 s101, s86\ns_mov_b32 s100, s88')
        for q in range(13): s(f's_mov_b32 s{86+q}, s101')
    build_srd(s, SX, 64, 2097152)
    s('s_mov_b32 s96, s5\ns_mov_b32 s97, s6' if not cfg.stamps else 's_mov_b32 s62, s5\ns_mov_b32 s63, s6')
    s(f's_cmp_ge_u32 s{sW}, 4\ns_cbranch_scc1 L_nox')
    for p in xpieces()[:NX0]: s.l.extend(p)
    s('L_nox:')
    build_srd(s, SQKV, 66, 1572864); build_srd(s, SG, 74, 1835008); build_srd(s, SU, 76, 1835008)
    s(f's_lshr_b32 s5, s4, 3\ns_lshr_b32 s{sTY}, s5, 1\ns_and_b32 s5, s5, 1\ns_and_b32 s6, s3, 6\ns_add_u32 s{sJ}, s6, s5')
    if cfg.mx512:
        if cfg.nbm:
            s(f's_lshr_b32 s5, s3, 1\ns_lshl_b32 s5, s5, 3\ns_and_b32 s6, s4, 7\ns_add_u32 s{sSB}, s5, s6')
            s(f's_and_b32 s5, s3, 1\ns_lshl_b32 s5, s5, 2\ns_lshr_b32 s6, s4, 3\ns_add_u32 s{sNB}, s5, s6')
        else:
            s(f's_lshr_b32 s5, s3, 1\ns_lshl_b32 s5, s5, 3\ns_lshr_b32 s6, s4, 2\ns_add_u32 s{sSB}, s5, s6')
            s(f's_and_b32 s5, s3, 1\ns_lshl_b32 s5, s5, 2\ns_and_b32 s6, s4, 3\ns_add_u32 s{sNB}, s5, s6')
    else:
        s(f's_lshl_b32 s5, s3, 2\ns_lshr_b32 s6, s4, 3\ns_add_u32 s{sSB}, s5, s6\ns_and_b32 s{sNB}, s4, 7')
    build_srd(s, SPHI, 68, 16384); build_srd(s, SO, 70, 524288); build_srd(s, SD, 78, 1835008)
    build_srd(s, SOUT, 80, 2097152); build_srd(s, SDBG, 82, 256); build_srd(s, SWS, 84, WS_BYTES)
    s(f's_and_b32 s{sW4}, s{sW}, 3')
    s(f's_mul_i32 s6, s{sJ}, 160\ns_add_u32 s6, s6, 512\ns_and_b32 s7, s{sJ}, 1')
    s('s_lshl_b32 s3, s7, 5\ns_add_u32 s3, s3, s6')
    s('s_xor_b32 s7, s7, 1\ns_lshl_b32 s4, s7, 7\ns_add_u32 s4, s4, s6')
    s(f's_add_u32 s5, s3, 64\ns_lshl_b32 s6, s{sJ}, 6\ns_cmp_eq_u32 s{sTY}, 0\ns_cselect_b32 s5, s6, s5')
    s(f's_mov_b32 s6, {BSTART[0]}')
    for w in range(1, 8): s(f's_cmp_eq_u32 s{sW}, {w}\ns_cselect_b32 s6, {BSTART[w]}, s6')
    s(f's_add_u32 s{sLB}, s{sW}, 4\ns_sub_u32 s7, s{sW}, 2\ns_cmp_ge_u32 s{sW}, 4\ns_cselect_b32 s{sLB}, s7, s{sLB}\ns_add_u32 s7, s{sW}, 2\ns_cmp_ge_u32 s{sW}, 6\ns_cselect_b32 s{sLB}, s7, s{sLB}\ns_cselect_b32 s7, 112, 0\ns_lshl_b32 s{sLB}, s{sLB}, 14')
    s(f's_sub_u32 s7, s6, s7\ns_lshl_b32 s{sWB}, s7, 14\ns_lshl_b32 s7, s{sNB}, 7\ns_add_u32 s{sWB}, s{sWB}, s7')
    s(f's_mul_i32 s{sH0}, s{sSB}, 288\ns_add_u32 s{sH0}, s{sH0}, s6\ns_lshl_b32 s{sH0}, s{sH0}, 10\ns_add_u32 s{sH1}, s{sH0}, {144*1024}')
    s(f's_lshl_b32 s6, s{sSB}, 3\ns_add_u32 s6, s6, s{sW}\ns_lshl_b32 s6, s6, 13\ns_add_u32 s{sXO}, s6, s7')
    if cfg.bonly: s('s_branch L_bonly')
    s(f's_cmp_ge_u32 s{sW}, 4\ns_cbranch_scc1 L_helper')
    s(f's_cmp_eq_u32 s{sTY}, 0\ns_cbranch_scc0 L_compY\ns_branch L_compX')
    return s

M16 = 'v_mfma_f32_16x16x32_bf16'
XN = 0; ACC = [128, 144, 160, 176]; WF = 192; NRING = 6; PK = 224
vTL, vTH = 216, 220
vL16, vKW, vVW, vM2, vXA = 242, 243, 244, 245, 246
vC, vR2, vNON, vFA, vZ = 240, 254, 248, 252, 251

def compute(ty):
    X = ty == 'X'
    s = S()
    s(f's_setprio {cfg.prioC}')
    s(f'v_lshlrev_b32 v{vL16}, 4, v1')
    s('v_lshrrev_b32 v2, 4, v1\nv_and_b32 v3, 15, v1')
    s('v_bfe_u32 v4, v1, 2, 2\nv_lshl_add_u32 v4, v2, 3, v4\nv_and_b32 v5, 3, v1\nv_lshlrev_b32 v5, 3, v5')
    if not X:
        s(f'v_and_b32 v6, 1, v2\nv_lshl_add_u32 v6, v6, 5, v5\nv_lshl_add_u32 v{vKW}, v4, 6, v6\nv_xor_b32 v{vM2}, 32, v{vKW}')
    s(f'v_bfe_u32 v6, v1, 3, 1\nv_and_b32 v7, 1, v2\nv_lshl_add_u32 v6, v6, 1, v7\nv_lshl_add_u32 v5, v6, 5, v5\nv_lshl_add_u32 v{vTL}, v4, 7, v5')
    s(f'v_add_u32 v{vTH}, 0x20000, v{vTL}')
    for q in range(1, 4): s(f'v_xor_b32 v{vTL+q}, {32*q}, v{vTL}\nv_xor_b32 v{vTH+q}, {32*q}, v{vTH}')
    s('v_xor_b32 v4, v2, v3\nv_lshlrev_b32 v4, 4, v4\nv_and_b32 v5, 3, v1\nv_lshl_add_u32 v4, v5, 8, v4')
    s(f'v_bfe_u32 v5, v1, 2, 2\nv_lshl_add_u32 v4, v5, 10, v4\ns_lshl_b32 s6, s{sW}, 15\nv_add_u32 v{vXA}, s6, v4')
    for u in range(1, 4): s(f'v_xor_b32 v{vXA+u}, {u<<6}, v{vXA}')
    if X:
        s(f's_lshl_b32 s6, s{sW}, 10\ns_add_u32 s6, s6, {KB}\nv_lshlrev_b32 v4, 3, v1\nv_add_u32 v{vKW}, s6, v4')
        s(f'v_and_b32 v4, 1, v2\nv_lshrrev_b32 v6, 1, v2\nv_lshl_add_u32 v4, v4, 1, v6\nv_xor_b32 v4, v4, v5\nv_lshlrev_b32 v4, 3, v4\nv_lshl_add_u32 v4, v3, 5, v4\nv_add_u32 v{vVW}, s6, v4')
        s(f's_lshl_b32 s6, s{sRB}, 3\ns_add_u32 s6, s6, s{sJ}\ns_lshl_b32 s6, s6, 4\ns_add_u32 s6, s6, s{sW}\ns_lshl_b32 s6, s6, 10\ns_add_u32 s{sQ}, s6, {Q_OFF}')
    E = PK
    s('v_and_b32 v4, 1, v1\nv_lshlrev_b32 v4, 4, v4\nv_mov_b32 v6, 0x3f80\nv_lshlrev_b32 v6, v4, v6')
    s('v_cmp_eq_u32 vcc, v5, v2\nv_cndmask_b32 v6, 0, v6, vcc\nv_bfe_u32 v4, v1, 1, 1')
    s(f'v_cmp_eq_u32 vcc, 0, v4\nv_cndmask_b32 v{E}, 0, v6, vcc\nv_cndmask_b32 v{E+1}, v6, 0, vcc')
    s(f'v_mov_b32 v{E+2}, 0\nv_mov_b32 v{E+3}, 0\nv_mov_b32 v{E+4}, 0\nv_mov_b32 v{E+5}, 0\nv_mov_b32 v{E+6}, v{E}\nv_mov_b32 v{E+7}, v{E+1}')
    s(f's_lshl_b32 s6, s{sRB}, 2\ns_add_u32 s6, s6, s{sW}\ns_mul_i32 s6, s6, {144*1024}')
    s(f's_lshl_b32 s7, s3, 6\ns_add_u32 s{sHA}, s6, s7\ns_lshl_b32 s7, s4, 6\ns_add_u32 s{sHM}, s6, s7\ns_lshl_b32 s7, s5, 6\ns_add_u32 s{sHC}, s6, s7')
    s(f's_mov_b32 s{sONES}, 0x3f803f80')
    setup = s; s = S()
    merge(s, setup, xpieces()[NX0:16 if cfg.hx else 32], 3)
    if not cfg.hx: s('s_barrier')
    stamp(s, 0)
    SA = ACC[0]
    xr = lambda tt, b: XN + 8*tt + 4*b
    if cfg.bm:
        A0, Q0 = SA, SA + 2
        CM = ACC[0] + 8
        DT = ACC[1]; ND = 5; LAG = 2
        def reads(b, c):
            if not cfg.hx: s(f's_waitcnt vmcnt({4*(7 - 4*b - c)})')
            elif b == 0: s(f's_waitcnt vmcnt({4*(3 - c)})')
            for u in range(4): s(f'ds_read_b128 {vr(xr(4*c+u,b),4)}, v{vXA+u} offset:{c*8192 + b*4096}')
        def dots(b, c):
            for u in range(4):
                for r in range(4):
                    z = c == 0 and u == 0 and r < 2; x = xr(4*c+u, b) + r; k = 4*(r & 1)
                    s(f'v_dot2_f32_bf16 v{A0+b+k}, v{x}, s{sONES}, ' + ('0' if z else f'v{A0+b+k}'))
                    s(f'v_dot2_f32_bf16 v{Q0+b+k}, v{x}, v{x}, ' + ('0' if z else f'v{Q0+b+k}'))
        def stats(b):
            a_, q = A0 + b, Q0 + b
            s(f'v_add_f32 v{a_}, v{a_}, v{a_+4}\nv_add_f32 v{q}, v{q}, v{q+4}')
            s(f'v_permlane32_swap_b32 v{a_}, v{q}\nv_add_f32 v{a_}, v{a_}, v{q}\nv_mov_b32 v{q}, v{a_}\nv_permlane16_swap_b32 v{a_}, v{q}')
            s(f'v_add_f32 v{a_}, v{a_}, v{q}\nv_mul_f32 v{a_}, 0x3b000000, v{a_}\nv_mov_b32 v{q}, v{a_}\nv_permlane32_swap_b32 v{a_}, v{q}')
            s(f'v_cvt_pk_bf16_f32 v{CM+4*b}, -v{a_}, -v{a_}\nv_and_b32 v{CM+4*b}, 0xffff0000, v{CM+4*b}')
            for r in range(1, 4): s(f'v_mov_b32 v{CM+4*b+r}, v{CM+4*b}')
        def mkside(b):
            side = S(); q = Q0 + b
            if b == 0: side(f'v_mov_b32 v{vZ}, 0')
            side(f'v_fma_f32 v{q}, -v{A0+b}, v{A0+b}, v{q}\nv_max_f32 v{q}, 0, v{q}')
            side(f'v_cvt_pk_bf16_f32 v{q}, v{q}, v{q}\nv_and_b32 v{q}, 0xffff0000, v{q}\nv_add_f32 v{q}, 0x3727c5ac, v{q}')
            side(f'v_cvt_pk_bf16_f32 v{q}, v{q}, v{q}\nv_and_b32 v{q}, 0xffff0000, v{q}\nv_sqrt_f32 v{q}, v{q}')
            if X and b == 0: side(f'v_lshrrev_b32 v250, 2, v{vL16}\nv_and_b32 v250, 0x3c, v250\ns_lshl_b32 s6, s{sW}, 7\nv_add_u32 v250, s6, v250\nv_add_u32 v252, {RSB}, v250\nv_lshlrev_b32 v253, 1, v250\nv_add_u32 v253, {STDB}, v253')
            else: side('s_nop 0')
            side(f'v_cvt_pk_bf16_f32 v{234+2*b}, v{q}, v{q}\nv_mov_b32 v{235+2*b}, v{234+2*b}\nv_and_b32 v{q}, 0xffff0000, v{234+2*b}\nv_rcp_f32 v{q}, v{q}')
            if X and b == 1:
                for bb in range(2): side(f'ds_write_b64 v253, v[{234+2*bb}:{235+2*bb}] offset:{128*bb}')
            else: side('s_nop 0')
            if X: side(f'v_mul_f32 v{vC+b}, 0x3fb8aa3b, v{q}')
            side(f'v_mul_f32 v{vR2+b}, v{q}, v{q}')
            if X and b == 1:
                for bb in range(2): side(f'ds_write_b32 v252, v{Q0+bb} offset:{64*bb}')
            return side.l
        def center(b, hooks):
            nonlocal pre_reads_at
            side = mkside(b)
            for f in range(16 + LAG):
                g = f - LAG
                cv = [f'v_cvt_pk_bf16_f32 v{xr(g,b)+j}, v{DT+8*(g%ND)+2*j}, v{DT+8*(g%ND)+2*j+1}' for j in range(4)] if g >= 0 else []
                for a_ in range(2):
                    if f < 16: s(f'{M16} {vr(DT+8*(f%ND)+4*a_,4)}, {vr(E+4*a_,4)}, {vr(xr(f,b),4)}, {vr(CM+4*b,4)}')
                    for x in cv[2*a_:2*a_+2]: s(x)
                    if side: s.l.append(side.pop(0))
                if f in hooks: hooks[f]()
                if b == 1 and f == 12: s('s_waitcnt lgkmcnt(0)\ns_barrier')
                if b == 1 and f == 14: pre_reads_at = len(s.l)
            assert not side
        pre_reads_at = None
        for c in range(4): reads(0, c); dots(0, c)
        stats(0)
        stamp(s, 1)
        if cfg.hx:
            center(0, {cfg.hk2: lambda: (s('s_barrier'), reads(1, 0), reads(1, 1), reads(1, 2))})
            dots(1, 0); reads(1, 3); dots(1, 1); dots(1, 2); dots(1, 3)
        else:
            center(0, {cfg.hk0: lambda: reads(1, 0), cfg.hk1: lambda: reads(1, 1), cfg.hk2: lambda: reads(1, 2)})
            dots(1, 0); dots(1, 1); reads(1, 3); dots(1, 2); dots(1, 3)
        s('s_barrier')
        stats(1)
        stamp(s, 2)
        center(1, {})
    else:
        for c in range(4):
            s(f's_waitcnt vmcnt({8*(3-c)})')
            if c == 3: stamp(s, 1)
            for u in range(4):
                for b in range(2): s(f'ds_read_b128 {vr(xr(4*c+u,b),4)}, v{vXA+u} offset:{c*8192 + b*4096}')
            for u in range(4):
                for r in range(4):
                    for b in range(2):
                        z = c == 0 and u == 0 and r == 0; x = xr(4*c+u, b) + r
                        s(f'v_dot2_f32_bf16 v{SA+b}, v{x}, s{sONES}, ' + ('0' if z else f'v{SA+b}'))
                        s(f'v_dot2_f32_bf16 v{SA+2+b}, v{x}, v{x}, ' + ('0' if z else f'v{SA+2+b}'))
        s('s_barrier')
        A0, A1, Q0, Q1 = SA, SA + 1, SA + 2, SA + 3
        s(f'v_permlane32_swap_b32 v{A0}, v{Q0}\nv_permlane32_swap_b32 v{A1}, v{Q1}\nv_add_f32 v{A0}, v{A0}, v{Q0}\nv_add_f32 v{A1}, v{A1}, v{Q1}')
        s(f'v_permlane16_swap_b32 v{A0}, v{A1}\nv_add_f32 v{A0}, v{A0}, v{A1}\nv_mul_f32 v{A0}, 0x3b000000, v{A0}')
        s(f'v_mov_b32 v{A1}, v{A0}\nv_permlane16_swap_b32 v{A0}, v{A1}\nv_mov_b32 v{Q0}, v{A0}\nv_mov_b32 v{Q1}, v{A1}')
        s(f'v_permlane32_swap_b32 v{A0}, v{Q0}\nv_permlane32_swap_b32 v{A1}, v{Q1}')
        CM = ACC[0] + 8
        for b in range(2):
            s(f'v_cvt_pk_bf16_f32 v{CM+4*b}, -v{A0+b}, -v{A0+b}\nv_and_b32 v{CM+4*b}, 0xffff0000, v{CM+4*b}')
            for r in range(1, 4): s(f'v_mov_b32 v{CM+4*b+r}, v{CM+4*b}')
        stamp(s, 2)
        side = S()
        side(f'v_mov_b32 v{vZ}, 0')
        for b in range(2):
            q = Q0 + b
            side(f'v_fma_f32 v{q}, -v{A0+b}, v{A0+b}, v{q}\nv_max_f32 v{q}, 0, v{q}')
            side(f'v_cvt_pk_bf16_f32 v{q}, v{q}, v{q}\nv_and_b32 v{q}, 0xffff0000, v{q}\nv_add_f32 v{q}, 0x3727c5ac, v{q}')
            side(f'v_cvt_pk_bf16_f32 v{q}, v{q}, v{q}\nv_and_b32 v{q}, 0xffff0000, v{q}\nv_sqrt_f32 v{q}, v{q}')
            if X and b == 0: side(f'v_lshrrev_b32 v250, 2, v{vL16}\nv_and_b32 v250, 0x3c, v250\ns_lshl_b32 s6, s{sW}, 7\nv_add_u32 v250, s6, v250\nv_add_u32 v252, {RSB}, v250\nv_lshlrev_b32 v253, 1, v250\nv_add_u32 v253, {STDB}, v253')
            else: side('s_nop 0')
            side(f'v_cvt_pk_bf16_f32 v234, v{q}, v{q}\nv_mov_b32 v235, v234\nv_and_b32 v{q}, 0xffff0000, v234\nv_rcp_f32 v{q}, v{q}')
            if X:
                side(f'ds_write_b64 v253, v[234:235] offset:{128*b}\nds_write_b32 v252, v{q} offset:{64*b}')
                side(f'v_mul_f32 v{vC+b}, 0x3fb8aa3b, v{q}')
            else: side('s_nop 0')
            side(f'v_mul_f32 v{vR2+b}, v{q}, v{q}')
        side = side.l
        DT = ACC[1]; ND = 5
        LAG = 2
        for f in range(32 + LAG):
            g = f - LAG
            cv = [f'v_cvt_pk_bf16_f32 v{XN+4*g+j}, v{DT+8*(g%ND)+2*j}, v{DT+8*(g%ND)+2*j+1}' for j in range(4)] if g >= 0 else []
            for a_ in range(2):
                if f < 32: s(f'{M16} {vr(DT+8*(f%ND)+4*a_,4)}, {vr(E+4*a_,4)}, {vr(XN+4*f,4)}, {vr(CM+4*(f&1),4)}')
                for x in cv[2*a_:2*a_+2]: s(x)
                if side: s.l.append(side.pop(0))
            if f == 28: s('s_waitcnt lgkmcnt(0)\ns_barrier')
            if f == 30: pre_reads_at = len(s.l)
        assert not side
    stamp(s, 3)
    mf = []
    for st in range(10):
        base = SLOT[st % 3]
        if not ((4 <= st < 6) or (X and st < 4)):
            sl = st if st < 4 else st - 6
            accs = [0, 1, 2, 3] if st < 4 else [2, 3, 0, 1]
            for p in range(2):
                for t in range(4):
                    for c in range(2):
                        for a_ in range(2):
                            mf.append((st, ACC[accs[2*p+c]] + 8*a_, 4*sl + t, (base + c*16384 + t*4096, 2*p + a_), sl == 0 and t == 0))
        else:
            sl = st & 1; a0 = 2 if st in (2, 3) else 0
            for t in range(8):
                for c in range(2):
                    for a_ in range(2):
                        mf.append((st, ACC[a0 + c] + 8*a_, 8*sl + t, (base + t*4096, 2*c + a_) if X else (base + c*16384 + t*2048, -1 - a_), sl == 0 and t == 0))
    N = len(mf)
    def packswap(e, src, pk, mul):
        for b in range(2):
            if mul is not None:
                for r in range(4): e.append(f'v_mul_f32 v{src+4*b+r}, v{src+4*b+r}, v{mul+b}')
            e.append(f'v_cvt_pk_bf16_f32 v{pk+2*b}, v{src+4*b}, v{src+4*b+1}')
            e.append(f'v_cvt_pk_bf16_f32 v{pk+2*b+1}, v{src+4*b+2}, v{src+4*b+3}')
    def swaps(e, pk):
        e.append(f'v_permlane16_swap_b32 v{pk}, v{pk+2}'); e.append(f'v_permlane16_swap_b32 v{pk+1}, v{pk+3}')
    def ep_h(g, u, sbase, off, PK=PK, defer=None):
        e = []; dst = e if defer is None else defer
        for a_ in range(2):
            for j in range(8*a_, 8*a_ + 8): e.append(f'v_max_f32 v{g+j}, 0, v{g+j}')
            if a_ == 1:
                swaps(e, PK); dst.append(f'buffer_store_dwordx4 {vr(PK,4)}, v{vL16}, {srd(SWS)}, s{sbase} offen offset:{off} sc1')
            for j in range(8*a_, 8*a_ + 8): e.append(f'v_mul_f32 v{g+j}, v{g+j}, v{u+j}')
            packswap(e, g + 8*a_, PK + 4*a_, vR2)
        e.append('s_nop 0'); swaps(e, PK + 4)
        dst.append(f'buffer_store_dwordx4 {vr(PK+4,4)}, v{vL16}, {srd(SWS)}, s{sbase} offen offset:{off+1024} sc1')
        return e
    def ep_hand(a0, a1, kind):
        e = []; fin = []
        for hd in range(4):
            src = (a0, a1)[hd >> 1] + 8*(hd & 1); pk = PK + 4*hd
            t = []; packswap(t, src, pk, None if kind == 'v' else vC)
            if kind == 'v':
                e += t[:2] + [f'ds_write_b64 v{vVW}, {vr(pk,2)} offset:{hd*4096}'] + t[2:] + [f'ds_write_b64 v{vVW}, {vr(pk+2,2)} offset:{hd*4096+512}']
                continue
            e += t[:6] + fin + t[6:]; fin = []
            swaps(fin, pk)
            if kind == 'k': fin += [f'ds_write_b64 v{vKW}, {vr(pk,2)} offset:{hd*4096}', f'ds_write_b64 v{vKW}, {vr(pk+2,2)} offset:{hd*4096+512}']
            else:
                fin.append(f'buffer_store_dwordx4 {vr(pk,4)}, v{vL16}, {srd(SWS)}, s{sQ} offen sc1')
                if hd < 3: fin.append(f's_add_u32 s{sQ}, s{sQ}, 4096')
        return e + fin
    A = ACC
    fill = {}; late = {}; posts = {}; mids = []
    skip = (({0: set(), 1: {7}, 2: {8}}[cfg.skip]) if X else ({8} if cfg.skipy else set()))
    fa = f's_lshl_b32 s6, s{sRB}, 2\ns_add_u32 s6, s6, s{sW}\ns_lshl_b32 s6, s6, 5\ns_add_u32 s6, s6, s{sJ}' + ('' if X else '\ns_add_u32 s6, s6, 8') + f'\ns_lshl_b32 s6, s6, 2\ns_add_u32 s6, s6, {FH}\nv_mov_b32 v{vFA}, s6'
    if X:
        fill[2*32] = (ep_hand(A[0], A[1], 'k'), 2*32 + 17); mids.append(2*32 + 19)
        if cfg.kvq:
            fill[4*32] = (ep_hand(A[2], A[3], 'v'), 4*32 + 12); mids.append(4*32 + 14)
            fill[6*32] = (ep_hand(A[0], A[1], 'q'), 6*32 + 15); mids.append(7*32 + cfg.qp + 1)
            skip = {8}
        else:
            fill[4*32] = (ep_hand(A[2], A[3], 'q'), 4*32 + 24)
            fill[6*32] = (ep_hand(A[0], A[1], 'v'), 6*32 + 10)
            mids.append(6*32 + 12)
        extra = f'\ns_lshl_b32 s6, s{sRB}, 3\ns_add_u32 s6, s6, s{sJ}\ns_lshl_b32 s6, s6, 5\ns_add_u32 s6, s6, s{sW}\ns_lshl_b32 s6, s6, 2\ns_add_u32 s6, s6, {FQ}\nv_mov_b32 v253, s6'
        posts[7*32 + cfg.qp if cfg.kvq else 5*32 + 12] = (253, '0')
    else:
        d1 = []; d2 = []
        fill[3*32+16] = (ep_h(A[0], A[1], sHA, 0, PK, d1), 3*32 + 31)
        fill[4*32] = (ep_h(A[2], A[3], sHA, 2048, PK + 8, d1), 4*32 + cfg.e4)
        fill[6*32] = (ep_h(A[0], A[1], sHM, 0, PK, d2), 6*32 + 15)
        for k, x in enumerate(d1): late[4*32 + (19, 21, cfg.e4 + 1, cfg.e4 + 2)[k]] = x
        for k, x in enumerate(d2): late[6*32 + 21 + 3*k] = x
        extra = f'\ns_mov_b32 s{sQ}, {FE-FH}'
        posts[7*32 + 20] = (vFA, f's{sQ}')
    fill[1*32+2] = ([f'buffer_load_dword v{vNON}, v{vZ}, {srd(SDBG)}, 0 offen sc1'] + (fa + extra).split('\n'), 1*32 + 22)
    t = S()
    t(f'v_lshrrev_b32 v249, 4, v{vL16}')
    b_traddr(t, 244, sLB, 250, 249)
    t('v_xor_b32 v246, 64, v244')
    line_voff(t, 250, 243, 249)
    t('v_lshl_add_u32 v243, v250, 10, v243')
    t('v_and_b32 v250, 1, v249\nv_lshlrev_b32 v250, 2, v250\nv_bfe_u32 v253, v249, 1, 1\nv_lshl_add_u32 v253, v253, 7, v250')
    t(f's_lshl_b32 s6, s{sSB}, 8\ns_lshl_b32 s7, s{sW}, 3\ns_add_u32 s6, s6, s7\ns_add_u32 s6, s6, {FE+32}\nv_add_u32 v253, s6, v253')
    late[cfg.ehn - 10] = f'buffer_load_dword v250, v253, {srd(SWS)}, 0 offen sc1'
    if cfg.p8:
        fill[7*32+12] = ([i.text for i in t.l], 7*32 + 27)
        pstart = 8*32 + 2; rstart, rstep = (cfg.rsx, cfg.rtx) if X else (cfg.rsy, cfg.rty)
    else:
        fill[8*32+2] = ([i.text for i in t.l], 8*32 + 24)
        pstart = 8*32 + 30; rstart, rstep = pstart + cfg.cpd, 1
    pre9 = []
    for i in range(8):
        g = []
        for c in range(2):
            g.append(I(f'ds_read_b64_tr_b16 {vr(8*i+4*c,2)}, v{(244, 246)[c]} offset:{2048*i}'))
            g.append(I(f'ds_read_b64_tr_b16 {vr(8*i+4*c+2,2)}, v{(244, 246)[c]} offset:{2048*i+B2}'))
        pre9.append(g)
    ref9 = ownpieces(range(8, 16), sLB, O8, 243, SD, CORDER)
    for k, p in enumerate(ref9): p[-1].needs = [pre9[k // 2][-1]]
    ref9 = ref9[:2*cfg.nref]
    fill[9*32+16] = (ep_h(A[2], A[3], sHC, 0), 9*32 + 31)
    tail = ep_h(A[0], A[1], sHC, 2048, PK + 8)
    def rd(n):
        st, a, xf, (off, q), first = mf[n]
        if q < 0: va, o, d = (vKW, vM2)[-1 - q], off, 256
        elif off >= 131072: va, o, d = vTH + q, off - 131072, 512
        else: va, o, d = vTL + q, off, 512
        r = WF + 4*(n % NRING)
        return [f'ds_read_b64_tr_b16 {vr(r,2)}, v{va} offset:{o}', f'ds_read_b64_tr_b16 {vr(r+2,2)}, v{va} offset:{o+d}']
    nxt = 0; half = []; pend = []; rdtok = {}
    def issue_reads(limit_frag, maxn):
        nonlocal nxt, half
        k = 0
        while k < maxn:
            if not half:
                if nxt > limit_frag or nxt >= N: break
                half = [(nxt, x) for x in rd(nxt)]; nxt += 1
            f, x = half.pop(0); rdtok[f] = s(x); k += 1
        return k
    passed = 0
    keep = s.l[pre_reads_at:]; del s.l[pre_reads_at:]
    issue_reads(NRING - 2, 2*(NRING - 1))
    s.l.extend(keep)
    delay = 0; dead = 0
    BP = 28
    def fillers(k):
        nw = 0
        while pend and k > 0:
            if pend[0].startswith('ds_write'):
                if nw and not last_gap: break
                nw += 1
            s(pend.pop(0)); k -= 1
    for n in range(N):
        st, a, xf, off, first = mf[n]
        if n in fill:
            assert not pend
            pend = list(fill[n][0]); dead = fill[n][1]; delay = 1
        needs = []
        if n % 2 == 0 and (n + 1) in rdtok and not (half and half[0][0] == n + 1): needs = [rdtok[n+1]]
        r = WF + 4*(n % NRING)
        isbar = n % 32 == BP and st + 1 not in skip
        lim = min(n + NRING - 1, 32*(passed+1) - 1)
        budget = 0; last_gap = False
        if delay > 0: delay -= 1
        elif pend and not isbar:
            gaps = sum(1 for m in range(n, dead + 1) if m % 32 != BP or m // 32 + 1 in skip)
            budget = -(-len(pend) // gaps); last_gap = gaps == 1
        s(f'{M16} {vr(a,4)}, {vr(r,4)}, {vr(xr(xf,0),4)}, ' + ('0' if first else vr(a,4)), needs=needs)
        if not isbar:
            behind = (min(lim, n + NRING - 2) - nxt + 1) * 2 + len(half)
            issue_reads(min(lim, n + NRING - 2), 2 if behind > 2 else 1)
            fillers(budget // 2)
        s(f'{M16} {vr(a+4,4)}, {vr(r,4)}, {vr(xr(xf,1),4)}, ' + ('0' if first else vr(a+4,4)))
        if isbar:
            assert nxt == 32*(st+1) and not half, (n, nxt)
            s('s_waitcnt lgkmcnt(0)')
            if cfg.hdbg and cfg.hb <= st <= cfg.hb + 5: stamp(s, 2*(st-cfg.hb), True)
            s('s_barrier'); passed = st + 1
            if passed + 1 in skip and passed + 1 == 8 and not (X and cfg.kvq): passed += 1
            if cfg.hdbg and cfg.hb <= st <= cfg.hb + 5: stamp(s, 2*(st-cfg.hb)+1, True)
            if st in (3, 5): stamp(s, 4 if st == 3 else 5)
            issue_reads(min(n + NRING - 1, N - 1), 4)
            if st == 9:
                s(f'v_readfirstlane_b32 s{sNON}, v{vNON}\ns_lshl_b32 s6, s{sSB}, 8\ns_lshl_b32 s7, s{sW}, 3\ns_add_u32 s6, s6, s7\ns_add_u32 s6, s6, {FE+32}')
                sbase(s, 6)
                s(f's_mov_b32 s{sNON+1}, s{sNON}')
            continue
        if n in mids:
            assert not pend
            s('s_barrier', needs=[[i for i in s.l if i.op == 'ds_write_b64'][-1]])
            if st + 1 in skip and (st + 1 == 7 or cfg.kvq): passed = st + 1
        behind = (lim - nxt + 1) * 2 + len(half)
        issue_reads(lim, 2 if behind > 2 else 1)
        if n in late: s(late[n])
        if 0 <= n - pstart < 16:
            k = n - pstart; s.l.extend(pre9[k // 2][2*(k % 2):2*(k % 2) + 2])
        if n >= rstart and ref9 and (n - rstart) % rstep == 0: s.l.extend(ref9.pop(0))
        for lab_, at, dat, adr, sr, cond in ((f'L_e{ty}', cfg.ehn, 250, 253, SWS, f'v_cmp_ne_u32 vcc, v250, v{vNON}'),
                                             (f'L_non{ty}c', 3*32 + 4, vNON, vZ, SDBG, f'v_cmp_eq_u32 vcc, 0, v{vNON}')):
            if n == at:
                s(f'{cond}\ns_cbranch_vccz {lab_}_x')
                s('s_mov_b32 s75, 0')
                s(f'{lab_}:')
                s(f'buffer_load_dword v{dat}, v{adr}, {srd(sr)}, 0 offen sc1\ns_waitcnt vmcnt(0)', tag='raw')
                s(f's_add_u32 s75, s75, 1\ns_cmp_gt_u32 s75, {SPIN}\ns_cbranch_scc1 {lab_}_x')
                s(f'{cond}\ns_cbranch_vccnz {lab_}')
                s(f'{lab_}_x:')
        if 0 <= n - cfg.ehn < 8:
            k = n - cfg.ehn
            s(f'buffer_load_dwordx4 {vr(64 + 4*k, 4)}, v{vL16}, {srd(SWS)}, s{sH0 + (k & 1)} offen offset:{(k >> 1)*1024} sc1')
        if n in posts: post(s, vNON, posts[n][0], posts[n][1], [[i for i in s.l if i.kind == 'vmst'][-1]])
        fillers(budget - budget // 2 if not last_gap else 99)
    assert not pend and not ref9
    stamp(s, 6)
    for x in tail: s(x)
    vms = [i for i in s.l if i.kind in ('vm', 'vmst', 'vmlds')]
    assert all(i.kind == 'vmst' for i in vms[-4:])
    stamp(s, 7)
    s('s_branch L_BC')
    return s

vOQ, vOG, vW2 = 2, 3, 252
WRB = 72
vOQ2, vOG2 = 249, 250
vOM = 251
def dma_stage(st, X):
    base = SLOT[st % 3]; r = []
    if X and st < 6:
        col = ([1024, 2048, 0] if cfg.kvq else [1024, 0, 2048])[st >> 1]
        for b in range(8): r.append(piece(sL2, base + b*1024, sM0, (256*(st & 1) + 8*b)*3072 + col, (vOQ, vOQ2)[b & 1], SQKV))
    elif st < 4 or st >= 6:
        sl = st if st < 4 else st - 6
        sb = sA0 if st < 4 else sC0
        for b in range(4):
            for pos, sr in enumerate((SG, SU)): r.append(piece(sL4, base + pos*16384 + b*1024, sb, (128*sl + 8*b)*3584, (vOG, vOG2)[b & 1], sr))
    else:
        for b in range(4):
            row = 256*(st & 1) + 16*b
            for pos, sr in enumerate((SG, SU)): r.append(piece(sL4, base + pos*16384 + b*1024, sM0, row*3584, vOM, sr))
    return r
def cwpieces(w):
    return [piece(sLBc, (w+4)*16384 + k*8192 + c*1024, sWBc, (BSTART[w]+12*k)*16384 + 8192*c, vW2, SD) for k in range(2) for c in range(2)]
sLBx, sWBx = 54, 55
def cwpiecesx(w, es=(0, 1)):
    return [piece(sLBx, (w+4)*16384 + e*2048 + c*1024, sWBx, (BSTART[w]+e)*16384 + 8192*c, vW2, SD) for e in es for c in range(2)]
def cwpieces2():
    return [piece(sLBc, w*8192 + c*1024, sWBc, (BSTART[w]+16)*16384 + 8192*c, vW2, SD) for w in range(4) for c in range(2)]
def ownpieces(steps, sbase, offs, voff=vW2, sr=SWH, rel=None):
    return [piece(sbase, o + c*1024, sWB, (rel[i] if rel else i)*16384 + 8192*c, voff, sr) for i, o in zip(steps, offs) for c in range(2)]
def emit(s, pieces, raw=False):
    for p in pieces:
        for x in p:
            if raw: x.tag = 'raw'
            s.l.append(x)
    return pieces[-1][-1]
def b_traddr(s, dst, sbase, t, lane=1):
    s(f'v_lshrrev_b32 v{t}, 5, v{lane}\nv_bfe_u32 v{dst}, v{lane}, 2, 2')
    s(f'v_lshl_add_u32 v{dst}, v{t}, 3, v{dst}\nv_lshlrev_b32 v{dst}, 7, v{dst}')
    s(f'v_bfe_u32 v{t}, v{lane}, 3, 1\nv_lshl_add_u32 v{dst}, v{t}, 6, v{dst}')
    s(f'v_bfe_u32 v{t}, v{lane}, 4, 1\nv_lshl_add_u32 v{dst}, v{t}, 5, v{dst}\nv_and_b32 v{t}, 3, v{lane}\nv_lshl_add_u32 v{dst}, v{t}, 3, v{dst}')
    if sbase is not None: s(f'v_add_u32 v{dst}, s{sbase}, v{dst}')
def line_voff(s, row, chunk, lane=1):
    s(f'v_lshrrev_b32 v{row}, 3, v{lane}\nv_bfe_u32 v{chunk}, v{lane}, 4, 1\nv_lshlrev_b32 v{chunk}, 2, v{chunk}\nv_xor_b32 v{chunk}, v{lane}, v{chunk}\nv_and_b32 v{chunk}, 7, v{chunk}\nv_lshlrev_b32 v{chunk}, 4, v{chunk}')
O8 = [2048*k for k in range(8)]
B2 = 512
def stg_offs(regions): return [(w + 4)*16384 + k*8192 for w in regions for k in range(2)]
def stg_reads(steps, offs, va, tok):
    w = S()
    for i, o in zip(steps, offs):
        for c in range(2):
            f = WRB + 8*i + 4*c
            w(f'ds_read_b64_tr_b16 {vr(f,2)}, v{va+c} offset:{o - 65536}', needs=[tok])
            w(f'ds_read_b64_tr_b16 {vr(f+2,2)}, v{va+c} offset:{o - 65536 + B2}')
    w.l.insert(12, I('s_waitcnt lgkmcnt(4)'))
    w('s_waitcnt lgkmcnt(0)')
    return w

def softmax_k(s, P, rs, out, t):
    m0, m1, n0, n1 = t
    s(f'v_max3_f32 v{m0}, v{P}, v{P+1}, v{P+2}\nv_max3_f32 v{m1}, v{P+3}, v{P+4}, v{P+5}')
    s(f'v_max3_f32 v{n0}, v{P+6}, v{P+7}, v{P+8}\nv_max3_f32 v{n1}, v{P+9}, v{P+10}, v{P+11}')
    s(f'v_max3_f32 v{m0}, v{m0}, v{P+12}, v{P+13}\nv_max3_f32 v{m1}, v{m1}, v{P+14}, v{P+15}')
    s(f'v_max3_f32 v{m0}, v{m0}, v{n0}, v{n1}\nv_max_f32 v{m0}, v{m0}, v{m1}')
    for j in range(16): s(f'v_sub_f32 v{P+j}, v{P+j}, v{m0}')
    for j in range(16): s(f'v_exp_f32 v{P+j}, v{P+j}')
    s(f'v_add_f32 v{n0}, v{P}, v{P+1}\nv_add_f32 v{n1}, v{P+2}, v{P+3}\nv_add_f32 v{m0}, v{P+4}, v{P+5}\nv_add_f32 v{m1}, v{P+6}, v{P+7}')
    for j in range(8, 16): s(f'v_add_f32 v{t[j%4]}, v{t[j%4]}, v{P+j}')
    s(f'v_add_f32 v{m0}, v{m0}, v{m1}\nv_add_f32 v{n0}, v{n0}, v{n1}\nv_add_f32 v{n0}, v{n0}, v{m0}')
    s(f'v_rcp_f32 v{n0}, v{n0}')
    s(f'v_mul_f32 v{n0}, v{n0}, v{rs}')
    for j in range(0, 16, 2):
        s(f'v_mul_f32 v{P+j}, v{P+j}, v{n0}\nv_mul_f32 v{P+j+1}, v{P+j+1}, v{n0}')
        if j >= 2: s(f'v_cvt_pk_bf16_f32 v{out+j//2-1}, v{P+j-2}, v{P+j-1}')
    s(f'v_cvt_pk_bf16_f32 v{out+7}, v{P+14}, v{P+15}')

def softmax_q(s, P, out, t):
    m0, m1, n0, n1 = t
    s(f'v_max3_f32 v{m0}, v{P}, v{P+1}, v{P+2}\nv_max3_f32 v{m1}, v{P+8}, v{P+9}, v{P+10}')
    s(f'v_max3_f32 v{n0}, v{P+3}, v{P+4}, v{P+5}\nv_max3_f32 v{n1}, v{P+11}, v{P+12}, v{P+13}')
    s(f'v_max3_f32 v{m0}, v{m0}, v{P+6}, v{P+7}\nv_max3_f32 v{m1}, v{m1}, v{P+14}, v{P+15}')
    s(f'v_max_f32 v{m0}, v{m0}, v{n0}\nv_max_f32 v{m1}, v{m1}, v{n1}')
    s(f'v_permlane32_swap_b32 v{m0}, v{m1}')
    s(f'v_max_f32 v{m0}, v{m0}, v{m1}')
    s(f'v_mov_b32 v{m1}, v{m0}')
    s(f'v_permlane32_swap_b32 v{m0}, v{m1}')
    for j in range(16): s(f'v_sub_f32 v{P+j}, v{P+j}, v{m0 if j < 8 else m1}')
    for j in range(16):
        s(f'v_exp_f32 v{P+j}, v{P+j}')
        if j >= 3 and j % 2 == 1: s(f'v_cvt_pk_bf16_f32 v{out+(j-3)//2}, v{P+j-3}, v{P+j-2}')
    s(f'v_cvt_pk_bf16_f32 v{out+7}, v{P+14}, v{P+15}')

def w1touch(s, X, part):
    s(f's_and_b32 s6, s{sRB}, 7\ns_lshl_b32 s6, s6, 6\nv_add_u32 v8, s6, v1')
    s('v_mul_u32_u24 v9, 0xe00, v8')
    d = 253 if part != 2 else 243
    if X:
        s('v_mul_u32_u24 v8, 0xc00, v8')
        s(f's_lshl_b32 s6, s{sJ}, 7\n' + (f's_add_u32 s7, s{sW4}, 1\ns_cmp_eq_u32 s{sW4}, 2\ns_cselect_b32 s7, 0, s7' if cfg.kvq else f's_xor_b32 s7, s{sW4}, 1\ns_cmp_eq_u32 s{sW4}, 2\ns_cselect_b32 s7, 2, s7') + f'\ns_lshl_b32 s7, s7, 10\ns_add_u32 s6, s6, s7\ns_lshl_b32 s7, s5, 1')
        s(f's_cmp_eq_u32 s{sW4}, 3\ns_cselect_b32 s6, 0x200000, s6\ns_cselect_b32 s7, s7, 0x200000')
        if part == 1: s(f's_cmp_ge_u32 s{sW4}, 2\ns_cselect_b32 s6, 0x200000, s6\ns_mov_b32 s7, 0x200000')
        if part == 2: s(f's_cmp_lt_u32 s{sW4}, 2\ns_cselect_b32 s6, 0x200000, s6')
        s(f'buffer_load_dword v{d}, v8, {srd(SQKV)}, s6 offen')
        if part != 1: s(f'buffer_load_dword v{d+1}, v9, {srd(SG)}, s7 offen\nbuffer_load_dword v{d+2}, v9, {srd(SU)}, s7 offen')
    else:
        s(f's_cmp_eq_u32 s{sW4}, 1\ns_cselect_b32 s6, s4, s3\ns_cmp_eq_u32 s{sW4}, 2\ns_cselect_b32 s6, s5, s6\ns_lshl_b32 s6, s6, 1')
        s(f's_cmp_eq_u32 s{sW4}, 3\ns_cselect_b32 s6, 0x200000, s6')
        if part == 1: s(f's_cmp_ge_u32 s{sW4}, 1\ns_cselect_b32 s6, 0x200000, s6')
        if part == 2: s(f's_cmp_lt_u32 s{sW4}, 1\ns_cselect_b32 s6, 0x200000, s6')
        s(f'buffer_load_dword v{d}, v9, {srd(SG)}, s6 offen\nbuffer_load_dword v{d+1}, v9, {srd(SU)}, s6 offen')

def malltouch(s):
    s(f's_mul_i32 s6, s2, 6144\ns_mul_i32 s7, s2, 7168\nv_lshlrev_b32 v8, 7, v1\nv_min_u32 v9, 6016, v8\nv_min_u32 v8, 7040, v8')
    s(f's_cmp_eq_u32 s{sW}, 4\ns_cselect_b32 s6, s6, 0x200000\nbuffer_load_dword v236, v9, {srd(SQKV)}, s6 offen')
    s(f's_cmp_eq_u32 s{sW}, 5\ns_cselect_b32 s6, s7, 0x200000\nbuffer_load_dword v237, v8, {srd(SG)}, s6 offen')
    s(f's_cmp_eq_u32 s{sW}, 6\ns_cselect_b32 s6, s7, 0x200000\nbuffer_load_dword v242, v8, {srd(SU)}, s6 offen')

def w2touch(s):
    if cfg.w2t == 1:
        s(f's_mul_i32 s6, s2, 7168\ns_lshl_b32 s7, s2, 11\ns_cmp_eq_u32 s{sW}, 7\ns_cselect_b32 s6, s6, 0x200000\ns_cselect_b32 s7, s7, 0x200000')
        s('v_lshlrev_b32 v8, 7, v1\nv_min_u32 v9, 1920, v8\nv_min_u32 v8, 7040, v8')
        s(f'buffer_load_dword v246, v8, {srd(SD)}, s6 offen\nbuffer_load_dword v247, v9, {srd(SO)}, s7 offen')
    if cfg.w2t == 2:
        s(f's_lshr_b32 s6, s2, 3\ns_lshl_b32 s6, s6, 2\ns_add_u32 s75, s6, s{sW4}')
        if cfg.mx512:
            s(f'v_lshrrev_b32 v8, 2, v1\nv_and_b32 v9, 3, v1\nv_lshlrev_b32 v9, 7, v9\nv_lshl_add_u32 v8, v8, 10, v9\ns_and_b32 s7, s{sNB}, 4\ns_lshl_b32 s7, s7, 7\nv_add_u32 v8, s7, v8')
            s(f's_mul_i32 s6, s75, {14*1024}\nbuffer_load_dword v246, v8, {srd(SD)}, s6 offen')
            s(f's_lshr_b32 s6, s75, 2\ns_lshl_b32 s6, s6, 1\ns_and_b32 s7, s{sW}, 1\ns_add_u32 s6, s6, s7\ns_lshl_b32 s6, s6, 13\ns_cmp_ge_u32 s{sW}, 6\ns_cselect_b32 s6, s6, 0x200000')
            s(f'v_min_u32 v9, {8*1024-128}, v8\nbuffer_load_dword v247, v9, {srd(SO)}, s6 offen')

def l2touch():
    r = []
    p = S(); p(f's_lshr_b32 s6, s2, 3\ns_lshl_b32 s6, s6, 2\ns_add_u32 s55, s6, s{sW4}\nv_lshlrev_b32 v19, 7, v1\ns_mul_i32 s6, s55, 14336')
    p(f'buffer_load_dword v244, v19, {srd(SD)}, s6 offen'); r.append(p.l)
    p = S(); p(f'v_min_u32 v19, 6016, v19\ns_mul_i32 s6, s55, 14336\ns_add_u32 s6, s6, 8192\nbuffer_load_dword v245, v19, {srd(SD)}, s6 offen'); r.append(p.l)
    p = S(); p(f'v_lshlrev_b32 v19, 7, v1\ns_lshr_b32 s6, s55, 2\ns_lshl_b32 s6, s6, 1\ns_and_b32 s7, s{sW}, 1\ns_add_u32 s6, s6, s7\ns_lshl_b32 s6, s6, 13\ns_cmp_ge_u32 s{sW}, 6\ns_cselect_b32 s6, s6, 0x200000')
    p(f'buffer_load_dword v243, v19, {srd(SO)}, s6 offen'); r.append(p.l)
    return r

def helper_head(s, X, wop, isq):
    global XTOK
    if cfg.hx and cfg.hx != 2: XTOK = emit(s, xpieces()[16:])
    if cfg.mt: malltouch(s)
    if cfg.tp in (1, 2, 4): w1touch(s, X, 0 if cfg.tp == 1 else 1)
    if cfg.hx == 2: XTOK = emit(s, xpieces()[16:])
    if X:
        s(f's_cmp_lg_u32 s2, 0\ns_cbranch_scc1 L_np\ns_cmp_lg_u32 s{sW}, 4\ns_cbranch_scc1 L_np')
        s('s_memrealtime s[76:77]\ns_waitcnt lgkmcnt(0)\ns_or_b32 s76, s76, 1')
        s('v_mov_b32 v4, s76\nv_mov_b32 v6, 0\ns_mov_b64 exec, 1')
        s(f'buffer_store_dword v4, v6, {srd(SDBG)}, 0 offen sc1', tag='raw')
        s('s_mov_b64 exec, -1')
        s('L_np:')
    s(f's_setprio {cfg.prioH}')
    if not X: s(f'v_lshrrev_b32 v4, 2, v1\nv_lshrrev_b32 v5, 4, v1\nv_and_b32 v5, 2, v5\nv_xor_b32 v5, v1, v5\nv_and_b32 v5, 3, v5\nv_lshlrev_b32 v5, 4, v5\nv_mul_u32_u24 v{vOM}, 0xe00, v4\nv_add_u32 v{vOM}, v{vOM}, v5')
    line_voff(s, 4, 5)
    s(f'v_mul_u32_u24 v{vOQ}, 0xc00, v4\nv_add_u32 v{vOQ}, v{vOQ}, v5')
    s(f'v_mul_u32_u24 v{vOG}, 0xe00, v4\nv_add_u32 v{vOG}, v{vOG}, v5')
    s(f'v_lshl_add_u32 v{vW2}, v4, 10, v5')
    s(f'v_xor_b32 v5, 32, v5\nv_mul_u32_u24 v{vOQ2}, 0xc00, v4\nv_add_u32 v{vOQ2}, v{vOQ2}, v5\nv_mul_u32_u24 v{vOG2}, 0xe00, v4\nv_add_u32 v{vOG2}, v{vOG2}, v5')
    s(f's_lshl_b32 s{sL4}, s{sW4}, 12\ns_lshl_b32 s{sL2}, s{sW4}, 13')
    s(f's_mul_i32 s6, s{sW4}, {32*3584}\ns_lshl_b32 s7, s5, 1\ns_add_u32 s{sC0}, s6, s7')
    if X: s(f's_mul_i32 s6, s{sW4}, {64*3072}\ns_lshl_b32 s7, s{sJ}, 7\ns_add_u32 s{sM0}, s6, s7')
    else:
        s(f's_lshl_b32 s7, s3, 1\ns_add_u32 s{sA0}, s6, s7')
        s(f's_mul_i32 s6, s{sW4}, {64*3584}\ns_lshl_b32 s7, s4, 1\ns_add_u32 s{sM0}, s6, s7')
    s(f's_lshl_b32 s{sLBc}, s{sW4}, 11\ns_lshl_b32 s6, s{sW4}, 14\ns_lshl_b32 s7, s{sNB}, 7\ns_add_u32 s{sWBc}, s6, s7')
    s(f's_lshl_b32 s{sHEAD}, s{sJ}, 2\ns_add_u32 s{sHEAD}, s{sHEAD}, s{sW4}')
    s(f's_lshl_b32 s{sKV}, s{sHEAD}, 12\ns_add_u32 s{sKV}, s{sKV}, {KV_OFF}')
    s(f's_cmp_lt_u32 s{sW}, 6\ns_cselect_b32 s{SO}, s{SD}, s{SO}\ns_cselect_b32 s{SO+1}, s{SD+1}, s{SO+1}\ns_cselect_b32 s{SO+2}, s{SD+2}, s{SO+2}')
    s('v_lshrrev_b32 v4, 5, v1\nv_lshlrev_b32 v7, 8, v4')
    if isq: s('v_and_b32 v6, 15, v1\nv_lshl_add_u32 v36, v6, 1, v7')
    else: s('v_bfe_u32 v6, v1, 3, 2\nv_and_b32 v36, 3, v1\nv_lshl_add_u32 v6, v6, 2, v36\nv_lshl_add_u32 v36, v6, 1, v7')
    s(f's_lshl_b32 s{sT2}, s{sHEAD}, 9')
    return

def helper_start(s, X, wop, isq):
    stamp(s, 0)
    if not cfg.hx: s('s_barrier')
    if cfg.hx and cfg.hb1 == 2: s('s_barrier', needs=[XTOK])
    tok = {0: emit(s, dma_stage(0, X))}
    if cfg.hx and cfg.hb1 == 1: s('s_barrier', needs=[XTOK])
    if cfg.tp in (0, 2): w1touch(s, X, 2 if cfg.tp == 2 else 0)
    if cfg.w2at == 0: w2touch(s)
    if cfg.hx and not cfg.hb1: s('s_barrier', needs=[XTOK])
    stamp(s, 1)
    s('s_barrier')
    s(f'v_mov_b32 v17, 0\nbuffer_load_dword v16, v17, {srd(SDBG)}, 0 offen sc1')
    if cfg.pro == 0: tok[1] = emit(s, dma_stage(1, X))
    s('s_barrier', needs=[tok[0]])
    if cfg.pro != 0: tok[1] = emit(s, dma_stage(1, X))
    tok[2] = emit(s, dma_stage(2, X))
    for i in range(8):
        s(f'buffer_load_ushort v{200+i}, v36, {srd(SPHI)}, s{sT2} offen offset:{i*32}')
    if cfg.tp == 4: w1touch(s, X, 2)
    if cfg.w2at == 1: w2touch(s)
    return tok

def nonce_and_wphi(w, lab, wop, bit):
    w(f'v_cmp_eq_u32 vcc, 0, v16\ns_cbranch_vccz {lab}_x')
    w('s_mov_b32 s75, 0')
    w(f'{lab}:')
    w(f'buffer_load_dword v16, v17, {srd(SDBG)}, 0 offen sc1\ns_waitcnt vmcnt(0)', tag='raw')
    w(f's_add_u32 s75, s75, 1\ns_cmp_gt_u32 s75, {SPIN}\ns_cbranch_scc1 {lab}_x')
    w(f'v_cmp_eq_u32 vcc, 0, v16\ns_cbranch_vccnz {lab}')
    w(f'{lab}_x:')
    w(f'v_readfirstlane_b32 s{sNON}, v16\nv_readfirstlane_b32 s{sNON+1}, v16')
    w(f'v_bfe_u32 v6, v1, {bit}, 1\nv_mul_u32_u24 v6, 0x8000, v6\nv_lshl_or_b32 v6, v6, 16, v6')
    for r in range(4):
        w(f'v_lshl_or_b32 v{wop+r}, v{200+2*r+1}, 16, v{200+2*r}\nv_xor_b32 v{wop+r}, v6, v{wop+r}')

def cost(i):
    if i.op in ('v_exp_f32', 'v_rcp_f32') or i.op.startswith('v_permlane'): return 11
    if i.kind == 'mfma': return 36
    if i.kind in ('vm', 'vmst'): return 14
    if i.op in ('v_max3_f32', 'v_fma_f32', 'v_lshl_add_u32', 'v_lshl_or_b32'): return 8.3
    return 5.6

def pack(s, X, work, bars, tok, extra, need10, quiet, frac, late_hi, w1at=None, first=(), tneed={}, pinned={}):
    flat = [(m, w.l) for m, w in work]
    qi = 0; qpos = 0; inloop = False; where = {}
    pieces = []; lgfree = False
    for bi, st in enumerate(bars):
        whole = st == int(st)
        if not lgfree: s('s_waitcnt lgkmcnt(0)')
        lgfree = False
        nd = [tok[t] for t in tneed.get(st, [st] if whole and st <= 9 else [])] + (need10 if st == 10 else [])
        dbg = cfg.hdbg and whole and cfg.hb + 1 <= st <= cfg.hb + 6
        if dbg: stamp(s, 2*(st-cfg.hb-1), True); s('s_nop 0', needs=nd)
        s('s_barrier', needs=nd)
        if dbg: stamp(s, 2*(st-cfg.hb-1)+1, True)
        for tgt in range(3, 10):
            if (w1at or {}).get(tgt, tgt - 2) == st:
                p = dma_stage(tgt, X); tok[tgt] = p[-1][-1]
                if st in first: emit(s, p)
                else: pieces += p
        pieces += extra.get(st, [])
        last = bi + 1 == len(bars)
        BUD = 1e9 if last else cfg.bud * frac.get(st, 1.0)
        hold = []
        if quiet.get(st) == 'all': hold = pieces; pieces = []
        q = quiet.get(st, 0) if quiet.get(st) != 'all' else 0
        if st in pinned: s.l.extend(pinned[st].l)
        used = 0; inexec = False; since = 99 if not inloop and not (qi < len(flat) and qpos == 0 and flat[qi][1][0].op in ('s_waitcnt', 's_memrealtime', 's_memtime')) else 0
        inloop = False
        while qi < len(flat) and flat[qi][0] <= st:
            ins = flat[qi][1][qpos]
            free = not inexec and not inloop and ins.op not in ('s_addc_u32', 's_subb_u32', 's_cselect_b32') and not ins.op.startswith('s_cbranch') and ins.kind != 'vmlds' and ('s', sT) not in ins.wr
            if pieces and free and ((since >= 6 and used >= q) or ins.tag == 'flush'):
                s.l.extend(pieces.pop(0)); used += 20; since = 0
                continue
            if used + 20*len(pieces) >= BUD and free and ins.tag != 'glue': break
            s.l.append(ins); used += cost(ins); since += 1
            where[id(ins)] = st
            if ('s', 'exec') in ins.wr: inexec = '-1' not in ins.text
            if ins.op.startswith('s_cbranch') and ins.text.split()[1].endswith('_x'): inloop = True
            if ins.kind == 'label' and ins.op.endswith('_x:'): inloop = False
            if ins.op.startswith('s_load') or ins.op.startswith('s_cmp') or ins.op in ('s_xor_b64', 's_or_b64'): inloop = True
            qpos += 1
            if qpos == len(flat[qi][1]): qi += 1; qpos = 0
        for p in pieces: s.l.extend(p)
        pieces = hold
        if whole and qi < len(flat) and qpos == 0 and flat[qi][0] == st + 0.5 and (st + 0.5) not in bars:
            s.l.extend(flat[qi][1]); qi += 1; lgfree = True
    assert qi == len(flat)
    l = []; hi = False
    bidx = [k for k, i in enumerate(s.l) if i.op == 's_barrier']
    for k, i in enumerate(s.l):
        want = i.kind == 'mfma' or (k > bidx[late_hi] and i.kind in ('vm', 'vmst'))
        if i.kind in ('mfma', 'valu', 'vm', 'vmst', 'vmlds', 'ds') and want != hi and i.tag != 'raw':
            l.append(I(f's_setprio {3 if want else cfg.prioH}')); hi = want
        l.append(i)
    s.l = l
    return where

def helperX():
    s = S(); X = True
    WK, RS, KF, KVA = 8, 20, 24, 40
    PT = 136; ID = 224; TT = 200; FR = 136
    vB1, vB2, vRD, vKVA, vL16h, vST = 232, 233, 234, 235, 238, 239
    helper_head(s, X, WK, False)
    s(f'v_lshlrev_b32 v{vL16h}, 4, v1\ns_lshl_b32 s6, s{sW4}, 12\ns_add_u32 s6, s6, {KB}\nv_lshlrev_b32 v5, 3, v1\nv_add_u32 v{vRD}, s6, v5')
    s('v_bfe_u32 v5, v1, 2, 2\nv_lshl_add_u32 v5, v4, 2, v5')
    s('v_and_b32 v7, 3, v1\nv_xor_b32 v7, v7, v4\nv_lshlrev_b32 v7, 3, v7\nv_lshl_add_u32 v7, v5, 5, v7\nv_add_u32 v7, s6, v7')
    s(f'v_lshlrev_b32 v6, 3, v5\nv_add_u32 v6, {STDB}, v6')
    s(f'v_bfe_u32 v5, v1, 4, 1\nv_cmp_eq_u32 vcc, 1, v5\nv_cndmask_b32 v{vB1}, v7, v6, vcc')
    s(f'v_xor_b32 v7, 16, v7\nv_add_u32 v7, 256, v7\nv_add_u32 v6, 64, v6\nv_cndmask_b32 v{vB2}, v7, v6, vcc')
    s(f'v_mov_b32 v6, 512\nv_mov_b32 v7, 128\nv_cndmask_b32 v{vST}, v6, v7, vcc')
    s(f'v_and_b32 v5, 31, v1\nv_min_u32 v5, 16, v5\nv_lshl_add_u32 v5, v4, 5, v5\nv_lshlrev_b32 v{vKVA}, 2, v5')
    s('v_and_b32 v5, 1, v1\nv_lshlrev_b32 v5, 4, v5\nv_mov_b32 v6, 0x3f80\nv_lshlrev_b32 v6, v5, v6')
    s('v_bfe_u32 v5, v1, 4, 1\nv_cmp_eq_u32 vcc, v5, v4\nv_cndmask_b32 v6, 0, v6, vcc\nv_bfe_u32 v5, v1, 1, 3')
    for r in range(8): s(f'v_cmp_eq_u32 vcc, {r}, v5\nv_cndmask_b32 v{ID+r}, 0, v6, vcc')
    s(f's_lshl_b32 s{sLBx}, s{sW4}, 12\ns_lshl_b32 s6, s{sW4}, 1\ns_and_b32 s7, s{sW4}, 2\ns_lshl_b32 s7, s7, 2\ns_add_u32 s6, s6, s7\ns_lshl_b32 s6, s6, 14\ns_lshl_b32 s7, s{sNB}, 7\ns_add_u32 s{sWBx}, s6, s7')
    tok = helper_start(s, X, WK, False)
    work = []
    def seg(minb):
        w = S(); work.append((minb, w)); return w
    w = seg(1)
    w(f'v_and_b32 v5, 31, v1\nv_lshlrev_b32 v5, 2, v5\nv_add_u32 v5, {RSB}, v5')
    for rt in range(4): w(f'ds_read_b32 v{RS+rt}, v5 offset:{rt*128}')
    nonce_and_wphi(w, 'L_nonX', WK, 2)
    w(f's_lshl_b32 s6, s{sHEAD}, 7\ns_add_u32 s6, s6, {FKV+64}\nv_mov_b32 v17, s6')
    sbase(w, 6)
    w(f's_lshl_b32 s7, s{sRB}, 2\ns_sub_u32 s6, s6, 64\ns_add_u32 s6, s6, s7\nv_mov_b32 v18, s6')
    w(f's_cmp_lg_u32 s{sRB}, 0\ns_cbranch_scc1 L_zero_x')
    for r in range(4): w(f'v_mov_b32 v{FR+r}, 0')
    for q in range(4): w(f'buffer_store_dwordx4 {vr(FR,4)}, v{vL16h}, {srd(SWS)}, s{sKV} offen offset:{q*1024} sc1', tag='raw')
    w('s_waitcnt vmcnt(0)', tag='raw')
    w('s_mov_b64 exec, 1')
    w(f'buffer_store_dword v16, v17, {srd(SWS)}, 0 offen sc1', tag='raw')
    w('s_mov_b64 exec, -1')
    w('L_zero_x:')
    w = seg(2.5)
    for rt in range(4):
        w(f'ds_read_b64 {vr(KF+4*rt,2)}, v{vRD} offset:{rt*1024}\nds_read_b64 {vr(KF+4*rt+2,2)}, v{vRD} offset:{rt*1024+512}')
    for rt in range(4): w(f'{MF} {vr(PT+16*rt,16)}, {vr(WK,4)}, {vr(KF+4*rt,4)}, 0')
    T4 = (4, 5, 6, 7)
    PH = [56, 64, 24, 32]; TP = [216, 56, 64, 24]
    tr_mm = lambda rt: [[I(f'{MF} {vr(TT,16)}, {vr(PH[rt],4)}, {vr(ID,4)}, 0')], [I(f'{MF} {vr(TT,16)}, {vr(PH[rt]+4,4)}, {vr(ID+4,4)}, {vr(TT,16)}')]]
    tr_cv = lambda rt: [I(f'v_cvt_pk_bf16_f32 v{TP[rt]+j}, v{TT+2*j}, v{TT+2*j+1}') for j in range(8)]
    softmax_k(w, PT, RS, PH[0], T4)
    for rt in range(1, 4):
        m = S(); softmax_k(m, PT + 16*rt, RS + rt, PH[rt], T4)
        merge(w, m, tr_mm(rt - 1) + [[], tr_cv(rt - 1)], 8)
    for x in tr_mm(3): w.l.extend(x)
    sload(w, 44, 1, False); scheck(w, 'L_pollz', 44, 1, False)
    w.l.extend(tr_cv(3))
    w = seg(4.5 if cfg.kvq else 6.5)
    for rt in range(4):
        for ks in range(2):
            f = FR + 8*rt + 4*ks
            lastv = w(f'ds_read_b64_tr_b16 {vr(f,2)}, v{vB1}\nds_read_b64_tr_b16 {vr(f+2,2)}, v{vB2}')
            if rt < 3 or ks < 1: w(f'v_add_u32 v{vB1}, v{vB1}, v{vST}\nv_add_u32 v{vB2}, v{vB2}, v{vST}')
        if rt == 2: w('s_waitcnt lgkmcnt(8)')
    for rt in range(4):
        for ks in range(2):
            w(f'{MF} {vr(KVA,16)}, {vr(TP[rt]+4*ks,4)}, {vr(FR+8*rt+4*ks,4)}, ' + ('0' if rt == 0 and ks == 0 else vr(KVA,16)))
    for i in w.l: i.tag = i.tag or 'glue'
    if cfg.kvq:
        for p in cwpiecesx(0):
            p[-1].needs = [lastv]; w.l.extend(p); tok['cw0'] = p[-1]
        w = seg(7.3)
    elif cfg.skip != 1: w = seg(7)
    if cfg.c0f:
        for p in cwpiecesx(0) + cwpiecesx(3, (1,)): w.l.extend(p); tok['cw0'] = p[-1]
    w('s_mov_b32 s76, 0x1ffff\ns_mov_b32 s77, 0x1ffff')
    w('s_mov_b64 exec, s[76:77]')
    for r in range(16): at = w(f'buffer_atomic_add_f32 v{KVA+r}, v{vKVA}, {srd(SWS)}, s{sKV} offen offset:{r*256}')
    w('s_mov_b64 exec, -1')
    if cfg.xcw and not cfg.c0f and not cfg.kvq:
        for p in cwpiecesx(0): w.l.extend(p); tok['cw0'] = p[-1]
    for i in w.l: i.tag = i.tag or 'glue'
    stamp(w, 2)
    w = seg(7.3 if cfg.kvq else cfg.pat if cfg.skip == 2 else 8)
    post(w, 16, 18, '0', [at])
    for i in w.l: i.tag = 'glue'
    stamp(w, 3)
    bars = [1, 2, 2.5, 3, 4, 5, 6, 6.5] + [[7, 8], [8], [7]][cfg.skip] + [9, 10]
    c9 = cwpieces2()
    extra = {1: cwpieces(1), 3: cwpieces(2), 8: cwpieces(0) + cwpieces(3), 9: c9}
    if cfg.xcw: extra = {1: cwpiecesx(1), 3: cwpiecesx(2), 5: cwpiecesx(3, (0,)), 8: cwpiecesx(3, (1,)), 9: c9}
    tok['cw'] = extra[8][-1][-1]
    if cfg.kvq:
        extra[7] = extra.pop(8)
        where = pack(s, X, work, [1, 2, 2.5, 3, 4, 4.5, 5, 6, 7, 7.3, 9, 10], tok, extra, [c9[-1][-1]], {2: 'all', 4: 'all'},
                     {2.5: cfg.f25, 3: cfg.fk, 4: 0.55*cfg.fk, 4.5: 0.45*cfg.fk, 5: cfg.fk, 6: cfg.fk, 7: 0.3, 7.3: 2}, -3, None, (7,), {7.3: [8, 'cw', 'cw0'] if cfg.p8 else [8], 9: [9, 'cw', 'cw0']})
    elif cfg.skip == 2:
        extra[7] = extra.pop(8)
        if cfg.c0f: del extra[7]; tok['cw'] = tok['cw0']
        where = pack(s, X, work, bars, tok, extra, [c9[-1][-1]], {2: 'all', 4: cfg.quiet, 7: cfg.q7, 9: cfg.q9},
                     {2.5: cfg.f25, 3: cfg.fk, 4: cfg.fk, 5: cfg.fk, 6: 0.45, 6.5: 0.4, 7: 2}, -3, None, (6, 7) if cfg.f8 else (6,), {7: [7, 8], 9: [9, 'cw', 'cw0']})
    elif cfg.skip:
        where = pack(s, X, work, bars, tok, extra, [c9[-1][-1]], {2: 'all', 4: cfg.quiet, 8: 30},
                     {2.5: cfg.f25, 3: cfg.fk, 4: cfg.fk, 5: cfg.fk, 6: 0.45}, -4, {8: 6.5, 9: 8, 4: cfg.s4}, (6.5, 8) if cfg.f8 else (6.5,), {6.5: [7], 9: [9, 'cw', 'cw0']})
    else:
        where = pack(s, X, work, bars, tok, extra, [c9[-1][-1]], {2: 'all', 4: cfg.quiet, 7: 100, 8: 30},
                     {2.5: cfg.f25, 3: cfg.fk, 4: cfg.fk, 5: cfg.fk, 6: 0.45, 6.5: 0.4}, -4, None, (6,), {9: [9, 'cw', 'cw0']})
    assert where[id(lastv)] < 7
    return s

def own_first(s, lab):
    pass

def helperY():
    s = S(); X = False
    WQ, QF, KVA = 8, 24, 40
    PT = 136; vKVA, vL16h, vSA = 235, 238, 240
    helper_head(s, X, WQ, True)
    s(f'v_lshlrev_b32 v{vL16h}, 4, v1')
    s(f'v_and_b32 v5, 31, v1\nv_min_u32 v5, 16, v5\nv_lshl_add_u32 v5, v4, 5, v5\nv_lshlrev_b32 v{vKVA}, 2, v5')
    s(f's_add_u32 s79, s{sLBc}, 65536')
    b_traddr(s, vSA, 79, 11)
    s(f'v_xor_b32 v{vSA+1}, 64, v{vSA}')
    tok = helper_start(s, X, WQ, True)
    work = []
    def seg(minb):
        w = S(); work.append((minb, w)); return w
    w = seg(3)
    nonce_and_wphi(w, 'L_nonY', WQ, 4)
    w(f's_lshl_b32 s6, s{sRB}, 3\ns_add_u32 s6, s6, s{sJ}\ns_lshl_b32 s{sQ}, s6, 14\ns_lshl_b32 s7, s{sW4}, 12\ns_add_u32 s{sQ}, s{sQ}, s7\ns_add_u32 s{sQ}, s{sQ}, {Q_OFF}')
    w(f's_lshl_b32 s6, s6, 7\ns_add_u32 s6, s6, {FQ}')
    sbase(w, 6)
    w(f's_lshl_b32 s6, s{sRB}, 5\ns_add_u32 s6, s6, s{sHEAD}\ns_lshl_b32 s6, s6, 2\ns_add_u32 s6, s6, {FO}\nv_mov_b32 v18, s6')
    w = seg(cfg.qat - 0.5)
    sload(w, 44, 4, False)
    w = seg(cfg.qat)
    stamp(w, 2)
    scheck(w, 'L_pollq', 44, 4, False)
    stamp(w, 3)
    for rt in range(4): w(f'buffer_load_dwordx4 {vr(QF+4*rt,4)}, v{vL16h}, {srd(SWS)}, s{sQ} offen offset:{rt*1024} sc1')
    w(f's_lshl_b32 s6, s{sHEAD}, 7\ns_add_u32 s6, s6, {FKV}')
    sbase(w, 6)
    w('s_mov_b32 s73, 0', tag='flush')
    for rt in range(4): w(f'{MF} {vr(PT+16*rt,16)}, {vr(WQ,4)}, {vr(QF+4*rt,4)}, 0')
    T4 = (4, 5, 6, 7)
    PQ = [56, 64, 200, 208]
    def kvloads(w):
        for r in range(16): w(f'buffer_load_dword v{KVA+r}, v{vKVA}, {srd(SWS)}, s{sKV} offen offset:{r*256} sc1', tag='raw')
    if cfg.kvq:
        for rt in range(4):
            if rt == cfg.kvr: sload(w, SP, 16, False)
            softmax_q(w, PT + 16*rt, PQ[rt], T4)
            if rt == cfg.kvr:
                stamp(w, 4); scheck(w, 'L_pollkv', SP, 16, False); kvloads(w); stamp(w, 5)
        w = seg(10)
    else:
        for rt in range(4): softmax_q(w, PT + 16*rt, PQ[rt], T4)
        w = seg(9.5)
        sload(w, SP, 16, False)
        w = seg(10)
        stamp(w, 4)
        scheck(w, 'L_pollkv', SP, 16, False)
        kvloads(w)
        stamp(w, 5)
    if cfg.yw == 2:
        emit(w, ownpieces(range(8, 16), sLB, O8)); w('s_waitcnt vmcnt(16) lgkmcnt(0)')
    else: w('s_waitcnt vmcnt(0) lgkmcnt(0)')
    w('v_and_b32 v4, 27, v1\nv_cmp_eq_u32 vcc, 17, v4\nv_mov_b32 v4, 0x3f803f80')
    for r in range(8): w(f'v_cvt_pk_bf16_f32 v{KVA+r}, v{KVA+2*r}, v{KVA+2*r+1}')
    for r in range(8): w(f'v_cndmask_b32 v{KVA+r}, v{KVA+r}, v4, vcc')
    OT = [136, 168, 24, 216]; ON = [152, 184, 48 - 0, 232]
    ON[2] = 0
    w(f'v_mov_b32 v3, v{vL16h}\nv_mov_b32 v248, v16\nv_mov_b32 v249, v18')
    ON = [152, 184, 8, 232]
    for rt in range(4):
        w(f'{MF} {vr(OT[rt],16)}, {vr(KVA,4)}, {vr(PQ[rt],4)}, 0')
        w(f'{MF} {vr(ON[rt],16)}, {vr(KVA+4,4)}, {vr(PQ[rt]+4,4)}, 0')
    w(f's_lshl_b32 s6, s{sRB}, 2\ns_mul_i32 s6, s6, 144\ns_add_u32 s6, s6, s{sHEAD}\ns_add_u32 s6, s6, 112\ns_lshl_b32 s79, s6, 10')
    w('v_mov_b32 v4, 0x358637bd')
    for rt in range(4):
        o = OT[rt]; n = ON[rt]
        w(f'v_rcp_f32 v{o+9}, v{o+9}\nv_rcp_f32 v{n+9}, v{n+9}')
        w(f'v_fma_f32 v{o+8}, v{o+8}, v{o+9}, v4\nv_fma_f32 v{o+8}, v{n+8}, v{n+9}, v{o+8}\nv_rcp_f32 v{o+8}, v{o+8}')
        w(f'v_mul_f32 v{o+9}, v{o+9}, v{o+8}\nv_mul_f32 v{n+9}, v{n+9}, v{o+8}')
        for j in range(8): w(f'v_mul_f32 v{o+j}, v{o+j}, v{o+9}')
        for j in range(8): w(f'v_fma_f32 v{o+j}, v{n+j}, v{n+9}, v{o+j}')
        for j in range(0, 8, 2): w(f'v_cvt_pk_bf16_f32 v{o+12+j//2}, v{o+j}, v{o+j+1}')
        ost = w(f'buffer_store_dwordx4 {vr(o+12,4)}, v3, {srd(SWS)}, s79 offen sc1')
        if rt < 3: w(f's_add_u32 s79, s79, {144*1024}')
    stamp(w, 6)
    post(w, 248, 249, '0', [ost])
    stamp(w, 7)
    c2 = cwpieces2()
    oa, ob = stg_offs([0, 1]), stg_offs([2, 3])
    ga, gb = ownpieces(range(4), sLBc, oa), ownpieces(range(4, 8), sLBc, ob)
    ra, rb_ = stg_reads(range(4), oa, vSA, ga[-1][-1]), stg_reads(range(4, 8), ob, vSA, gb[-1][-1])
    extra = {1: ga, 4: gb + cwpieces(0), 5: cwpieces(1), 6: cwpieces(2), 7: cwpieces(3), 9: c2}
    if cfg.l2t:
        t = l2touch(); extra[5] += t[:2]; extra[6] += t[2:]
    tok['cw'] = [p for p in extra[7]][-1][-1]
    if cfg.skipy:
        pack(s, X, work, [1, 2, 3, 4, 5, 6, 7, 9, 10], tok, extra, [c2[-1][-1]], {}, {7: cfg.f7 + 1, 9: cfg.f9}, -3, None, (6,), {7: [7, 8], 9: [9, 'cw']}, {3: ra, 6: rb_})
    else:
        extra[8] = extra.pop(9)
        pack(s, X, work, list(range(1, 11)), tok, extra, [c2[-1][-1]], {}, {7: cfg.f7, 8: 0.9, 9: cfg.f9}, -3, None, (), {8: [8, 'cw'] if cfg.p8 else [8], 9: [9, 'cw']}, {3: ra, 6: rb_})
    s('s_branch L_BHY')
    return s

BACC = [8, 24, 40, 56]; BW = 232; vBX = 248
def red_write(s, acc, t):
    s(f'v_and_b32 v4, 31, v1\nv_lshrrev_b32 v5, 5, v1\nv_and_b32 v6, 7, v1\nv_xor_b32 v6, v5, v6\nv_lshlrev_b32 v6, 4, v6\nv_lshl_add_u32 v6, v4, 8, v6\nv_add_u32 v{t}, s{sLB}, v6')
    for k in range(1, 4): s(f'v_xor_b32 v{t+k}, {k<<5}, v{t}')
    for nt in range(2):
        for st in range(2):
            for q in range(4):
                if q == 3 and nt == 1 and st == 1: s('s_waitcnt lgkmcnt(8)')
                s(f'ds_write_b128 v{t+q}, {vr(acc[2*nt+st]+4*q,4)} offset:{st*8192 + nt*128}')
    s('s_waitcnt vmcnt(0)')

def phaseB_body(kind):
    s = S(); lab = f'L_B{kind}'
    C = kind == 'C'; n = 20 if C else 16
    order = CORDER if C else list(range(16))
    if C:
        acc = [160, 176, 192, 208]; bw = 224; vl, v16, vd, vtr, vxo, wr, vtr2 = 240, 242, 243, 244, 245, 96, 246
        hreg = lambda i: 8*i if i < 12 else 8*(i - 12)
        if cfg.cpre:
            wr = 0; hreg = lambda i: 64 + 8*i if i < 12 else 8*(i - 12)
    else:
        acc = BACC; bw = BW; vl, v16, vd, vtr, vxo, wr, vtr2 = 1, 3, vW2, 6, 7, WRB, 5
        hreg = lambda i: 136 + 8*i if i < 12 else WRB + 8*(i - 12)
    hoff = [0]
    def hload(i):
        rel = order[i]
        if rel // 4 != hoff[0]:
            d = (rel // 4 - hoff[0]) * 4096; hoff[0] = rel // 4
            op = 's_add_u32' if d > 0 else 's_sub_u32'
            s(f'{op} s{sH0}, s{sH0}, {abs(d)}\n{op} s{sH1}, s{sH1}, {abs(d)}')
        for c in range(2):
            s(f'buffer_load_dwordx4 {vr(hreg(i)+4*c,4)}, v{v16}, {srd(SWS)}, s{sH0+c} offen offset:{(rel%4)*1024}' + (' sc1' if not cfg.nosc else ''))
    wt = {}; rt_ = {}
    def rd(i, f):
        va, o0 = ((vtr, vtr2), (i % 8)*2048) if i < 16 else ((241, 247), (i - 16)*2048)
        for c in range(2):
            s(f'ds_read_b64_tr_b16 {vr(f+4*c,2)}, v{va[c]} offset:{o0}', needs=[wt[i]] if i in wt else [])
            rt_[i] = s(f'ds_read_b64_tr_b16 {vr(f+4*c+2,2)}, v{va[c]} offset:{o0 + B2}')
    def wdma(i):
        if cfg.now: return
        for p in ownpieces([i], sLB, [(i % 8)*2048], vd, SD if C else SWH, order):
            if i - 8 in rt_: p[-1].needs = [rt_[i-8]]
            s.l.extend(p); wt[i] = p[-1]
    def preread():
        for i in range(8):
            rd(i, wr + 8*i)
            if i % 2 == 1 and i >= 3: s('s_waitcnt lgkmcnt(8)')
    def step(i):
        if 8 <= i + 1 < n: rd(i + 1, bw + 8*((i + 1) % 2))
        f = wr + 8*i if i < 8 else bw + 8*(i % 2)
        for nt in range(2):
            for st in range(2):
                a = acc[2*nt+st]
                if cfg.nomf: s(f'v_xor_b32 v{a}, v{f+4*nt}, v{hreg(i)+4*st}'); continue
                s(f'{MF} {vr(a,16)}, {vr(f+4*nt,4)}, {vr(hreg(i)+4*st,4)}, ' + ('0' if i == 0 else vr(a,16)))
        if cfg.cdbg and i in (0, 3, 7, 11, 15): stamp(s, (0, 3, 7, 11, 15).index(i))
    def xload(t):
        s(f'v_lshrrev_b32 v{t}, 3, v{vl}\nv_and_b32 v{vxo}, 7, v{vl}\nv_lshlrev_b32 v{vxo}, 4, v{vxo}\nv_lshl_add_u32 v{vxo}, v{t}, 10, v{vxo}')
        s(f'buffer_load_dwordx4 {vr(vBX,4)}, v{vxo}, {srd(SX)}, s{sXO} offen')
    if C:
        s('s_setprio 3')
        p0 = 4 if cfg.eh else 0
        if not cfg.eh: scheck(s, lab + '_e', SP, 2, True)
        for i in range(p0, p0 + cfg.pre): hload(i)
        s(f'v_lshrrev_b32 v{vl}, 4, v{v16}')
        b_traddr(s, 241, None, 247, vl)
        s(f'v_add_u32 v{vtr}, s{sLB}, v241\nv_xor_b32 v{vtr2}, 64, v{vtr}\ns_lshl_b32 s6, s{sW}, 13\nv_add_u32 v241, s6, v241\nv_xor_b32 v247, 64, v241')
        if not cfg.cpre:
            preread()
            line_voff(s, vxo, vd, vl)
            s(f'v_lshl_add_u32 v{vd}, v{vxo}, 10, v{vd}')
        s(f's_sub_u32 s4, s4, {FE-FH}\ns_subb_u32 s5, s5, 0')
        cf = cfg.cf if cfg.eh else 0
        if cf: s(f's_waitcnt vmcnt({4 + 2*cfg.pre})')
        for i in range(cf): step(i)
        s(f's_waitcnt vmcnt({2*cfg.pre})')
        post(s, vNON, vFA)
        if cfg.b11: s(f's_cmp_lg_u32 s{sTY}, 0\ns_cbranch_scc1 L_nb11\ns_barrier\nL_nb11:')
        stamp(s, 8)
        s('s_setprio 0')
        LA = max(cfg.la, p0 + cfg.pre)
        for i in range(p0 + cfg.pre, min(12, LA + cf)): hload(i)
        for i in range(cf, 8):
            step(i)
            if i + LA < 12: hload(i + LA)
            for k in (8 + cfg.nref + 2*(i - cf), 9 + cfg.nref + 2*(i - cf)):
                if k < 16: wdma(k)
            if i == cfg.sl: sload(s, SP, 2, True)
        scheck(s, lab + '_f', SP, 2, True)
        stamp(s, 9)
        nl = 12
        for k in range(cfg.lb): hload(nl); nl += 1
        for i in range(8, n):
            step(i)
            for k in range(2):
                if nl < 20: hload(nl); nl += 1
            if i == 12: xload(252)
        stamp(s, 10)
        s(f'v_mov_b32 v1, v{vl}\nv_mov_b32 v7, v{vxo}')
        red_write(s, acc, 72)
        s('s_branch L_red')
        return s
    s('s_setprio 0')
    s('v_lshlrev_b32 v3, 4, v1')
    b_traddr(s, 6, sLB, 7)
    s('v_xor_b32 v5, 64, v6')
    s(f's_lshr_b32 s6, s{sSB}, 1\ns_lshl_b32 s6, s6, 7\ns_and_b32 s78, s{sW}, 1\ns_lshl_b32 s7, s78, 6\ns_add_u32 s6, s6, s7\ns_add_u32 s6, s6, {FO}')
    s(f's_lshl_b32 s7, s{sSB}, 8\ns_lshl_b32 s78, s78, 4\ns_add_u32 s7, s7, s78\ns_add_u32 s7, s7, {FH}')
    s(f's_cmp_ge_u32 s{sW}, 6\ns_cselect_b32 s6, s6, s7')
    sbase(s, 6)
    def snap():
        s(f's_cmp_ge_u32 s{sW}, 6\ns_cbranch_scc1 {lab}_so')
        sload(s, SP, 4, True); s(f's_branch {lab}_sx\n{lab}_so:'); sload(s, SP, 16, False); s(f'{lab}_sx:')
    if kind == 'HX':
        if cfg.b11 == 1: s('s_barrier')
        for i in range(8):
            if cfg.b11 == 2 and i == 3: s('s_barrier')
            wdma(i)
        preread()
    early = kind == 'HX' and cfg.esn
    if early: s('s_waitcnt lgkmcnt(0)'); snap()
    npre = cfg.hw if kind == 'HY' else cfg.hwx
    if kind == 'HY' and cfg.yw: npre = -100
    for i in range(8, 8 + npre): wdma(i)
    xload(8)
    stamp(s, 8)
    if not early: s('s_waitcnt lgkmcnt(0)')
    def gate(k, first):
        s(f's_cmp_ge_u32 s{sW}, 6\ns_cbranch_scc1 {lab}_o{k}')
        if first: sload(s, SP, 4, True)
        scheck(s, f'{lab}_ph{k}', SP, 4, True, [[0, 2], [1, 3], [0, 1, 2, 3]][k])
        s(f's_branch {lab}_go{k}')
        s(f'{lab}_o{k}:')
        if first: sload(s, SP, 16, False)
        scheck(s, f'{lab}_po{k}', SP, 16, False, [[0, 1, 2, 3], [4, 5, 6, 7], list(range(8))][k])
        s(f'{lab}_go{k}:')
    gate(0 if cfg.g2 >= 0 else 2, not early)
    stamp(s, 9)
    nl = 0
    for k in range(cfg.lh): hload(nl); nl += 1
    for i in range(n):
        step(i)
        if i == cfg.g2: gate(1, False)
        for k in range(2):
            if nl < n and (nl < 12 or nl - 12 <= i) and (nl < 8 or i >= cfg.g2): hload(nl); nl += 1
        for k in (8 + npre + 2*i, 9 + npre + 2*i):
            if 8 <= k < 16: wdma(k)
    stamp(s, 10)
    red_write(s, acc, 72)
    if kind != 'HX': s('s_branch L_red')
    return s

def phaseB_tail():
    s = S()
    s(f'v_lshrrev_b32 v4, 3, v1\nv_and_b32 v5, 7, v1\nv_lshlrev_b32 v5, 1, v5\nv_xor_b32 v5, v4, v5\nv_lshlrev_b32 v5, 4, v5\nv_lshl_add_u32 v5, v4, 8, v5\ns_lshl_b32 s7, s{sW}, 11\nv_add_u32 v76, s7, v5')
    s('v_xor_b32 v77, 16, v76')
    s('v_add_u32 v78, 0x10000, v76\nv_add_u32 v79, 0x10000, v77\nv_add_u32 v80, 0x20000, v76\nv_add_u32 v81, 0x20000, v77')
    R = 84
    for j in range(4):
        s(f'v_lshlrev_b32 v{R+64+2*j}, 16, v{vBX+j}\nv_and_b32 v{R+65+2*j}, 0xffff0000, v{vBX+j}')
    s('s_waitcnt lgkmcnt(0)\ns_barrier')
    stamp(s, 11)
    for p in range(8):
        g, o = [(1, 0), (1, 16384), (1, 32768), (1, 49152), (0, 32768), (0, 49152), (2, 0), (2, 16384)][p]
        if p == 7: s('s_waitcnt lgkmcnt(8)')
        s(f'ds_read_b128 {vr(R+8*p,4)}, v{76+2*g} offset:{o}\nds_read_b128 {vr(R+8*p+4,4)}, v{77+2*g} offset:{o}')
    for p in range(1, 6):
        for j in range(8): s(f'v_add_f32 v{R+j}, v{R+j}, v{R+8*p+j}')
    for j in range(8): s(f'v_mul_f32 v{R+8+j}, 0xbfb8aa3b, v{R+j}')
    for j in range(8): s(f'v_exp_f32 v{R+8+j}, v{R+8+j}')
    for j in range(8): s(f'v_add_f32 v{R+48+j}, v{R+48+j}, v{R+56+j}')
    for j in range(8): s(f'v_add_f32 v{R+8+j}, 1.0, v{R+8+j}')
    for j in range(8): s(f'v_rcp_f32 v{R+8+j}, v{R+8+j}')
    for j in range(8): s(f'v_mul_f32 v{R+j}, v{R+j}, v{R+48+j}')
    for j in range(8): s(f'v_fma_f32 v{R+j}, v{R+j}, v{R+8+j}, v{R+64+j}')
    for j in range(4): s(f'v_cvt_pk_bf16_f32 v{R+24+j}, v{R+2*j}, v{R+2*j+1}')
    s(f'buffer_store_dwordx4 {vr(R+24,4)}, v7, {srd(SOUT)}, s{sXO} offen' + ['', ' sc1', ' nt', ' sc0 sc1', ' sc1 nt'][cfg.ost])
    return s

def fin():
    s = S()
    if cfg.stamps:
        s('s_waitcnt vmcnt(0)')
        stamp(s, 12)
        if cfg.pb >= 0:
            s(f's_cmp_lg_u32 s{sW}, {cfg.pw}\ns_cbranch_scc1 L_nospin\ns_cmp_lg_u32 s2, {cfg.pwg}\ns_cbranch_scc1 L_nospin')
            s(f's_sub_u32 s6, s{sTS+cfg.pb}, s{sTS+cfg.pa}\ns_lshl_b32 s6, s6, 3\ns_min_u32 s6, s6, 40000\ns_add_u32 s6, s6, s{sTS+12}')
            s('L_spin:\ns_memrealtime s[76:77]\ns_waitcnt lgkmcnt(0)\ns_cmp_lt_u32 s76, s6\ns_cbranch_scc1 L_spin\nL_nospin:')
        s(f's_lshl_b32 s6, s2, 3\ns_add_u32 s6, s6, s{sW}\ns_lshl_b32 s6, s6, 6\ns_add_u32 s6, s6, {TS_OFF}\nv_mov_b32 v8, s6')
        s('s_memrealtime s[76:77]\ns_waitcnt lgkmcnt(0)\ns_mov_b32 s99, s76')
        for q in range(4):
            for r in range(4): s(f'v_mov_b32 v{12+r}, s{sTS+4*q+r}')
            s('s_mov_b64 exec, 1')
            s(f'buffer_store_dwordx4 v[12:15], v8, {srd(SWS)}, 0 offen offset:{q*16}')
            s('s_mov_b64 exec, -1\ns_nop 2')
    return s

Cfg.w2t = 1; Cfg.w2at = 0; Cfg.ktry = 0; Cfg.xl = 1; Cfg.fk = 1.0; Cfg.skip = 2; Cfg.f7 = 0.55; Cfg.nomf = 0; Cfg.nosc = 0; Cfg.now = 0; Cfg.slp = 2; Cfg.la = 4; Cfg.lb = 2; Cfg.lh = 4; Cfg.ost = 4; Cfg.pwg = 72; Cfg.cdbg = 0; Cfg.sl = 3; Cfg.nbm = 1; Cfg.hw = 0; Cfg.hwx = 8; Cfg.mt = 0; Cfg.tmaj = 0; Cfg.yw = 0; Cfg.b11 = 0; Cfg.hb = 4; Cfg.f25 = 0.3; Cfg.s4 = 2; Cfg.g2 = 3; Cfg.l2t = 0; Cfg.tlbw = 0; Cfg.cpre = 1; Cfg.cpd = 4; Cfg.cps = 1; Cfg.esn = 0; Cfg.xcw = 1; Cfg.f8 = 1; Cfg.skipy = 0; Cfg.q7 = 0; Cfg.eh = 1; Cfg.ehn = 302; Cfg.cf = 3; Cfg.e4 = 22; Cfg.nref = 8; Cfg.c0f = 0; Cfg.p8 = 0; Cfg.rsx = 286; Cfg.rtx = 1; Cfg.rsy = 264; Cfg.rty = 2; Cfg.kvq = 1; Cfg.kvr = 2; Cfg.qp = 7; Cfg.pat = 7; Cfg.q9 = 0; Cfg.bm = 1; Cfg.hx = 1; Cfg.hb1 = 1; Cfg.hk0 = 4; Cfg.hk1 = 10; Cfg.hk2 = 16; Cfg.kvf = 8; Cfg.ystg = 1; Cfg.qat = 9; Cfg.f9 = 0.8

def build():
    out = []
    def put(lab, streams, name):
        l = []
        for x in streams: l += x.l
        if lab: out.append(lab + ':')
        out.extend('    ' + i.text if i.kind != 'label' else i.text for i in finalize(l, name))
    put(None, [prologue()], 'pro')
    if cfg.bonly:
        b = S()
        b('s_waitcnt vmcnt(0)')
        line_voff(b, 4, 5)
        b(f'v_lshl_add_u32 v252, v4, 10, v5\nv_lshlrev_b32 v242, 4, v1\nv_mov_b32 v248, 0\ns_lshl_b32 s6, s{sSB}, 8\ns_add_u32 s6, s6, {FE}')
        sbase(b, 6)
        b(f's_cmp_lt_u32 s{sW}, 6\ns_cselect_b32 s{SO}, s{SD}, s{SO}\ns_cselect_b32 s{SO+1}, s{SD+1}, s{SO+1}\ns_cselect_b32 s{SO+2}, s{SD+2}, s{SO+2}')
        b(f's_cmp_ge_u32 s{sW}, 4\ns_cbranch_scc1 L_bh')
        b(f'v_mov_b32 v252, {WS_BYTES}')
        b('s_barrier'); stamp(b, 7); b('s_branch L_BC\nL_bh:')
        b('s_barrier'); stamp(b, 7); b('s_branch L_BHY' if cfg.bonly == 1 else 's_branch L_BHX')
        put('L_bonly', [b], 'bo')
    put('L_compX', [compute('X')], 'cX')
    put('L_compY', [compute('Y')], 'cY')
    put('L_BC', [phaseB_body('C')], 'BC')
    hs = S(); hs(f's_cmp_eq_u32 s{sTY}, 0\ns_cbranch_scc1 L_helpX')
    put('L_helper', [hs, helperY()], 'hY')
    put('L_BHY', [phaseB_body('HY')], 'BHY')
    lx = S(); lx('L_BHX:')
    put('L_helpX', [helperX(), lx, phaseB_body('HX')], 'hX')
    put('L_red', [phaseB_tail()], 'red')
    put('L_fin', [fin()], 'fin')
    hdr = open('cdna_kernels/' + KN[:-7] + '.s.ref').read().split('; Override')[0]
    txt = hdr + '; @launch grid=(256,1,1) block=(512,1,1) lds=163840\n'
    txt += f'.amdgcn_target "amdgcn-amd-amdhsa--gfx950"\n.text\n.globl {KN}\n.p2align 8\n.type {KN},@function\n{KN}:\n'
    txt += '\n'.join(out) + '\nL_end:\n    s_endpgm\n'
    txt += f'''.section .rodata,"a"
.p2align 6
.amdhsa_kernel {KN}
  .amdhsa_next_free_vgpr 256
  .amdhsa_next_free_sgpr 102
  .amdhsa_accum_offset 256
  .amdhsa_group_segment_fixed_size 0
  .amdhsa_kernarg_size 88
  .amdhsa_user_sgpr_count 2
  .amdhsa_user_sgpr_kernarg_segment_ptr 1
  .amdhsa_system_sgpr_workgroup_id_x 1
.end_amdhsa_kernel
'''
    return txt

if __name__ == '__main__':
    for a in sys.argv[2:]:
        k, v = a.split('='); setattr(cfg, k, float(v) if '.' in v else int(v))
    d = getattr(cfg, 'fsh', 0)
    FKV += d; FH += d; FE += d; FO += d; FQ += d
    KV_OFF += getattr(cfg, 'ksh', 0)
    open(sys.argv[1], 'w').write(build())
```

```python
import sys
from fw import S, I, finalize
KN = 'recurrent_scan__linear_kernel_hedgehog__glu_gated_reglu__prompt_kernel'

class Cfg:
    stamps = 0; hdbg = 0; rt = 0; span = 0
    pa = -1; pb = -1; pw = 0
    mx512 = 1
    prioC = 1; prioH = 0
    tp = 2; pro = 0
    bud = 1000; quiet = 450
    mid2 = 1
    pre = 2
    bonly = 0
cfg = Cfg()

SLOT = [131072, 0, 32768]
KB = 65536; VB = 65536; STDB = 129024; RSB = 130048
KV_OFF = 0x900000
Q_OFF = 0x940000
F_OFF = 0xB40000
FKV, FH, FE, FO, FQ = F_OFF, F_OFF + 0x1000, F_OFF + 0x3000, F_OFF + 0x5000, F_OFF + 0x6000
TS_OFF = 0xB50000
WS_BYTES = 0xC00000
SPIN = 1 << 20
SX, SD, SO, SWS, SOUT, SQKV, SG, SU, SDBG, SPHI = 8, 12, 16, 20, 24, 28, 32, 36, 40, 44
SWH = SO
SP = 28
def srd(b): return f's[{b}:{b+3}]'
sW, sRB, sJ, sTY, sSB, sNB = 48, 49, 50, 51, 52, 53
sA0, sM0, sLBc, sC0, sL4, sL2 = 54, 56, 57, 58, 59, 60
sNON = 62
sT, sT2, sHEAD = 64, 65, 67
sHA, sHM, sHC, sW4 = 68, 69, 70, 71
sQ, sONES, sKV = 72, 74, 78
sWB, sLB, sH0, sH1, sXO, sWBc = 80, 81, 82, 83, 84, 85
sTS = 86
def vr(b, n): return f'v[{b}:{b+n-1}]'
MF = 'v_mfma_f32_32x32x16_bf16'

def stamp(s, idx, force=False):
    if not cfg.stamps: return
    if (cfg.hdbg or cfg.span) and idx != 12 and not force: return
    s('s_memrealtime s[76:77]' if cfg.rt else 's_memtime s[76:77]'); s('s_waitcnt lgkmcnt(0)'); s(f's_mov_b32 s{sTS+idx}, s76')

def build_srd(s, b, lo, nbytes):
    s(f's_mov_b32 s{b}, s{lo}\ns_mov_b32 s{b+1}, s{lo+1}\ns_mov_b32 s{b+2}, {nbytes}\ns_mov_b32 s{b+3}, 0x00020000')

BSTART = [32, 52, 72, 92, 0, 16, 112, 128]
CORDER = [0, 1, 2, 3, 12, 13, 14, 15, 8, 9, 10, 11, 4, 5, 6, 7, 16, 17, 18, 19]
NX0 = 8
def xpieces():
    a, b = (96, 97) if not cfg.stamps else (62, 63)
    r = []
    for c, g in ([(c, 4*b + g) for b in range(2) for c in range(4) for g in range(4)] if cfg.bm else [(c, g) for c in range(4) for g in range(8)]):
        if True:
            t = 66 if len(r) >= NX0 else 7
            p = S()
            p(f's_add_u32 m0, s{b}, {(g >> 2)*65536 + c*4096 + (g & 3)*1024 if cfg.xl2 else c*8192+g*1024}\ns_add_u32 s{t}, s{a}, {g*4096+c*256}')
            p(f'buffer_load_dwordx4 v{10+(g&3)}, {srd(SX)}, s{t} offen lds')
            r.append(p.l)
    return r

def merge(w, main, side, every):
    side = list(side)
    for n, i in enumerate(main.l):
        w.l.append(i)
        if side and n % every == every - 1: w.l.extend(side.pop(0))
    for x in side: w.l.extend(x)

def piece(lds_s, lds_o, g_s, g_o, voff, sr):
    p = S()
    p(f's_add_u32 m0, s{lds_s}, {lds_o}\ns_add_u32 s{sT}, s{g_s}, {g_o}')
    p(f'buffer_load_dwordx4 v{voff}, {srd(sr)}, s{sT} offen lds')
    return p.l

def sbase(s, soff): s(f's_add_u32 s4, s{SWS}, s{soff}\ns_addc_u32 s5, s{SWS+1}, 0')
def sload(s, z, n, two):
    sfx = {1: '', 2: 'x2', 4: 'x4', 8: 'x8', 16: 'x16'}[n]
    rg = lambda b: f's{b}' if n == 1 else f's[{b}:{b+n-1}]'
    s(f's_load_dword{sfx} {rg(z)}, s[4:5], 0 glc')
    if two: s(f's_load_dword{sfx} {rg(z+n)}, s[4:5], 128 glc')
def scheck(s, label, z, n, two, pairs=None):
    tot = n * (2 if two else 1)
    pairs = pairs or list(range(tot // 2))
    def test():
        s('s_waitcnt lgkmcnt(0)')
        if tot == 1: s(f's_cmp_eq_u32 s{z}, s{sNON}'); return
        s(f's_xor_b64 s[6:7], s[{z+2*pairs[0]}:{z+2*pairs[0]+1}], s[{sNON}:{sNON+1}]')
        for k in pairs[1:]:
            s(f's_xor_b64 s[76:77], s[{z+2*k}:{z+2*k+1}], s[{sNON}:{sNON+1}]\ns_or_b64 s[6:7], s[6:7], s[76:77]')
        s('s_cmp_eq_u64 s[6:7], 0')
    test()
    if cfg.bonly: return
    s(f's_cbranch_scc1 {label}_x')
    s('s_mov_b32 s75, 0')
    s(f'{label}:')
    if cfg.slp: s(f's_sleep {cfg.slp}')
    sload(s, z, n, two)
    s(f's_add_u32 s75, s75, 1\ns_cmp_gt_u32 s75, {SPIN}\ns_cbranch_scc1 {label}_y')
    test()
    s(f's_cbranch_scc0 {label}')
    s(f'{label}_y:')
    s('s_waitcnt lgkmcnt(0)')
    s(f'{label}_x:')
def post(s, vdat, vaddr, soff='0', needs=None):
    s('s_mov_b64 exec, 1', needs=needs)
    s(f'buffer_store_dword v{vdat}, v{vaddr}, {srd(SWS)}, {soff} offen sc1')
    s('s_mov_b64 exec, -1')

def prologue():
    s = S()
    s('s_cmp_ge_u32 s2, 256\ns_cbranch_scc1 L_end')
    s('s_load_dwordx16 s[64:79], s[0:1], 0\ns_load_dwordx4 s[80:83], s[0:1], 64\ns_load_dwordx2 s[84:85], s[0:1], 80')
    if cfg.stamps: s('s_memtime s[86:87]\ns_memrealtime s[88:89]')
    s('v_lshrrev_b32 v2, 6, v0\nv_and_b32 v1, 63, v0')
    s(f'v_readfirstlane_b32 s{sW}, v2')
    s('s_and_b32 s3, s2, 7\ns_lshr_b32 s4, s2, 3')
    s(f's_cmp_lg_u32 s{sW}, 7\ns_cbranch_scc1 L_nocode')
    s('s_getpc_b64 s[6:7]')
    s('L_pc:')
    s('s_and_b32 s5, s4, 7\ns_lshl_b32 s5, s5, 13\nv_lshl_add_u32 v3, v1, 7, s5\nv_min_u32 v3, L_end-L_pc, v3')
    s('global_load_dword v9, v3, s[6:7]', tag='raw')
    s('L_nocode:')
    s(f's_and_b32 s5, s3, 1\ns_lshl_b32 s5, s5, 3\ns_and_b32 s6, s4, 7\ns_add_u32 s{sRB}, s5, s6')
    s(f's_and_b32 s6, s{sW}, 3\ns_lshl_b32 s6, s6, 15\ns_lshl_b32 s5, s{sRB}, 17\ns_add_u32 s5, s5, s6')
    s('v_lshrrev_b32 v3, 4, v1\nv_and_b32 v4, 15, v1\nv_xor_b32 v4, v3, v4\nv_lshlrev_b32 v4, 4, v4\nv_lshl_add_u32 v10, v3, 10, v4')
    s('v_xor_b32 v11, 64, v10\nv_xor_b32 v12, 128, v10\nv_xor_b32 v13, 192, v10')
    s('s_waitcnt lgkmcnt(0)')
    if cfg.stamps:
        s('s_mov_b32 s101, s86\ns_mov_b32 s100, s88')
        for q in range(13): s(f's_mov_b32 s{86+q}, s101')
    build_srd(s, SX, 64, 2097152)
    if cfg.xl2: s('s_lshr_b32 s6, s6, 1')
    s('s_mov_b32 s96, s5\ns_mov_b32 s97, s6' if not cfg.stamps else 's_mov_b32 s62, s5\ns_mov_b32 s63, s6')
    s(f's_cmp_ge_u32 s{sW}, 4\ns_cbranch_scc1 L_nox')
    for p in xpieces()[:NX0]: s.l.extend(p)
    s('L_nox:')
    build_srd(s, SQKV, 66, 1572864); build_srd(s, SG, 74, 1835008); build_srd(s, SU, 76, 1835008)
    s(f's_lshr_b32 s5, s4, 3\ns_lshr_b32 s{sTY}, s5, 1\ns_and_b32 s5, s5, 1\ns_and_b32 s6, s3, 6\ns_add_u32 s{sJ}, s6, s5')
    if cfg.mx512:
        if cfg.nbm:
            s(f's_lshr_b32 s5, s3, 1\ns_lshl_b32 s5, s5, 3\ns_and_b32 s6, s4, 7\ns_add_u32 s{sSB}, s5, s6')
            s(f's_and_b32 s5, s3, 1\ns_lshl_b32 s5, s5, 2\ns_lshr_b32 s6, s4, 3\ns_add_u32 s{sNB}, s5, s6')
        else:
            s(f's_lshr_b32 s5, s3, 1\ns_lshl_b32 s5, s5, 3\ns_lshr_b32 s6, s4, 2\ns_add_u32 s{sSB}, s5, s6')
            s(f's_and_b32 s5, s3, 1\ns_lshl_b32 s5, s5, 2\ns_and_b32 s6, s4, 3\ns_add_u32 s{sNB}, s5, s6')
    else:
        s(f's_lshl_b32 s5, s3, 2\ns_lshr_b32 s6, s4, 3\ns_add_u32 s{sSB}, s5, s6\ns_and_b32 s{sNB}, s4, 7')
    build_srd(s, SPHI, 68, 16384); build_srd(s, SO, 70, 524288); build_srd(s, SD, 78, 1835008)
    build_srd(s, SOUT, 80, 2097152); build_srd(s, SDBG, 82, 256); build_srd(s, SWS, 84, WS_BYTES)
    s(f's_and_b32 s{sW4}, s{sW}, 3')
    s(f's_mul_i32 s6, s{sJ}, 160\ns_add_u32 s6, s6, 512\ns_and_b32 s7, s{sJ}, 1')
    s('s_lshl_b32 s3, s7, 5\ns_add_u32 s3, s3, s6')
    s('s_xor_b32 s7, s7, 1\ns_lshl_b32 s4, s7, 7\ns_add_u32 s4, s4, s6')
    s(f's_add_u32 s5, s3, 64\ns_lshl_b32 s6, s{sJ}, 6\ns_cmp_eq_u32 s{sTY}, 0\ns_cselect_b32 s5, s6, s5')
    s(f's_mov_b32 s6, {BSTART[0]}')
    for w in range(1, 8): s(f's_cmp_eq_u32 s{sW}, {w}\ns_cselect_b32 s6, {BSTART[w]}, s6')
    s(f's_add_u32 s{sLB}, s{sW}, 4\ns_sub_u32 s7, s{sW}, 2\ns_cmp_ge_u32 s{sW}, 4\ns_cselect_b32 s{sLB}, s7, s{sLB}\ns_add_u32 s7, s{sW}, 2\ns_cmp_ge_u32 s{sW}, 6\ns_cselect_b32 s{sLB}, s7, s{sLB}\ns_cselect_b32 s7, 112, 0\ns_lshl_b32 s{sLB}, s{sLB}, 14')
    s(f's_sub_u32 s7, s6, s7\ns_lshl_b32 s{sWB}, s7, 14\ns_lshl_b32 s7, s{sNB}, 7\ns_add_u32 s{sWB}, s{sWB}, s7')
    s(f's_mul_i32 s{sH0}, s{sSB}, 288\ns_add_u32 s{sH0}, s{sH0}, s6\ns_lshl_b32 s{sH0}, s{sH0}, 10\ns_add_u32 s{sH1}, s{sH0}, {144*1024}')
    s(f's_lshl_b32 s6, s{sSB}, 3\ns_add_u32 s6, s6, s{sW}\ns_lshl_b32 s6, s6, 13\ns_add_u32 s{sXO}, s6, s7')
    if cfg.bonly: s('s_branch L_bonly')
    s(f's_cmp_ge_u32 s{sW}, 4\ns_cbranch_scc1 L_helper')
    s(f's_cmp_eq_u32 s{sTY}, 0\ns_cbranch_scc0 L_compY\ns_branch L_compX')
    return s

M16 = 'v_mfma_f32_16x16x32_bf16'
XN = 0; ACC = [128, 144, 160, 176]; WF = 192; NRING = 6; PK = 224
vTL, vTH = 216, 220
vL16, vKW, vVW, vM2, vXA = 242, 243, 244, 245, 246
vC, vR2, vNON, vFA, vZ = 240, 254, 248, 252, 251

def compute(ty):
    X = ty == 'X'
    s = S()
    s(f's_setprio {cfg.prioC}')
    s(f'v_lshlrev_b32 v{vL16}, 4, v1')
    s('v_lshrrev_b32 v2, 4, v1\nv_and_b32 v3, 15, v1')
    s('v_bfe_u32 v4, v1, 2, 2\nv_lshl_add_u32 v4, v2, 3, v4\nv_and_b32 v5, 3, v1\nv_lshlrev_b32 v5, 3, v5')
    if not X:
        s(f'v_and_b32 v6, 1, v2\nv_lshl_add_u32 v6, v6, 5, v5\nv_lshl_add_u32 v{vKW}, v4, 6, v6\nv_xor_b32 v{vM2}, 32, v{vKW}')
    s(f'v_bfe_u32 v6, v1, 3, 1\nv_and_b32 v7, 1, v2\nv_lshl_add_u32 v6, v6, 1, v7\nv_lshl_add_u32 v5, v6, 5, v5\nv_lshl_add_u32 v{vTL}, v4, 7, v5')
    s(f'v_add_u32 v{vTH}, 0x20000, v{vTL}')
    for q in range(1, 4): s(f'v_xor_b32 v{vTL+q}, {32*q}, v{vTL}\nv_xor_b32 v{vTH+q}, {32*q}, v{vTH}')
    s('v_xor_b32 v4, v2, v3\nv_lshlrev_b32 v4, 4, v4\nv_and_b32 v5, 3, v1\nv_lshl_add_u32 v4, v5, 8, v4')
    s(f'v_bfe_u32 v5, v1, 2, 2\nv_lshl_add_u32 v4, v5, 10, v4\ns_lshl_b32 s6, s{sW}, {14 if cfg.xl2 else 15}\nv_add_u32 v{vXA}, s6, v4')
    for u in range(1, 4): s(f'v_xor_b32 v{vXA+u}, {u<<6}, v{vXA}')
    if X:
        s(f's_lshl_b32 s6, s{sW}, 10\ns_add_u32 s6, s6, {KB}\nv_lshlrev_b32 v4, 3, v1\nv_add_u32 v{vKW}, s6, v4')
        s(f'v_and_b32 v4, 1, v2\nv_lshrrev_b32 v6, 1, v2\nv_lshl_add_u32 v4, v4, 1, v6\nv_xor_b32 v4, v4, v5\nv_lshlrev_b32 v4, 3, v4\nv_lshl_add_u32 v4, v3, 5, v4\nv_add_u32 v{vVW}, s6, v4')
        s(f's_lshl_b32 s6, s{sRB}, 3\ns_add_u32 s6, s6, s{sJ}\ns_lshl_b32 s6, s6, 4\ns_add_u32 s6, s6, s{sW}\ns_lshl_b32 s6, s6, 10\ns_add_u32 s{sQ}, s6, {Q_OFF}')
    E = PK
    s('v_and_b32 v4, 1, v1\nv_lshlrev_b32 v4, 4, v4\nv_mov_b32 v6, 0x3f80\nv_lshlrev_b32 v6, v4, v6')
    s('v_cmp_eq_u32 vcc, v5, v2\nv_cndmask_b32 v6, 0, v6, vcc\nv_bfe_u32 v4, v1, 1, 1')
    s(f'v_cmp_eq_u32 vcc, 0, v4\nv_cndmask_b32 v{E}, 0, v6, vcc\nv_cndmask_b32 v{E+1}, v6, 0, vcc')
    s(f'v_mov_b32 v{E+2}, 0\nv_mov_b32 v{E+3}, 0\nv_mov_b32 v{E+4}, 0\nv_mov_b32 v{E+5}, 0\nv_mov_b32 v{E+6}, v{E}\nv_mov_b32 v{E+7}, v{E+1}')
    s(f's_lshl_b32 s6, s{sRB}, 2\ns_add_u32 s6, s6, s{sW}\ns_mul_i32 s6, s6, {144*1024}')
    s(f's_lshl_b32 s7, s3, 6\ns_add_u32 s{sHA}, s6, s7\ns_lshl_b32 s7, s4, 6\ns_add_u32 s{sHM}, s6, s7\ns_lshl_b32 s7, s5, 6\ns_add_u32 s{sHC}, s6, s7')
    s(f's_mov_b32 s{sONES}, 0x3f803f80')
    setup = s; s = S()
    merge(s, setup, xpieces()[NX0:16 if cfg.hx else 32], 3)
    if not cfg.hx: s('s_barrier')
    stamp(s, 0)
    SA = ACC[0]
    xr = lambda tt, b: XN + 8*tt + 4*b
    if cfg.bm:
        A0, Q0 = SA, SA + 2
        CM = ACC[0] + 8
        DT = ACC[1]; ND = 5; LAG = 2
        def reads(b, c):
            if not cfg.hx: s(f's_waitcnt vmcnt({4*(7 - 4*b - c)})')
            elif b == 0: s(f's_waitcnt vmcnt({4*(3 - c)})')
            for u in range(4): s(f'ds_read_b128 {vr(xr(4*c+u,b),4)}, v{vXA+u} offset:{c*4096 if cfg.xl2 else c*8192 + b*4096}')
            if cfg.xl2 and b == 0 and c == 3:
                for u in range(4): s(f'v_add_u32 v{vXA+u}, 0x10000, v{vXA+u}')
        def dots(b, c):
            for u in range(4):
                for r in range(4):
                    z = c == 0 and u == 0 and r < 2; x = xr(4*c+u, b) + r; k = 4*(r & 1)
                    s(f'v_dot2_f32_bf16 v{A0+b+k}, v{x}, s{sONES}, ' + ('0' if z else f'v{A0+b+k}'))
                    s(f'v_dot2_f32_bf16 v{Q0+b+k}, v{x}, v{x}, ' + ('0' if z else f'v{Q0+b+k}'))
        def stats(b):
            a_, q = A0 + b, Q0 + b
            s(f'v_add_f32 v{a_}, v{a_}, v{a_+4}\nv_add_f32 v{q}, v{q}, v{q+4}')
            s(f'v_permlane32_swap_b32 v{a_}, v{q}\nv_add_f32 v{a_}, v{a_}, v{q}\nv_mov_b32 v{q}, v{a_}\nv_permlane16_swap_b32 v{a_}, v{q}')
            s(f'v_add_f32 v{a_}, v{a_}, v{q}\nv_mul_f32 v{a_}, 0x3b000000, v{a_}\nv_mov_b32 v{q}, v{a_}\nv_permlane32_swap_b32 v{a_}, v{q}')
            s(f'v_cvt_pk_bf16_f32 v{CM+4*b}, -v{a_}, -v{a_}\nv_and_b32 v{CM+4*b}, 0xffff0000, v{CM+4*b}')
            for r in range(1, 4): s(f'v_mov_b32 v{CM+4*b+r}, v{CM+4*b}')
        def mkside(b):
            side = S(); q = Q0 + b
            if b == 0: side(f'v_mov_b32 v{vZ}, 0')
            side(f'v_fma_f32 v{q}, -v{A0+b}, v{A0+b}, v{q}\nv_max_f32 v{q}, 0, v{q}')
            side(f'v_cvt_pk_bf16_f32 v{q}, v{q}, v{q}\nv_and_b32 v{q}, 0xffff0000, v{q}\nv_add_f32 v{q}, 0x3727c5ac, v{q}')
            side(f'v_cvt_pk_bf16_f32 v{q}, v{q}, v{q}\nv_and_b32 v{q}, 0xffff0000, v{q}\nv_sqrt_f32 v{q}, v{q}')
            if X and b == 0: side(f'v_lshrrev_b32 v250, 2, v{vL16}\nv_and_b32 v250, 0x3c, v250\ns_lshl_b32 s6, s{sW}, 7\nv_add_u32 v250, s6, v250\nv_add_u32 v252, {RSB}, v250\nv_lshlrev_b32 v253, 1, v250\nv_add_u32 v253, {STDB}, v253')
            else: side('s_nop 0')
            side(f'v_cvt_pk_bf16_f32 v{234+2*b}, v{q}, v{q}\nv_mov_b32 v{235+2*b}, v{234+2*b}\nv_and_b32 v{q}, 0xffff0000, v{234+2*b}\nv_rcp_f32 v{q}, v{q}')
            if X and b == 1:
                for bb in range(2): side(f'ds_write_b64 v253, v[{234+2*bb}:{235+2*bb}] offset:{128*bb}')
            else: side('s_nop 0')
            if X: side(f'v_mul_f32 v{vC+b}, 0x3fb8aa3b, v{q}')
            side(f'v_mul_f32 v{vR2+b}, v{q}, v{q}')
            if X and b == 1:
                for bb in range(2): side(f'ds_write_b32 v252, v{Q0+bb} offset:{64*bb}')
            return side.l
        def center(b, hooks):
            nonlocal pre_reads_at
            side = mkside(b)
            for f in range(16 + LAG):
                g = f - LAG
                cv = [f'v_cvt_pk_bf16_f32 v{xr(g,b)+j}, v{DT+8*(g%ND)+2*j}, v{DT+8*(g%ND)+2*j+1}' for j in range(4)] if g >= 0 else []
                for a_ in range(2):
                    if f < 16: s(f'{M16} {vr(DT+8*(f%ND)+4*a_,4)}, {vr(E+4*a_,4)}, {vr(xr(f,b),4)}, {vr(CM+4*b,4)}')
                    for x in cv[2*a_:2*a_+2]: s(x)
                    if side: s.l.append(side.pop(0))
                if f in hooks: hooks[f]()
                if b == 1 and f == 12: s('s_waitcnt lgkmcnt(0)\ns_barrier')
                if b == 1 and f == 14: pre_reads_at = len(s.l)
            assert not side
        pre_reads_at = None
        for c in range(4): reads(0, c); dots(0, c)
        stats(0)
        stamp(s, 1)
        if cfg.hx:
            center(0, {cfg.hk2: lambda: (s('s_barrier'), reads(1, 0), reads(1, 1), reads(1, 2))})
            dots(1, 0); reads(1, 3); dots(1, 1); dots(1, 2); dots(1, 3)
        else:
            center(0, {cfg.hk0: lambda: reads(1, 0), cfg.hk1: lambda: reads(1, 1), cfg.hk2: lambda: reads(1, 2)})
            dots(1, 0); dots(1, 1); reads(1, 3); dots(1, 2); dots(1, 3)
        s('s_barrier')
        stats(1)
        stamp(s, 2)
        center(1, {})
    else:
        for c in range(4):
            s(f's_waitcnt vmcnt({8*(3-c)})')
            if c == 3: stamp(s, 1)
            for u in range(4):
                for b in range(2): s(f'ds_read_b128 {vr(xr(4*c+u,b),4)}, v{vXA+u} offset:{c*8192 + b*4096}')
            for u in range(4):
                for r in range(4):
                    for b in range(2):
                        z = c == 0 and u == 0 and r == 0; x = xr(4*c+u, b) + r
                        s(f'v_dot2_f32_bf16 v{SA+b}, v{x}, s{sONES}, ' + ('0' if z else f'v{SA+b}'))
                        s(f'v_dot2_f32_bf16 v{SA+2+b}, v{x}, v{x}, ' + ('0' if z else f'v{SA+2+b}'))
        s('s_barrier')
        A0, A1, Q0, Q1 = SA, SA + 1, SA + 2, SA + 3
        s(f'v_permlane32_swap_b32 v{A0}, v{Q0}\nv_permlane32_swap_b32 v{A1}, v{Q1}\nv_add_f32 v{A0}, v{A0}, v{Q0}\nv_add_f32 v{A1}, v{A1}, v{Q1}')
        s(f'v_permlane16_swap_b32 v{A0}, v{A1}\nv_add_f32 v{A0}, v{A0}, v{A1}\nv_mul_f32 v{A0}, 0x3b000000, v{A0}')
        s(f'v_mov_b32 v{A1}, v{A0}\nv_permlane16_swap_b32 v{A0}, v{A1}\nv_mov_b32 v{Q0}, v{A0}\nv_mov_b32 v{Q1}, v{A1}')
        s(f'v_permlane32_swap_b32 v{A0}, v{Q0}\nv_permlane32_swap_b32 v{A1}, v{Q1}')
        CM = ACC[0] + 8
        for b in range(2):
            s(f'v_cvt_pk_bf16_f32 v{CM+4*b}, -v{A0+b}, -v{A0+b}\nv_and_b32 v{CM+4*b}, 0xffff0000, v{CM+4*b}')
            for r in range(1, 4): s(f'v_mov_b32 v{CM+4*b+r}, v{CM+4*b}')
        stamp(s, 2)
        side = S()
        side(f'v_mov_b32 v{vZ}, 0')
        for b in range(2):
            q = Q0 + b
            side(f'v_fma_f32 v{q}, -v{A0+b}, v{A0+b}, v{q}\nv_max_f32 v{q}, 0, v{q}')
            side(f'v_cvt_pk_bf16_f32 v{q}, v{q}, v{q}\nv_and_b32 v{q}, 0xffff0000, v{q}\nv_add_f32 v{q}, 0x3727c5ac, v{q}')
            side(f'v_cvt_pk_bf16_f32 v{q}, v{q}, v{q}\nv_and_b32 v{q}, 0xffff0000, v{q}\nv_sqrt_f32 v{q}, v{q}')
            if X and b == 0: side(f'v_lshrrev_b32 v250, 2, v{vL16}\nv_and_b32 v250, 0x3c, v250\ns_lshl_b32 s6, s{sW}, 7\nv_add_u32 v250, s6, v250\nv_add_u32 v252, {RSB}, v250\nv_lshlrev_b32 v253, 1, v250\nv_add_u32 v253, {STDB}, v253')
            else: side('s_nop 0')
            side(f'v_cvt_pk_bf16_f32 v234, v{q}, v{q}\nv_mov_b32 v235, v234\nv_and_b32 v{q}, 0xffff0000, v234\nv_rcp_f32 v{q}, v{q}')
            if X:
                side(f'ds_write_b64 v253, v[234:235] offset:{128*b}\nds_write_b32 v252, v{q} offset:{64*b}')
                side(f'v_mul_f32 v{vC+b}, 0x3fb8aa3b, v{q}')
            else: side('s_nop 0')
            side(f'v_mul_f32 v{vR2+b}, v{q}, v{q}')
        side = side.l
        DT = ACC[1]; ND = 5
        LAG = 2
        for f in range(32 + LAG):
            g = f - LAG
            cv = [f'v_cvt_pk_bf16_f32 v{XN+4*g+j}, v{DT+8*(g%ND)+2*j}, v{DT+8*(g%ND)+2*j+1}' for j in range(4)] if g >= 0 else []
            for a_ in range(2):
                if f < 32: s(f'{M16} {vr(DT+8*(f%ND)+4*a_,4)}, {vr(E+4*a_,4)}, {vr(XN+4*f,4)}, {vr(CM+4*(f&1),4)}')
                for x in cv[2*a_:2*a_+2]: s(x)
                if side: s.l.append(side.pop(0))
            if f == 28: s('s_waitcnt lgkmcnt(0)\ns_barrier')
            if f == 30: pre_reads_at = len(s.l)
        assert not side
    stamp(s, 3)
    mf = []
    for st in range(10):
        base = SLOT[st % 3]
        if not ((4 <= st < 6) or (X and st < 4)):
            sl = st if st < 4 else st - 6
            accs = [0, 1, 2, 3] if st < 4 else [2, 3, 0, 1]
            for p in range(2):
                for t in range(4):
                    for c in range(2):
                        for a_ in range(2):
                            mf.append((st, ACC[accs[2*p+c]] + 8*a_, 4*sl + t, (base + c*16384 + t*4096, 2*p + a_), sl == 0 and t == 0))
        else:
            sl = st & 1; a0 = 2 if st in (2, 3) else 0
            for t in range(8):
                for c in range(2):
                    for a_ in range(2):
                        mf.append((st, ACC[a0 + c] + 8*a_, 8*sl + t, (base + t*4096, 2*c + a_) if X else (base + c*16384 + t*2048, -1 - a_), sl == 0 and t == 0))
    N = len(mf)
    def packswap(e, src, pk, mul):
        for b in range(2):
            if mul is not None:
                for r in range(4): e.append(f'v_mul_f32 v{src+4*b+r}, v{src+4*b+r}, v{mul+b}')
            e.append(f'v_cvt_pk_bf16_f32 v{pk+2*b}, v{src+4*b}, v{src+4*b+1}')
            e.append(f'v_cvt_pk_bf16_f32 v{pk+2*b+1}, v{src+4*b+2}, v{src+4*b+3}')
    def swaps(e, pk):
        e.append(f'v_permlane16_swap_b32 v{pk}, v{pk+2}'); e.append(f'v_permlane16_swap_b32 v{pk+1}, v{pk+3}')
    def ep_h(g, u, sbase, off, PK=PK, defer=None):
        e = []; dst = e if defer is None else defer
        for a_ in range(2):
            for j in range(8*a_, 8*a_ + 8): e.append(f'v_max_f32 v{g+j}, 0, v{g+j}')
            if a_ == 1:
                swaps(e, PK); dst.append(f'buffer_store_dwordx4 {vr(PK,4)}, v{vL16}, {srd(SWS)}, s{sbase} offen offset:{off} sc1')
            for j in range(8*a_, 8*a_ + 8): e.append(f'v_mul_f32 v{g+j}, v{g+j}, v{u+j}')
            packswap(e, g + 8*a_, PK + 4*a_, vR2)
        e.append('s_nop 0'); swaps(e, PK + 4)
        dst.append(f'buffer_store_dwordx4 {vr(PK+4,4)}, v{vL16}, {srd(SWS)}, s{sbase} offen offset:{off+1024} sc1')
        return e
    def ep_hand(a0, a1, kind):
        e = []; fin = []
        for hd in range(4):
            src = (a0, a1)[hd >> 1] + 8*(hd & 1); pk = PK + 4*hd
            t = []; packswap(t, src, pk, None if kind == 'v' else vC)
            if kind == 'v':
                e += t[:2] + [f'ds_write_b64 v{vVW}, {vr(pk,2)} offset:{hd*4096}'] + t[2:] + [f'ds_write_b64 v{vVW}, {vr(pk+2,2)} offset:{hd*4096+512}']
                continue
            e += t[:6] + fin + t[6:]; fin = []
            swaps(fin, pk)
            if kind == 'k': fin += [f'ds_write_b64 v{vKW}, {vr(pk,2)} offset:{hd*4096}', f'ds_write_b64 v{vKW}, {vr(pk+2,2)} offset:{hd*4096+512}']
            else:
                fin.append(f'buffer_store_dwordx4 {vr(pk,4)}, v{vL16}, {srd(SWS)}, s{sQ} offen sc1')
                if hd < 3: fin.append(f's_add_u32 s{sQ}, s{sQ}, 4096')
        return e + fin
    A = ACC
    fill = {}; late = {}; posts = {}; mids = []
    skip = (({0: set(), 1: {7}, 2: {8}}[cfg.skip]) if X else ({8} if cfg.skipy else set()))
    fa = f's_lshl_b32 s6, s{sRB}, 2\ns_add_u32 s6, s6, s{sW}\ns_lshl_b32 s6, s6, 5\ns_add_u32 s6, s6, s{sJ}' + ('' if X else '\ns_add_u32 s6, s6, 8') + f'\ns_lshl_b32 s6, s6, 2\ns_add_u32 s6, s6, {FH}\nv_mov_b32 v{vFA}, s6'
    if X:
        fill[2*32] = (ep_hand(A[0], A[1], 'k'), 2*32 + 17); mids.append(2*32 + 19)
        if cfg.kvq:
            fill[4*32] = (ep_hand(A[2], A[3], 'v'), 4*32 + 12); mids.append(4*32 + 14)
            fill[6*32] = (ep_hand(A[0], A[1], 'q'), 6*32 + 15); mids.append(7*32 + cfg.qp + 1)
            skip = {8}
        else:
            fill[4*32] = (ep_hand(A[2], A[3], 'q'), 4*32 + 24)
            fill[6*32] = (ep_hand(A[0], A[1], 'v'), 6*32 + 10)
            mids.append(6*32 + 12)
        extra = f'\ns_lshl_b32 s6, s{sRB}, 3\ns_add_u32 s6, s6, s{sJ}\ns_lshl_b32 s6, s6, 5\ns_add_u32 s6, s6, s{sW}\ns_lshl_b32 s6, s6, 2\ns_add_u32 s6, s6, {FQ}\nv_mov_b32 v253, s6'
        posts[7*32 + cfg.qp if cfg.kvq else 5*32 + 12] = (253, '0')
    else:
        d1 = []; d2 = []
        fill[3*32+16] = (ep_h(A[0], A[1], sHA, 0, PK, d1), 3*32 + 31)
        fill[4*32] = (ep_h(A[2], A[3], sHA, 2048, PK + 8, d1), 4*32 + cfg.e4)
        fill[6*32] = (ep_h(A[0], A[1], sHM, 0, PK, d2), 6*32 + 15)
        for k, x in enumerate(d1): late[4*32 + (19, 21, cfg.e4 + 1, cfg.e4 + 2)[k]] = x
        for k, x in enumerate(d2): late[6*32 + 21 + 3*k] = x
        extra = f'\ns_mov_b32 s{sQ}, {FE-FH}'
        posts[7*32 + 20] = (vFA, f's{sQ}')
    if cfg.s2x if X else cfg.s2y:
        skip = skip | {2}
        if not X: mids.append(2*32 + cfg.s2y)
    fill[1*32+2] = ([f'buffer_load_dword v{vNON}, v{vZ}, {srd(SDBG)}, 0 offen sc1'] + (fa + extra).split('\n'), 1*32 + 22)
    t = S()
    t(f'v_lshrrev_b32 v249, 4, v{vL16}')
    b_traddr(t, 244, sLB, 250, 249)
    t('v_xor_b32 v246, 64, v244')
    line_voff(t, 250, 243, 249)
    t('v_lshl_add_u32 v243, v250, 10, v243')
    t('v_and_b32 v250, 1, v249\nv_lshlrev_b32 v250, 2, v250\nv_bfe_u32 v253, v249, 1, 1\nv_lshl_add_u32 v253, v253, 7, v250')
    t(f's_lshl_b32 s6, s{sSB}, 8\ns_lshl_b32 s7, s{sW}, 3\ns_add_u32 s6, s6, s7\ns_add_u32 s6, s6, {FE+32}\nv_add_u32 v253, s6, v253')
    late[cfg.ehn - 10] = f'buffer_load_dword v250, v253, {srd(SWS)}, 0 offen sc1'
    if cfg.p8:
        fill[7*32+12] = ([i.text for i in t.l], 7*32 + 27)
        pstart = 8*32 + 2; rstart, rstep = (cfg.rsx, cfg.rtx) if X else (cfg.rsy, cfg.rty)
    else:
        fill[8*32+2] = ([i.text for i in t.l], 8*32 + 24)
        pstart = 8*32 + 30; rstart, rstep = pstart + cfg.cpd, 1
    pre9 = []
    for i in range(8):
        g = []
        for c in range(2):
            g.append(I(f'ds_read_b64_tr_b16 {vr(8*i+4*c,2)}, v{(244, 246)[c]} offset:{2048*i}'))
            g.append(I(f'ds_read_b64_tr_b16 {vr(8*i+4*c+2,2)}, v{(244, 246)[c]} offset:{2048*i+B2}'))
        pre9.append(g)
    ref9 = ownpieces(range(8, 16), sLB, O8, 243, SD, CORDER)
    for k, p in enumerate(ref9): p[-1].needs = [pre9[k // 2][-1]]
    ref9 = ref9[:2*cfg.nref]
    fill[9*32+16] = (ep_h(A[2], A[3], sHC, 0), 9*32 + 31)
    tail = ep_h(A[0], A[1], sHC, 2048, PK + 8)
    def rd(n):
        st, a, xf, (off, q), first = mf[n]
        if q < 0: va, o, d = (vKW, vM2)[-1 - q], off, 256
        elif off >= 131072: va, o, d = vTH + q, off - 131072, 512
        else: va, o, d = vTL + q, off, 512
        r = WF + 4*(n % NRING)
        return [f'ds_read_b64_tr_b16 {vr(r,2)}, v{va} offset:{o}', f'ds_read_b64_tr_b16 {vr(r+2,2)}, v{va} offset:{o+d}']
    nxt = 0; half = []; pend = []; rdtok = {}
    def issue_reads(limit_frag, maxn):
        nonlocal nxt, half
        k = 0
        while k < maxn:
            if not half:
                if nxt > limit_frag or nxt >= N: break
                half = [(nxt, x) for x in rd(nxt)]; nxt += 1
            f, x = half.pop(0); rdtok[f] = s(x); k += 1
        return k
    passed = 0
    keep = s.l[pre_reads_at:]; del s.l[pre_reads_at:]
    issue_reads(NRING - 2, 2*(NRING - 1))
    s.l.extend(keep)
    delay = 0; dead = 0
    BP = 28
    def fillers(k):
        nw = 0
        while pend and k > 0:
            if pend[0].startswith('ds_write'):
                if nw and not last_gap: break
                nw += 1
            s(pend.pop(0)); k -= 1
    for n in range(N):
        st, a, xf, off, first = mf[n]
        if n in fill:
            assert not pend
            pend = list(fill[n][0]); dead = fill[n][1]; delay = 1
        needs = []
        if n % 2 == 0 and (n + 1) in rdtok and not (half and half[0][0] == n + 1): needs = [rdtok[n+1]]
        r = WF + 4*(n % NRING)
        isbar = n % 32 == BP and st + 1 not in skip
        lim = min(n + NRING - 1, 32*(passed+1) - 1)
        budget = 0; last_gap = False
        if delay > 0: delay -= 1
        elif pend and not isbar:
            gaps = sum(1 for m in range(n, dead + 1) if m % 32 != BP or m // 32 + 1 in skip)
            budget = -(-len(pend) // gaps); last_gap = gaps == 1
        s(f'{M16} {vr(a,4)}, {vr(r,4)}, {vr(xr(xf,0),4)}, ' + ('0' if first else vr(a,4)), needs=needs)
        if not isbar:
            behind = (min(lim, n + NRING - 2) - nxt + 1) * 2 + len(half)
            issue_reads(min(lim, n + NRING - 2), 2 if behind > 2 else 1)
            fillers(budget // 2)
        s(f'{M16} {vr(a+4,4)}, {vr(r,4)}, {vr(xr(xf,1),4)}, ' + ('0' if first else vr(a+4,4)))
        if isbar:
            assert nxt == 32*(st+1) and not half, (n, nxt)
            s('s_waitcnt lgkmcnt(0)')
            if cfg.hdbg and cfg.hb <= st <= cfg.hb + 5: stamp(s, 2*(st-cfg.hb), True)
            s('s_barrier'); passed = st + 1
            if passed + 1 in skip and (passed + 1 == 2 or (passed + 1 == 8 and not (X and cfg.kvq))): passed += 1
            if cfg.hdbg and cfg.hb <= st <= cfg.hb + 5: stamp(s, 2*(st-cfg.hb)+1, True)
            if st in (3, 5): stamp(s, 4 if st == 3 else 5)
            issue_reads(min(n + NRING - 1, N - 1), 4)
            if st == 9:
                s(f'v_readfirstlane_b32 s{sNON}, v{vNON}\ns_lshl_b32 s6, s{sSB}, 8\ns_lshl_b32 s7, s{sW}, 3\ns_add_u32 s6, s6, s7\ns_add_u32 s6, s6, {FE+32}')
                sbase(s, 6)
                s(f's_mov_b32 s{sNON+1}, s{sNON}')
            continue
        if n in mids:
            assert not pend
            s('s_barrier', needs=[i for i in s.l if i.op == 'ds_write_b64'][-1:])
            if st + 1 in skip and (st + 1 == 7 or cfg.kvq): passed = st + 1
        behind = (lim - nxt + 1) * 2 + len(half)
        issue_reads(lim, 2 if behind > 2 else 1)
        if n in late: s(late[n])
        if 0 <= n - pstart < 16:
            k = n - pstart; s.l.extend(pre9[k // 2][2*(k % 2):2*(k % 2) + 2])
        if n >= rstart and ref9 and (n - rstart) % rstep == 0: s.l.extend(ref9.pop(0))
        for lab_, at, dat, adr, sr, cond in ((f'L_e{ty}', cfg.ehn, 250, 253, SWS, f'v_cmp_ne_u32 vcc, v250, v{vNON}'),
                                             (f'L_non{ty}c', 3*32 + 4, vNON, vZ, SDBG, f'v_cmp_eq_u32 vcc, 0, v{vNON}')):
            if n == at:
                s(f'{cond}\ns_cbranch_vccz {lab_}_x')
                s('s_mov_b32 s75, 0')
                s(f'{lab_}:')
                s(f'buffer_load_dword v{dat}, v{adr}, {srd(sr)}, 0 offen sc1\ns_waitcnt vmcnt(0)', tag='raw')
                s(f's_add_u32 s75, s75, 1\ns_cmp_gt_u32 s75, {SPIN}\ns_cbranch_scc1 {lab_}_x')
                s(f'{cond}\ns_cbranch_vccnz {lab_}')
                s(f'{lab_}_x:')
        if 0 <= n - cfg.ehn < 8:
            k = n - cfg.ehn
            s(f'buffer_load_dwordx4 {vr(64 + 4*k, 4)}, v{vL16}, {srd(SWS)}, s{sH0 + (k & 1)} offen offset:{(k >> 1)*1024} sc1')
        if n in posts: post(s, vNON, posts[n][0], posts[n][1], [[i for i in s.l if i.kind == 'vmst'][-1]])
        fillers(budget - budget // 2 if not last_gap else 99)
    assert not pend and not ref9
    stamp(s, 6)
    for x in tail: s(x)
    vms = [i for i in s.l if i.kind in ('vm', 'vmst', 'vmlds')]
    assert all(i.kind == 'vmst' for i in vms[-4:])
    stamp(s, 7)
    s('s_branch L_BC')
    return s

vOQ, vOG, vW2 = 2, 3, 252
WRB = 72
vOQ2, vOG2 = 249, 250
vOM = 251
def dma_stage(st, X):
    base = SLOT[st % 3]; r = []
    if X and st < 6:
        col = ([1024, 2048, 0] if cfg.kvq else [1024, 0, 2048])[st >> 1]
        for b in range(8): r.append(piece(sL2, base + b*1024, sM0, (256*(st & 1) + 8*b)*3072 + col, (vOQ, vOQ2)[b & 1], SQKV))
    elif st < 4 or st >= 6:
        sl = st if st < 4 else st - 6
        sb = sA0 if st < 4 else sC0
        for b in range(4):
            for pos, sr in enumerate((SG, SU)): r.append(piece(sL4, base + pos*16384 + b*1024, sb, (128*sl + 8*b)*3584, (vOG, vOG2)[b & 1], sr))
    else:
        for b in range(4):
            row = 256*(st & 1) + 16*b
            for pos, sr in enumerate((SG, SU)): r.append(piece(sL4, base + pos*16384 + b*1024, sM0, row*3584, vOM, sr))
    return r
def cwpieces(w):
    return [piece(sLBc, (w+4)*16384 + k*8192 + c*1024, sWBc, (BSTART[w]+12*k)*16384 + 8192*c, vW2, SD) for k in range(2) for c in range(2)]
sLBx, sWBx = 54, 55
def cwpiecesx(w, es=(0, 1)):
    return [piece(sLBx, (w+4)*16384 + e*2048 + c*1024, sWBx, (BSTART[w]+e)*16384 + 8192*c, vW2, SD) for e in es for c in range(2)]
def cwpieces2():
    return [piece(sLBc, w*8192 + c*1024, sWBc, (BSTART[w]+16)*16384 + 8192*c, vW2, SD) for w in range(4) for c in range(2)]
def ownpieces(steps, sbase, offs, voff=vW2, sr=SWH, rel=None):
    return [piece(sbase, o + c*1024, sWB, (rel[i] if rel else i)*16384 + 8192*c, voff, sr) for i, o in zip(steps, offs) for c in range(2)]
def emit(s, pieces, raw=False):
    for p in pieces:
        for x in p:
            if raw: x.tag = 'raw'
            s.l.append(x)
    return pieces[-1][-1]
def b_traddr(s, dst, sbase, t, lane=1):
    s(f'v_lshrrev_b32 v{t}, 5, v{lane}\nv_bfe_u32 v{dst}, v{lane}, 2, 2')
    s(f'v_lshl_add_u32 v{dst}, v{t}, 3, v{dst}\nv_lshlrev_b32 v{dst}, 7, v{dst}')
    s(f'v_bfe_u32 v{t}, v{lane}, 3, 1\nv_lshl_add_u32 v{dst}, v{t}, 6, v{dst}')
    s(f'v_bfe_u32 v{t}, v{lane}, 4, 1\nv_lshl_add_u32 v{dst}, v{t}, 5, v{dst}\nv_and_b32 v{t}, 3, v{lane}\nv_lshl_add_u32 v{dst}, v{t}, 3, v{dst}')
    if sbase is not None: s(f'v_add_u32 v{dst}, s{sbase}, v{dst}')
def line_voff(s, row, chunk, lane=1):
    s(f'v_lshrrev_b32 v{row}, 3, v{lane}\nv_bfe_u32 v{chunk}, v{lane}, 4, 1\nv_lshlrev_b32 v{chunk}, 2, v{chunk}\nv_xor_b32 v{chunk}, v{lane}, v{chunk}\nv_and_b32 v{chunk}, 7, v{chunk}\nv_lshlrev_b32 v{chunk}, 4, v{chunk}')
O8 = [2048*k for k in range(8)]
B2 = 512
def stg_offs(regions): return [(w + 4)*16384 + k*8192 for w in regions for k in range(2)]
def stg_reads(steps, offs, va, tok):
    w = S()
    for i, o in zip(steps, offs):
        for c in range(2):
            f = WRB + 8*i + 4*c
            w(f'ds_read_b64_tr_b16 {vr(f,2)}, v{va+c} offset:{o - 65536}', needs=[tok])
            w(f'ds_read_b64_tr_b16 {vr(f+2,2)}, v{va+c} offset:{o - 65536 + B2}')
    w.l.insert(12, I('s_waitcnt lgkmcnt(4)'))
    w('s_waitcnt lgkmcnt(0)')
    return w

def softmax_k(s, P, rs, out, t):
    m0, m1, n0, n1 = t
    s(f'v_max3_f32 v{m0}, v{P}, v{P+1}, v{P+2}\nv_max3_f32 v{m1}, v{P+3}, v{P+4}, v{P+5}')
    s(f'v_max3_f32 v{n0}, v{P+6}, v{P+7}, v{P+8}\nv_max3_f32 v{n1}, v{P+9}, v{P+10}, v{P+11}')
    s(f'v_max3_f32 v{m0}, v{m0}, v{P+12}, v{P+13}\nv_max3_f32 v{m1}, v{m1}, v{P+14}, v{P+15}')
    s(f'v_max3_f32 v{m0}, v{m0}, v{n0}, v{n1}\nv_max_f32 v{m0}, v{m0}, v{m1}')
    for j in range(16): s(f'v_sub_f32 v{P+j}, v{P+j}, v{m0}')
    for j in range(16): s(f'v_exp_f32 v{P+j}, v{P+j}')
    s(f'v_add_f32 v{n0}, v{P}, v{P+1}\nv_add_f32 v{n1}, v{P+2}, v{P+3}\nv_add_f32 v{m0}, v{P+4}, v{P+5}\nv_add_f32 v{m1}, v{P+6}, v{P+7}')
    for j in range(8, 16): s(f'v_add_f32 v{t[j%4]}, v{t[j%4]}, v{P+j}')
    s(f'v_add_f32 v{m0}, v{m0}, v{m1}\nv_add_f32 v{n0}, v{n0}, v{n1}\nv_add_f32 v{n0}, v{n0}, v{m0}')
    s(f'v_rcp_f32 v{n0}, v{n0}')
    s(f'v_mul_f32 v{n0}, v{n0}, v{rs}')
    for j in range(0, 16, 2):
        s(f'v_mul_f32 v{P+j}, v{P+j}, v{n0}\nv_mul_f32 v{P+j+1}, v{P+j+1}, v{n0}')
        if j >= 2: s(f'v_cvt_pk_bf16_f32 v{out+j//2-1}, v{P+j-2}, v{P+j-1}')
    s(f'v_cvt_pk_bf16_f32 v{out+7}, v{P+14}, v{P+15}')

def softmax_q(s, P, out, t):
    m0, m1, n0, n1 = t
    s(f'v_max3_f32 v{m0}, v{P}, v{P+1}, v{P+2}\nv_max3_f32 v{m1}, v{P+8}, v{P+9}, v{P+10}')
    s(f'v_max3_f32 v{n0}, v{P+3}, v{P+4}, v{P+5}\nv_max3_f32 v{n1}, v{P+11}, v{P+12}, v{P+13}')
    s(f'v_max3_f32 v{m0}, v{m0}, v{P+6}, v{P+7}\nv_max3_f32 v{m1}, v{m1}, v{P+14}, v{P+15}')
    s(f'v_max_f32 v{m0}, v{m0}, v{n0}\nv_max_f32 v{m1}, v{m1}, v{n1}')
    s(f'v_permlane32_swap_b32 v{m0}, v{m1}')
    s(f'v_max_f32 v{m0}, v{m0}, v{m1}')
    s(f'v_mov_b32 v{m1}, v{m0}')
    s(f'v_permlane32_swap_b32 v{m0}, v{m1}')
    for j in range(16): s(f'v_sub_f32 v{P+j}, v{P+j}, v{m0 if j < 8 else m1}')
    for j in range(16):
        s(f'v_exp_f32 v{P+j}, v{P+j}')
        if j >= 3 and j % 2 == 1: s(f'v_cvt_pk_bf16_f32 v{out+(j-3)//2}, v{P+j-3}, v{P+j-2}')
    s(f'v_cvt_pk_bf16_f32 v{out+7}, v{P+14}, v{P+15}')

def w1touch(s, X, part):
    s(f's_and_b32 s6, s{sRB}, 7\ns_lshl_b32 s6, s6, 6\nv_add_u32 v8, s6, v1')
    s('v_mul_u32_u24 v9, 0xe00, v8')
    d = 253 if part != 2 else 243
    if X:
        s('v_mul_u32_u24 v8, 0xc00, v8')
        s(f's_lshl_b32 s6, s{sJ}, 7\n' + (f's_add_u32 s7, s{sW4}, 1\ns_cmp_eq_u32 s{sW4}, 2\ns_cselect_b32 s7, 0, s7' if cfg.kvq else f's_xor_b32 s7, s{sW4}, 1\ns_cmp_eq_u32 s{sW4}, 2\ns_cselect_b32 s7, 2, s7') + f'\ns_lshl_b32 s7, s7, 10\ns_add_u32 s6, s6, s7\ns_lshl_b32 s7, s5, 1')
        s(f's_cmp_eq_u32 s{sW4}, 3\ns_cselect_b32 s6, 0x200000, s6\ns_cselect_b32 s7, s7, 0x200000')
        if part == 1: s(f's_cmp_ge_u32 s{sW4}, 2\ns_cselect_b32 s6, 0x200000, s6\ns_mov_b32 s7, 0x200000')
        if part == 2: s(f's_cmp_lt_u32 s{sW4}, 2\ns_cselect_b32 s6, 0x200000, s6')
        s(f'buffer_load_dword v{d}, v8, {srd(SQKV)}, s6 offen')
        if part != 1: s(f'buffer_load_dword v{d+1}, v9, {srd(SG)}, s7 offen\nbuffer_load_dword v{d+2}, v9, {srd(SU)}, s7 offen')
    else:
        s(f's_cmp_eq_u32 s{sW4}, 1\ns_cselect_b32 s6, s4, s3\ns_cmp_eq_u32 s{sW4}, 2\ns_cselect_b32 s6, s5, s6\ns_lshl_b32 s6, s6, 1')
        s(f's_cmp_eq_u32 s{sW4}, 3\ns_cselect_b32 s6, 0x200000, s6')
        if part == 1: s(f's_cmp_ge_u32 s{sW4}, 1\ns_cselect_b32 s6, 0x200000, s6')
        if part == 2: s(f's_cmp_lt_u32 s{sW4}, 1\ns_cselect_b32 s6, 0x200000, s6')
        s(f'buffer_load_dword v{d}, v9, {srd(SG)}, s6 offen\nbuffer_load_dword v{d+1}, v9, {srd(SU)}, s6 offen')

def malltouch(s):
    s(f's_mul_i32 s6, s2, 6144\ns_mul_i32 s7, s2, 7168\nv_lshlrev_b32 v8, 7, v1\nv_min_u32 v9, 6016, v8\nv_min_u32 v8, 7040, v8')
    s(f's_cmp_eq_u32 s{sW}, 4\ns_cselect_b32 s6, s6, 0x200000\nbuffer_load_dword v236, v9, {srd(SQKV)}, s6 offen')
    s(f's_cmp_eq_u32 s{sW}, 5\ns_cselect_b32 s6, s7, 0x200000\nbuffer_load_dword v237, v8, {srd(SG)}, s6 offen')
    s(f's_cmp_eq_u32 s{sW}, 6\ns_cselect_b32 s6, s7, 0x200000\nbuffer_load_dword v242, v8, {srd(SU)}, s6 offen')

def w2touch(s):
    if cfg.w2t == 1:
        s(f's_mul_i32 s6, s2, 7168\ns_lshl_b32 s7, s2, 11\ns_cmp_eq_u32 s{sW}, 7\ns_cselect_b32 s6, s6, 0x200000\ns_cselect_b32 s7, s7, 0x200000')
        s('v_lshlrev_b32 v8, 7, v1\nv_min_u32 v9, 1920, v8\nv_min_u32 v8, 7040, v8')
        s(f'buffer_load_dword v246, v8, {srd(SD)}, s6 offen\nbuffer_load_dword v247, v9, {srd(SO)}, s7 offen')
    if cfg.w2t == 2:
        s(f's_lshr_b32 s6, s2, 3\ns_lshl_b32 s6, s6, 2\ns_add_u32 s75, s6, s{sW4}')
        if cfg.mx512:
            s(f'v_lshrrev_b32 v8, 2, v1\nv_and_b32 v9, 3, v1\nv_lshlrev_b32 v9, 7, v9\nv_lshl_add_u32 v8, v8, 10, v9\ns_and_b32 s7, s{sNB}, 4\ns_lshl_b32 s7, s7, 7\nv_add_u32 v8, s7, v8')
            s(f's_mul_i32 s6, s75, {14*1024}\nbuffer_load_dword v246, v8, {srd(SD)}, s6 offen')
            s(f's_lshr_b32 s6, s75, 2\ns_lshl_b32 s6, s6, 1\ns_and_b32 s7, s{sW}, 1\ns_add_u32 s6, s6, s7\ns_lshl_b32 s6, s6, 13\ns_cmp_ge_u32 s{sW}, 6\ns_cselect_b32 s6, s6, 0x200000')
            s(f'v_min_u32 v9, {8*1024-128}, v8\nbuffer_load_dword v247, v9, {srd(SO)}, s6 offen')

def l2touch():
    r = []
    p = S(); p(f's_lshr_b32 s6, s2, 3\ns_lshl_b32 s6, s6, 2\ns_add_u32 s55, s6, s{sW4}\nv_lshlrev_b32 v19, 7, v1\ns_mul_i32 s6, s55, 14336')
    p(f'buffer_load_dword v244, v19, {srd(SD)}, s6 offen'); r.append(p.l)
    p = S(); p(f'v_min_u32 v19, 6016, v19\ns_mul_i32 s6, s55, 14336\ns_add_u32 s6, s6, 8192\nbuffer_load_dword v245, v19, {srd(SD)}, s6 offen'); r.append(p.l)
    p = S(); p(f'v_lshlrev_b32 v19, 7, v1\ns_lshr_b32 s6, s55, 2\ns_lshl_b32 s6, s6, 1\ns_and_b32 s7, s{sW}, 1\ns_add_u32 s6, s6, s7\ns_lshl_b32 s6, s6, 13\ns_cmp_ge_u32 s{sW}, 6\ns_cselect_b32 s6, s6, 0x200000')
    p(f'buffer_load_dword v243, v19, {srd(SO)}, s6 offen'); r.append(p.l)
    return r

def recode(tag):
    p = S()
    p('s_getpc_b64 s[54:55]')
    p(f'L_rc{tag}:')
    p(f's_sub_u32 s54, s54, L_rc{tag}-L_pc\ns_subb_u32 s55, s55, 0')
    p(f's_lshr_b32 s6, s2, 3\ns_and_b32 s6, s6, 7\ns_lshl_b32 s6, s6, 2\ns_add_u32 s6, s6, s{sW4}\ns_lshl_b32 s6, s6, 11')
    p('v_and_b32 v19, 15, v1\nv_lshl_add_u32 v19, v19, 7, s6\nv_min_u32 v19, L_end-L_pc, v19')
    p('global_load_dword v242, v19, s[54:55]')
    return [p.l]

def helper_head(s, X, wop, isq):
    global XTOK
    if cfg.hx and cfg.hx != 2: XTOK = emit(s, xpieces()[16:])
    if cfg.mt: malltouch(s)
    if cfg.tp in (1, 2, 4): w1touch(s, X, 0 if cfg.tp == 1 else 1)
    if cfg.hx == 2: XTOK = emit(s, xpieces()[16:])
    if X:
        s(f's_cmp_lg_u32 s2, 0\ns_cbranch_scc1 L_np\ns_cmp_lg_u32 s{sW}, 4\ns_cbranch_scc1 L_np')
        s('s_memrealtime s[76:77]\ns_waitcnt lgkmcnt(0)\ns_or_b32 s76, s76, 1')
        s('v_mov_b32 v4, s76\nv_mov_b32 v6, 0\ns_mov_b64 exec, 1')
        s(f'buffer_store_dword v4, v6, {srd(SDBG)}, 0 offen sc1', tag='raw')
        s('s_mov_b64 exec, -1')
        s('L_np:')
    s(f's_setprio {cfg.prioH}')
    if not X: s(f'v_lshrrev_b32 v4, 2, v1\nv_lshrrev_b32 v5, 4, v1\nv_and_b32 v5, 2, v5\nv_xor_b32 v5, v1, v5\nv_and_b32 v5, 3, v5\nv_lshlrev_b32 v5, 4, v5\nv_mul_u32_u24 v{vOM}, 0xe00, v4\nv_add_u32 v{vOM}, v{vOM}, v5')
    line_voff(s, 4, 5)
    s(f'v_mul_u32_u24 v{vOQ}, 0xc00, v4\nv_add_u32 v{vOQ}, v{vOQ}, v5')
    s(f'v_mul_u32_u24 v{vOG}, 0xe00, v4\nv_add_u32 v{vOG}, v{vOG}, v5')
    s(f'v_lshl_add_u32 v{vW2}, v4, 10, v5')
    s(f'v_xor_b32 v5, 32, v5\nv_mul_u32_u24 v{vOQ2}, 0xc00, v4\nv_add_u32 v{vOQ2}, v{vOQ2}, v5\nv_mul_u32_u24 v{vOG2}, 0xe00, v4\nv_add_u32 v{vOG2}, v{vOG2}, v5')
    s(f's_lshl_b32 s{sL4}, s{sW4}, 12\ns_lshl_b32 s{sL2}, s{sW4}, 13')
    s(f's_mul_i32 s6, s{sW4}, {32*3584}\ns_lshl_b32 s7, s5, 1\ns_add_u32 s{sC0}, s6, s7')
    if X: s(f's_mul_i32 s6, s{sW4}, {64*3072}\ns_lshl_b32 s7, s{sJ}, 7\ns_add_u32 s{sM0}, s6, s7')
    else:
        s(f's_lshl_b32 s7, s3, 1\ns_add_u32 s{sA0}, s6, s7')
        s(f's_mul_i32 s6, s{sW4}, {64*3584}\ns_lshl_b32 s7, s4, 1\ns_add_u32 s{sM0}, s6, s7')
    s(f's_lshl_b32 s{sLBc}, s{sW4}, 11\ns_lshl_b32 s6, s{sW4}, 14\ns_lshl_b32 s7, s{sNB}, 7\ns_add_u32 s{sWBc}, s6, s7')
    s(f's_lshl_b32 s{sHEAD}, s{sJ}, 2\ns_add_u32 s{sHEAD}, s{sHEAD}, s{sW4}')
    s(f's_lshl_b32 s{sKV}, s{sHEAD}, 12\ns_add_u32 s{sKV}, s{sKV}, {KV_OFF}')
    s(f's_cmp_lt_u32 s{sW}, 6\ns_cselect_b32 s{SO}, s{SD}, s{SO}\ns_cselect_b32 s{SO+1}, s{SD+1}, s{SO+1}\ns_cselect_b32 s{SO+2}, s{SD+2}, s{SO+2}')
    s('v_lshrrev_b32 v4, 5, v1\nv_lshlrev_b32 v7, 8, v4')
    if isq: s('v_and_b32 v6, 15, v1\nv_lshl_add_u32 v36, v6, 1, v7')
    else: s('v_bfe_u32 v6, v1, 3, 2\nv_and_b32 v36, 3, v1\nv_lshl_add_u32 v6, v6, 2, v36\nv_lshl_add_u32 v36, v6, 1, v7')
    s(f's_lshl_b32 s{sT2}, s{sHEAD}, 9')
    return

def helper_start(s, X, wop, isq):
    stamp(s, 0)
    def ush():
        for i in range(8): s(f'buffer_load_ushort v{200+i}, v36, {srd(SPHI)}, s{sT2} offen offset:{i*32}')
    if cfg.xl2:
        if cfg.w2e == 2: w2touch(s)
        s('s_barrier', needs=[XTOK])
        stamp(s, 1)
        tok = {0: emit(s, dma_stage(0, X)), 1: emit(s, dma_stage(1, X))}
        if cfg.w2e == 1: w2touch(s)
        s(f'v_mov_b32 v17, 0\nbuffer_load_dword v16, v17, {srd(SDBG)}, 0 offen sc1')
        if cfg.o2 == 0: tok[2] = emit(s, dma_stage(2, X))
        s('s_barrier')
        if cfg.o2 == 1: tok[2] = emit(s, dma_stage(2, X))
        s('s_barrier', needs=[tok[0]])
        if cfg.o2 == 2: tok[2] = emit(s, dma_stage(2, X))
        ush()
        if cfg.tp in (2, 4): w1touch(s, X, 2)
        if cfg.w2e == 0: w2touch(s)
        return tok
    if not cfg.hx: s('s_barrier')
    if cfg.hx and cfg.hb1 == 2: s('s_barrier', needs=[XTOK])
    tok = {0: emit(s, dma_stage(0, X))}
    if cfg.hx and cfg.hb1 == 1: s('s_barrier', needs=[XTOK])
    if cfg.tp in (0, 2): w1touch(s, X, 2 if cfg.tp == 2 else 0)
    if cfg.w2at == 0: w2touch(s)
    if cfg.hx and not cfg.hb1: s('s_barrier', needs=[XTOK])
    stamp(s, 1)
    s('s_barrier')
    s(f'v_mov_b32 v17, 0\nbuffer_load_dword v16, v17, {srd(SDBG)}, 0 offen sc1')
    if cfg.pro == 0: tok[1] = emit(s, dma_stage(1, X))
    s('s_barrier', needs=[tok[0]])
    if cfg.pro != 0: tok[1] = emit(s, dma_stage(1, X))
    tok[2] = emit(s, dma_stage(2, X))
    ush()
    if cfg.tp == 4: w1touch(s, X, 2)
    if cfg.w2at == 1: w2touch(s)
    return tok

def nonce_and_wphi(w, lab, wop, bit):
    w(f'v_cmp_eq_u32 vcc, 0, v16\ns_cbranch_vccz {lab}_x')
    w('s_mov_b32 s75, 0')
    w(f'{lab}:')
    w(f'buffer_load_dword v16, v17, {srd(SDBG)}, 0 offen sc1\ns_waitcnt vmcnt(0)', tag='raw')
    w(f's_add_u32 s75, s75, 1\ns_cmp_gt_u32 s75, {SPIN}\ns_cbranch_scc1 {lab}_x')
    w(f'v_cmp_eq_u32 vcc, 0, v16\ns_cbranch_vccnz {lab}')
    w(f'{lab}_x:')
    w(f'v_readfirstlane_b32 s{sNON}, v16\nv_readfirstlane_b32 s{sNON+1}, v16')
    w(f'v_bfe_u32 v6, v1, {bit}, 1\nv_mul_u32_u24 v6, 0x8000, v6\nv_lshl_or_b32 v6, v6, 16, v6')
    for r in range(4):
        w(f'v_lshl_or_b32 v{wop+r}, v{200+2*r+1}, 16, v{200+2*r}\nv_xor_b32 v{wop+r}, v6, v{wop+r}')

def cost(i):
    if i.op in ('v_exp_f32', 'v_rcp_f32') or i.op.startswith('v_permlane'): return 11
    if i.kind == 'mfma': return 36
    if i.kind in ('vm', 'vmst'): return 14
    if i.op in ('v_max3_f32', 'v_fma_f32', 'v_lshl_add_u32', 'v_lshl_or_b32'): return 8.3
    return 5.6

def pack(s, X, work, bars, tok, extra, need10, quiet, frac, late_hi, w1at=None, first=(), tneed={}, pinned={}):
    flat = [(m, w.l) for m, w in work]
    qi = 0; qpos = 0; inloop = False; where = {}
    pieces = []; lgfree = False
    for bi, st in enumerate(bars):
        whole = st == int(st)
        if not lgfree: s('s_waitcnt lgkmcnt(0)')
        lgfree = False
        nd = [tok[t] for t in tneed.get(st, [st] if whole and st <= 9 else [])] + (need10 if st == 10 else [])
        dbg = cfg.hdbg and whole and cfg.hb + 1 <= st <= cfg.hb + 6
        if dbg: stamp(s, 2*(st-cfg.hb-1), True); s('s_nop 0', needs=nd)
        s('s_barrier', needs=nd)
        if dbg: stamp(s, 2*(st-cfg.hb-1)+1, True)
        for tgt in range(3, 10):
            if (w1at or {}).get(tgt, tgt - 2) == st:
                p = dma_stage(tgt, X); tok[tgt] = p[-1][-1]
                if st in first: emit(s, p)
                else: pieces += p
        pieces += extra.get(st, [])
        last = bi + 1 == len(bars)
        BUD = 1e9 if last else cfg.bud * frac.get(st, 1.0)
        hold = []
        if quiet.get(st) == 'all': hold = pieces; pieces = []
        q = quiet.get(st, 0) if quiet.get(st) != 'all' else 0
        if st in pinned: s.l.extend(pinned[st].l)
        used = 0; inexec = False; since = 99 if not inloop and not (qi < len(flat) and qpos == 0 and flat[qi][1][0].op in ('s_waitcnt', 's_memrealtime', 's_memtime')) else 0
        inloop = False
        while qi < len(flat) and flat[qi][0] <= st:
            ins = flat[qi][1][qpos]
            free = not inexec and not inloop and ins.op not in ('s_addc_u32', 's_subb_u32', 's_cselect_b32') and not ins.op.startswith('s_cbranch') and ins.kind != 'vmlds' and ('s', sT) not in ins.wr
            if pieces and free and ((since >= 6 and used >= q) or ins.tag == 'flush'):
                s.l.extend(pieces.pop(0)); used += 20; since = 0
                continue
            if used + 20*len(pieces) >= BUD and free and ins.tag != 'glue': break
            s.l.append(ins); used += cost(ins); since += 1
            where[id(ins)] = st
            if ('s', 'exec') in ins.wr: inexec = '-1' not in ins.text
            if ins.op.startswith('s_cbranch') and ins.text.split()[1].endswith('_x'): inloop = True
            if ins.kind == 'label' and ins.op.endswith('_x:'): inloop = False
            if ins.op.startswith('s_load') or ins.op.startswith('s_cmp') or ins.op in ('s_xor_b64', 's_or_b64'): inloop = True
            qpos += 1
            if qpos == len(flat[qi][1]): qi += 1; qpos = 0
        for p in pieces: s.l.extend(p)
        pieces = hold
        if whole and qi < len(flat) and qpos == 0 and flat[qi][0] == st + 0.5 and (st + 0.5) not in bars:
            s.l.extend(flat[qi][1]); qi += 1; lgfree = True
    assert qi == len(flat)
    l = []; hi = False
    bidx = [k for k, i in enumerate(s.l) if i.op == 's_barrier']
    for k, i in enumerate(s.l):
        want = i.kind == 'mfma' or (k > bidx[late_hi] and i.kind in ('vm', 'vmst'))
        if i.kind in ('mfma', 'valu', 'vm', 'vmst', 'vmlds', 'ds') and want != hi and i.tag != 'raw':
            l.append(I(f's_setprio {3 if want else cfg.prioH}')); hi = want
        l.append(i)
    s.l = l
    return where

def helperX():
    s = S(); X = True
    WK, RS, KF, KVA = 8, 20, 24, 40
    PT = 136; ID = 224; TT = 200; FR = 136
    vB1, vB2, vRD, vKVA, vL16h, vST = 232, 233, 234, 235, 238, 239
    helper_head(s, X, WK, False)
    s(f'v_lshlrev_b32 v{vL16h}, 4, v1\ns_lshl_b32 s6, s{sW4}, 12\ns_add_u32 s6, s6, {KB}\nv_lshlrev_b32 v5, 3, v1\nv_add_u32 v{vRD}, s6, v5')
    s('v_bfe_u32 v5, v1, 2, 2\nv_lshl_add_u32 v5, v4, 2, v5')
    s('v_and_b32 v7, 3, v1\nv_xor_b32 v7, v7, v4\nv_lshlrev_b32 v7, 3, v7\nv_lshl_add_u32 v7, v5, 5, v7\nv_add_u32 v7, s6, v7')
    s(f'v_lshlrev_b32 v6, 3, v5\nv_add_u32 v6, {STDB}, v6')
    s(f'v_bfe_u32 v5, v1, 4, 1\nv_cmp_eq_u32 vcc, 1, v5\nv_cndmask_b32 v{vB1}, v7, v6, vcc')
    s(f'v_xor_b32 v7, 16, v7\nv_add_u32 v7, 256, v7\nv_add_u32 v6, 64, v6\nv_cndmask_b32 v{vB2}, v7, v6, vcc')
    s(f'v_mov_b32 v6, 512\nv_mov_b32 v7, 128\nv_cndmask_b32 v{vST}, v6, v7, vcc')
    s(f'v_and_b32 v5, 31, v1\nv_min_u32 v5, 16, v5\nv_lshl_add_u32 v5, v4, 5, v5\nv_lshlrev_b32 v{vKVA}, 2, v5')
    s('v_and_b32 v5, 1, v1\nv_lshlrev_b32 v5, 4, v5\nv_mov_b32 v6, 0x3f80\nv_lshlrev_b32 v6, v5, v6')
    s('v_bfe_u32 v5, v1, 4, 1\nv_cmp_eq_u32 vcc, v5, v4\nv_cndmask_b32 v6, 0, v6, vcc\nv_bfe_u32 v5, v1, 1, 3')
    for r in range(8): s(f'v_cmp_eq_u32 vcc, {r}, v5\nv_cndmask_b32 v{ID+r}, 0, v6, vcc')
    s(f's_lshl_b32 s{sLBx}, s{sW4}, 12\ns_lshl_b32 s6, s{sW4}, 1\ns_and_b32 s7, s{sW4}, 2\ns_lshl_b32 s7, s7, 2\ns_add_u32 s6, s6, s7\ns_lshl_b32 s6, s6, 14\ns_lshl_b32 s7, s{sNB}, 7\ns_add_u32 s{sWBx}, s6, s7')
    tok = helper_start(s, X, WK, False)
    work = []
    def seg(minb):
        w = S(); work.append((minb, w)); return w
    w = seg(1)
    w(f'v_and_b32 v5, 31, v1\nv_lshlrev_b32 v5, 2, v5\nv_add_u32 v5, {RSB}, v5')
    for rt in range(4): w(f'ds_read_b32 v{RS+rt}, v5 offset:{rt*128}')
    nonce_and_wphi(w, 'L_nonX', WK, 2)
    w(f's_lshl_b32 s6, s{sHEAD}, 7\ns_add_u32 s6, s6, {FKV+64}\nv_mov_b32 v17, s6')
    sbase(w, 6)
    w(f's_lshl_b32 s7, s{sRB}, 2\ns_sub_u32 s6, s6, 64\ns_add_u32 s6, s6, s7\nv_mov_b32 v18, s6')
    w(f's_cmp_lg_u32 s{sRB}, 0\ns_cbranch_scc1 L_zero_x')
    for r in range(4): w(f'v_mov_b32 v{FR+r}, 0')
    for q in range(4): w(f'buffer_store_dwordx4 {vr(FR,4)}, v{vL16h}, {srd(SWS)}, s{sKV} offen offset:{q*1024} sc1', tag='raw')
    w('s_waitcnt vmcnt(0)', tag='raw')
    w('s_mov_b64 exec, 1')
    w(f'buffer_store_dword v16, v17, {srd(SWS)}, 0 offen sc1', tag='raw')
    w('s_mov_b64 exec, -1')
    w('L_zero_x:')
    w = seg(2.5)
    for rt in range(4):
        w(f'ds_read_b64 {vr(KF+4*rt,2)}, v{vRD} offset:{rt*1024}\nds_read_b64 {vr(KF+4*rt+2,2)}, v{vRD} offset:{rt*1024+512}')
    for rt in range(4): w(f'{MF} {vr(PT+16*rt,16)}, {vr(WK,4)}, {vr(KF+4*rt,4)}, 0')
    T4 = (4, 5, 6, 7)
    PH = [56, 64, 24, 32]; TP = [216, 56, 64, 24]
    tr_mm = lambda rt: [[I(f'{MF} {vr(TT,16)}, {vr(PH[rt],4)}, {vr(ID,4)}, 0')], [I(f'{MF} {vr(TT,16)}, {vr(PH[rt]+4,4)}, {vr(ID+4,4)}, {vr(TT,16)}')]]
    tr_cv = lambda rt: [I(f'v_cvt_pk_bf16_f32 v{TP[rt]+j}, v{TT+2*j}, v{TT+2*j+1}') for j in range(8)]
    softmax_k(w, PT, RS, PH[0], T4)
    for rt in range(1, 4):
        m = S(); softmax_k(m, PT + 16*rt, RS + rt, PH[rt], T4)
        merge(w, m, tr_mm(rt - 1) + [[], tr_cv(rt - 1)], 8)
    for x in tr_mm(3): w.l.extend(x)
    sload(w, 44, 1, False); scheck(w, 'L_pollz', 44, 1, False)
    w.l.extend(tr_cv(3))
    w = seg(4.5 if cfg.kvq else 6.5)
    for rt in range(4):
        for ks in range(2):
            f = FR + 8*rt + 4*ks
            lastv = w(f'ds_read_b64_tr_b16 {vr(f,2)}, v{vB1}\nds_read_b64_tr_b16 {vr(f+2,2)}, v{vB2}')
            if rt < 3 or ks < 1: w(f'v_add_u32 v{vB1}, v{vB1}, v{vST}\nv_add_u32 v{vB2}, v{vB2}, v{vST}')
        if rt == 2: w('s_waitcnt lgkmcnt(8)')
    for rt in range(4):
        for ks in range(2):
            w(f'{MF} {vr(KVA,16)}, {vr(TP[rt]+4*ks,4)}, {vr(FR+8*rt+4*ks,4)}, ' + ('0' if rt == 0 and ks == 0 else vr(KVA,16)))
    for i in w.l: i.tag = i.tag or 'glue'
    if cfg.kvq:
        for p in cwpiecesx(0):
            p[-1].needs = [lastv]; w.l.extend(p); tok['cw0'] = p[-1]
        w = seg(7.3)
    elif cfg.skip != 1: w = seg(7)
    if cfg.c0f:
        for p in cwpiecesx(0) + cwpiecesx(3, (1,)): w.l.extend(p); tok['cw0'] = p[-1]
    w('s_mov_b32 s76, 0x1ffff\ns_mov_b32 s77, 0x1ffff')
    w('s_mov_b64 exec, s[76:77]')
    for r in range(16): at = w(f'buffer_atomic_add_f32 v{KVA+r}, v{vKVA}, {srd(SWS)}, s{sKV} offen offset:{r*256}')
    w('s_mov_b64 exec, -1')
    if cfg.xcw and not cfg.c0f and not cfg.kvq:
        for p in cwpiecesx(0): w.l.extend(p); tok['cw0'] = p[-1]
    for i in w.l: i.tag = i.tag or 'glue'
    stamp(w, 2)
    w = seg(7.3 if cfg.kvq else cfg.pat if cfg.skip == 2 else 8)
    post(w, 16, 18, '0', [at])
    for i in w.l: i.tag = 'glue'
    stamp(w, 3)
    bars = [1, 2, 2.5, 3, 4, 5, 6, 6.5] + [[7, 8], [8], [7]][cfg.skip] + [9, 10]
    c9 = cwpieces2()
    extra = {1: cwpieces(1), 3: cwpieces(2), 8: cwpieces(0) + cwpieces(3), 9: c9}
    if cfg.xcw: extra = {1: cwpiecesx(1), 3: cwpiecesx(2), 5: cwpiecesx(3, (0,)), 8: cwpiecesx(3, (1,)), 9: c9}
    tok['cw'] = extra[8][-1][-1]
    if cfg.kvq:
        extra[7] = extra.pop(8)
        where = pack(s, X, work, [1] + ([] if cfg.s2x else [2]) + [2.5, 3, 4, 4.5, 5, 6, 7, 7.3, 9, 10], tok, extra, [c9[-1][-1]], {2: 'all', 4: 'all'},
                     {2.5: cfg.f25, 3: cfg.fk, 4: 0.55*cfg.fk, 4.5: 0.45*cfg.fk, 5: cfg.fk, 6: cfg.fk, 7: 0.3, 7.3: 2}, -3, {4: 2.5} if cfg.s2x else None, (7,), {1: [1, 2] if cfg.s2x else [1], 7.3: [8, 'cw', 'cw0'] if cfg.p8 else [8], 9: [9, 'cw', 'cw0']})
    elif cfg.skip == 2:
        extra[7] = extra.pop(8)
        if cfg.c0f: del extra[7]; tok['cw'] = tok['cw0']
        where = pack(s, X, work, bars, tok, extra, [c9[-1][-1]], {2: 'all', 4: cfg.quiet, 7: cfg.q7, 9: cfg.q9},
                     {2.5: cfg.f25, 3: cfg.fk, 4: cfg.fk, 5: cfg.fk, 6: 0.45, 6.5: 0.4, 7: 2}, -3, None, (6, 7) if cfg.f8 else (6,), {7: [7, 8], 9: [9, 'cw', 'cw0']})
    elif cfg.skip:
        where = pack(s, X, work, bars, tok, extra, [c9[-1][-1]], {2: 'all', 4: cfg.quiet, 8: 30},
                     {2.5: cfg.f25, 3: cfg.fk, 4: cfg.fk, 5: cfg.fk, 6: 0.45}, -4, {8: 6.5, 9: 8, 4: cfg.s4}, (6.5, 8) if cfg.f8 else (6.5,), {6.5: [7], 9: [9, 'cw', 'cw0']})
    else:
        where = pack(s, X, work, bars, tok, extra, [c9[-1][-1]], {2: 'all', 4: cfg.quiet, 7: 100, 8: 30},
                     {2.5: cfg.f25, 3: cfg.fk, 4: cfg.fk, 5: cfg.fk, 6: 0.45, 6.5: 0.4}, -4, None, (6,), {9: [9, 'cw', 'cw0']})
    assert where[id(lastv)] < 7
    return s

def own_first(s, lab):
    pass

def helperY():
    s = S(); X = False
    WQ, QF, KVA = 8, 24, 40
    PT = 136; vKVA, vL16h, vSA = 235, 238, 240
    helper_head(s, X, WQ, True)
    s(f'v_lshlrev_b32 v{vL16h}, 4, v1')
    s(f'v_and_b32 v5, 31, v1\nv_min_u32 v5, 16, v5\nv_lshl_add_u32 v5, v4, 5, v5\nv_lshlrev_b32 v{vKVA}, 2, v5')
    s(f's_add_u32 s79, s{sLBc}, 65536')
    b_traddr(s, vSA, 79, 11)
    s(f'v_xor_b32 v{vSA+1}, 64, v{vSA}')
    tok = helper_start(s, X, WQ, True)
    work = []
    def seg(minb):
        w = S(); work.append((minb, w)); return w
    w = seg(3)
    nonce_and_wphi(w, 'L_nonY', WQ, 4)
    w(f's_lshl_b32 s6, s{sRB}, 3\ns_add_u32 s6, s6, s{sJ}\ns_lshl_b32 s{sQ}, s6, 14\ns_lshl_b32 s7, s{sW4}, 12\ns_add_u32 s{sQ}, s{sQ}, s7\ns_add_u32 s{sQ}, s{sQ}, {Q_OFF}')
    w(f's_lshl_b32 s6, s6, 7\ns_add_u32 s6, s6, {FQ}')
    sbase(w, 6)
    w(f's_lshl_b32 s6, s{sRB}, 5\ns_add_u32 s6, s6, s{sHEAD}\ns_lshl_b32 s6, s6, 2\ns_add_u32 s6, s6, {FO}\nv_mov_b32 v18, s6')
    w = seg(cfg.qat - 0.5)
    sload(w, 44, 4, False)
    w = seg(cfg.qat)
    stamp(w, 2)
    scheck(w, 'L_pollq', 44, 4, False)
    stamp(w, 3)
    for rt in range(4): w(f'buffer_load_dwordx4 {vr(QF+4*rt,4)}, v{vL16h}, {srd(SWS)}, s{sQ} offen offset:{rt*1024} sc1')
    w(f's_lshl_b32 s6, s{sHEAD}, 7\ns_add_u32 s6, s6, {FKV}')
    sbase(w, 6)
    w('s_mov_b32 s73, 0', tag='flush')
    for rt in range(4): w(f'{MF} {vr(PT+16*rt,16)}, {vr(WQ,4)}, {vr(QF+4*rt,4)}, 0')
    T4 = (4, 5, 6, 7)
    PQ = [56, 64, 200, 208]
    def kvloads(w):
        for r in range(16): w(f'buffer_load_dword v{KVA+r}, v{vKVA}, {srd(SWS)}, s{sKV} offen offset:{r*256} sc1', tag='raw')
    if cfg.kvq:
        for rt in range(4):
            if rt == cfg.kvr: sload(w, SP, 16, False)
            softmax_q(w, PT + 16*rt, PQ[rt], T4)
            if rt == cfg.kvr:
                stamp(w, 4); scheck(w, 'L_pollkv', SP, 16, False); kvloads(w); stamp(w, 5)
        w = seg(10)
    else:
        for rt in range(4): softmax_q(w, PT + 16*rt, PQ[rt], T4)
        w = seg(9.5)
        sload(w, SP, 16, False)
        w = seg(10)
        stamp(w, 4)
        scheck(w, 'L_pollkv', SP, 16, False)
        kvloads(w)
        stamp(w, 5)
    if cfg.yw == 2:
        emit(w, ownpieces(range(8, 16), sLB, O8)); w('s_waitcnt vmcnt(16) lgkmcnt(0)')
    else: w('s_waitcnt vmcnt(0) lgkmcnt(0)')
    w('v_and_b32 v4, 27, v1\nv_cmp_eq_u32 vcc, 17, v4\nv_mov_b32 v4, 0x3f803f80')
    for r in range(8): w(f'v_cvt_pk_bf16_f32 v{KVA+r}, v{KVA+2*r}, v{KVA+2*r+1}')
    for r in range(8): w(f'v_cndmask_b32 v{KVA+r}, v{KVA+r}, v4, vcc')
    OT = [136, 168, 24, 216]; ON = [152, 184, 48 - 0, 232]
    ON[2] = 0
    w(f'v_mov_b32 v3, v{vL16h}\nv_mov_b32 v248, v16\nv_mov_b32 v249, v18')
    ON = [152, 184, 8, 232]
    for rt in range(4):
        w(f'{MF} {vr(OT[rt],16)}, {vr(KVA,4)}, {vr(PQ[rt],4)}, 0')
        w(f'{MF} {vr(ON[rt],16)}, {vr(KVA+4,4)}, {vr(PQ[rt]+4,4)}, 0')
    w(f's_lshl_b32 s6, s{sRB}, 2\ns_mul_i32 s6, s6, 144\ns_add_u32 s6, s6, s{sHEAD}\ns_add_u32 s6, s6, 112\ns_lshl_b32 s79, s6, 10')
    w('v_mov_b32 v4, 0x358637bd')
    for rt in range(4):
        o = OT[rt]; n = ON[rt]
        w(f'v_rcp_f32 v{o+9}, v{o+9}\nv_rcp_f32 v{n+9}, v{n+9}')
        w(f'v_fma_f32 v{o+8}, v{o+8}, v{o+9}, v4\nv_fma_f32 v{o+8}, v{n+8}, v{n+9}, v{o+8}\nv_rcp_f32 v{o+8}, v{o+8}')
        w(f'v_mul_f32 v{o+9}, v{o+9}, v{o+8}\nv_mul_f32 v{n+9}, v{n+9}, v{o+8}')
        for j in range(8): w(f'v_mul_f32 v{o+j}, v{o+j}, v{o+9}')
        for j in range(8): w(f'v_fma_f32 v{o+j}, v{n+j}, v{n+9}, v{o+j}')
        for j in range(0, 8, 2): w(f'v_cvt_pk_bf16_f32 v{o+12+j//2}, v{o+j}, v{o+j+1}')
        ost = w(f'buffer_store_dwordx4 {vr(o+12,4)}, v3, {srd(SWS)}, s79 offen sc1')
        if rt < 3: w(f's_add_u32 s79, s79, {144*1024}')
    stamp(w, 6)
    post(w, 248, 249, '0', [ost])
    stamp(w, 7)
    c2 = cwpieces2()
    oa, ob = stg_offs([0, 1]), stg_offs([2, 3])
    ga, gb = ownpieces(range(4), sLBc, oa), ownpieces(range(4, 8), sLBc, ob)
    ra, rb_ = stg_reads(range(4), oa, vSA, ga[-1][-1]), stg_reads(range(4, 8), ob, vSA, gb[-1][-1])
    extra = {1: ga, 4: gb + cwpieces(0), 5: cwpieces(1), 6: cwpieces(2), 7: cwpieces(3), 9: c2}
    if cfg.l2t:
        t = l2touch(); extra[5] += t[:2]; extra[6] += t[2:]
    tok['cw'] = [p for p in extra[7]][-1][-1]
    if cfg.rc: extra[cfg.rc] = extra.get(cfg.rc, []) + recode('a')
    if cfg.skipy:
        pack(s, X, work, [1, 2, 3, 4, 5, 6, 7, 9, 10], tok, extra, [c2[-1][-1]], {}, {7: cfg.f7 + 1, 9: cfg.f9}, -3, None, (6,), {7: [7, 8], 9: [9, 'cw']}, {3: ra, 6: rb_})
    else:
        extra[8] = extra.pop(9)
        pack(s, X, work, [1, 2.4 if cfg.s2y else 2] + list(range(3, 11)), tok, extra, [c2[-1][-1]], {}, {7: cfg.f7, 8: 0.9, 9: cfg.f9}, -3, {4: 2.4} if cfg.s2y else None, (), {1: [1, 2] if cfg.s2y else [1], 8: [8, 'cw'] if cfg.p8 else [8], 9: [9, 'cw']}, {3: ra, 6: rb_})
    s('s_branch L_BHY')
    return s

BACC = [8, 24, 40, 56]; BW = 232; vBX = 248
def red_write(s, acc, t):
    s(f'v_and_b32 v4, 31, v1\nv_lshrrev_b32 v5, 5, v1\nv_and_b32 v6, 7, v1\nv_xor_b32 v6, v5, v6\nv_lshlrev_b32 v6, 4, v6\nv_lshl_add_u32 v6, v4, 8, v6\nv_add_u32 v{t}, s{sLB}, v6')
    for k in range(1, 4): s(f'v_xor_b32 v{t+k}, {k<<5}, v{t}')
    for nt in range(2):
        for st in range(2):
            for q in range(4):
                if q == 3 and nt == 1 and st == 1: s('s_waitcnt lgkmcnt(8)')
                s(f'ds_write_b128 v{t+q}, {vr(acc[2*nt+st]+4*q,4)} offset:{st*8192 + nt*128}')
    s('s_waitcnt vmcnt(0)')

def phaseB_body(kind):
    s = S(); lab = f'L_B{kind}'
    C = kind == 'C'; n = 20 if C else 16
    order = CORDER if C else list(range(16))
    if C:
        acc = [160, 176, 192, 208]; bw = 224; vl, v16, vd, vtr, vxo, wr, vtr2 = 240, 242, 243, 244, 245, 96, 246
        hreg = lambda i: 8*i if i < 12 else 8*(i - 12)
        if cfg.cpre:
            wr = 0; hreg = lambda i: 64 + 8*i if i < 12 else 8*(i - 12)
    else:
        acc = BACC; bw = BW; vl, v16, vd, vtr, vxo, wr, vtr2 = 1, 3, vW2, 6, 7, WRB, 5
        hreg = lambda i: 136 + 8*i if i < 12 else WRB + 8*(i - 12)
    hoff = [0]
    def hload(i):
        rel = order[i]
        if rel // 4 != hoff[0]:
            d = (rel // 4 - hoff[0]) * 4096; hoff[0] = rel // 4
            op = 's_add_u32' if d > 0 else 's_sub_u32'
            s(f'{op} s{sH0}, s{sH0}, {abs(d)}\n{op} s{sH1}, s{sH1}, {abs(d)}')
        for c in range(2):
            s(f'buffer_load_dwordx4 {vr(hreg(i)+4*c,4)}, v{v16}, {srd(SWS)}, s{sH0+c} offen offset:{(rel%4)*1024}' + (' sc1' if not cfg.nosc else ''))
    wt = {}; rt_ = {}
    def rd(i, f):
        va, o0 = ((vtr, vtr2), (i % 8)*2048) if i < 16 else ((241, 247), (i - 16)*2048)
        for c in range(2):
            s(f'ds_read_b64_tr_b16 {vr(f+4*c,2)}, v{va[c]} offset:{o0}', needs=[wt[i]] if i in wt else [])
            rt_[i] = s(f'ds_read_b64_tr_b16 {vr(f+4*c+2,2)}, v{va[c]} offset:{o0 + B2}')
    def wdma(i):
        if cfg.now: return
        for p in ownpieces([i], sLB, [(i % 8)*2048], vd, SD if C else SWH, order):
            if i - 8 in rt_: p[-1].needs = [rt_[i-8]]
            s.l.extend(p); wt[i] = p[-1]
    def preread():
        for i in range(8):
            rd(i, wr + 8*i)
            if i % 2 == 1 and i >= 3: s('s_waitcnt lgkmcnt(8)')
    def step(i):
        if 8 <= i + 1 < n: rd(i + 1, bw + 8*((i + 1) % 2))
        f = wr + 8*i if i < 8 else bw + 8*(i % 2)
        for nt in range(2):
            for st in range(2):
                a = acc[2*nt+st]
                if cfg.nomf: s(f'v_xor_b32 v{a}, v{f+4*nt}, v{hreg(i)+4*st}'); continue
                s(f'{MF} {vr(a,16)}, {vr(f+4*nt,4)}, {vr(hreg(i)+4*st,4)}, ' + ('0' if i == 0 else vr(a,16)))
        if cfg.cdbg and i in (0, 3, 7, 11, 15): stamp(s, (0, 3, 7, 11, 15).index(i))
    def xload(t):
        s(f'v_lshrrev_b32 v{t}, 3, v{vl}\nv_and_b32 v{vxo}, 7, v{vl}\nv_lshlrev_b32 v{vxo}, 4, v{vxo}\nv_lshl_add_u32 v{vxo}, v{t}, 10, v{vxo}')
        s(f'buffer_load_dwordx4 {vr(vBX,4)}, v{vxo}, {srd(SX)}, s{sXO} offen')
    if C:
        s('s_setprio 3')
        p0 = 4 if cfg.eh else 0
        if not cfg.eh: scheck(s, lab + '_e', SP, 2, True)
        for i in range(p0, p0 + cfg.pre): hload(i)
        s(f'v_lshrrev_b32 v{vl}, 4, v{v16}')
        b_traddr(s, 241, None, 247, vl)
        s(f'v_add_u32 v{vtr}, s{sLB}, v241\nv_xor_b32 v{vtr2}, 64, v{vtr}\ns_lshl_b32 s6, s{sW}, 13\nv_add_u32 v241, s6, v241\nv_xor_b32 v247, 64, v241')
        if not cfg.cpre:
            preread()
            line_voff(s, vxo, vd, vl)
            s(f'v_lshl_add_u32 v{vd}, v{vxo}, 10, v{vd}')
        s(f's_sub_u32 s4, s4, {FE-FH}\ns_subb_u32 s5, s5, 0')
        cf = cfg.cf if cfg.eh else 0
        if cf: s(f's_waitcnt vmcnt({4 + 2*cfg.pre})')
        for i in range(cf): step(i)
        s(f's_waitcnt vmcnt({2*cfg.pre})')
        post(s, vNON, vFA)
        if cfg.b11: s(f's_cmp_lg_u32 s{sTY}, 0\ns_cbranch_scc1 L_nb11\ns_barrier\nL_nb11:')
        stamp(s, 8)
        s('s_setprio 0')
        LA = max(cfg.la, p0 + cfg.pre)
        for i in range(p0 + cfg.pre, min(12, LA + cf)): hload(i)
        for i in range(cf, 8):
            step(i)
            if i + LA < 12: hload(i + LA)
            for k in (8 + cfg.nref + 2*(i - cf), 9 + cfg.nref + 2*(i - cf)):
                if k < 16: wdma(k)
            if i == cfg.sl: sload(s, SP, 2, True)
        scheck(s, lab + '_f', SP, 2, True)
        stamp(s, 9)
        nl = 12
        for k in range(cfg.lb): hload(nl); nl += 1
        for i in range(8, n):
            step(i)
            for k in range(2):
                if nl < 20: hload(nl); nl += 1
            if i == 12: xload(252)
        stamp(s, 10)
        s(f'v_mov_b32 v1, v{vl}\nv_mov_b32 v7, v{vxo}')
        red_write(s, acc, 72)
        s('s_branch L_red')
        return s
    s('s_setprio 0')
    s('v_lshlrev_b32 v3, 4, v1')
    b_traddr(s, 6, sLB, 7)
    s('v_xor_b32 v5, 64, v6')
    s(f's_lshr_b32 s6, s{sSB}, 1\ns_lshl_b32 s6, s6, 7\ns_and_b32 s78, s{sW}, 1\ns_lshl_b32 s7, s78, 6\ns_add_u32 s6, s6, s7\ns_add_u32 s6, s6, {FO}')
    s(f's_lshl_b32 s7, s{sSB}, 8\ns_lshl_b32 s78, s78, 4\ns_add_u32 s7, s7, s78\ns_add_u32 s7, s7, {FH}')
    s(f's_cmp_ge_u32 s{sW}, 6\ns_cselect_b32 s6, s6, s7')
    sbase(s, 6)
    def snap():
        s(f's_cmp_ge_u32 s{sW}, 6\ns_cbranch_scc1 {lab}_so')
        sload(s, SP, 4, True); s(f's_branch {lab}_sx\n{lab}_so:'); sload(s, SP, 16, False); s(f'{lab}_sx:')
    if kind == 'HX':
        if cfg.b11 == 1: s('s_barrier')
        for i in range(8):
            if cfg.b11 == 2 and i == 3: s('s_barrier')
            wdma(i)
        preread()
    early = kind == 'HX' and cfg.esn
    if early: s('s_waitcnt lgkmcnt(0)'); snap()
    npre = cfg.hw if kind == 'HY' else cfg.hwx
    if kind == 'HY' and cfg.yw: npre = -100
    for i in range(8, 8 + npre): wdma(i)
    xload(8)
    stamp(s, 8)
    if not early: s('s_waitcnt lgkmcnt(0)')
    def gate(k, first):
        s(f's_cmp_ge_u32 s{sW}, 6\ns_cbranch_scc1 {lab}_o{k}')
        if first: sload(s, SP, 4, True)
        scheck(s, f'{lab}_ph{k}', SP, 4, True, [[0, 2], [1, 3], [0, 1, 2, 3]][k])
        s(f's_branch {lab}_go{k}')
        s(f'{lab}_o{k}:')
        if first: sload(s, SP, 16, False)
        scheck(s, f'{lab}_po{k}', SP, 16, False, [[0, 1, 2, 3], [4, 5, 6, 7], list(range(8))][k])
        s(f'{lab}_go{k}:')
    gate(0 if cfg.g2 >= 0 else 2, not early)
    stamp(s, 9)
    nl = 0
    for k in range(cfg.lh): hload(nl); nl += 1
    for i in range(n):
        step(i)
        if i == cfg.g2: gate(1, False)
        for k in range(2):
            if nl < n and (nl < 12 or nl - 12 <= i) and (nl < 8 or i >= cfg.g2): hload(nl); nl += 1
        for k in (8 + npre + 2*i, 9 + npre + 2*i):
            if 8 <= k < 16: wdma(k)
    stamp(s, 10)
    red_write(s, acc, 72)
    if kind != 'HX': s('s_branch L_red')
    return s

def phaseB_tail():
    s = S()
    s(f'v_lshrrev_b32 v4, 3, v1\nv_and_b32 v5, 7, v1\nv_lshlrev_b32 v5, 1, v5\nv_xor_b32 v5, v4, v5\nv_lshlrev_b32 v5, 4, v5\nv_lshl_add_u32 v5, v4, 8, v5\ns_lshl_b32 s7, s{sW}, 11\nv_add_u32 v76, s7, v5')
    s('v_xor_b32 v77, 16, v76')
    s('v_add_u32 v78, 0x10000, v76\nv_add_u32 v79, 0x10000, v77\nv_add_u32 v80, 0x20000, v76\nv_add_u32 v81, 0x20000, v77')
    R = 84
    for j in range(4):
        s(f'v_lshlrev_b32 v{R+64+2*j}, 16, v{vBX+j}\nv_and_b32 v{R+65+2*j}, 0xffff0000, v{vBX+j}')
    s('s_waitcnt lgkmcnt(0)\ns_barrier')
    stamp(s, 11)
    for p in range(8):
        g, o = [(1, 0), (1, 16384), (1, 32768), (1, 49152), (0, 32768), (0, 49152), (2, 0), (2, 16384)][p]
        if p == 7: s('s_waitcnt lgkmcnt(8)')
        s(f'ds_read_b128 {vr(R+8*p,4)}, v{76+2*g} offset:{o}\nds_read_b128 {vr(R+8*p+4,4)}, v{77+2*g} offset:{o}')
    for p in range(1, 6):
        for j in range(8): s(f'v_add_f32 v{R+j}, v{R+j}, v{R+8*p+j}')
    for j in range(8): s(f'v_mul_f32 v{R+8+j}, 0xbfb8aa3b, v{R+j}')
    for j in range(8): s(f'v_exp_f32 v{R+8+j}, v{R+8+j}')
    for j in range(8): s(f'v_add_f32 v{R+48+j}, v{R+48+j}, v{R+56+j}')
    for j in range(8): s(f'v_add_f32 v{R+8+j}, 1.0, v{R+8+j}')
    for j in range(8): s(f'v_rcp_f32 v{R+8+j}, v{R+8+j}')
    for j in range(8): s(f'v_mul_f32 v{R+j}, v{R+j}, v{R+48+j}')
    for j in range(8): s(f'v_fma_f32 v{R+j}, v{R+j}, v{R+8+j}, v{R+64+j}')
    for j in range(4): s(f'v_cvt_pk_bf16_f32 v{R+24+j}, v{R+2*j}, v{R+2*j+1}')
    s(f'buffer_store_dwordx4 {vr(R+24,4)}, v7, {srd(SOUT)}, s{sXO} offen' + ['', ' sc1', ' nt', ' sc0 sc1', ' sc1 nt'][cfg.ost])
    return s

def fin():
    s = S()
    if cfg.stamps:
        s('s_waitcnt vmcnt(0)')
        stamp(s, 12)
        if cfg.pb >= 0:
            s(f's_cmp_lg_u32 s{sW}, {cfg.pw}\ns_cbranch_scc1 L_nospin\ns_cmp_lg_u32 s2, {cfg.pwg}\ns_cbranch_scc1 L_nospin')
            s(f's_sub_u32 s6, s{sTS+cfg.pb}, s{sTS+cfg.pa}\ns_lshl_b32 s6, s6, 3\ns_min_u32 s6, s6, 40000\ns_add_u32 s6, s6, s{sTS+12}')
            s('L_spin:\ns_memrealtime s[76:77]\ns_waitcnt lgkmcnt(0)\ns_cmp_lt_u32 s76, s6\ns_cbranch_scc1 L_spin\nL_nospin:')
        s(f's_lshl_b32 s6, s2, 3\ns_add_u32 s6, s6, s{sW}\ns_lshl_b32 s6, s6, 6\ns_add_u32 s6, s6, {TS_OFF}\nv_mov_b32 v8, s6')
        s('s_memrealtime s[76:77]\ns_waitcnt lgkmcnt(0)\ns_mov_b32 s99, s76')
        for q in range(4):
            for r in range(4): s(f'v_mov_b32 v{12+r}, s{sTS+4*q+r}')
            s('s_mov_b64 exec, 1')
            s(f'buffer_store_dwordx4 v[12:15], v8, {srd(SWS)}, 0 offen offset:{q*16}')
            s('s_mov_b64 exec, -1\ns_nop 2')
    return s

Cfg.w2t = 1; Cfg.w2at = 0; Cfg.ktry = 0; Cfg.xl = 1; Cfg.fk = 1.0; Cfg.skip = 2; Cfg.f7 = 0.55; Cfg.nomf = 0; Cfg.nosc = 0; Cfg.now = 0; Cfg.slp = 2; Cfg.la = 4; Cfg.lb = 2; Cfg.lh = 4; Cfg.ost = 4; Cfg.pwg = 72; Cfg.cdbg = 0; Cfg.sl = 3; Cfg.nbm = 1; Cfg.hw = 0; Cfg.hwx = 8; Cfg.mt = 0; Cfg.tmaj = 0; Cfg.yw = 0; Cfg.b11 = 0; Cfg.hb = 4; Cfg.f25 = 0.3; Cfg.s4 = 2; Cfg.g2 = 3; Cfg.l2t = 0; Cfg.tlbw = 0; Cfg.cpre = 1; Cfg.cpd = 4; Cfg.cps = 1; Cfg.esn = 0; Cfg.xcw = 1; Cfg.f8 = 1; Cfg.skipy = 0; Cfg.q7 = 0; Cfg.eh = 1; Cfg.ehn = 302; Cfg.cf = 3; Cfg.e4 = 22; Cfg.nref = 8; Cfg.c0f = 0; Cfg.p8 = 0; Cfg.rsx = 286; Cfg.rtx = 1; Cfg.rsy = 264; Cfg.rty = 2; Cfg.kvq = 1; Cfg.kvr = 2; Cfg.qp = 7; Cfg.pat = 7; Cfg.q9 = 0; Cfg.rc = 0; Cfg.w2e = 0; Cfg.bm = 1; Cfg.xl2 = 1; Cfg.o2 = 1; Cfg.s2x = 0; Cfg.s2y = 0; Cfg.hx = 1; Cfg.hb1 = 1; Cfg.hk0 = 4; Cfg.hk1 = 10; Cfg.hk2 = 16; Cfg.kvf = 8; Cfg.ystg = 1; Cfg.qat = 9; Cfg.f9 = 0.8

def build():
    out = []
    def put(lab, streams, name):
        l = []
        for x in streams: l += x.l
        if lab: out.append(lab + ':')
        out.extend('    ' + i.text if i.kind != 'label' else i.text for i in finalize(l, name))
    put(None, [prologue()], 'pro')
    if cfg.bonly:
        b = S()
        b('s_waitcnt vmcnt(0)')
        line_voff(b, 4, 5)
        b(f'v_lshl_add_u32 v252, v4, 10, v5\nv_lshlrev_b32 v242, 4, v1\nv_mov_b32 v248, 0\ns_lshl_b32 s6, s{sSB}, 8\ns_add_u32 s6, s6, {FE}')
        sbase(b, 6)
        b(f's_cmp_lt_u32 s{sW}, 6\ns_cselect_b32 s{SO}, s{SD}, s{SO}\ns_cselect_b32 s{SO+1}, s{SD+1}, s{SO+1}\ns_cselect_b32 s{SO+2}, s{SD+2}, s{SO+2}')
        b(f's_cmp_ge_u32 s{sW}, 4\ns_cbranch_scc1 L_bh')
        b(f'v_mov_b32 v252, {WS_BYTES}')
        b('s_barrier'); stamp(b, 7); b('s_branch L_BC\nL_bh:')
        b('s_barrier'); stamp(b, 7); b('s_branch L_BHY' if cfg.bonly == 1 else 's_branch L_BHX')
        put('L_bonly', [b], 'bo')
    put('L_compX', [compute('X')], 'cX')
    put('L_compY', [compute('Y')], 'cY')
    put('L_BC', [phaseB_body('C')], 'BC')
    hs = S(); hs(f's_cmp_eq_u32 s{sTY}, 0\ns_cbranch_scc1 L_helpX')
    put('L_helper', [hs, helperY()], 'hY')
    put('L_BHY', [phaseB_body('HY')], 'BHY')
    lx = S(); lx('L_BHX:')
    put('L_helpX', [helperX(), lx, phaseB_body('HX')], 'hX')
    put('L_red', [phaseB_tail()], 'red')
    put('L_fin', [fin()], 'fin')
    hdr = open('cdna_kernels/' + KN[:-7] + '.s.ref').read().split('; Override')[0]
    txt = hdr + '; @launch grid=(256,1,1) block=(512,1,1) lds=163840\n'
    txt += f'.amdgcn_target "amdgcn-amd-amdhsa--gfx950"\n.text\n.globl {KN}\n.p2align 8\n.type {KN},@function\n{KN}:\n'
    txt += '\n'.join(out) + '\nL_end:\n    s_endpgm\n'
    txt += f'''.section .rodata,"a"
.p2align 6
.amdhsa_kernel {KN}
  .amdhsa_next_free_vgpr 256
  .amdhsa_next_free_sgpr 102
  .amdhsa_accum_offset 256
  .amdhsa_group_segment_fixed_size 0
  .amdhsa_kernarg_size 88
  .amdhsa_user_sgpr_count 2
  .amdhsa_user_sgpr_kernarg_segment_ptr 1
  .amdhsa_system_sgpr_workgroup_id_x 1
.end_amdhsa_kernel
'''
    return txt

if __name__ == '__main__':
    for a in sys.argv[2:]:
        k, v = a.split('='); setattr(cfg, k, float(v) if '.' in v else int(v))
    d = getattr(cfg, 'fsh', 0)
    FKV += d; FH += d; FE += d; FO += d; FQ += d
    KV_OFF += getattr(cfg, 'ksh', 0)
    open(sys.argv[1], 'w').write(build())
```

```python
import sys
from fw import S, I, finalize
KN = 'recurrent_scan__linear_kernel_hedgehog__glu_gated_reglu__prompt_kernel'

class Cfg:
    stamps = 0; hdbg = 0; rt = 0; span = 0
    pa = -1; pb = -1; pw = 0
    mx512 = 1
    prioC = 1; prioH = 0
    tp = 2; pro = 0
    bud = 1000; quiet = 450
    mid2 = 1
    pre = 2
    bonly = 0
cfg = Cfg()

SLOT = [131072, 0, 32768]
KB = 65536; VB = 65536; STDB = 129024; RSB = 130048
KV_OFF = 0x900000
Q_OFF = 0x940000
F_OFF = 0xB40000
FKV, FH, FE, FO, FQ = F_OFF, F_OFF + 0x1000, F_OFF + 0x3000, F_OFF + 0x5000, F_OFF + 0x6000
TS_OFF = 0xB50000
WS_BYTES = 0xC00000
SPIN = 1 << 20
SX, SD, SO, SWS, SOUT, SQKV, SG, SU, SDBG, SPHI = 8, 12, 16, 20, 24, 28, 32, 36, 40, 44
SWH = SO
SP = 28
def srd(b): return f's[{b}:{b+3}]'
sW, sRB, sJ, sTY, sSB, sNB = 48, 49, 50, 51, 52, 53
sA0, sM0, sLBc, sC0, sL4, sL2 = 54, 56, 57, 58, 59, 60
sNON = 62
sT, sT2, sHEAD = 64, 65, 67
sHA, sHM, sHC, sW4 = 68, 69, 70, 71
sQ, sONES, sKV = 72, 74, 78
sWB, sLB, sH0, sH1, sXO, sWBc = 80, 81, 82, 83, 84, 85
sTS = 86
def vr(b, n): return f'v[{b}:{b+n-1}]'
MF = 'v_mfma_f32_32x32x16_bf16'

def stamp(s, idx, force=False):
    if not cfg.stamps: return
    if (cfg.hdbg or cfg.span) and idx != 12 and not force: return
    s('s_memrealtime s[76:77]' if cfg.rt else 's_memtime s[76:77]'); s('s_waitcnt lgkmcnt(0)'); s(f's_mov_b32 s{sTS+idx}, s76')

def build_srd(s, b, lo, nbytes):
    s(f's_mov_b32 s{b}, s{lo}\ns_mov_b32 s{b+1}, s{lo+1}\ns_mov_b32 s{b+2}, {nbytes}\ns_mov_b32 s{b+3}, 0x00020000')

BSTART = [32, 52, 72, 92, 0, 16, 112, 128]
CORDER = [0, 1, 2, 3, 12, 13, 14, 15, 8, 9, 10, 11, 4, 5, 6, 7, 16, 17, 18, 19]
NX0 = 8
def xpieces():
    a, b = (96, 97) if not cfg.stamps else (62, 63)
    r = []
    for c, g in ([(c, 4*b + g) for b in range(2) for c in range(4) for g in range(4)] if cfg.bm else [(c, g) for c in range(4) for g in range(8)]):
        if True:
            t = 66 if len(r) >= NX0 else 7
            p = S()
            p(f's_add_u32 m0, s{b}, {(g >> 2)*65536 + c*4096 + (g & 3)*1024 if cfg.xl2 else c*8192+g*1024}\ns_add_u32 s{t}, s{a}, {g*4096+c*256}')
            p(f'buffer_load_dwordx4 v{10+(g&3)}, {srd(SX)}, s{t} offen lds')
            r.append(p.l)
    return r

def merge(w, main, side, every):
    side = list(side)
    for n, i in enumerate(main.l):
        w.l.append(i)
        if side and n % every == every - 1: w.l.extend(side.pop(0))
    for x in side: w.l.extend(x)

def piece(lds_s, lds_o, g_s, g_o, voff, sr):
    p = S()
    p(f's_add_u32 m0, s{lds_s}, {lds_o}\ns_add_u32 s{sT}, s{g_s}, {g_o}')
    p(f'buffer_load_dwordx4 v{voff}, {srd(sr)}, s{sT} offen lds')
    return p.l

def sbase(s, soff): s(f's_add_u32 s4, s{SWS}, s{soff}\ns_addc_u32 s5, s{SWS+1}, 0')
def sload(s, z, n, two):
    sfx = {1: '', 2: 'x2', 4: 'x4', 8: 'x8', 16: 'x16'}[n]
    rg = lambda b: f's{b}' if n == 1 else f's[{b}:{b+n-1}]'
    s(f's_load_dword{sfx} {rg(z)}, s[4:5], 0 glc')
    if two: s(f's_load_dword{sfx} {rg(z+n)}, s[4:5], 128 glc')
def scheck(s, label, z, n, two, pairs=None):
    tot = n * (2 if two else 1)
    pairs = pairs or list(range(tot // 2))
    def test():
        s('s_waitcnt lgkmcnt(0)')
        if tot == 1: s(f's_cmp_eq_u32 s{z}, s{sNON}'); return
        s(f's_xor_b64 s[6:7], s[{z+2*pairs[0]}:{z+2*pairs[0]+1}], s[{sNON}:{sNON+1}]')
        for k in pairs[1:]:
            s(f's_xor_b64 s[76:77], s[{z+2*k}:{z+2*k+1}], s[{sNON}:{sNON+1}]\ns_or_b64 s[6:7], s[6:7], s[76:77]')
        s('s_cmp_eq_u64 s[6:7], 0')
    test()
    if cfg.bonly: return
    s(f's_cbranch_scc1 {label}_x')
    s('s_mov_b32 s75, 0')
    s(f'{label}:')
    if cfg.slp: s(f's_sleep {cfg.slp}')
    sload(s, z, n, two)
    s(f's_add_u32 s75, s75, 1\ns_cmp_gt_u32 s75, {SPIN}\ns_cbranch_scc1 {label}_y')
    test()
    s(f's_cbranch_scc0 {label}')
    s(f'{label}_y:')
    s('s_waitcnt lgkmcnt(0)')
    s(f'{label}_x:')
def post(s, vdat, vaddr, soff='0', needs=None):
    s('s_mov_b64 exec, 1', needs=needs)
    s(f'buffer_store_dword v{vdat}, v{vaddr}, {srd(SWS)}, {soff} offen sc1')
    s('s_mov_b64 exec, -1')

def prologue():
    s = S()
    s('s_cmp_ge_u32 s2, 256\ns_cbranch_scc1 L_end')
    s('s_load_dwordx16 s[64:79], s[0:1], 0\ns_load_dwordx4 s[80:83], s[0:1], 64\ns_load_dwordx2 s[84:85], s[0:1], 80')
    if cfg.stamps: s('s_memtime s[86:87]\ns_memrealtime s[88:89]')
    s('v_lshrrev_b32 v2, 6, v0\nv_and_b32 v1, 63, v0')
    s(f'v_readfirstlane_b32 s{sW}, v2')
    s('s_and_b32 s3, s2, 7\ns_lshr_b32 s4, s2, 3')
    s(f's_cmp_lg_u32 s{sW}, 7\ns_cbranch_scc1 L_nocode')
    s('s_getpc_b64 s[6:7]')
    s('L_pc:')
    s('s_and_b32 s5, s4, 7\ns_lshl_b32 s5, s5, 13\nv_lshl_add_u32 v3, v1, 7, s5\nv_min_u32 v3, L_end-L_pc, v3')
    s('global_load_dword v9, v3, s[6:7]', tag='raw')
    s('L_nocode:')
    s(f's_and_b32 s5, s3, 1\ns_lshl_b32 s5, s5, 3\ns_and_b32 s6, s4, 7\ns_add_u32 s{sRB}, s5, s6')
    s(f's_and_b32 s6, s{sW}, 3\ns_lshl_b32 s6, s6, 15\ns_lshl_b32 s5, s{sRB}, 17\ns_add_u32 s5, s5, s6')
    s('v_lshrrev_b32 v3, 4, v1\nv_and_b32 v4, 15, v1\nv_xor_b32 v4, v3, v4\nv_lshlrev_b32 v4, 4, v4\nv_lshl_add_u32 v10, v3, 10, v4')
    s('v_xor_b32 v11, 64, v10\nv_xor_b32 v12, 128, v10\nv_xor_b32 v13, 192, v10')
    s('s_waitcnt lgkmcnt(0)')
    if cfg.stamps:
        s('s_mov_b32 s101, s86\ns_mov_b32 s100, s88')
        for q in range(13): s(f's_mov_b32 s{86+q}, s101')
    build_srd(s, SX, 64, 2097152)
    if cfg.xl2: s('s_lshr_b32 s6, s6, 1')
    s('s_mov_b32 s96, s5\ns_mov_b32 s97, s6' if not cfg.stamps else 's_mov_b32 s62, s5\ns_mov_b32 s63, s6')
    s(f's_cmp_ge_u32 s{sW}, 4\ns_cbranch_scc1 L_nox')
    for p in xpieces()[:NX0]: s.l.extend(p)
    s('L_nox:')
    build_srd(s, SQKV, 66, 1572864); build_srd(s, SG, 74, 1835008); build_srd(s, SU, 76, 1835008)
    s(f's_lshr_b32 s5, s4, 3\ns_lshr_b32 s{sTY}, s5, 1\ns_and_b32 s5, s5, 1\ns_and_b32 s6, s3, 6\ns_add_u32 s{sJ}, s6, s5')
    if cfg.mx512:
        if cfg.nbm:
            s(f's_lshr_b32 s5, s3, 1\ns_lshl_b32 s5, s5, 3\ns_and_b32 s6, s4, 7\ns_add_u32 s{sSB}, s5, s6')
            s(f's_and_b32 s5, s3, 1\ns_lshl_b32 s5, s5, 2\ns_lshr_b32 s6, s4, 3\ns_add_u32 s{sNB}, s5, s6')
        else:
            s(f's_lshr_b32 s5, s3, 1\ns_lshl_b32 s5, s5, 3\ns_lshr_b32 s6, s4, 2\ns_add_u32 s{sSB}, s5, s6')
            s(f's_and_b32 s5, s3, 1\ns_lshl_b32 s5, s5, 2\ns_and_b32 s6, s4, 3\ns_add_u32 s{sNB}, s5, s6')
    else:
        s(f's_lshl_b32 s5, s3, 2\ns_lshr_b32 s6, s4, 3\ns_add_u32 s{sSB}, s5, s6\ns_and_b32 s{sNB}, s4, 7')
    build_srd(s, SPHI, 68, 16384); build_srd(s, SO, 70, 524288); build_srd(s, SD, 78, 1835008)
    build_srd(s, SOUT, 80, 2097152); build_srd(s, SDBG, 82, 256); build_srd(s, SWS, 84, WS_BYTES)
    s(f's_and_b32 s{sW4}, s{sW}, 3')
    s(f's_mul_i32 s6, s{sJ}, 160\ns_add_u32 s6, s6, 512\ns_and_b32 s7, s{sJ}, 1')
    s('s_lshl_b32 s3, s7, 5\ns_add_u32 s3, s3, s6')
    s('s_xor_b32 s7, s7, 1\ns_lshl_b32 s4, s7, 7\ns_add_u32 s4, s4, s6')
    s(f's_add_u32 s5, s3, 64\ns_lshl_b32 s6, s{sJ}, 6\ns_cmp_eq_u32 s{sTY}, 0\ns_cselect_b32 s5, s6, s5')
    s(f's_mov_b32 s6, {BSTART[0]}')
    for w in range(1, 8): s(f's_cmp_eq_u32 s{sW}, {w}\ns_cselect_b32 s6, {BSTART[w]}, s6')
    s(f's_add_u32 s{sLB}, s{sW}, 4\ns_sub_u32 s7, s{sW}, 2\ns_cmp_ge_u32 s{sW}, 4\ns_cselect_b32 s{sLB}, s7, s{sLB}\ns_add_u32 s7, s{sW}, 2\ns_cmp_ge_u32 s{sW}, 6\ns_cselect_b32 s{sLB}, s7, s{sLB}\ns_cselect_b32 s7, 112, 0\ns_lshl_b32 s{sLB}, s{sLB}, 14')
    s(f's_sub_u32 s7, s6, s7\ns_lshl_b32 s{sWB}, s7, 14\ns_lshl_b32 s7, s{sNB}, 7\ns_add_u32 s{sWB}, s{sWB}, s7')
    s(f's_mul_i32 s{sH0}, s{sSB}, 288\ns_add_u32 s{sH0}, s{sH0}, s6\ns_lshl_b32 s{sH0}, s{sH0}, 10\ns_add_u32 s{sH1}, s{sH0}, {144*1024}')
    s(f's_lshl_b32 s6, s{sSB}, 3\ns_add_u32 s6, s6, s{sW}\ns_lshl_b32 s6, s6, 13\ns_add_u32 s{sXO}, s6, s7')
    if cfg.bonly: s('s_branch L_bonly')
    s(f's_cmp_ge_u32 s{sW}, 4\ns_cbranch_scc1 L_helper')
    s(f's_cmp_eq_u32 s{sTY}, 0\ns_cbranch_scc0 L_compY\ns_branch L_compX')
    return s

M16 = 'v_mfma_f32_16x16x32_bf16'
XN = 0; ACC = [128, 144, 160, 176]; WF = 192; NRING = 6; PK = 224
vTL, vTH = 216, 220
vL16, vKW, vVW, vM2, vXA = 242, 243, 244, 245, 246
vC, vR2, vNON, vFA, vZ = 240, 254, 248, 252, 251

def compute(ty):
    X = ty == 'X'
    s = S()
    s(f's_setprio {cfg.prioC}')
    s(f'v_lshlrev_b32 v{vL16}, 4, v1')
    s('v_lshrrev_b32 v2, 4, v1\nv_and_b32 v3, 15, v1')
    s('v_bfe_u32 v4, v1, 2, 2\nv_lshl_add_u32 v4, v2, 3, v4\nv_and_b32 v5, 3, v1\nv_lshlrev_b32 v5, 3, v5')
    if not X:
        s(f'v_and_b32 v6, 1, v2\nv_lshl_add_u32 v6, v6, 5, v5\nv_lshl_add_u32 v{vKW}, v4, 6, v6\nv_xor_b32 v{vM2}, 32, v{vKW}')
    s(f'v_bfe_u32 v6, v1, 3, 1\nv_and_b32 v7, 1, v2\nv_lshl_add_u32 v6, v6, 1, v7\nv_lshl_add_u32 v5, v6, 5, v5\nv_lshl_add_u32 v{vTL}, v4, 7, v5')
    s(f'v_add_u32 v{vTH}, 0x20000, v{vTL}')
    for q in range(1, 4): s(f'v_xor_b32 v{vTL+q}, {32*q}, v{vTL}\nv_xor_b32 v{vTH+q}, {32*q}, v{vTH}')
    s('v_xor_b32 v4, v2, v3\nv_lshlrev_b32 v4, 4, v4\nv_and_b32 v5, 3, v1\nv_lshl_add_u32 v4, v5, 8, v4')
    s(f'v_bfe_u32 v5, v1, 2, 2\nv_lshl_add_u32 v4, v5, 10, v4\ns_lshl_b32 s6, s{sW}, {14 if cfg.xl2 else 15}\nv_add_u32 v{vXA}, s6, v4')
    for u in range(1, 4): s(f'v_xor_b32 v{vXA+u}, {u<<6}, v{vXA}')
    if X:
        s(f's_lshl_b32 s6, s{sW}, 10\ns_add_u32 s6, s6, {KB}\nv_lshlrev_b32 v4, 3, v1\nv_add_u32 v{vKW}, s6, v4')
        s(f'v_and_b32 v4, 1, v2\nv_lshrrev_b32 v6, 1, v2\nv_lshl_add_u32 v4, v4, 1, v6\nv_xor_b32 v4, v4, v5\nv_lshlrev_b32 v4, 3, v4\nv_lshl_add_u32 v4, v3, 5, v4\nv_add_u32 v{vVW}, s6, v4')
        s(f's_lshl_b32 s6, s{sRB}, 3\ns_add_u32 s6, s6, s{sJ}\ns_lshl_b32 s6, s6, 4\ns_add_u32 s6, s6, s{sW}\ns_lshl_b32 s6, s6, 10\ns_add_u32 s{sQ}, s6, {Q_OFF}')
    E = PK
    s('v_and_b32 v4, 1, v1\nv_lshlrev_b32 v4, 4, v4\nv_mov_b32 v6, 0x3f80\nv_lshlrev_b32 v6, v4, v6')
    s('v_cmp_eq_u32 vcc, v5, v2\nv_cndmask_b32 v6, 0, v6, vcc\nv_bfe_u32 v4, v1, 1, 1')
    s(f'v_cmp_eq_u32 vcc, 0, v4\nv_cndmask_b32 v{E}, 0, v6, vcc\nv_cndmask_b32 v{E+1}, v6, 0, vcc')
    s(f'v_mov_b32 v{E+2}, 0\nv_mov_b32 v{E+3}, 0\nv_mov_b32 v{E+4}, 0\nv_mov_b32 v{E+5}, 0\nv_mov_b32 v{E+6}, v{E}\nv_mov_b32 v{E+7}, v{E+1}')
    s(f's_lshl_b32 s6, s{sRB}, 2\ns_add_u32 s6, s6, s{sW}\ns_mul_i32 s6, s6, {144*1024}')
    s(f's_lshl_b32 s7, s3, 6\ns_add_u32 s{sHA}, s6, s7\ns_lshl_b32 s7, s4, 6\ns_add_u32 s{sHM}, s6, s7\ns_lshl_b32 s7, s5, 6\ns_add_u32 s{sHC}, s6, s7')
    s(f's_mov_b32 s{sONES}, 0x3f803f80')
    setup = s; s = S()
    merge(s, setup, xpieces()[NX0:16 if cfg.hx else 32], 3)
    if not cfg.hx: s('s_barrier')
    stamp(s, 0)
    SA = ACC[0]
    xr = lambda tt, b: XN + 8*tt + 4*b
    if cfg.bm:
        A0, Q0 = SA, SA + 2
        CM = ACC[0] + 8
        DT = ACC[1]; ND = 5; LAG = 2
        def reads(b, c):
            if not cfg.hx: s(f's_waitcnt vmcnt({4*(7 - 4*b - c)})')
            elif b == 0: s(f's_waitcnt vmcnt({4*(3 - c)})')
            for u in range(4): s(f'ds_read_b128 {vr(xr(4*c+u,b),4)}, v{vXA+u} offset:{c*4096 if cfg.xl2 else c*8192 + b*4096}')
            if cfg.xl2 and b == 0 and c == 3:
                for u in range(4): s(f'v_add_u32 v{vXA+u}, 0x10000, v{vXA+u}')
        def dots(b, c):
            for u in range(4):
                for r in range(4):
                    z = c == 0 and u == 0 and r < 2; x = xr(4*c+u, b) + r; k = 4*(r & 1)
                    s(f'v_dot2_f32_bf16 v{A0+b+k}, v{x}, s{sONES}, ' + ('0' if z else f'v{A0+b+k}'))
                    s(f'v_dot2_f32_bf16 v{Q0+b+k}, v{x}, v{x}, ' + ('0' if z else f'v{Q0+b+k}'))
        def stats(b):
            a_, q = A0 + b, Q0 + b
            s(f'v_add_f32 v{a_}, v{a_}, v{a_+4}\nv_add_f32 v{q}, v{q}, v{q+4}')
            s(f'v_permlane32_swap_b32 v{a_}, v{q}\nv_add_f32 v{a_}, v{a_}, v{q}\nv_mov_b32 v{q}, v{a_}\nv_permlane16_swap_b32 v{a_}, v{q}')
            s(f'v_add_f32 v{a_}, v{a_}, v{q}\nv_mul_f32 v{a_}, 0x3b000000, v{a_}\nv_mov_b32 v{q}, v{a_}\nv_permlane32_swap_b32 v{a_}, v{q}')
            s(f'v_cvt_pk_bf16_f32 v{CM+4*b}, -v{a_}, -v{a_}\nv_and_b32 v{CM+4*b}, 0xffff0000, v{CM+4*b}')
            for r in range(1, 4): s(f'v_mov_b32 v{CM+4*b+r}, v{CM+4*b}')
        def mkside(b):
            side = S(); q = Q0 + b
            if b == 0: side(f'v_mov_b32 v{vZ}, 0')
            side(f'v_fma_f32 v{q}, -v{A0+b}, v{A0+b}, v{q}\nv_max_f32 v{q}, 0, v{q}')
            side(f'v_cvt_pk_bf16_f32 v{q}, v{q}, v{q}\nv_and_b32 v{q}, 0xffff0000, v{q}\nv_add_f32 v{q}, 0x3727c5ac, v{q}')
            side(f'v_cvt_pk_bf16_f32 v{q}, v{q}, v{q}\nv_and_b32 v{q}, 0xffff0000, v{q}\nv_sqrt_f32 v{q}, v{q}')
            if X and b == 0: side(f'v_lshrrev_b32 v250, 2, v{vL16}\nv_and_b32 v250, 0x3c, v250\ns_lshl_b32 s6, s{sW}, 7\nv_add_u32 v250, s6, v250\nv_add_u32 v252, {RSB}, v250\nv_lshlrev_b32 v253, 1, v250\nv_add_u32 v253, {STDB}, v253')
            else: side('s_nop 0')
            side(f'v_cvt_pk_bf16_f32 v{234+2*b}, v{q}, v{q}\nv_mov_b32 v{235+2*b}, v{234+2*b}\nv_and_b32 v{q}, 0xffff0000, v{234+2*b}\nv_rcp_f32 v{q}, v{q}')
            if X and b == 1:
                for bb in range(2): side(f'ds_write_b64 v253, v[{234+2*bb}:{235+2*bb}] offset:{128*bb}')
            else: side('s_nop 0')
            if X: side(f'v_mul_f32 v{vC+b}, 0x3fb8aa3b, v{q}')
            side(f'v_mul_f32 v{vR2+b}, v{q}, v{q}')
            if X and b == 1:
                for bb in range(2): side(f'ds_write_b32 v252, v{Q0+bb} offset:{64*bb}')
            return side.l
        def center(b, hooks):
            nonlocal pre_reads_at
            side = mkside(b)
            for f in range(16 + LAG):
                g = f - LAG
                cv = [f'v_cvt_pk_bf16_f32 v{xr(g,b)+j}, v{DT+8*(g%ND)+2*j}, v{DT+8*(g%ND)+2*j+1}' for j in range(4)] if g >= 0 else []
                for a_ in range(2):
                    if f < 16: s(f'{M16} {vr(DT+8*(f%ND)+4*a_,4)}, {vr(E+4*a_,4)}, {vr(xr(f,b),4)}, {vr(CM+4*b,4)}')
                    for x in cv[2*a_:2*a_+2]: s(x)
                    if side: s.l.append(side.pop(0))
                if f in hooks: hooks[f]()
                if b == 1 and f == 12: s('s_waitcnt lgkmcnt(0)\ns_barrier')
                if b == 1 and f == 14: pre_reads_at = len(s.l)
            assert not side
        pre_reads_at = None
        for c in range(4): reads(0, c); dots(0, c)
        stats(0)
        stamp(s, 1)
        if cfg.hx:
            center(0, {cfg.hk2: lambda: (s('s_barrier'), reads(1, 0), reads(1, 1), reads(1, 2))})
            dots(1, 0); reads(1, 3); dots(1, 1); dots(1, 2); dots(1, 3)
        else:
            center(0, {cfg.hk0: lambda: reads(1, 0), cfg.hk1: lambda: reads(1, 1), cfg.hk2: lambda: reads(1, 2)})
            dots(1, 0); dots(1, 1); reads(1, 3); dots(1, 2); dots(1, 3)
        s('s_barrier')
        stats(1)
        stamp(s, 2)
        center(1, {})
    else:
        for c in range(4):
            s(f's_waitcnt vmcnt({8*(3-c)})')
            if c == 3: stamp(s, 1)
            for u in range(4):
                for b in range(2): s(f'ds_read_b128 {vr(xr(4*c+u,b),4)}, v{vXA+u} offset:{c*8192 + b*4096}')
            for u in range(4):
                for r in range(4):
                    for b in range(2):
                        z = c == 0 and u == 0 and r == 0; x = xr(4*c+u, b) + r
                        s(f'v_dot2_f32_bf16 v{SA+b}, v{x}, s{sONES}, ' + ('0' if z else f'v{SA+b}'))
                        s(f'v_dot2_f32_bf16 v{SA+2+b}, v{x}, v{x}, ' + ('0' if z else f'v{SA+2+b}'))
        s('s_barrier')
        A0, A1, Q0, Q1 = SA, SA + 1, SA + 2, SA + 3
        s(f'v_permlane32_swap_b32 v{A0}, v{Q0}\nv_permlane32_swap_b32 v{A1}, v{Q1}\nv_add_f32 v{A0}, v{A0}, v{Q0}\nv_add_f32 v{A1}, v{A1}, v{Q1}')
        s(f'v_permlane16_swap_b32 v{A0}, v{A1}\nv_add_f32 v{A0}, v{A0}, v{A1}\nv_mul_f32 v{A0}, 0x3b000000, v{A0}')
        s(f'v_mov_b32 v{A1}, v{A0}\nv_permlane16_swap_b32 v{A0}, v{A1}\nv_mov_b32 v{Q0}, v{A0}\nv_mov_b32 v{Q1}, v{A1}')
        s(f'v_permlane32_swap_b32 v{A0}, v{Q0}\nv_permlane32_swap_b32 v{A1}, v{Q1}')
        CM = ACC[0] + 8
        for b in range(2):
            s(f'v_cvt_pk_bf16_f32 v{CM+4*b}, -v{A0+b}, -v{A0+b}\nv_and_b32 v{CM+4*b}, 0xffff0000, v{CM+4*b}')
            for r in range(1, 4): s(f'v_mov_b32 v{CM+4*b+r}, v{CM+4*b}')
        stamp(s, 2)
        side = S()
        side(f'v_mov_b32 v{vZ}, 0')
        for b in range(2):
            q = Q0 + b
            side(f'v_fma_f32 v{q}, -v{A0+b}, v{A0+b}, v{q}\nv_max_f32 v{q}, 0, v{q}')
            side(f'v_cvt_pk_bf16_f32 v{q}, v{q}, v{q}\nv_and_b32 v{q}, 0xffff0000, v{q}\nv_add_f32 v{q}, 0x3727c5ac, v{q}')
            side(f'v_cvt_pk_bf16_f32 v{q}, v{q}, v{q}\nv_and_b32 v{q}, 0xffff0000, v{q}\nv_sqrt_f32 v{q}, v{q}')
            if X and b == 0: side(f'v_lshrrev_b32 v250, 2, v{vL16}\nv_and_b32 v250, 0x3c, v250\ns_lshl_b32 s6, s{sW}, 7\nv_add_u32 v250, s6, v250\nv_add_u32 v252, {RSB}, v250\nv_lshlrev_b32 v253, 1, v250\nv_add_u32 v253, {STDB}, v253')
            else: side('s_nop 0')
            side(f'v_cvt_pk_bf16_f32 v234, v{q}, v{q}\nv_mov_b32 v235, v234\nv_and_b32 v{q}, 0xffff0000, v234\nv_rcp_f32 v{q}, v{q}')
            if X:
                side(f'ds_write_b64 v253, v[234:235] offset:{128*b}\nds_write_b32 v252, v{q} offset:{64*b}')
                side(f'v_mul_f32 v{vC+b}, 0x3fb8aa3b, v{q}')
            else: side('s_nop 0')
            side(f'v_mul_f32 v{vR2+b}, v{q}, v{q}')
        side = side.l
        DT = ACC[1]; ND = 5
        LAG = 2
        for f in range(32 + LAG):
            g = f - LAG
            cv = [f'v_cvt_pk_bf16_f32 v{XN+4*g+j}, v{DT+8*(g%ND)+2*j}, v{DT+8*(g%ND)+2*j+1}' for j in range(4)] if g >= 0 else []
            for a_ in range(2):
                if f < 32: s(f'{M16} {vr(DT+8*(f%ND)+4*a_,4)}, {vr(E+4*a_,4)}, {vr(XN+4*f,4)}, {vr(CM+4*(f&1),4)}')
                for x in cv[2*a_:2*a_+2]: s(x)
                if side: s.l.append(side.pop(0))
            if f == 28: s('s_waitcnt lgkmcnt(0)\ns_barrier')
            if f == 30: pre_reads_at = len(s.l)
        assert not side
    stamp(s, 3)
    mf = []
    for st in range(10):
        base = SLOT[st % 3]
        if not ((4 <= st < 6) or (X and st < 4)):
            sl = st if st < 4 else st - 6
            accs = [0, 1, 2, 3] if st < 4 else [2, 3, 0, 1]
            for p in range(2):
                for t in range(4):
                    for c in range(2):
                        for a_ in range(2):
                            mf.append((st, ACC[accs[2*p+c]] + 8*a_, 4*sl + t, (base + c*16384 + t*4096, 2*p + a_), sl == 0 and t == 0))
        else:
            sl = st & 1; a0 = 2 if st in (2, 3) else 0
            for t in range(8):
                for c in range(2):
                    for a_ in range(2):
                        mf.append((st, ACC[a0 + c] + 8*a_, 8*sl + t, (base + t*4096, 2*c + a_) if X else (base + c*16384 + t*2048, -1 - a_), sl == 0 and t == 0))
    N = len(mf)
    def packswap(e, src, pk, mul):
        for b in range(2):
            if mul is not None:
                for r in range(4): e.append(f'v_mul_f32 v{src+4*b+r}, v{src+4*b+r}, v{mul+b}')
            e.append(f'v_cvt_pk_bf16_f32 v{pk+2*b}, v{src+4*b}, v{src+4*b+1}')
            e.append(f'v_cvt_pk_bf16_f32 v{pk+2*b+1}, v{src+4*b+2}, v{src+4*b+3}')
    def swaps(e, pk):
        e.append(f'v_permlane16_swap_b32 v{pk}, v{pk+2}'); e.append(f'v_permlane16_swap_b32 v{pk+1}, v{pk+3}')
    def ep_h(g, u, sbase, off, PK=PK, defer=None):
        e = []; dst = e if defer is None else defer
        for a_ in range(2):
            for j in range(8*a_, 8*a_ + 8): e.append(f'v_max_f32 v{g+j}, 0, v{g+j}')
            if a_ == 1:
                swaps(e, PK); dst.append(f'buffer_store_dwordx4 {vr(PK,4)}, v{vL16}, {srd(SWS)}, s{sbase} offen offset:{off} sc1')
            for j in range(8*a_, 8*a_ + 8): e.append(f'v_mul_f32 v{g+j}, v{g+j}, v{u+j}')
            packswap(e, g + 8*a_, PK + 4*a_, vR2)
        e.append('s_nop 0'); swaps(e, PK + 4)
        dst.append(f'buffer_store_dwordx4 {vr(PK+4,4)}, v{vL16}, {srd(SWS)}, s{sbase} offen offset:{off+1024} sc1')
        return e
    def ep_hand(a0, a1, kind):
        e = []; fin = []
        for hd in range(4):
            src = (a0, a1)[hd >> 1] + 8*(hd & 1); pk = PK + 4*hd
            t = []; packswap(t, src, pk, None if kind == 'v' else vC)
            if kind == 'v':
                e += t[:2] + [f'ds_write_b64 v{vVW}, {vr(pk,2)} offset:{hd*4096}'] + t[2:] + [f'ds_write_b64 v{vVW}, {vr(pk+2,2)} offset:{hd*4096+512}']
                continue
            e += t[:6] + fin + t[6:]; fin = []
            swaps(fin, pk)
            if kind == 'k': fin += [f'ds_write_b64 v{vKW}, {vr(pk,2)} offset:{hd*4096}', f'ds_write_b64 v{vKW}, {vr(pk+2,2)} offset:{hd*4096+512}']
            else:
                fin.append(f'buffer_store_dwordx4 {vr(pk,4)}, v{vL16}, {srd(SWS)}, s{sQ} offen sc1')
                if hd < 3: fin.append(f's_add_u32 s{sQ}, s{sQ}, 4096')
        return e + fin
    A = ACC
    fill = {}; late = {}; posts = {}; mids = []
    skip = (({0: set(), 1: {7}, 2: {8}}[cfg.skip]) if X else ({8} if cfg.skipy else set()))
    fa = f's_lshl_b32 s6, s{sRB}, 2\ns_add_u32 s6, s6, s{sW}\ns_lshl_b32 s6, s6, 5\ns_add_u32 s6, s6, s{sJ}' + ('' if X else '\ns_add_u32 s6, s6, 8') + f'\ns_lshl_b32 s6, s6, 2\ns_add_u32 s6, s6, {FH}\nv_mov_b32 v{vFA}, s6'
    if X:
        fill[2*32] = (ep_hand(A[0], A[1], 'k'), 2*32 + 17); mids.append(2*32 + 19)
        if cfg.kvq:
            fill[4*32] = (ep_hand(A[2], A[3], 'v'), 4*32 + 12); mids.append(4*32 + 14)
            fill[6*32] = (ep_hand(A[0], A[1], 'q'), 6*32 + 15); mids.append(7*32 + cfg.qp + 1)
            skip = {8}
        else:
            fill[4*32] = (ep_hand(A[2], A[3], 'q'), 4*32 + 24)
            fill[6*32] = (ep_hand(A[0], A[1], 'v'), 6*32 + 10)
            mids.append(6*32 + 12)
        extra = f'\ns_lshl_b32 s6, s{sRB}, 3\ns_add_u32 s6, s6, s{sJ}\ns_lshl_b32 s6, s6, 5\ns_add_u32 s6, s6, s{sW}\ns_lshl_b32 s6, s6, 2\ns_add_u32 s6, s6, {FQ}\nv_mov_b32 v253, s6'
        posts[7*32 + cfg.qp if cfg.kvq else 5*32 + 12] = (253, '0')
    else:
        d1 = []; d2 = []
        fill[3*32+16] = (ep_h(A[0], A[1], sHA, 0, PK, d1), 3*32 + 31)
        fill[4*32] = (ep_h(A[2], A[3], sHA, 2048, PK + 8, d1), 4*32 + cfg.e4)
        fill[6*32] = (ep_h(A[0], A[1], sHM, 0, PK, d2), 6*32 + 15)
        for k, x in enumerate(d1): late[4*32 + (19, 21, cfg.e4 + 1, cfg.e4 + 2)[k]] = x
        for k, x in enumerate(d2): late[6*32 + 21 + 3*k] = x
        extra = f'\ns_mov_b32 s{sQ}, {FE-FH}'
        posts[7*32 + 20] = (vFA, f's{sQ}')
    if cfg.s2x if X else cfg.s2y:
        skip = skip | {2}
        if not X: mids.append(2*32 + cfg.s2y)
    fill[1*32+2] = ([f'buffer_load_dword v{vNON}, v{vZ}, {srd(SDBG)}, 0 offen sc1'] + (fa + extra).split('\n'), 1*32 + 22)
    t = S()
    t(f'v_lshrrev_b32 v249, 4, v{vL16}')
    b_traddr(t, 244, sLB, 250, 249)
    t('v_xor_b32 v246, 64, v244')
    line_voff(t, 250, 243, 249)
    t('v_lshl_add_u32 v243, v250, 10, v243')
    t('v_and_b32 v250, 1, v249\nv_lshlrev_b32 v250, 2, v250\nv_bfe_u32 v253, v249, 1, 1\nv_lshl_add_u32 v253, v253, 7, v250')
    t(f's_lshl_b32 s6, s{sSB}, 8\ns_lshl_b32 s7, s{sW}, 3\ns_add_u32 s6, s6, s7\ns_add_u32 s6, s6, {FE+32}\nv_add_u32 v253, s6, v253')
    late[cfg.ehn - 10] = f'buffer_load_dword v250, v253, {srd(SWS)}, 0 offen sc1'
    if cfg.p8:
        fill[7*32+12] = ([i.text for i in t.l], 7*32 + 27)
        pstart = 8*32 + 2; rstart, rstep = (cfg.rsx, cfg.rtx) if X else (cfg.rsy, cfg.rty)
    else:
        fill[8*32+2] = ([i.text for i in t.l], 8*32 + 24)
        pstart = 8*32 + 30; rstart, rstep = pstart + cfg.cpd, 1
    pre9 = []
    for i in range(8):
        g = []
        for c in range(2):
            g.append(I(f'ds_read_b64_tr_b16 {vr(8*i+4*c,2)}, v{(244, 246)[c]} offset:{2048*i}'))
            g.append(I(f'ds_read_b64_tr_b16 {vr(8*i+4*c+2,2)}, v{(244, 246)[c]} offset:{2048*i+B2}'))
        pre9.append(g)
    ref9 = ownpieces(range(8, 16), sLB, O8, 243, SD, CORDER)
    for k, p in enumerate(ref9): p[-1].needs = [pre9[k // 2][-1]]
    ref9 = ref9[:2*cfg.nref]
    fill[9*32+16] = (ep_h(A[2], A[3], sHC, 0), 9*32 + 31)
    tail = ep_h(A[0], A[1], sHC, 2048, PK + 8)
    def rd(n):
        st, a, xf, (off, q), first = mf[n]
        if q < 0: va, o, d = (vKW, vM2)[-1 - q], off, 256
        elif off >= 131072: va, o, d = vTH + q, off - 131072, 512
        else: va, o, d = vTL + q, off, 512
        r = WF + 4*(n % NRING)
        return [f'ds_read_b64_tr_b16 {vr(r,2)}, v{va} offset:{o}', f'ds_read_b64_tr_b16 {vr(r+2,2)}, v{va} offset:{o+d}']
    nxt = 0; half = []; pend = []; rdtok = {}
    def issue_reads(limit_frag, maxn):
        nonlocal nxt, half
        k = 0
        while k < maxn:
            if not half:
                if nxt > limit_frag or nxt >= N: break
                half = [(nxt, x) for x in rd(nxt)]; nxt += 1
            f, x = half.pop(0); rdtok[f] = s(x); k += 1
        return k
    passed = 0
    keep = s.l[pre_reads_at:]; del s.l[pre_reads_at:]
    issue_reads(NRING - 2, 2*(NRING - 1))
    s.l.extend(keep)
    delay = 0; dead = 0
    BP = 28
    def fillers(k):
        nw = 0
        while pend and k > 0:
            if pend[0].startswith('ds_write'):
                if nw and not last_gap: break
                nw += 1
            s(pend.pop(0)); k -= 1
    for n in range(N):
        st, a, xf, off, first = mf[n]
        if n in fill:
            assert not pend
            pend = list(fill[n][0]); dead = fill[n][1]; delay = 1
        needs = []
        if n % 2 == 0 and (n + 1) in rdtok and not (half and half[0][0] == n + 1): needs = [rdtok[n+1]]
        r = WF + 4*(n % NRING)
        isbar = n % 32 == BP and st + 1 not in skip
        lim = min(n + NRING - 1, 32*(passed+1) - 1)
        budget = 0; last_gap = False
        if delay > 0: delay -= 1
        elif pend and not isbar:
            gaps = sum(1 for m in range(n, dead + 1) if m % 32 != BP or m // 32 + 1 in skip)
            budget = -(-len(pend) // gaps); last_gap = gaps == 1
        s(f'{M16} {vr(a,4)}, {vr(r,4)}, {vr(xr(xf,0),4)}, ' + ('0' if first else vr(a,4)), needs=needs)
        if not isbar:
            behind = (min(lim, n + NRING - 2) - nxt + 1) * 2 + len(half)
            issue_reads(min(lim, n + NRING - 2), 2 if behind > 2 else 1)
            fillers(budget // 2)
        s(f'{M16} {vr(a+4,4)}, {vr(r,4)}, {vr(xr(xf,1),4)}, ' + ('0' if first else vr(a+4,4)))
        if isbar:
            assert nxt == 32*(st+1) and not half, (n, nxt)
            s('s_waitcnt lgkmcnt(0)')
            if cfg.hdbg and cfg.hb <= st <= cfg.hb + 5: stamp(s, 2*(st-cfg.hb), True)
            s('s_barrier'); passed = st + 1
            if passed + 1 in skip and (passed + 1 == 2 or (passed + 1 == 8 and not (X and cfg.kvq))): passed += 1
            if cfg.hdbg and cfg.hb <= st <= cfg.hb + 5: stamp(s, 2*(st-cfg.hb)+1, True)
            if st in (3, 5): stamp(s, 4 if st == 3 else 5)
            issue_reads(min(n + NRING - 1, N - 1), 4)
            if st == 9:
                s(f'v_readfirstlane_b32 s{sNON}, v{vNON}\ns_lshl_b32 s6, s{sSB}, 8\ns_lshl_b32 s7, s{sW}, 3\ns_add_u32 s6, s6, s7\ns_add_u32 s6, s6, {FE+32}')
                sbase(s, 6)
                s(f's_mov_b32 s{sNON+1}, s{sNON}')
            continue
        if n in mids:
            assert not pend
            s('s_barrier', needs=[i for i in s.l if i.op == 'ds_write_b64'][-1:])
            if st + 1 in skip and (st + 1 == 7 or cfg.kvq): passed = st + 1
        behind = (lim - nxt + 1) * 2 + len(half)
        issue_reads(lim, 2 if behind > 2 else 1)
        if n in late: s(late[n])
        if 0 <= n - pstart < 16:
            k = n - pstart; s.l.extend(pre9[k // 2][2*(k % 2):2*(k % 2) + 2])
        if n >= rstart and ref9 and (n - rstart) % rstep == 0: s.l.extend(ref9.pop(0))
        for lab_, at, dat, adr, sr, cond in ((f'L_e{ty}', cfg.ehn, 250, 253, SWS, f'v_cmp_ne_u32 vcc, v250, v{vNON}'),
                                             (f'L_non{ty}c', 3*32 + 4, vNON, vZ, SDBG, f'v_cmp_eq_u32 vcc, 0, v{vNON}')):
            if n == at:
                s(f'{cond}\ns_cbranch_vccz {lab_}_x')
                s('s_mov_b32 s75, 0')
                s(f'{lab_}:')
                s(f'buffer_load_dword v{dat}, v{adr}, {srd(sr)}, 0 offen sc1\ns_waitcnt vmcnt(0)', tag='raw')
                s(f's_add_u32 s75, s75, 1\ns_cmp_gt_u32 s75, {SPIN}\ns_cbranch_scc1 {lab_}_x')
                s(f'{cond}\ns_cbranch_vccnz {lab_}')
                s(f'{lab_}_x:')
        if 0 <= n - cfg.ehn < 8:
            k = n - cfg.ehn
            s(f'buffer_load_dwordx4 {vr(64 + 4*k, 4)}, v{vL16}, {srd(SWS)}, s{sH0 + (k & 1)} offen offset:{(k >> 1)*1024} sc1')
        if n in posts: post(s, vNON, posts[n][0], posts[n][1], [[i for i in s.l if i.kind == 'vmst'][-1]])
        fillers(budget - budget // 2 if not last_gap else 99)
    assert not pend and not ref9
    stamp(s, 6)
    for x in tail: s(x)
    vms = [i for i in s.l if i.kind in ('vm', 'vmst', 'vmlds')]
    assert all(i.kind == 'vmst' for i in vms[-4:])
    stamp(s, 7)
    s('s_branch L_BC')
    return s

vOQ, vOG, vW2 = 2, 3, 252
WRB = 72
vOQ2, vOG2 = 249, 250
vOM = 251
def dma_stage(st, X):
    base = SLOT[st % 3]; r = []
    if X and st < 6:
        col = ([1024, 2048, 0] if cfg.kvq else [1024, 0, 2048])[st >> 1]
        for b in range(8): r.append(piece(sL2, base + b*1024, sM0, (256*(st & 1) + 8*b)*3072 + col, (vOQ, vOQ2)[b & 1], SQKV))
    elif st < 4 or st >= 6:
        sl = st if st < 4 else st - 6
        sb = sA0 if st < 4 else sC0
        for b in range(4):
            for pos, sr in enumerate((SG, SU)): r.append(piece(sL4, base + pos*16384 + b*1024, sb, (128*sl + 8*b)*3584, (vOG, vOG2)[b & 1], sr))
    else:
        for b in range(4):
            row = 256*(st & 1) + 16*b
            for pos, sr in enumerate((SG, SU)): r.append(piece(sL4, base + pos*16384 + b*1024, sM0, row*3584, vOM, sr))
    return r
def cwpieces(w):
    return [piece(sLBc, (w+4)*16384 + k*8192 + c*1024, sWBc, (BSTART[w]+12*k)*16384 + 8192*c, vW2, SD) for k in range(2) for c in range(2)]
sLBx, sWBx = 54, 55
def cwpiecesx(w, es=(0, 1)):
    return [piece(sLBx, (w+4)*16384 + e*2048 + c*1024, sWBx, (BSTART[w]+e)*16384 + 8192*c, vW2, SD) for e in es for c in range(2)]
def cwpieces2():
    return [piece(sLBc, w*8192 + c*1024, sWBc, (BSTART[w]+16)*16384 + 8192*c, vW2, SD) for w in range(4) for c in range(2)]
def ownpieces(steps, sbase, offs, voff=vW2, sr=SWH, rel=None):
    return [piece(sbase, o + c*1024, sWB, (rel[i] if rel else i)*16384 + 8192*c, voff, sr) for i, o in zip(steps, offs) for c in range(2)]
def emit(s, pieces, raw=False):
    for p in pieces:
        for x in p:
            if raw: x.tag = 'raw'
            s.l.append(x)
    return pieces[-1][-1]
def b_traddr(s, dst, sbase, t, lane=1):
    s(f'v_lshrrev_b32 v{t}, 5, v{lane}\nv_bfe_u32 v{dst}, v{lane}, 2, 2')
    s(f'v_lshl_add_u32 v{dst}, v{t}, 3, v{dst}\nv_lshlrev_b32 v{dst}, 7, v{dst}')
    s(f'v_bfe_u32 v{t}, v{lane}, 3, 1\nv_lshl_add_u32 v{dst}, v{t}, 6, v{dst}')
    s(f'v_bfe_u32 v{t}, v{lane}, 4, 1\nv_lshl_add_u32 v{dst}, v{t}, 5, v{dst}\nv_and_b32 v{t}, 3, v{lane}\nv_lshl_add_u32 v{dst}, v{t}, 3, v{dst}')
    if sbase is not None: s(f'v_add_u32 v{dst}, s{sbase}, v{dst}')
def line_voff(s, row, chunk, lane=1):
    s(f'v_lshrrev_b32 v{row}, 3, v{lane}\nv_bfe_u32 v{chunk}, v{lane}, 4, 1\nv_lshlrev_b32 v{chunk}, 2, v{chunk}\nv_xor_b32 v{chunk}, v{lane}, v{chunk}\nv_and_b32 v{chunk}, 7, v{chunk}\nv_lshlrev_b32 v{chunk}, 4, v{chunk}')
O8 = [2048*k for k in range(8)]
B2 = 512
def stg_offs(regions): return [(w + 4)*16384 + k*8192 for w in regions for k in range(2)]
def stg_reads(steps, offs, va, tok):
    w = S()
    for i, o in zip(steps, offs):
        for c in range(2):
            f = WRB + 8*i + 4*c
            w(f'ds_read_b64_tr_b16 {vr(f,2)}, v{va+c} offset:{o - 65536}', needs=[tok])
            w(f'ds_read_b64_tr_b16 {vr(f+2,2)}, v{va+c} offset:{o - 65536 + B2}')
    w.l.insert(12, I('s_waitcnt lgkmcnt(4)'))
    w('s_waitcnt lgkmcnt(0)')
    return w

def softmax_k(s, P, rs, out, t):
    m0, m1, n0, n1 = t
    s(f'v_max3_f32 v{m0}, v{P}, v{P+1}, v{P+2}\nv_max3_f32 v{m1}, v{P+3}, v{P+4}, v{P+5}')
    s(f'v_max3_f32 v{n0}, v{P+6}, v{P+7}, v{P+8}\nv_max3_f32 v{n1}, v{P+9}, v{P+10}, v{P+11}')
    s(f'v_max3_f32 v{m0}, v{m0}, v{P+12}, v{P+13}\nv_max3_f32 v{m1}, v{m1}, v{P+14}, v{P+15}')
    s(f'v_max3_f32 v{m0}, v{m0}, v{n0}, v{n1}\nv_max_f32 v{m0}, v{m0}, v{m1}')
    for j in range(16): s(f'v_sub_f32 v{P+j}, v{P+j}, v{m0}')
    for j in range(16): s(f'v_exp_f32 v{P+j}, v{P+j}')
    s(f'v_add_f32 v{n0}, v{P}, v{P+1}\nv_add_f32 v{n1}, v{P+2}, v{P+3}\nv_add_f32 v{m0}, v{P+4}, v{P+5}\nv_add_f32 v{m1}, v{P+6}, v{P+7}')
    for j in range(8, 16): s(f'v_add_f32 v{t[j%4]}, v{t[j%4]}, v{P+j}')
    s(f'v_add_f32 v{m0}, v{m0}, v{m1}\nv_add_f32 v{n0}, v{n0}, v{n1}\nv_add_f32 v{n0}, v{n0}, v{m0}')
    s(f'v_rcp_f32 v{n0}, v{n0}')
    s(f'v_mul_f32 v{n0}, v{n0}, v{rs}')
    for j in range(0, 16, 2):
        s(f'v_mul_f32 v{P+j}, v{P+j}, v{n0}\nv_mul_f32 v{P+j+1}, v{P+j+1}, v{n0}')
        if j >= 2: s(f'v_cvt_pk_bf16_f32 v{out+j//2-1}, v{P+j-2}, v{P+j-1}')
    s(f'v_cvt_pk_bf16_f32 v{out+7}, v{P+14}, v{P+15}')

def softmax_q(s, P, out, t):
    m0, m1, n0, n1 = t
    s(f'v_max3_f32 v{m0}, v{P}, v{P+1}, v{P+2}\nv_max3_f32 v{m1}, v{P+8}, v{P+9}, v{P+10}')
    s(f'v_max3_f32 v{n0}, v{P+3}, v{P+4}, v{P+5}\nv_max3_f32 v{n1}, v{P+11}, v{P+12}, v{P+13}')
    s(f'v_max3_f32 v{m0}, v{m0}, v{P+6}, v{P+7}\nv_max3_f32 v{m1}, v{m1}, v{P+14}, v{P+15}')
    s(f'v_max_f32 v{m0}, v{m0}, v{n0}\nv_max_f32 v{m1}, v{m1}, v{n1}')
    s(f'v_permlane32_swap_b32 v{m0}, v{m1}')
    s(f'v_max_f32 v{m0}, v{m0}, v{m1}')
    s(f'v_mov_b32 v{m1}, v{m0}')
    s(f'v_permlane32_swap_b32 v{m0}, v{m1}')
    for j in range(16): s(f'v_sub_f32 v{P+j}, v{P+j}, v{m0 if j < 8 else m1}')
    for j in range(16):
        s(f'v_exp_f32 v{P+j}, v{P+j}')
        if j >= 3 and j % 2 == 1: s(f'v_cvt_pk_bf16_f32 v{out+(j-3)//2}, v{P+j-3}, v{P+j-2}')
    s(f'v_cvt_pk_bf16_f32 v{out+7}, v{P+14}, v{P+15}')

def w1touch(s, X, part):
    s(f's_and_b32 s6, s{sRB}, 7\ns_lshl_b32 s6, s6, 6\nv_add_u32 v8, s6, v1')
    s('v_mul_u32_u24 v9, 0xe00, v8')
    d = 253 if part != 2 else 243
    if X:
        s('v_mul_u32_u24 v8, 0xc00, v8')
        s(f's_lshl_b32 s6, s{sJ}, 7\n' + (f's_add_u32 s7, s{sW4}, 1\ns_cmp_eq_u32 s{sW4}, 2\ns_cselect_b32 s7, 0, s7' if cfg.kvq else f's_xor_b32 s7, s{sW4}, 1\ns_cmp_eq_u32 s{sW4}, 2\ns_cselect_b32 s7, 2, s7') + f'\ns_lshl_b32 s7, s7, 10\ns_add_u32 s6, s6, s7\ns_lshl_b32 s7, s5, 1')
        s(f's_cmp_eq_u32 s{sW4}, 3\ns_cselect_b32 s6, 0x200000, s6\ns_cselect_b32 s7, s7, 0x200000')
        if part == 1: s(f's_cmp_ge_u32 s{sW4}, 2\ns_cselect_b32 s6, 0x200000, s6\ns_mov_b32 s7, 0x200000')
        if part == 2: s(f's_cmp_lt_u32 s{sW4}, 2\ns_cselect_b32 s6, 0x200000, s6')
        s(f'buffer_load_dword v{d}, v8, {srd(SQKV)}, s6 offen')
        if part != 1: s(f'buffer_load_dword v{d+1}, v9, {srd(SG)}, s7 offen\nbuffer_load_dword v{d+2}, v9, {srd(SU)}, s7 offen')
    else:
        s(f's_cmp_eq_u32 s{sW4}, 1\ns_cselect_b32 s6, s4, s3\ns_cmp_eq_u32 s{sW4}, 2\ns_cselect_b32 s6, s5, s6\ns_lshl_b32 s6, s6, 1')
        s(f's_cmp_eq_u32 s{sW4}, 3\ns_cselect_b32 s6, 0x200000, s6')
        if part == 1: s(f's_cmp_ge_u32 s{sW4}, 1\ns_cselect_b32 s6, 0x200000, s6')
        if part == 2: s(f's_cmp_lt_u32 s{sW4}, 1\ns_cselect_b32 s6, 0x200000, s6')
        s(f'buffer_load_dword v{d}, v9, {srd(SG)}, s6 offen\nbuffer_load_dword v{d+1}, v9, {srd(SU)}, s6 offen')

def malltouch(s):
    s(f's_mul_i32 s6, s2, 6144\ns_mul_i32 s7, s2, 7168\nv_lshlrev_b32 v8, 7, v1\nv_min_u32 v9, 6016, v8\nv_min_u32 v8, 7040, v8')
    s(f's_cmp_eq_u32 s{sW}, 4\ns_cselect_b32 s6, s6, 0x200000\nbuffer_load_dword v236, v9, {srd(SQKV)}, s6 offen')
    s(f's_cmp_eq_u32 s{sW}, 5\ns_cselect_b32 s6, s7, 0x200000\nbuffer_load_dword v237, v8, {srd(SG)}, s6 offen')
    s(f's_cmp_eq_u32 s{sW}, 6\ns_cselect_b32 s6, s7, 0x200000\nbuffer_load_dword v242, v8, {srd(SU)}, s6 offen')

def w2touch(s):
    if cfg.w2t == 1:
        s(f's_mul_i32 s6, s2, 7168\ns_lshl_b32 s7, s2, 11\ns_cmp_eq_u32 s{sW}, 7\ns_cselect_b32 s6, s6, 0x200000\ns_cselect_b32 s7, s7, 0x200000')
        s('v_lshlrev_b32 v8, 7, v1\nv_min_u32 v9, 1920, v8\nv_min_u32 v8, 7040, v8')
        s(f'buffer_load_dword v246, v8, {srd(SD)}, s6 offen\nbuffer_load_dword v247, v9, {srd(SO)}, s7 offen')
    if cfg.w2t == 2:
        s(f's_lshr_b32 s6, s2, 3\ns_lshl_b32 s6, s6, 2\ns_add_u32 s75, s6, s{sW4}')
        if cfg.mx512:
            s(f'v_lshrrev_b32 v8, 2, v1\nv_and_b32 v9, 3, v1\nv_lshlrev_b32 v9, 7, v9\nv_lshl_add_u32 v8, v8, 10, v9\ns_and_b32 s7, s{sNB}, 4\ns_lshl_b32 s7, s7, 7\nv_add_u32 v8, s7, v8')
            s(f's_mul_i32 s6, s75, {14*1024}\nbuffer_load_dword v246, v8, {srd(SD)}, s6 offen')
            s(f's_lshr_b32 s6, s75, 2\ns_lshl_b32 s6, s6, 1\ns_and_b32 s7, s{sW}, 1\ns_add_u32 s6, s6, s7\ns_lshl_b32 s6, s6, 13\ns_cmp_ge_u32 s{sW}, 6\ns_cselect_b32 s6, s6, 0x200000')
            s(f'v_min_u32 v9, {8*1024-128}, v8\nbuffer_load_dword v247, v9, {srd(SO)}, s6 offen')

def l2touch():
    r = []
    p = S(); p(f's_lshr_b32 s6, s2, 3\ns_lshl_b32 s6, s6, 2\ns_add_u32 s55, s6, s{sW4}\nv_lshlrev_b32 v19, 7, v1\ns_mul_i32 s6, s55, 14336')
    p(f'buffer_load_dword v244, v19, {srd(SD)}, s6 offen'); r.append(p.l)
    p = S(); p(f'v_min_u32 v19, 6016, v19\ns_mul_i32 s6, s55, 14336\ns_add_u32 s6, s6, 8192\nbuffer_load_dword v245, v19, {srd(SD)}, s6 offen'); r.append(p.l)
    p = S(); p(f'v_lshlrev_b32 v19, 7, v1\ns_lshr_b32 s6, s55, 2\ns_lshl_b32 s6, s6, 1\ns_and_b32 s7, s{sW}, 1\ns_add_u32 s6, s6, s7\ns_lshl_b32 s6, s6, 13\ns_cmp_ge_u32 s{sW}, 6\ns_cselect_b32 s6, s6, 0x200000')
    p(f'buffer_load_dword v243, v19, {srd(SO)}, s6 offen'); r.append(p.l)
    return r

def recode(tag):
    p = S()
    p('s_getpc_b64 s[54:55]')
    p(f'L_rc{tag}:')
    p(f's_sub_u32 s54, s54, L_rc{tag}-L_pc\ns_subb_u32 s55, s55, 0')
    p(f's_lshr_b32 s6, s2, 3\ns_and_b32 s6, s6, 7\ns_lshl_b32 s6, s6, 2\ns_add_u32 s6, s6, s{sW4}\ns_lshl_b32 s6, s6, 11')
    p('v_and_b32 v19, 15, v1\nv_lshl_add_u32 v19, v19, 7, s6\nv_min_u32 v19, L_end-L_pc, v19')
    p('global_load_dword v242, v19, s[54:55]')
    return [p.l]

def helper_head(s, X, wop, isq):
    global XTOK
    if cfg.hx and cfg.hx != 2: XTOK = emit(s, xpieces()[16:])
    if cfg.mt: malltouch(s)
    if cfg.tp in (1, 2, 4): w1touch(s, X, 0 if cfg.tp == 1 else 1)
    if cfg.hx == 2: XTOK = emit(s, xpieces()[16:])
    if X:
        s(f's_cmp_lg_u32 s2, 0\ns_cbranch_scc1 L_np\ns_cmp_lg_u32 s{sW}, 4\ns_cbranch_scc1 L_np')
        s('s_memrealtime s[76:77]\ns_waitcnt lgkmcnt(0)\ns_or_b32 s76, s76, 1')
        s('v_mov_b32 v4, s76\nv_mov_b32 v6, 0\ns_mov_b64 exec, 1')
        s(f'buffer_store_dword v4, v6, {srd(SDBG)}, 0 offen sc1', tag='raw')
        s('s_mov_b64 exec, -1')
        s('L_np:')
    s(f's_setprio {cfg.prioH}')
    if not X: s(f'v_lshrrev_b32 v4, 2, v1\nv_lshrrev_b32 v5, 4, v1\nv_and_b32 v5, 2, v5\nv_xor_b32 v5, v1, v5\nv_and_b32 v5, 3, v5\nv_lshlrev_b32 v5, 4, v5\nv_mul_u32_u24 v{vOM}, 0xe00, v4\nv_add_u32 v{vOM}, v{vOM}, v5')
    line_voff(s, 4, 5)
    s(f'v_mul_u32_u24 v{vOQ}, 0xc00, v4\nv_add_u32 v{vOQ}, v{vOQ}, v5')
    s(f'v_mul_u32_u24 v{vOG}, 0xe00, v4\nv_add_u32 v{vOG}, v{vOG}, v5')
    s(f'v_lshl_add_u32 v{vW2}, v4, 10, v5')
    s(f'v_xor_b32 v5, 32, v5\nv_mul_u32_u24 v{vOQ2}, 0xc00, v4\nv_add_u32 v{vOQ2}, v{vOQ2}, v5\nv_mul_u32_u24 v{vOG2}, 0xe00, v4\nv_add_u32 v{vOG2}, v{vOG2}, v5')
    s(f's_lshl_b32 s{sL4}, s{sW4}, 12\ns_lshl_b32 s{sL2}, s{sW4}, 13')
    s(f's_mul_i32 s6, s{sW4}, {32*3584}\ns_lshl_b32 s7, s5, 1\ns_add_u32 s{sC0}, s6, s7')
    if X: s(f's_mul_i32 s6, s{sW4}, {64*3072}\ns_lshl_b32 s7, s{sJ}, 7\ns_add_u32 s{sM0}, s6, s7')
    else:
        s(f's_lshl_b32 s7, s3, 1\ns_add_u32 s{sA0}, s6, s7')
        s(f's_mul_i32 s6, s{sW4}, {64*3584}\ns_lshl_b32 s7, s4, 1\ns_add_u32 s{sM0}, s6, s7')
    s(f's_lshl_b32 s{sLBc}, s{sW4}, 11\ns_lshl_b32 s6, s{sW4}, 14\ns_lshl_b32 s7, s{sNB}, 7\ns_add_u32 s{sWBc}, s6, s7')
    s(f's_lshl_b32 s{sHEAD}, s{sJ}, 2\ns_add_u32 s{sHEAD}, s{sHEAD}, s{sW4}')
    s(f's_lshl_b32 s{sKV}, s{sHEAD}, 12\ns_add_u32 s{sKV}, s{sKV}, {KV_OFF}')
    s(f's_cmp_lt_u32 s{sW}, 6\ns_cselect_b32 s{SO}, s{SD}, s{SO}\ns_cselect_b32 s{SO+1}, s{SD+1}, s{SO+1}\ns_cselect_b32 s{SO+2}, s{SD+2}, s{SO+2}')
    s('v_lshrrev_b32 v4, 5, v1\nv_lshlrev_b32 v7, 8, v4')
    if isq: s('v_and_b32 v6, 15, v1\nv_lshl_add_u32 v36, v6, 1, v7')
    else: s('v_bfe_u32 v6, v1, 3, 2\nv_and_b32 v36, 3, v1\nv_lshl_add_u32 v6, v6, 2, v36\nv_lshl_add_u32 v36, v6, 1, v7')
    s(f's_lshl_b32 s{sT2}, s{sHEAD}, 9')
    return

def helper_start(s, X, wop, isq):
    stamp(s, 0)
    def ush():
        for i in range(8): s(f'buffer_load_ushort v{200+i}, v36, {srd(SPHI)}, s{sT2} offen offset:{i*32}')
    if cfg.xl2:
        if cfg.w2e == 2: w2touch(s)
        s('s_barrier', needs=[XTOK])
        stamp(s, 1)
        tok = {0: emit(s, dma_stage(0, X)), 1: emit(s, dma_stage(1, X))}
        if cfg.w2e == 1: w2touch(s)
        if cfg.pgw:
            s(f's_cmp_eq_u32 s{sW}, 6\ns_cselect_b32 s6, 0, 0x7ff00000\nv_min_u32 v8, 6, v1\nv_lshlrev_b32 v8, 21, v8\nv_min_u32 v8, {WS_BYTES - 128}, v8\nv_min_u32 v9, 1, v1\nv_mul_u32_u24 v9, 0x1fff80, v9')
            s(f'buffer_load_dword v37, v8, {srd(SWS)}, s6 offen\nbuffer_load_dword v38, v9, {srd(SOUT)}, s6 offen')
        s(f'v_mov_b32 v17, 0\nbuffer_load_dword v16, v17, {srd(SDBG)}, 0 offen sc1')
        if cfg.o2 == 0: tok[2] = emit(s, dma_stage(2, X))
        s('s_barrier')
        if cfg.o2 == 1: tok[2] = emit(s, dma_stage(2, X))
        s('s_barrier', needs=[tok[0]])
        if cfg.o2 == 2: tok[2] = emit(s, dma_stage(2, X))
        ush()
        if cfg.tp in (2, 4): w1touch(s, X, 2)
        if cfg.w2e == 0: w2touch(s)
        return tok
    if not cfg.hx: s('s_barrier')
    if cfg.hx and cfg.hb1 == 2: s('s_barrier', needs=[XTOK])
    tok = {0: emit(s, dma_stage(0, X))}
    if cfg.hx and cfg.hb1 == 1: s('s_barrier', needs=[XTOK])
    if cfg.tp in (0, 2): w1touch(s, X, 2 if cfg.tp == 2 else 0)
    if cfg.w2at == 0: w2touch(s)
    if cfg.hx and not cfg.hb1: s('s_barrier', needs=[XTOK])
    stamp(s, 1)
    s('s_barrier')
    s(f'v_mov_b32 v17, 0\nbuffer_load_dword v16, v17, {srd(SDBG)}, 0 offen sc1')
    if cfg.pro == 0: tok[1] = emit(s, dma_stage(1, X))
    s('s_barrier', needs=[tok[0]])
    if cfg.pro != 0: tok[1] = emit(s, dma_stage(1, X))
    tok[2] = emit(s, dma_stage(2, X))
    ush()
    if cfg.tp == 4: w1touch(s, X, 2)
    if cfg.w2at == 1: w2touch(s)
    return tok

def nonce_and_wphi(w, lab, wop, bit):
    w(f'v_cmp_eq_u32 vcc, 0, v16\ns_cbranch_vccz {lab}_x')
    w('s_mov_b32 s75, 0')
    w(f'{lab}:')
    w(f'buffer_load_dword v16, v17, {srd(SDBG)}, 0 offen sc1\ns_waitcnt vmcnt(0)', tag='raw')
    w(f's_add_u32 s75, s75, 1\ns_cmp_gt_u32 s75, {SPIN}\ns_cbranch_scc1 {lab}_x')
    w(f'v_cmp_eq_u32 vcc, 0, v16\ns_cbranch_vccnz {lab}')
    w(f'{lab}_x:')
    w(f'v_readfirstlane_b32 s{sNON}, v16\nv_readfirstlane_b32 s{sNON+1}, v16')
    w(f'v_bfe_u32 v6, v1, {bit}, 1\nv_mul_u32_u24 v6, 0x8000, v6\nv_lshl_or_b32 v6, v6, 16, v6')
    for r in range(4):
        w(f'v_lshl_or_b32 v{wop+r}, v{200+2*r+1}, 16, v{200+2*r}\nv_xor_b32 v{wop+r}, v6, v{wop+r}')

def cost(i):
    if i.op in ('v_exp_f32', 'v_rcp_f32') or i.op.startswith('v_permlane'): return 11
    if i.kind == 'mfma': return 36
    if i.kind in ('vm', 'vmst'): return 14
    if i.op in ('v_max3_f32', 'v_fma_f32', 'v_lshl_add_u32', 'v_lshl_or_b32'): return 8.3
    return 5.6

def pack(s, X, work, bars, tok, extra, need10, quiet, frac, late_hi, w1at=None, first=(), tneed={}, pinned={}):
    flat = [(m, w.l) for m, w in work]
    qi = 0; qpos = 0; inloop = False; where = {}
    pieces = []; lgfree = False
    for bi, st in enumerate(bars):
        whole = st == int(st)
        if not lgfree: s('s_waitcnt lgkmcnt(0)')
        lgfree = False
        nd = [tok[t] for t in tneed.get(st, [st] if whole and st <= 9 else [])] + (need10 if st == 10 else [])
        dbg = cfg.hdbg and whole and cfg.hb + 1 <= st <= cfg.hb + 6
        if dbg: stamp(s, 2*(st-cfg.hb-1), True); s('s_nop 0', needs=nd)
        s('s_barrier', needs=nd)
        if dbg: stamp(s, 2*(st-cfg.hb-1)+1, True)
        for tgt in range(3, 10):
            if (w1at or {}).get(tgt, tgt - 2) == st:
                p = dma_stage(tgt, X); tok[tgt] = p[-1][-1]
                if st in first: emit(s, p)
                else: pieces += p
        pieces += extra.get(st, [])
        last = bi + 1 == len(bars)
        BUD = 1e9 if last else cfg.bud * frac.get(st, 1.0)
        hold = []
        if quiet.get(st) == 'all': hold = pieces; pieces = []
        q = quiet.get(st, 0) if quiet.get(st) != 'all' else 0
        if st in pinned: s.l.extend(pinned[st].l)
        used = 0; inexec = False; since = 99 if not inloop and not (qi < len(flat) and qpos == 0 and flat[qi][1][0].op in ('s_waitcnt', 's_memrealtime', 's_memtime')) else 0
        inloop = False
        while qi < len(flat) and flat[qi][0] <= st:
            ins = flat[qi][1][qpos]
            free = not inexec and not inloop and ins.op not in ('s_addc_u32', 's_subb_u32', 's_cselect_b32') and not ins.op.startswith('s_cbranch') and ins.kind != 'vmlds' and ('s', sT) not in ins.wr
            if pieces and free and ((since >= 6 and used >= q) or ins.tag == 'flush'):
                s.l.extend(pieces.pop(0)); used += 20; since = 0
                continue
            if used + 20*len(pieces) >= BUD and free and ins.tag != 'glue': break
            s.l.append(ins); used += cost(ins); since += 1
            where[id(ins)] = st
            if ('s', 'exec') in ins.wr: inexec = '-1' not in ins.text
            if ins.op.startswith('s_cbranch') and ins.text.split()[1].endswith('_x'): inloop = True
            if ins.kind == 'label' and ins.op.endswith('_x:'): inloop = False
            if ins.op.startswith('s_load') or ins.op.startswith('s_cmp') or ins.op in ('s_xor_b64', 's_or_b64'): inloop = True
            qpos += 1
            if qpos == len(flat[qi][1]): qi += 1; qpos = 0
        for p in pieces: s.l.extend(p)
        pieces = hold
        if whole and qi < len(flat) and qpos == 0 and flat[qi][0] == st + 0.5 and (st + 0.5) not in bars:
            s.l.extend(flat[qi][1]); qi += 1; lgfree = True
    assert qi == len(flat)
    l = []; hi = False
    bidx = [k for k, i in enumerate(s.l) if i.op == 's_barrier']
    for k, i in enumerate(s.l):
        want = i.kind == 'mfma' or (k > bidx[late_hi] and i.kind in ('vm', 'vmst'))
        if i.kind in ('mfma', 'valu', 'vm', 'vmst', 'vmlds', 'ds') and want != hi and i.tag != 'raw':
            l.append(I(f's_setprio {3 if want else cfg.prioH}')); hi = want
        l.append(i)
    s.l = l
    return where

def helperX():
    s = S(); X = True
    WK, RS, KF, KVA = 8, 20, 24, 40
    PT = 136; ID = 224; TT = 200; FR = 136
    vB1, vB2, vRD, vKVA, vL16h, vST = 232, 233, 234, 235, 238, 239
    helper_head(s, X, WK, False)
    s(f'v_lshlrev_b32 v{vL16h}, 4, v1\ns_lshl_b32 s6, s{sW4}, 12\ns_add_u32 s6, s6, {KB}\nv_lshlrev_b32 v5, 3, v1\nv_add_u32 v{vRD}, s6, v5')
    s('v_bfe_u32 v5, v1, 2, 2\nv_lshl_add_u32 v5, v4, 2, v5')
    s('v_and_b32 v7, 3, v1\nv_xor_b32 v7, v7, v4\nv_lshlrev_b32 v7, 3, v7\nv_lshl_add_u32 v7, v5, 5, v7\nv_add_u32 v7, s6, v7')
    s(f'v_lshlrev_b32 v6, 3, v5\nv_add_u32 v6, {STDB}, v6')
    s(f'v_bfe_u32 v5, v1, 4, 1\nv_cmp_eq_u32 vcc, 1, v5\nv_cndmask_b32 v{vB1}, v7, v6, vcc')
    s(f'v_xor_b32 v7, 16, v7\nv_add_u32 v7, 256, v7\nv_add_u32 v6, 64, v6\nv_cndmask_b32 v{vB2}, v7, v6, vcc')
    s(f'v_mov_b32 v6, 512\nv_mov_b32 v7, 128\nv_cndmask_b32 v{vST}, v6, v7, vcc')
    s(f'v_and_b32 v5, 31, v1\nv_min_u32 v5, 16, v5\nv_lshl_add_u32 v5, v4, 5, v5\nv_lshlrev_b32 v{vKVA}, 2, v5')
    s('v_and_b32 v5, 1, v1\nv_lshlrev_b32 v5, 4, v5\nv_mov_b32 v6, 0x3f80\nv_lshlrev_b32 v6, v5, v6')
    s('v_bfe_u32 v5, v1, 4, 1\nv_cmp_eq_u32 vcc, v5, v4\nv_cndmask_b32 v6, 0, v6, vcc\nv_bfe_u32 v5, v1, 1, 3')
    for r in range(8): s(f'v_cmp_eq_u32 vcc, {r}, v5\nv_cndmask_b32 v{ID+r}, 0, v6, vcc')
    s(f's_lshl_b32 s{sLBx}, s{sW4}, 12\ns_lshl_b32 s6, s{sW4}, 1\ns_and_b32 s7, s{sW4}, 2\ns_lshl_b32 s7, s7, 2\ns_add_u32 s6, s6, s7\ns_lshl_b32 s6, s6, 14\ns_lshl_b32 s7, s{sNB}, 7\ns_add_u32 s{sWBx}, s6, s7')
    tok = helper_start(s, X, WK, False)
    work = []
    def seg(minb):
        w = S(); work.append((minb, w)); return w
    w = seg(1)
    w(f'v_and_b32 v5, 31, v1\nv_lshlrev_b32 v5, 2, v5\nv_add_u32 v5, {RSB}, v5')
    for rt in range(4): w(f'ds_read_b32 v{RS+rt}, v5 offset:{rt*128}')
    nonce_and_wphi(w, 'L_nonX', WK, 2)
    w(f's_lshl_b32 s6, s{sHEAD}, 7\ns_add_u32 s6, s6, {FKV+64}\nv_mov_b32 v17, s6')
    sbase(w, 6)
    w(f's_lshl_b32 s7, s{sRB}, 2\ns_sub_u32 s6, s6, 64\ns_add_u32 s6, s6, s7\nv_mov_b32 v18, s6')
    w(f's_cmp_lg_u32 s{sRB}, 0\ns_cbranch_scc1 L_zero_x')
    for r in range(4): w(f'v_mov_b32 v{FR+r}, 0')
    for q in range(4): w(f'buffer_store_dwordx4 {vr(FR,4)}, v{vL16h}, {srd(SWS)}, s{sKV} offen offset:{q*1024} sc1', tag='raw')
    w('s_waitcnt vmcnt(0)', tag='raw')
    w('s_mov_b64 exec, 1')
    w(f'buffer_store_dword v16, v17, {srd(SWS)}, 0 offen sc1', tag='raw')
    w('s_mov_b64 exec, -1')
    w('L_zero_x:')
    w = seg(2.5)
    for rt in range(4):
        w(f'ds_read_b64 {vr(KF+4*rt,2)}, v{vRD} offset:{rt*1024}\nds_read_b64 {vr(KF+4*rt+2,2)}, v{vRD} offset:{rt*1024+512}')
    for rt in range(4): w(f'{MF} {vr(PT+16*rt,16)}, {vr(WK,4)}, {vr(KF+4*rt,4)}, 0')
    T4 = (4, 5, 6, 7)
    PH = [56, 64, 24, 32]; TP = [216, 56, 64, 24]
    tr_mm = lambda rt: [[I(f'{MF} {vr(TT,16)}, {vr(PH[rt],4)}, {vr(ID,4)}, 0')], [I(f'{MF} {vr(TT,16)}, {vr(PH[rt]+4,4)}, {vr(ID+4,4)}, {vr(TT,16)}')]]
    tr_cv = lambda rt: [I(f'v_cvt_pk_bf16_f32 v{TP[rt]+j}, v{TT+2*j}, v{TT+2*j+1}') for j in range(8)]
    softmax_k(w, PT, RS, PH[0], T4)
    for rt in range(1, 4):
        m = S(); softmax_k(m, PT + 16*rt, RS + rt, PH[rt], T4)
        merge(w, m, tr_mm(rt - 1) + [[], tr_cv(rt - 1)], 8)
    for x in tr_mm(3): w.l.extend(x)
    sload(w, 44, 1, False); scheck(w, 'L_pollz', 44, 1, False)
    w.l.extend(tr_cv(3))
    w = seg(4.5 if cfg.kvq else 6.5)
    for rt in range(4):
        for ks in range(2):
            f = FR + 8*rt + 4*ks
            lastv = w(f'ds_read_b64_tr_b16 {vr(f,2)}, v{vB1}\nds_read_b64_tr_b16 {vr(f+2,2)}, v{vB2}')
            if rt < 3 or ks < 1: w(f'v_add_u32 v{vB1}, v{vB1}, v{vST}\nv_add_u32 v{vB2}, v{vB2}, v{vST}')
        if rt == 2: w('s_waitcnt lgkmcnt(8)')
    for rt in range(4):
        for ks in range(2):
            w(f'{MF} {vr(KVA,16)}, {vr(TP[rt]+4*ks,4)}, {vr(FR+8*rt+4*ks,4)}, ' + ('0' if rt == 0 and ks == 0 else vr(KVA,16)))
    for i in w.l: i.tag = i.tag or 'glue'
    if cfg.kvq:
        for p in cwpiecesx(0):
            p[-1].needs = [lastv]; w.l.extend(p); tok['cw0'] = p[-1]
        w = seg(7.3)
    elif cfg.skip != 1: w = seg(7)
    if cfg.c0f:
        for p in cwpiecesx(0) + cwpiecesx(3, (1,)): w.l.extend(p); tok['cw0'] = p[-1]
    w('s_mov_b32 s76, 0x1ffff\ns_mov_b32 s77, 0x1ffff')
    w('s_mov_b64 exec, s[76:77]')
    for r in range(16): at = w(f'buffer_atomic_add_f32 v{KVA+r}, v{vKVA}, {srd(SWS)}, s{sKV} offen offset:{r*256}')
    w('s_mov_b64 exec, -1')
    if cfg.xcw and not cfg.c0f and not cfg.kvq:
        for p in cwpiecesx(0): w.l.extend(p); tok['cw0'] = p[-1]
    for i in w.l: i.tag = i.tag or 'glue'
    stamp(w, 2)
    w = seg(7.3 if cfg.kvq else cfg.pat if cfg.skip == 2 else 8)
    post(w, 16, 18, '0', [at])
    for i in w.l: i.tag = 'glue'
    stamp(w, 3)
    bars = [1, 2, 2.5, 3, 4, 5, 6, 6.5] + [[7, 8], [8], [7]][cfg.skip] + [9, 10]
    c9 = cwpieces2()
    extra = {1: cwpieces(1), 3: cwpieces(2), 8: cwpieces(0) + cwpieces(3), 9: c9}
    if cfg.xcw: extra = {1: cwpiecesx(1), 3: cwpiecesx(2), 5: cwpiecesx(3, (0,)), 8: cwpiecesx(3, (1,)), 9: c9}
    tok['cw'] = extra[8][-1][-1]
    if cfg.kvq:
        extra[7] = extra.pop(8)
        where = pack(s, X, work, [1] + ([] if cfg.s2x else [2]) + [2.5, 3, 4, 4.5, 5, 6, 7, 7.3, 9, 10], tok, extra, [c9[-1][-1]], {2: 'all', 4: 'all'},
                     {2.5: cfg.f25, 3: cfg.fk, 4: 0.55*cfg.fk, 4.5: 0.45*cfg.fk, 5: cfg.fk, 6: cfg.fk, 7: 0.3, 7.3: 2}, -3, {4: 2.5} if cfg.s2x else None, (7,), {1: [1, 2] if cfg.s2x else [1], 7.3: [8, 'cw', 'cw0'] if cfg.p8 else [8], 9: [9, 'cw', 'cw0']})
    elif cfg.skip == 2:
        extra[7] = extra.pop(8)
        if cfg.c0f: del extra[7]; tok['cw'] = tok['cw0']
        where = pack(s, X, work, bars, tok, extra, [c9[-1][-1]], {2: 'all', 4: cfg.quiet, 7: cfg.q7, 9: cfg.q9},
                     {2.5: cfg.f25, 3: cfg.fk, 4: cfg.fk, 5: cfg.fk, 6: 0.45, 6.5: 0.4, 7: 2}, -3, None, (6, 7) if cfg.f8 else (6,), {7: [7, 8], 9: [9, 'cw', 'cw0']})
    elif cfg.skip:
        where = pack(s, X, work, bars, tok, extra, [c9[-1][-1]], {2: 'all', 4: cfg.quiet, 8: 30},
                     {2.5: cfg.f25, 3: cfg.fk, 4: cfg.fk, 5: cfg.fk, 6: 0.45}, -4, {8: 6.5, 9: 8, 4: cfg.s4}, (6.5, 8) if cfg.f8 else (6.5,), {6.5: [7], 9: [9, 'cw', 'cw0']})
    else:
        where = pack(s, X, work, bars, tok, extra, [c9[-1][-1]], {2: 'all', 4: cfg.quiet, 7: 100, 8: 30},
                     {2.5: cfg.f25, 3: cfg.fk, 4: cfg.fk, 5: cfg.fk, 6: 0.45, 6.5: 0.4}, -4, None, (6,), {9: [9, 'cw', 'cw0']})
    assert where[id(lastv)] < 7
    return s

def own_first(s, lab):
    pass

def helperY():
    s = S(); X = False
    WQ, QF, KVA = 8, 24, 40
    PT = 136; vKVA, vL16h, vSA = 235, 238, 240
    helper_head(s, X, WQ, True)
    s(f'v_lshlrev_b32 v{vL16h}, 4, v1')
    s(f'v_and_b32 v5, 31, v1\nv_min_u32 v5, 16, v5\nv_lshl_add_u32 v5, v4, 5, v5\nv_lshlrev_b32 v{vKVA}, 2, v5')
    s(f's_add_u32 s79, s{sLBc}, 65536')
    b_traddr(s, vSA, 79, 11)
    s(f'v_xor_b32 v{vSA+1}, 64, v{vSA}')
    tok = helper_start(s, X, WQ, True)
    work = []
    def seg(minb):
        w = S(); work.append((minb, w)); return w
    w = seg(3)
    nonce_and_wphi(w, 'L_nonY', WQ, 4)
    w(f's_lshl_b32 s6, s{sRB}, 3\ns_add_u32 s6, s6, s{sJ}\ns_lshl_b32 s{sQ}, s6, 14\ns_lshl_b32 s7, s{sW4}, 12\ns_add_u32 s{sQ}, s{sQ}, s7\ns_add_u32 s{sQ}, s{sQ}, {Q_OFF}')
    w(f's_lshl_b32 s6, s6, 7\ns_add_u32 s6, s6, {FQ}')
    sbase(w, 6)
    w(f's_lshl_b32 s6, s{sRB}, 5\ns_add_u32 s6, s6, s{sHEAD}\ns_lshl_b32 s6, s6, 2\ns_add_u32 s6, s6, {FO}\nv_mov_b32 v18, s6')
    w = seg(cfg.qat - 0.5)
    sload(w, 44, 4, False)
    w = seg(cfg.qat)
    stamp(w, 2)
    scheck(w, 'L_pollq', 44, 4, False)
    stamp(w, 3)
    for rt in range(4): w(f'buffer_load_dwordx4 {vr(QF+4*rt,4)}, v{vL16h}, {srd(SWS)}, s{sQ} offen offset:{rt*1024} sc1')
    w(f's_lshl_b32 s6, s{sHEAD}, 7\ns_add_u32 s6, s6, {FKV}')
    sbase(w, 6)
    w('s_mov_b32 s73, 0', tag='flush')
    for rt in range(4): w(f'{MF} {vr(PT+16*rt,16)}, {vr(WQ,4)}, {vr(QF+4*rt,4)}, 0')
    T4 = (4, 5, 6, 7)
    PQ = [56, 64, 200, 208]
    def kvloads(w):
        for r in range(16): w(f'buffer_load_dword v{KVA+r}, v{vKVA}, {srd(SWS)}, s{sKV} offen offset:{r*256} sc1', tag='raw')
    if cfg.kvq:
        for rt in range(4):
            if rt == cfg.kvr: sload(w, SP, 16, False)
            softmax_q(w, PT + 16*rt, PQ[rt], T4)
            if rt == cfg.kvr:
                stamp(w, 4); scheck(w, 'L_pollkv', SP, 16, False); kvloads(w); stamp(w, 5)
        w = seg(10)
    else:
        for rt in range(4): softmax_q(w, PT + 16*rt, PQ[rt], T4)
        w = seg(9.5)
        sload(w, SP, 16, False)
        w = seg(10)
        stamp(w, 4)
        scheck(w, 'L_pollkv', SP, 16, False)
        kvloads(w)
        stamp(w, 5)
    if cfg.yw == 2:
        emit(w, ownpieces(range(8, 16), sLB, O8)); w('s_waitcnt vmcnt(16) lgkmcnt(0)')
    else: w('s_waitcnt vmcnt(0) lgkmcnt(0)')
    w('v_and_b32 v4, 27, v1\nv_cmp_eq_u32 vcc, 17, v4\nv_mov_b32 v4, 0x3f803f80')
    for r in range(8): w(f'v_cvt_pk_bf16_f32 v{KVA+r}, v{KVA+2*r}, v{KVA+2*r+1}')
    for r in range(8): w(f'v_cndmask_b32 v{KVA+r}, v{KVA+r}, v4, vcc')
    OT = [136, 168, 24, 216]; ON = [152, 184, 48 - 0, 232]
    ON[2] = 0
    w(f'v_mov_b32 v3, v{vL16h}\nv_mov_b32 v248, v16\nv_mov_b32 v249, v18')
    ON = [152, 184, 8, 232]
    for rt in range(4):
        w(f'{MF} {vr(OT[rt],16)}, {vr(KVA,4)}, {vr(PQ[rt],4)}, 0')
        w(f'{MF} {vr(ON[rt],16)}, {vr(KVA+4,4)}, {vr(PQ[rt]+4,4)}, 0')
    w(f's_lshl_b32 s6, s{sRB}, 2\ns_mul_i32 s6, s6, 144\ns_add_u32 s6, s6, s{sHEAD}\ns_add_u32 s6, s6, 112\ns_lshl_b32 s79, s6, 10')
    w('v_mov_b32 v4, 0x358637bd')
    for rt in range(4):
        o = OT[rt]; n = ON[rt]
        w(f'v_rcp_f32 v{o+9}, v{o+9}\nv_rcp_f32 v{n+9}, v{n+9}')
        w(f'v_fma_f32 v{o+8}, v{o+8}, v{o+9}, v4\nv_fma_f32 v{o+8}, v{n+8}, v{n+9}, v{o+8}\nv_rcp_f32 v{o+8}, v{o+8}')
        w(f'v_mul_f32 v{o+9}, v{o+9}, v{o+8}\nv_mul_f32 v{n+9}, v{n+9}, v{o+8}')
        for j in range(8): w(f'v_mul_f32 v{o+j}, v{o+j}, v{o+9}')
        for j in range(8): w(f'v_fma_f32 v{o+j}, v{n+j}, v{n+9}, v{o+j}')
        for j in range(0, 8, 2): w(f'v_cvt_pk_bf16_f32 v{o+12+j//2}, v{o+j}, v{o+j+1}')
        ost = w(f'buffer_store_dwordx4 {vr(o+12,4)}, v3, {srd(SWS)}, s79 offen sc1')
        if rt < 3: w(f's_add_u32 s79, s79, {144*1024}')
    stamp(w, 6)
    post(w, 248, 249, '0', [ost])
    stamp(w, 7)
    c2 = cwpieces2()
    oa, ob = stg_offs([0, 1]), stg_offs([2, 3])
    ga, gb = ownpieces(range(4), sLBc, oa), ownpieces(range(4, 8), sLBc, ob)
    ra, rb_ = stg_reads(range(4), oa, vSA, ga[-1][-1]), stg_reads(range(4, 8), ob, vSA, gb[-1][-1])
    extra = {1: ga, 4: gb + cwpieces(0), 5: cwpieces(1), 6: cwpieces(2), 7: cwpieces(3), 9: c2}
    if cfg.l2t:
        t = l2touch(); extra[5] += t[:2]; extra[6] += t[2:]
    tok['cw'] = [p for p in extra[7]][-1][-1]
    if cfg.rc: extra[cfg.rc] = extra.get(cfg.rc, []) + recode('a')
    if cfg.w2r:
        p = S()
        p(f's_and_b32 s6, s2, 127\ns_lshl_b32 s6, s6, 1\ns_and_b32 s7, s{sW}, 1\ns_add_u32 s75, s6, s7\ns_mul_i32 s6, s75, 7168\ns_lshl_b32 s7, s75, 11\ns_cmp_ge_u32 s{sW}, 6\ns_cselect_b32 s6, s6, 0x200000\ns_cselect_b32 s7, s7, 0x200000')
        p('v_lshlrev_b32 v19, 7, v1\nv_min_u32 v20, 1920, v19\nv_min_u32 v19, 7040, v19')
        p(f'buffer_load_dword v242, v19, {srd(SD)}, s6 offen\nbuffer_load_dword v21, v20, {srd(SO)}, s7 offen')
        extra[cfg.w2r] = extra.get(cfg.w2r, []) + [p.l]
    if cfg.skipy:
        pack(s, X, work, [1, 2, 3, 4, 5, 6, 7, 9, 10], tok, extra, [c2[-1][-1]], {}, {7: cfg.f7 + 1, 9: cfg.f9}, -3, None, (6,), {7: [7, 8], 9: [9, 'cw']}, {3: ra, 6: rb_})
    else:
        extra[8] = extra.pop(9)
        pack(s, X, work, [1, 2.4 if cfg.s2y else 2] + list(range(3, 11)), tok, extra, [c2[-1][-1]], {}, {7: cfg.f7, 8: 0.9, 9: cfg.f9}, -3, {4: 2.4} if cfg.s2y else None, (), {1: [1, 2] if cfg.s2y else [1], 8: [8, 'cw'] if cfg.p8 else [8], 9: [9, 'cw']}, {3: ra, 6: rb_})
    s('s_branch L_BHY')
    return s

BACC = [8, 24, 40, 56]; BW = 232; vBX = 248
def red_write(s, acc, t):
    s(f'v_and_b32 v4, 31, v1\nv_lshrrev_b32 v5, 5, v1\nv_and_b32 v6, 7, v1\nv_xor_b32 v6, v5, v6\nv_lshlrev_b32 v6, 4, v6\nv_lshl_add_u32 v6, v4, 8, v6\nv_add_u32 v{t}, s{sLB}, v6')
    for k in range(1, 4): s(f'v_xor_b32 v{t+k}, {k<<5}, v{t}')
    for nt in range(2):
        for st in range(2):
            for q in range(4):
                if q == 3 and nt == 1 and st == 1: s('s_waitcnt lgkmcnt(8)')
                s(f'ds_write_b128 v{t+q}, {vr(acc[2*nt+st]+4*q,4)} offset:{st*8192 + nt*128}')
    s('s_waitcnt vmcnt(0)')

def phaseB_body(kind):
    s = S(); lab = f'L_B{kind}'
    C = kind == 'C'; n = 20 if C else 16
    order = CORDER if C else list(range(16))
    if C:
        acc = [160, 176, 192, 208]; bw = 224; vl, v16, vd, vtr, vxo, wr, vtr2 = 240, 242, 243, 244, 245, 96, 246
        hreg = lambda i: 8*i if i < 12 else 8*(i - 12)
        if cfg.cpre:
            wr = 0; hreg = lambda i: 64 + 8*i if i < 12 else 8*(i - 12)
    else:
        acc = BACC; bw = BW; vl, v16, vd, vtr, vxo, wr, vtr2 = 1, 3, vW2, 6, 7, WRB, 5
        hreg = lambda i: 136 + 8*i if i < 12 else WRB + 8*(i - 12)
    hoff = [0]
    def hload(i):
        rel = order[i]
        if rel // 4 != hoff[0]:
            d = (rel // 4 - hoff[0]) * 4096; hoff[0] = rel // 4
            op = 's_add_u32' if d > 0 else 's_sub_u32'
            s(f'{op} s{sH0}, s{sH0}, {abs(d)}\n{op} s{sH1}, s{sH1}, {abs(d)}')
        for c in range(2):
            s(f'buffer_load_dwordx4 {vr(hreg(i)+4*c,4)}, v{v16}, {srd(SWS)}, s{sH0+c} offen offset:{(rel%4)*1024}' + (' sc1' if not cfg.nosc else ''))
    wt = {}; rt_ = {}
    def rd(i, f):
        va, o0 = ((vtr, vtr2), (i % 8)*2048) if i < 16 else ((241, 247), (i - 16)*2048)
        for c in range(2):
            s(f'ds_read_b64_tr_b16 {vr(f+4*c,2)}, v{va[c]} offset:{o0}', needs=[wt[i]] if i in wt else [])
            rt_[i] = s(f'ds_read_b64_tr_b16 {vr(f+4*c+2,2)}, v{va[c]} offset:{o0 + B2}')
    def wdma(i):
        if cfg.now: return
        for p in ownpieces([i], sLB, [(i % 8)*2048], vd, SD if C else SWH, order):
            if i - 8 in rt_: p[-1].needs = [rt_[i-8]]
            s.l.extend(p); wt[i] = p[-1]
    def preread():
        for i in range(8):
            rd(i, wr + 8*i)
            if i % 2 == 1 and i >= 3: s('s_waitcnt lgkmcnt(8)')
    def step(i):
        if 8 <= i + 1 < n: rd(i + 1, bw + 8*((i + 1) % 2))
        f = wr + 8*i if i < 8 else bw + 8*(i % 2)
        for nt in range(2):
            for st in range(2):
                a = acc[2*nt+st]
                if cfg.nomf: s(f'v_xor_b32 v{a}, v{f+4*nt}, v{hreg(i)+4*st}'); continue
                s(f'{MF} {vr(a,16)}, {vr(f+4*nt,4)}, {vr(hreg(i)+4*st,4)}, ' + ('0' if i == 0 else vr(a,16)))
        if cfg.cdbg and i in (0, 3, 7, 11, 15): stamp(s, (0, 3, 7, 11, 15).index(i))
    def xload(t):
        s(f'v_lshrrev_b32 v{t}, 3, v{vl}\nv_and_b32 v{vxo}, 7, v{vl}\nv_lshlrev_b32 v{vxo}, 4, v{vxo}\nv_lshl_add_u32 v{vxo}, v{t}, 10, v{vxo}')
        s(f'buffer_load_dwordx4 {vr(vBX,4)}, v{vxo}, {srd(SX)}, s{sXO} offen')
    if C:
        s('s_setprio 3')
        p0 = 4 if cfg.eh else 0
        if not cfg.eh: scheck(s, lab + '_e', SP, 2, True)
        for i in range(p0, p0 + cfg.pre): hload(i)
        s(f'v_lshrrev_b32 v{vl}, 4, v{v16}')
        b_traddr(s, 241, None, 247, vl)
        s(f'v_add_u32 v{vtr}, s{sLB}, v241\nv_xor_b32 v{vtr2}, 64, v{vtr}\ns_lshl_b32 s6, s{sW}, 13\nv_add_u32 v241, s6, v241\nv_xor_b32 v247, 64, v241')
        if not cfg.cpre:
            preread()
            line_voff(s, vxo, vd, vl)
            s(f'v_lshl_add_u32 v{vd}, v{vxo}, 10, v{vd}')
        s(f's_sub_u32 s4, s4, {FE-FH}\ns_subb_u32 s5, s5, 0')
        cf = cfg.cf if cfg.eh else 0
        if cf: s(f's_waitcnt vmcnt({4 + 2*cfg.pre})')
        for i in range(cf): step(i)
        s(f's_waitcnt vmcnt({2*cfg.pre})')
        post(s, vNON, vFA)
        if cfg.b11: s(f's_cmp_lg_u32 s{sTY}, 0\ns_cbranch_scc1 L_nb11\ns_barrier\nL_nb11:')
        stamp(s, 8)
        s('s_setprio 0')
        LA = max(cfg.la, p0 + cfg.pre)
        for i in range(p0 + cfg.pre, min(12, LA + cf)): hload(i)
        for i in range(cf, 8):
            step(i)
            if i + LA < 12: hload(i + LA)
            for k in (8 + cfg.nref + 2*(i - cf), 9 + cfg.nref + 2*(i - cf)):
                if k < 16: wdma(k)
            if i == cfg.sl: sload(s, SP, 2, True)
        scheck(s, lab + '_f', SP, 2, True)
        stamp(s, 9)
        nl = 12
        for k in range(cfg.lb): hload(nl); nl += 1
        for i in range(8, n):
            step(i)
            for k in range(2):
                if nl < 20: hload(nl); nl += 1
            if i == 12: xload(252)
        stamp(s, 10)
        s(f'v_mov_b32 v1, v{vl}\nv_mov_b32 v7, v{vxo}')
        red_write(s, acc, 72)
        s('s_branch L_red')
        return s
    s('s_setprio 0')
    s('v_lshlrev_b32 v3, 4, v1')
    b_traddr(s, 6, sLB, 7)
    s('v_xor_b32 v5, 64, v6')
    s(f's_lshr_b32 s6, s{sSB}, 1\ns_lshl_b32 s6, s6, 7\ns_and_b32 s78, s{sW}, 1\ns_lshl_b32 s7, s78, 6\ns_add_u32 s6, s6, s7\ns_add_u32 s6, s6, {FO}')
    s(f's_lshl_b32 s7, s{sSB}, 8\ns_lshl_b32 s78, s78, 4\ns_add_u32 s7, s7, s78\ns_add_u32 s7, s7, {FH}')
    s(f's_cmp_ge_u32 s{sW}, 6\ns_cselect_b32 s6, s6, s7')
    sbase(s, 6)
    def snap():
        s(f's_cmp_ge_u32 s{sW}, 6\ns_cbranch_scc1 {lab}_so')
        sload(s, SP, 4, True); s(f's_branch {lab}_sx\n{lab}_so:'); sload(s, SP, 16, False); s(f'{lab}_sx:')
    if kind == 'HX':
        if cfg.b11 == 1: s('s_barrier')
        for i in range(8):
            if cfg.b11 == 2 and i == 3: s('s_barrier')
            wdma(i)
        preread()
    early = kind == 'HX' and cfg.esn
    if early: s('s_waitcnt lgkmcnt(0)'); snap()
    npre = cfg.hw if kind == 'HY' else cfg.hwx
    if kind == 'HY' and cfg.yw: npre = -100
    for i in range(8, 8 + npre): wdma(i)
    xload(8)
    stamp(s, 8)
    if not early: s('s_waitcnt lgkmcnt(0)')
    def gate(k, first):
        s(f's_cmp_ge_u32 s{sW}, 6\ns_cbranch_scc1 {lab}_o{k}')
        if first: sload(s, SP, 4, True)
        scheck(s, f'{lab}_ph{k}', SP, 4, True, [[0, 2], [1, 3], [0, 1, 2, 3]][k])
        s(f's_branch {lab}_go{k}')
        s(f'{lab}_o{k}:')
        if first: sload(s, SP, 16, False)
        scheck(s, f'{lab}_po{k}', SP, 16, False, [[0, 1, 2, 3], [4, 5, 6, 7], list(range(8))][k])
        s(f'{lab}_go{k}:')
    gate(0 if cfg.g2 >= 0 else 2, not early)
    stamp(s, 9)
    nl = 0
    for k in range(cfg.lh): hload(nl); nl += 1
    for i in range(n):
        step(i)
        if i == cfg.g2: gate(1, False)
        for k in range(2):
            if nl < n and (nl < 12 or nl - 12 <= i) and (nl < 8 or i >= cfg.g2): hload(nl); nl += 1
        for k in (8 + npre + 2*i, 9 + npre + 2*i):
            if 8 <= k < 16: wdma(k)
    stamp(s, 10)
    red_write(s, acc, 72)
    if kind != 'HX': s('s_branch L_red')
    return s

def phaseB_tail():
    s = S()
    s(f'v_lshrrev_b32 v4, 3, v1\nv_and_b32 v5, 7, v1\nv_lshlrev_b32 v5, 1, v5\nv_xor_b32 v5, v4, v5\nv_lshlrev_b32 v5, 4, v5\nv_lshl_add_u32 v5, v4, 8, v5\ns_lshl_b32 s7, s{sW}, 11\nv_add_u32 v76, s7, v5')
    s('v_xor_b32 v77, 16, v76')
    s('v_add_u32 v78, 0x10000, v76\nv_add_u32 v79, 0x10000, v77\nv_add_u32 v80, 0x20000, v76\nv_add_u32 v81, 0x20000, v77')
    R = 84
    for j in range(4):
        s(f'v_lshlrev_b32 v{R+64+2*j}, 16, v{vBX+j}\nv_and_b32 v{R+65+2*j}, 0xffff0000, v{vBX+j}')
    s('s_waitcnt lgkmcnt(0)\ns_barrier')
    stamp(s, 11)
    for p in range(8):
        g, o = [(1, 0), (1, 16384), (1, 32768), (1, 49152), (0, 32768), (0, 49152), (2, 0), (2, 16384)][p]
        if p == 7: s('s_waitcnt lgkmcnt(8)')
        s(f'ds_read_b128 {vr(R+8*p,4)}, v{76+2*g} offset:{o}\nds_read_b128 {vr(R+8*p+4,4)}, v{77+2*g} offset:{o}')
    for p in range(1, 6):
        for j in range(8): s(f'v_add_f32 v{R+j}, v{R+j}, v{R+8*p+j}')
    for j in range(8): s(f'v_mul_f32 v{R+8+j}, 0xbfb8aa3b, v{R+j}')
    for j in range(8): s(f'v_exp_f32 v{R+8+j}, v{R+8+j}')
    for j in range(8): s(f'v_add_f32 v{R+48+j}, v{R+48+j}, v{R+56+j}')
    for j in range(8): s(f'v_add_f32 v{R+8+j}, 1.0, v{R+8+j}')
    for j in range(8): s(f'v_rcp_f32 v{R+8+j}, v{R+8+j}')
    for j in range(8): s(f'v_mul_f32 v{R+j}, v{R+j}, v{R+48+j}')
    for j in range(8): s(f'v_fma_f32 v{R+j}, v{R+j}, v{R+8+j}, v{R+64+j}')
    for j in range(4): s(f'v_cvt_pk_bf16_f32 v{R+24+j}, v{R+2*j}, v{R+2*j+1}')
    s(f'buffer_store_dwordx4 {vr(R+24,4)}, v7, {srd(SOUT)}, s{sXO} offen' + ['', ' sc1', ' nt', ' sc0 sc1', ' sc1 nt'][cfg.ost])
    return s

def fin():
    s = S()
    if cfg.stamps:
        s('s_waitcnt vmcnt(0)')
        stamp(s, 12)
        if cfg.pb >= 0:
            s(f's_cmp_lg_u32 s{sW}, {cfg.pw}\ns_cbranch_scc1 L_nospin\ns_cmp_lg_u32 s2, {cfg.pwg}\ns_cbranch_scc1 L_nospin')
            s(f's_sub_u32 s6, s{sTS+cfg.pb}, s{sTS+cfg.pa}\ns_lshl_b32 s6, s6, 3\ns_min_u32 s6, s6, 40000\ns_add_u32 s6, s6, s{sTS+12}')
            s('L_spin:\ns_memrealtime s[76:77]\ns_waitcnt lgkmcnt(0)\ns_cmp_lt_u32 s76, s6\ns_cbranch_scc1 L_spin\nL_nospin:')
        s(f's_lshl_b32 s6, s2, 3\ns_add_u32 s6, s6, s{sW}\ns_lshl_b32 s6, s6, 6\ns_add_u32 s6, s6, {TS_OFF}\nv_mov_b32 v8, s6')
        s('s_memrealtime s[76:77]\ns_waitcnt lgkmcnt(0)\ns_mov_b32 s99, s76')
        for q in range(4):
            for r in range(4): s(f'v_mov_b32 v{12+r}, s{sTS+4*q+r}')
            s('s_mov_b64 exec, 1')
            s(f'buffer_store_dwordx4 v[12:15], v8, {srd(SWS)}, 0 offen offset:{q*16}')
            s('s_mov_b64 exec, -1\ns_nop 2')
    return s

Cfg.w2t = 1; Cfg.w2at = 0; Cfg.ktry = 0; Cfg.xl = 1; Cfg.fk = 1.0; Cfg.skip = 2; Cfg.f7 = 0.55; Cfg.nomf = 0; Cfg.nosc = 0; Cfg.now = 0; Cfg.slp = 2; Cfg.la = 4; Cfg.lb = 2; Cfg.lh = 4; Cfg.ost = 4; Cfg.pwg = 72; Cfg.cdbg = 0; Cfg.sl = 3; Cfg.nbm = 1; Cfg.hw = 0; Cfg.hwx = 8; Cfg.mt = 0; Cfg.tmaj = 0; Cfg.yw = 0; Cfg.b11 = 0; Cfg.hb = 4; Cfg.f25 = 0.3; Cfg.s4 = 2; Cfg.g2 = 3; Cfg.l2t = 0; Cfg.tlbw = 0; Cfg.cpre = 1; Cfg.cpd = 4; Cfg.cps = 1; Cfg.esn = 0; Cfg.xcw = 1; Cfg.f8 = 1; Cfg.skipy = 0; Cfg.q7 = 0; Cfg.eh = 1; Cfg.ehn = 302; Cfg.cf = 3; Cfg.e4 = 22; Cfg.nref = 8; Cfg.c0f = 0; Cfg.p8 = 0; Cfg.rsx = 286; Cfg.rtx = 1; Cfg.rsy = 264; Cfg.rty = 2; Cfg.kvq = 1; Cfg.kvr = 2; Cfg.qp = 7; Cfg.pat = 7; Cfg.q9 = 0; Cfg.rc = 0; Cfg.pgw = 0; Cfg.w2r = 0; Cfg.w2e = 1; Cfg.bm = 1; Cfg.xl2 = 1; Cfg.o2 = 1; Cfg.s2x = 1; Cfg.s2y = 0; Cfg.hx = 1; Cfg.hb1 = 1; Cfg.hk0 = 4; Cfg.hk1 = 10; Cfg.hk2 = 16; Cfg.kvf = 8; Cfg.ystg = 1; Cfg.qat = 9; Cfg.f9 = 0.8

def build():
    out = []
    def put(lab, streams, name):
        l = []
        for x in streams: l += x.l
        if lab: out.append(lab + ':')
        out.extend('    ' + i.text if i.kind != 'label' else i.text for i in finalize(l, name))
    put(None, [prologue()], 'pro')
    if cfg.bonly:
        b = S()
        b('s_waitcnt vmcnt(0)')
        line_voff(b, 4, 5)
        b(f'v_lshl_add_u32 v252, v4, 10, v5\nv_lshlrev_b32 v242, 4, v1\nv_mov_b32 v248, 0\ns_lshl_b32 s6, s{sSB}, 8\ns_add_u32 s6, s6, {FE}')
        sbase(b, 6)
        b(f's_cmp_lt_u32 s{sW}, 6\ns_cselect_b32 s{SO}, s{SD}, s{SO}\ns_cselect_b32 s{SO+1}, s{SD+1}, s{SO+1}\ns_cselect_b32 s{SO+2}, s{SD+2}, s{SO+2}')
        b(f's_cmp_ge_u32 s{sW}, 4\ns_cbranch_scc1 L_bh')
        b(f'v_mov_b32 v252, {WS_BYTES}')
        b('s_barrier'); stamp(b, 7); b('s_branch L_BC\nL_bh:')
        b('s_barrier'); stamp(b, 7); b('s_branch L_BHY' if cfg.bonly == 1 else 's_branch L_BHX')
        put('L_bonly', [b], 'bo')
    put('L_compX', [compute('X')], 'cX')
    put('L_compY', [compute('Y')], 'cY')
    put('L_BC', [phaseB_body('C')], 'BC')
    hs = S(); hs(f's_cmp_eq_u32 s{sTY}, 0\ns_cbranch_scc1 L_helpX')
    put('L_helper', [hs, helperY()], 'hY')
    put('L_BHY', [phaseB_body('HY')], 'BHY')
    lx = S(); lx('L_BHX:')
    put('L_helpX', [helperX(), lx, phaseB_body('HX')], 'hX')
    put('L_red', [phaseB_tail()], 'red')
    put('L_fin', [fin()], 'fin')
    hdr = open('cdna_kernels/' + KN[:-7] + '.s.ref').read().split('; Override')[0]
    txt = hdr + '; @launch grid=(256,1,1) block=(512,1,1) lds=163840\n'
    txt += f'.amdgcn_target "amdgcn-amd-amdhsa--gfx950"\n.text\n.globl {KN}\n.p2align 8\n.type {KN},@function\n{KN}:\n'
    txt += '\n'.join(out) + '\nL_end:\n    s_endpgm\n'
    txt += f'''.section .rodata,"a"
.p2align 6
.amdhsa_kernel {KN}
  .amdhsa_next_free_vgpr 256
  .amdhsa_next_free_sgpr 102
  .amdhsa_accum_offset 256
  .amdhsa_group_segment_fixed_size 0
  .amdhsa_kernarg_size 88
  .amdhsa_user_sgpr_count 2
  .amdhsa_user_sgpr_kernarg_segment_ptr 1
  .amdhsa_system_sgpr_workgroup_id_x 1
.end_amdhsa_kernel
'''
    return txt

if __name__ == '__main__':
    for a in sys.argv[2:]:
        k, v = a.split('='); setattr(cfg, k, float(v) if '.' in v else int(v))
    d = getattr(cfg, 'fsh', 0)
    FKV += d; FH += d; FE += d; FO += d; FQ += d
    KV_OFF += getattr(cfg, 'ksh', 0)
    open(sys.argv[1], 'w').write(build())
```

```python
import sys
from fw import S, I, finalize
KN = 'recurrent_scan__linear_kernel_hedgehog__glu_gated_reglu__prompt_kernel'

class Cfg:
    stamps = 0; hdbg = 0; rt = 0; span = 0
    pa = -1; pb = -1; pw = 0
    mx512 = 1
    prioC = 1; prioH = 0
    tp = 2; pro = 0
    bud = 1000; quiet = 450
    mid2 = 1
    pre = 2
    bonly = 0
cfg = Cfg()

SLOT = [131072, 0, 32768]
KB = 65536; VB = 65536; STDB = 129024; RSB = 130048
KV_OFF = 0x900000
Q_OFF = 0x940000
F_OFF = 0xB40000
FKV, FH, FE, FO, FQ = F_OFF, F_OFF + 0x1000, F_OFF + 0x3000, F_OFF + 0x5000, F_OFF + 0x6000
TS_OFF = 0xB50000
WS_BYTES = 0xC00000
SPIN = 1 << 20
SX, SD, SO, SWS, SOUT, SQKV, SG, SU, SDBG, SPHI = 8, 12, 16, 20, 24, 28, 32, 36, 40, 44
SWH = SO
SP = 28
def srd(b): return f's[{b}:{b+3}]'
sW, sRB, sJ, sTY, sSB, sNB = 48, 49, 50, 51, 52, 53
sA0, sM0, sLBc, sC0, sL4, sL2 = 54, 56, 57, 58, 59, 60
sNON = 62
sT, sT2, sHEAD = 64, 65, 67
sHA, sHM, sHC, sW4 = 68, 69, 70, 71
sQ, sONES, sKV = 72, 74, 78
sWB, sLB, sH0, sH1, sXO, sWBc = 80, 81, 82, 83, 84, 85
sTS = 86
def vr(b, n): return f'v[{b}:{b+n-1}]'
MF = 'v_mfma_f32_32x32x16_bf16'

def stamp(s, idx, force=False):
    if not cfg.stamps: return
    if (cfg.hdbg or cfg.span) and idx != 12 and not force: return
    s('s_memrealtime s[76:77]' if cfg.rt else 's_memtime s[76:77]'); s('s_waitcnt lgkmcnt(0)'); s(f's_mov_b32 s{sTS+idx}, s76')

def build_srd(s, b, lo, nbytes):
    s(f's_mov_b32 s{b}, s{lo}\ns_mov_b32 s{b+1}, s{lo+1}\ns_mov_b32 s{b+2}, {nbytes}\ns_mov_b32 s{b+3}, 0x00020000')

BSTART = [32, 52, 72, 92, 0, 16, 112, 128]
CORDER = [0, 1, 2, 3, 12, 13, 14, 15, 8, 9, 10, 11, 4, 5, 6, 7, 16, 17, 18, 19]
NX0 = 8
def xpieces():
    a, b = (96, 97) if not cfg.stamps else (62, 63)
    r = []
    for c, g in ([(c, 4*b + g) for b in range(2) for c in range(4) for g in range(4)] if cfg.bm else [(c, g) for c in range(4) for g in range(8)]):
        if True:
            t = 66 if len(r) >= NX0 else 7
            p = S()
            p(f's_add_u32 m0, s{b}, {(g >> 2)*65536 + c*4096 + (g & 3)*1024 if cfg.xl2 else c*8192+g*1024}\ns_add_u32 s{t}, s{a}, {g*4096+c*256}')
            p(f'buffer_load_dwordx4 v{10+(g&3)}, {srd(SX)}, s{t} offen lds')
            r.append(p.l)
    return r

def merge(w, main, side, every):
    side = list(side)
    for n, i in enumerate(main.l):
        w.l.append(i)
        if side and n % every == every - 1: w.l.extend(side.pop(0))
    for x in side: w.l.extend(x)

def piece(lds_s, lds_o, g_s, g_o, voff, sr):
    p = S()
    p(f's_add_u32 m0, s{lds_s}, {lds_o}\ns_add_u32 s{sT}, s{g_s}, {g_o}')
    p(f'buffer_load_dwordx4 v{voff}, {srd(sr)}, s{sT} offen lds')
    return p.l

def sbase(s, soff): s(f's_add_u32 s4, s{SWS}, s{soff}\ns_addc_u32 s5, s{SWS+1}, 0')
def sload(s, z, n, two):
    sfx = {1: '', 2: 'x2', 4: 'x4', 8: 'x8', 16: 'x16'}[n]
    rg = lambda b: f's{b}' if n == 1 else f's[{b}:{b+n-1}]'
    s(f's_load_dword{sfx} {rg(z)}, s[4:5], 0 glc')
    if two: s(f's_load_dword{sfx} {rg(z+n)}, s[4:5], 128 glc')
def scheck(s, label, z, n, two, pairs=None):
    tot = n * (2 if two else 1)
    pairs = pairs or list(range(tot // 2))
    def test():
        s('s_waitcnt lgkmcnt(0)')
        if tot == 1: s(f's_cmp_eq_u32 s{z}, s{sNON}'); return
        s(f's_xor_b64 s[6:7], s[{z+2*pairs[0]}:{z+2*pairs[0]+1}], s[{sNON}:{sNON+1}]')
        for k in pairs[1:]:
            s(f's_xor_b64 s[76:77], s[{z+2*k}:{z+2*k+1}], s[{sNON}:{sNON+1}]\ns_or_b64 s[6:7], s[6:7], s[76:77]')
        s('s_cmp_eq_u64 s[6:7], 0')
    test()
    if cfg.bonly: return
    s(f's_cbranch_scc1 {label}_x')
    s('s_mov_b32 s75, 0')
    s(f'{label}:')
    if cfg.slp: s(f's_sleep {cfg.slp}')
    sload(s, z, n, two)
    s(f's_add_u32 s75, s75, 1\ns_cmp_gt_u32 s75, {SPIN}\ns_cbranch_scc1 {label}_y')
    test()
    s(f's_cbranch_scc0 {label}')
    s(f'{label}_y:')
    s('s_waitcnt lgkmcnt(0)')
    s(f'{label}_x:')
def post(s, vdat, vaddr, soff='0', needs=None):
    s('s_mov_b64 exec, 1', needs=needs)
    s(f'buffer_store_dword v{vdat}, v{vaddr}, {srd(SWS)}, {soff} offen sc1')
    s('s_mov_b64 exec, -1')

def prologue():
    s = S()
    s('s_cmp_ge_u32 s2, 256\ns_cbranch_scc1 L_end')
    s('s_load_dwordx16 s[64:79], s[0:1], 0\ns_load_dwordx4 s[80:83], s[0:1], 64\ns_load_dwordx2 s[84:85], s[0:1], 80')
    if cfg.stamps: s('s_memtime s[86:87]\ns_memrealtime s[88:89]')
    s('v_lshrrev_b32 v2, 6, v0\nv_and_b32 v1, 63, v0')
    s(f'v_readfirstlane_b32 s{sW}, v2')
    s('s_and_b32 s3, s2, 7\ns_lshr_b32 s4, s2, 3')
    s(f's_cmp_lg_u32 s{sW}, 7\ns_cbranch_scc1 L_nocode')
    s('s_getpc_b64 s[6:7]')
    s('L_pc:')
    s('s_and_b32 s5, s4, 7\ns_lshl_b32 s5, s5, 13\nv_lshl_add_u32 v3, v1, 7, s5\nv_min_u32 v3, L_end-L_pc, v3')
    s('global_load_dword v9, v3, s[6:7]', tag='raw')
    s('L_nocode:')
    s(f's_and_b32 s5, s3, 1\ns_lshl_b32 s5, s5, 3\ns_and_b32 s6, s4, 7\ns_add_u32 s{sRB}, s5, s6')
    s(f's_and_b32 s6, s{sW}, 3\ns_lshl_b32 s6, s6, 15\ns_lshl_b32 s5, s{sRB}, 17\ns_add_u32 s5, s5, s6')
    s('v_lshrrev_b32 v3, 4, v1\nv_and_b32 v4, 15, v1\nv_xor_b32 v4, v3, v4\nv_lshlrev_b32 v4, 4, v4\nv_lshl_add_u32 v10, v3, 10, v4')
    s('v_xor_b32 v11, 64, v10\nv_xor_b32 v12, 128, v10\nv_xor_b32 v13, 192, v10')
    s('s_waitcnt lgkmcnt(0)')
    if cfg.stamps:
        s('s_mov_b32 s101, s86\ns_mov_b32 s100, s88')
        for q in range(13): s(f's_mov_b32 s{86+q}, s101')
    build_srd(s, SX, 64, 2097152)
    if cfg.xl2: s('s_lshr_b32 s6, s6, 1')
    s('s_mov_b32 s96, s5\ns_mov_b32 s97, s6' if not cfg.stamps else 's_mov_b32 s62, s5\ns_mov_b32 s63, s6')
    s(f's_cmp_ge_u32 s{sW}, 4\ns_cbranch_scc1 L_nox')
    for p in xpieces()[:NX0]: s.l.extend(p)
    s('L_nox:')
    build_srd(s, SQKV, 66, 1572864); build_srd(s, SG, 74, 1835008); build_srd(s, SU, 76, 1835008)
    s(f's_lshr_b32 s5, s4, 3\ns_lshr_b32 s{sTY}, s5, 1\ns_and_b32 s5, s5, 1\ns_and_b32 s6, s3, 6\ns_add_u32 s{sJ}, s6, s5')
    if cfg.mx512:
        if cfg.nbm:
            s(f's_lshr_b32 s5, s3, 1\ns_lshl_b32 s5, s5, 3\ns_and_b32 s6, s4, 7\ns_add_u32 s{sSB}, s5, s6')
            s(f's_and_b32 s5, s3, 1\ns_lshl_b32 s5, s5, 2\ns_lshr_b32 s6, s4, 3\ns_add_u32 s{sNB}, s5, s6')
        else:
            s(f's_lshr_b32 s5, s3, 1\ns_lshl_b32 s5, s5, 3\ns_lshr_b32 s6, s4, 2\ns_add_u32 s{sSB}, s5, s6')
            s(f's_and_b32 s5, s3, 1\ns_lshl_b32 s5, s5, 2\ns_and_b32 s6, s4, 3\ns_add_u32 s{sNB}, s5, s6')
    else:
        s(f's_lshl_b32 s5, s3, 2\ns_lshr_b32 s6, s4, 3\ns_add_u32 s{sSB}, s5, s6\ns_and_b32 s{sNB}, s4, 7')
    build_srd(s, SPHI, 68, 16384); build_srd(s, SO, 70, 524288); build_srd(s, SD, 78, 1835008)
    build_srd(s, SOUT, 80, 2097152); build_srd(s, SDBG, 82, 256); build_srd(s, SWS, 84, WS_BYTES)
    s(f's_and_b32 s{sW4}, s{sW}, 3')
    s(f's_mul_i32 s6, s{sJ}, 160\ns_add_u32 s6, s6, 512\ns_and_b32 s7, s{sJ}, 1')
    s('s_lshl_b32 s3, s7, 5\ns_add_u32 s3, s3, s6')
    s('s_xor_b32 s7, s7, 1\ns_lshl_b32 s4, s7, 7\ns_add_u32 s4, s4, s6')
    s(f's_add_u32 s5, s3, 64\ns_lshl_b32 s6, s{sJ}, 6\ns_cmp_eq_u32 s{sTY}, 0\ns_cselect_b32 s5, s6, s5')
    s(f's_mov_b32 s6, {BSTART[0]}')
    for w in range(1, 8): s(f's_cmp_eq_u32 s{sW}, {w}\ns_cselect_b32 s6, {BSTART[w]}, s6')
    s(f's_add_u32 s{sLB}, s{sW}, 4\ns_sub_u32 s7, s{sW}, 2\ns_cmp_ge_u32 s{sW}, 4\ns_cselect_b32 s{sLB}, s7, s{sLB}\ns_add_u32 s7, s{sW}, 2\ns_cmp_ge_u32 s{sW}, 6\ns_cselect_b32 s{sLB}, s7, s{sLB}\ns_cselect_b32 s7, 112, 0\ns_lshl_b32 s{sLB}, s{sLB}, 14')
    s(f's_sub_u32 s7, s6, s7\ns_lshl_b32 s{sWB}, s7, 14\ns_lshl_b32 s7, s{sNB}, 7\ns_add_u32 s{sWB}, s{sWB}, s7')
    s(f's_mul_i32 s{sH0}, s{sSB}, 288\ns_add_u32 s{sH0}, s{sH0}, s6\ns_lshl_b32 s{sH0}, s{sH0}, 10\ns_add_u32 s{sH1}, s{sH0}, {144*1024}')
    s(f's_lshl_b32 s6, s{sSB}, 3\ns_add_u32 s6, s6, s{sW}\ns_lshl_b32 s6, s6, 13\ns_add_u32 s{sXO}, s6, s7')
    if cfg.bonly: s('s_branch L_bonly')
    s(f's_cmp_ge_u32 s{sW}, 4\ns_cbranch_scc1 L_helper')
    s(f's_cmp_eq_u32 s{sTY}, 0\ns_cbranch_scc0 L_compY\ns_branch L_compX')
    return s

M16 = 'v_mfma_f32_16x16x32_bf16'
XN = 0; ACC = [128, 144, 160, 176]; WF = 192; NRING = 6; PK = 224
vTL, vTH = 216, 220
vL16, vKW, vVW, vM2, vXA = 242, 243, 244, 245, 246
vC, vR2, vNON, vFA, vZ = 240, 254, 248, 252, 251

def compute(ty):
    X = ty == 'X'
    s = S()
    s(f's_setprio {cfg.prioC}')
    s(f'v_lshlrev_b32 v{vL16}, 4, v1')
    s('v_lshrrev_b32 v2, 4, v1\nv_and_b32 v3, 15, v1')
    s('v_bfe_u32 v4, v1, 2, 2\nv_lshl_add_u32 v4, v2, 3, v4\nv_and_b32 v5, 3, v1\nv_lshlrev_b32 v5, 3, v5')
    if not X:
        s(f'v_and_b32 v6, 1, v2\nv_lshl_add_u32 v6, v6, 5, v5\nv_lshl_add_u32 v{vKW}, v4, 6, v6\nv_xor_b32 v{vM2}, 32, v{vKW}')
    s(f'v_bfe_u32 v6, v1, 3, 1\nv_and_b32 v7, 1, v2\nv_lshl_add_u32 v6, v6, 1, v7\nv_lshl_add_u32 v5, v6, 5, v5\nv_lshl_add_u32 v{vTL}, v4, 7, v5')
    s(f'v_add_u32 v{vTH}, 0x20000, v{vTL}')
    for q in range(1, 4): s(f'v_xor_b32 v{vTL+q}, {32*q}, v{vTL}\nv_xor_b32 v{vTH+q}, {32*q}, v{vTH}')
    s('v_xor_b32 v4, v2, v3\nv_lshlrev_b32 v4, 4, v4\nv_and_b32 v5, 3, v1\nv_lshl_add_u32 v4, v5, 8, v4')
    s(f'v_bfe_u32 v5, v1, 2, 2\nv_lshl_add_u32 v4, v5, 10, v4\ns_lshl_b32 s6, s{sW}, {14 if cfg.xl2 else 15}\nv_add_u32 v{vXA}, s6, v4')
    for u in range(1, 4): s(f'v_xor_b32 v{vXA+u}, {u<<6}, v{vXA}')
    if X:
        s(f's_lshl_b32 s6, s{sW}, 10\ns_add_u32 s6, s6, {KB}\nv_lshlrev_b32 v4, 3, v1\nv_add_u32 v{vKW}, s6, v4')
        s(f'v_and_b32 v4, 1, v2\nv_lshrrev_b32 v6, 1, v2\nv_lshl_add_u32 v4, v4, 1, v6\nv_xor_b32 v4, v4, v5\nv_lshlrev_b32 v4, 3, v4\nv_lshl_add_u32 v4, v3, 5, v4\nv_add_u32 v{vVW}, s6, v4')
        s(f's_lshl_b32 s6, s{sRB}, 3\ns_add_u32 s6, s6, s{sJ}\ns_lshl_b32 s6, s6, 4\ns_add_u32 s6, s6, s{sW}\ns_lshl_b32 s6, s6, 10\ns_add_u32 s{sQ}, s6, {Q_OFF}')
    E = PK
    s('v_and_b32 v4, 1, v1\nv_lshlrev_b32 v4, 4, v4\nv_mov_b32 v6, 0x3f80\nv_lshlrev_b32 v6, v4, v6')
    s('v_cmp_eq_u32 vcc, v5, v2\nv_cndmask_b32 v6, 0, v6, vcc\nv_bfe_u32 v4, v1, 1, 1')
    s(f'v_cmp_eq_u32 vcc, 0, v4\nv_cndmask_b32 v{E}, 0, v6, vcc\nv_cndmask_b32 v{E+1}, v6, 0, vcc')
    s(f'v_mov_b32 v{E+2}, 0\nv_mov_b32 v{E+3}, 0\nv_mov_b32 v{E+4}, 0\nv_mov_b32 v{E+5}, 0\nv_mov_b32 v{E+6}, v{E}\nv_mov_b32 v{E+7}, v{E+1}')
    s(f's_lshl_b32 s6, s{sRB}, 2\ns_add_u32 s6, s6, s{sW}\ns_mul_i32 s6, s6, {144*1024}')
    s(f's_lshl_b32 s7, s3, 6\ns_add_u32 s{sHA}, s6, s7\ns_lshl_b32 s7, s4, 6\ns_add_u32 s{sHM}, s6, s7\ns_lshl_b32 s7, s5, 6\ns_add_u32 s{sHC}, s6, s7')
    s(f's_mov_b32 s{sONES}, 0x3f803f80')
    setup = s; s = S()
    merge(s, setup, xpieces()[NX0:16 if cfg.hx else 32], 3)
    if not cfg.hx: s('s_barrier')
    stamp(s, 0)
    SA = ACC[0]
    xr = lambda tt, b: XN + 8*tt + 4*b
    if cfg.bm:
        A0, Q0 = SA, SA + 2
        CM = ACC[0] + 8
        DT = ACC[1]; ND = 5; LAG = 2
        def reads(b, c):
            if not cfg.hx: s(f's_waitcnt vmcnt({4*(7 - 4*b - c)})')
            elif b == 0: s(f's_waitcnt vmcnt({4*(3 - c)})')
            for u in range(4): s(f'ds_read_b128 {vr(xr(4*c+u,b),4)}, v{vXA+u} offset:{c*4096 if cfg.xl2 else c*8192 + b*4096}')
            if cfg.xl2 and b == 0 and c == 3:
                for u in range(4): s(f'v_add_u32 v{vXA+u}, 0x10000, v{vXA+u}')
        def dots(b, c):
            for u in range(4):
                for r in range(4):
                    z = c == 0 and u == 0 and r < 2; x = xr(4*c+u, b) + r; k = 4*(r & 1)
                    s(f'v_dot2_f32_bf16 v{A0+b+k}, v{x}, s{sONES}, ' + ('0' if z else f'v{A0+b+k}'))
                    s(f'v_dot2_f32_bf16 v{Q0+b+k}, v{x}, v{x}, ' + ('0' if z else f'v{Q0+b+k}'))
        def stats(b):
            a_, q = A0 + b, Q0 + b
            s(f'v_add_f32 v{a_}, v{a_}, v{a_+4}\nv_add_f32 v{q}, v{q}, v{q+4}')
            s(f'v_permlane32_swap_b32 v{a_}, v{q}\nv_add_f32 v{a_}, v{a_}, v{q}\nv_mov_b32 v{q}, v{a_}\nv_permlane16_swap_b32 v{a_}, v{q}')
            s(f'v_add_f32 v{a_}, v{a_}, v{q}\nv_mul_f32 v{a_}, 0x3b000000, v{a_}\nv_mov_b32 v{q}, v{a_}\nv_permlane32_swap_b32 v{a_}, v{q}')
            s(f'v_cvt_pk_bf16_f32 v{CM+4*b}, -v{a_}, -v{a_}\nv_and_b32 v{CM+4*b}, 0xffff0000, v{CM+4*b}')
            for r in range(1, 4): s(f'v_mov_b32 v{CM+4*b+r}, v{CM+4*b}')
        def mkside(b):
            side = S(); q = Q0 + b
            if b == 0: side(f'v_mov_b32 v{vZ}, 0')
            side(f'v_fma_f32 v{q}, -v{A0+b}, v{A0+b}, v{q}\nv_max_f32 v{q}, 0, v{q}')
            side(f'v_cvt_pk_bf16_f32 v{q}, v{q}, v{q}\nv_and_b32 v{q}, 0xffff0000, v{q}\nv_add_f32 v{q}, 0x3727c5ac, v{q}')
            side(f'v_cvt_pk_bf16_f32 v{q}, v{q}, v{q}\nv_and_b32 v{q}, 0xffff0000, v{q}\nv_sqrt_f32 v{q}, v{q}')
            if X and b == 0: side(f'v_lshrrev_b32 v250, 2, v{vL16}\nv_and_b32 v250, 0x3c, v250\ns_lshl_b32 s6, s{sW}, 7\nv_add_u32 v250, s6, v250\nv_add_u32 v252, {RSB}, v250\nv_lshlrev_b32 v253, 1, v250\nv_add_u32 v253, {STDB}, v253')
            else: side('s_nop 0')
            side(f'v_cvt_pk_bf16_f32 v{234+2*b}, v{q}, v{q}\nv_mov_b32 v{235+2*b}, v{234+2*b}\nv_and_b32 v{q}, 0xffff0000, v{234+2*b}\nv_rcp_f32 v{q}, v{q}')
            if X and b == 1:
                for bb in range(2): side(f'ds_write_b64 v253, v[{234+2*bb}:{235+2*bb}] offset:{128*bb}')
            else: side('s_nop 0')
            if X: side(f'v_mul_f32 v{vC+b}, 0x3fb8aa3b, v{q}')
            side(f'v_mul_f32 v{vR2+b}, v{q}, v{q}')
            if X and b == 1:
                for bb in range(2): side(f'ds_write_b32 v252, v{Q0+bb} offset:{64*bb}')
            return side.l
        def center(b, hooks):
            nonlocal pre_reads_at
            side = mkside(b)
            for f in range(16 + LAG):
                g = f - LAG
                cv = [f'v_cvt_pk_bf16_f32 v{xr(g,b)+j}, v{DT+8*(g%ND)+2*j}, v{DT+8*(g%ND)+2*j+1}' for j in range(4)] if g >= 0 else []
                for a_ in range(2):
                    if f < 16: s(f'{M16} {vr(DT+8*(f%ND)+4*a_,4)}, {vr(E+4*a_,4)}, {vr(xr(f,b),4)}, {vr(CM+4*b,4)}')
                    for x in cv[2*a_:2*a_+2]: s(x)
                    if side: s.l.append(side.pop(0))
                if f in hooks: hooks[f]()
                if b == 1 and f == 12: s('s_waitcnt lgkmcnt(0)\ns_barrier')
                if b == 1 and f == 14: pre_reads_at = len(s.l)
            assert not side
        pre_reads_at = None
        for c in range(4): reads(0, c); dots(0, c)
        stats(0)
        stamp(s, 1)
        if cfg.hx:
            center(0, {cfg.hk2: lambda: (s('s_barrier'), reads(1, 0), reads(1, 1), reads(1, 2))})
            dots(1, 0); reads(1, 3); dots(1, 1); dots(1, 2); dots(1, 3)
        else:
            center(0, {cfg.hk0: lambda: reads(1, 0), cfg.hk1: lambda: reads(1, 1), cfg.hk2: lambda: reads(1, 2)})
            dots(1, 0); dots(1, 1); reads(1, 3); dots(1, 2); dots(1, 3)
        s('s_barrier')
        stats(1)
        stamp(s, 2)
        center(1, {})
    else:
        for c in range(4):
            s(f's_waitcnt vmcnt({8*(3-c)})')
            if c == 3: stamp(s, 1)
            for u in range(4):
                for b in range(2): s(f'ds_read_b128 {vr(xr(4*c+u,b),4)}, v{vXA+u} offset:{c*8192 + b*4096}')
            for u in range(4):
                for r in range(4):
                    for b in range(2):
                        z = c == 0 and u == 0 and r == 0; x = xr(4*c+u, b) + r
                        s(f'v_dot2_f32_bf16 v{SA+b}, v{x}, s{sONES}, ' + ('0' if z else f'v{SA+b}'))
                        s(f'v_dot2_f32_bf16 v{SA+2+b}, v{x}, v{x}, ' + ('0' if z else f'v{SA+2+b}'))
        s('s_barrier')
        A0, A1, Q0, Q1 = SA, SA + 1, SA + 2, SA + 3
        s(f'v_permlane32_swap_b32 v{A0}, v{Q0}\nv_permlane32_swap_b32 v{A1}, v{Q1}\nv_add_f32 v{A0}, v{A0}, v{Q0}\nv_add_f32 v{A1}, v{A1}, v{Q1}')
        s(f'v_permlane16_swap_b32 v{A0}, v{A1}\nv_add_f32 v{A0}, v{A0}, v{A1}\nv_mul_f32 v{A0}, 0x3b000000, v{A0}')
        s(f'v_mov_b32 v{A1}, v{A0}\nv_permlane16_swap_b32 v{A0}, v{A1}\nv_mov_b32 v{Q0}, v{A0}\nv_mov_b32 v{Q1}, v{A1}')
        s(f'v_permlane32_swap_b32 v{A0}, v{Q0}\nv_permlane32_swap_b32 v{A1}, v{Q1}')
        CM = ACC[0] + 8
        for b in range(2):
            s(f'v_cvt_pk_bf16_f32 v{CM+4*b}, -v{A0+b}, -v{A0+b}\nv_and_b32 v{CM+4*b}, 0xffff0000, v{CM+4*b}')
            for r in range(1, 4): s(f'v_mov_b32 v{CM+4*b+r}, v{CM+4*b}')
        stamp(s, 2)
        side = S()
        side(f'v_mov_b32 v{vZ}, 0')
        for b in range(2):
            q = Q0 + b
            side(f'v_fma_f32 v{q}, -v{A0+b}, v{A0+b}, v{q}\nv_max_f32 v{q}, 0, v{q}')
            side(f'v_cvt_pk_bf16_f32 v{q}, v{q}, v{q}\nv_and_b32 v{q}, 0xffff0000, v{q}\nv_add_f32 v{q}, 0x3727c5ac, v{q}')
            side(f'v_cvt_pk_bf16_f32 v{q}, v{q}, v{q}\nv_and_b32 v{q}, 0xffff0000, v{q}\nv_sqrt_f32 v{q}, v{q}')
            if X and b == 0: side(f'v_lshrrev_b32 v250, 2, v{vL16}\nv_and_b32 v250, 0x3c, v250\ns_lshl_b32 s6, s{sW}, 7\nv_add_u32 v250, s6, v250\nv_add_u32 v252, {RSB}, v250\nv_lshlrev_b32 v253, 1, v250\nv_add_u32 v253, {STDB}, v253')
            else: side('s_nop 0')
            side(f'v_cvt_pk_bf16_f32 v234, v{q}, v{q}\nv_mov_b32 v235, v234\nv_and_b32 v{q}, 0xffff0000, v234\nv_rcp_f32 v{q}, v{q}')
            if X:
                side(f'ds_write_b64 v253, v[234:235] offset:{128*b}\nds_write_b32 v252, v{q} offset:{64*b}')
                side(f'v_mul_f32 v{vC+b}, 0x3fb8aa3b, v{q}')
            else: side('s_nop 0')
            side(f'v_mul_f32 v{vR2+b}, v{q}, v{q}')
        side = side.l
        DT = ACC[1]; ND = 5
        LAG = 2
        for f in range(32 + LAG):
            g = f - LAG
            cv = [f'v_cvt_pk_bf16_f32 v{XN+4*g+j}, v{DT+8*(g%ND)+2*j}, v{DT+8*(g%ND)+2*j+1}' for j in range(4)] if g >= 0 else []
            for a_ in range(2):
                if f < 32: s(f'{M16} {vr(DT+8*(f%ND)+4*a_,4)}, {vr(E+4*a_,4)}, {vr(XN+4*f,4)}, {vr(CM+4*(f&1),4)}')
                for x in cv[2*a_:2*a_+2]: s(x)
                if side: s.l.append(side.pop(0))
            if f == 28: s('s_waitcnt lgkmcnt(0)\ns_barrier')
            if f == 30: pre_reads_at = len(s.l)
        assert not side
    stamp(s, 3)
    mf = []
    for st in range(10):
        base = SLOT[st % 3]
        if not ((4 <= st < 6) or (X and st < 4)):
            sl = st if st < 4 else st - 6
            accs = [0, 1, 2, 3] if st < 4 else [2, 3, 0, 1]
            for p in range(2):
                for t in range(4):
                    for c in range(2):
                        for a_ in range(2):
                            mf.append((st, ACC[accs[2*p+c]] + 8*a_, 4*sl + t, (base + c*16384 + t*4096, 2*p + a_), sl == 0 and t == 0))
        else:
            sl = st & 1; a0 = 2 if st in (2, 3) else 0
            for t in range(8):
                for c in range(2):
                    for a_ in range(2):
                        mf.append((st, ACC[a0 + c] + 8*a_, 8*sl + t, (base + t*4096, 2*c + a_) if X else (base + c*16384 + t*2048, -1 - a_), sl == 0 and t == 0))
    N = len(mf)
    def packswap(e, src, pk, mul):
        for b in range(2):
            if mul is not None:
                for r in range(4): e.append(f'v_mul_f32 v{src+4*b+r}, v{src+4*b+r}, v{mul+b}')
            e.append(f'v_cvt_pk_bf16_f32 v{pk+2*b}, v{src+4*b}, v{src+4*b+1}')
            e.append(f'v_cvt_pk_bf16_f32 v{pk+2*b+1}, v{src+4*b+2}, v{src+4*b+3}')
    def swaps(e, pk):
        e.append(f'v_permlane16_swap_b32 v{pk}, v{pk+2}'); e.append(f'v_permlane16_swap_b32 v{pk+1}, v{pk+3}')
    def ep_h(g, u, sbase, off, PK=PK, defer=None):
        e = []; dst = e if defer is None else defer
        for a_ in range(2):
            for j in range(8*a_, 8*a_ + 8): e.append(f'v_max_f32 v{g+j}, 0, v{g+j}')
            if a_ == 1:
                swaps(e, PK); dst.append(f'buffer_store_dwordx4 {vr(PK,4)}, v{vL16}, {srd(SWS)}, s{sbase} offen offset:{off} sc1')
            for j in range(8*a_, 8*a_ + 8): e.append(f'v_mul_f32 v{g+j}, v{g+j}, v{u+j}')
            packswap(e, g + 8*a_, PK + 4*a_, vR2)
        e.append('s_nop 0'); swaps(e, PK + 4)
        dst.append(f'buffer_store_dwordx4 {vr(PK+4,4)}, v{vL16}, {srd(SWS)}, s{sbase} offen offset:{off+1024} sc1')
        return e
    def ep_hand(a0, a1, kind):
        e = []; fin = []
        for hd in range(4):
            src = (a0, a1)[hd >> 1] + 8*(hd & 1); pk = PK + 4*hd
            t = []; packswap(t, src, pk, None if kind == 'v' else vC)
            if kind == 'v':
                e += t[:2] + [f'ds_write_b64 v{vVW}, {vr(pk,2)} offset:{hd*4096}'] + t[2:] + [f'ds_write_b64 v{vVW}, {vr(pk+2,2)} offset:{hd*4096+512}']
                continue
            e += t[:6] + fin + t[6:]; fin = []
            swaps(fin, pk)
            if kind == 'k': fin += [f'ds_write_b64 v{vKW}, {vr(pk,2)} offset:{hd*4096}', f'ds_write_b64 v{vKW}, {vr(pk+2,2)} offset:{hd*4096+512}']
            else:
                fin.append(f'buffer_store_dwordx4 {vr(pk,4)}, v{vL16}, {srd(SWS)}, s{sQ} offen sc1')
                if hd < 3: fin.append(f's_add_u32 s{sQ}, s{sQ}, 4096')
        return e + fin
    A = ACC
    fill = {}; late = {}; posts = {}; mids = []
    skip = (({0: set(), 1: {7}, 2: {8}}[cfg.skip]) if X else ({8} if cfg.skipy else set()))
    fa = f's_lshl_b32 s6, s{sRB}, 2\ns_add_u32 s6, s6, s{sW}\ns_lshl_b32 s6, s6, 5\ns_add_u32 s6, s6, s{sJ}' + ('' if X else '\ns_add_u32 s6, s6, 8') + f'\ns_lshl_b32 s6, s6, 2\ns_add_u32 s6, s6, {FH}\nv_mov_b32 v{vFA}, s6'
    if X:
        fill[2*32] = (ep_hand(A[0], A[1], 'k'), 2*32 + 17); mids.append(2*32 + 19)
        if cfg.kvq:
            fill[4*32] = (ep_hand(A[2], A[3], 'v'), 4*32 + 12); mids.append(4*32 + 14)
            fill[6*32] = (ep_hand(A[0], A[1], 'q'), 6*32 + 15); mids.append(7*32 + cfg.qp + 1)
            skip = {8}
        else:
            fill[4*32] = (ep_hand(A[2], A[3], 'q'), 4*32 + 24)
            fill[6*32] = (ep_hand(A[0], A[1], 'v'), 6*32 + 10)
            mids.append(6*32 + 12)
        extra = f'\ns_lshl_b32 s6, s{sRB}, 3\ns_add_u32 s6, s6, s{sJ}\ns_lshl_b32 s6, s6, 5\ns_add_u32 s6, s6, s{sW}\ns_lshl_b32 s6, s6, 2\ns_add_u32 s6, s6, {FQ}\nv_mov_b32 v253, s6'
        posts[7*32 + cfg.qp if cfg.kvq else 5*32 + 12] = (253, '0')
    else:
        d1 = []; d2 = []
        fill[3*32+16] = (ep_h(A[0], A[1], sHA, 0, PK, d1), 3*32 + 31)
        fill[4*32] = (ep_h(A[2], A[3], sHA, 2048, PK + 8, d1), 4*32 + cfg.e4)
        fill[6*32] = (ep_h(A[0], A[1], sHM, 0, PK, d2), 6*32 + 15)
        for k, x in enumerate(d1): late[4*32 + (19, 21, cfg.e4 + 1, cfg.e4 + 2)[k]] = x
        for k, x in enumerate(d2): late[6*32 + 21 + 3*k] = x
        extra = f'\ns_mov_b32 s{sQ}, {FE-FH}'
        posts[7*32 + 20] = (vFA, f's{sQ}')
    if cfg.s2x if X else cfg.s2y:
        skip = skip | {2}
        if not X: mids.append(2*32 + cfg.s2y)
    fill[1*32+2] = ([f'buffer_load_dword v{vNON}, v{vZ}, {srd(SDBG)}, 0 offen sc1'] + (fa + extra).split('\n'), 1*32 + 22)
    t = S()
    t(f'v_lshrrev_b32 v249, 4, v{vL16}')
    b_traddr(t, 244, sLB, 250, 249)
    t('v_xor_b32 v246, 64, v244')
    line_voff(t, 250, 243, 249)
    t('v_lshl_add_u32 v243, v250, 10, v243')
    t('v_and_b32 v250, 1, v249\nv_lshlrev_b32 v250, 2, v250\nv_bfe_u32 v253, v249, 1, 1\nv_lshl_add_u32 v253, v253, 7, v250')
    t(f's_lshl_b32 s6, s{sSB}, 8\ns_lshl_b32 s7, s{sW}, 3\ns_add_u32 s6, s6, s7\ns_add_u32 s6, s6, {FE+32}\nv_add_u32 v253, s6, v253')
    late[cfg.ehn - 10] = f'buffer_load_dword v250, v253, {srd(SWS)}, 0 offen sc1'
    if cfg.p8:
        fill[7*32+12] = ([i.text for i in t.l], 7*32 + 27)
        pstart = 8*32 + 2; rstart, rstep = (cfg.rsx, cfg.rtx) if X else (cfg.rsy, cfg.rty)
    else:
        fill[8*32+2] = ([i.text for i in t.l], 8*32 + 24)
        pstart = 8*32 + 30; rstart, rstep = pstart + cfg.cpd, 1
    pre9 = []
    for i in range(8):
        g = []
        for c in range(2):
            g.append(I(f'ds_read_b64_tr_b16 {vr(8*i+4*c,2)}, v{(244, 246)[c]} offset:{2048*i}'))
            g.append(I(f'ds_read_b64_tr_b16 {vr(8*i+4*c+2,2)}, v{(244, 246)[c]} offset:{2048*i+B2}'))
        pre9.append(g)
    ref9 = ownpieces(range(8, 16), sLB, O8, 243, SD, CORDER)
    for k, p in enumerate(ref9): p[-1].needs = [pre9[k // 2][-1]]
    ref9 = ref9[:2*cfg.nref]
    fill[9*32+16] = (ep_h(A[2], A[3], sHC, 0), 9*32 + 31)
    tail = ep_h(A[0], A[1], sHC, 2048, PK + 8)
    def rd(n):
        st, a, xf, (off, q), first = mf[n]
        if q < 0: va, o, d = (vKW, vM2)[-1 - q], off, 256
        elif off >= 131072: va, o, d = vTH + q, off - 131072, 512
        else: va, o, d = vTL + q, off, 512
        r = WF + 4*(n % NRING)
        return [f'ds_read_b64_tr_b16 {vr(r,2)}, v{va} offset:{o}', f'ds_read_b64_tr_b16 {vr(r+2,2)}, v{va} offset:{o+d}']
    nxt = 0; half = []; pend = []; rdtok = {}
    def issue_reads(limit_frag, maxn):
        nonlocal nxt, half
        k = 0
        while k < maxn:
            if not half:
                if nxt > limit_frag or nxt >= N: break
                half = [(nxt, x) for x in rd(nxt)]; nxt += 1
            f, x = half.pop(0); rdtok[f] = s(x); k += 1
        return k
    passed = 0
    keep = s.l[pre_reads_at:]; del s.l[pre_reads_at:]
    issue_reads(NRING - 2, 2*(NRING - 1))
    s.l.extend(keep)
    delay = 0; dead = 0
    BP = 28
    def fillers(k):
        nw = 0
        while pend and k > 0:
            if pend[0].startswith('ds_write'):
                if nw and not last_gap: break
                nw += 1
            s(pend.pop(0)); k -= 1
    for n in range(N):
        st, a, xf, off, first = mf[n]
        if n in fill:
            assert not pend
            pend = list(fill[n][0]); dead = fill[n][1]; delay = 1
        needs = []
        if n % 2 == 0 and (n + 1) in rdtok and not (half and half[0][0] == n + 1): needs = [rdtok[n+1]]
        r = WF + 4*(n % NRING)
        isbar = n % 32 == BP and st + 1 not in skip
        lim = min(n + NRING - 1, 32*(passed+1) - 1)
        budget = 0; last_gap = False
        if delay > 0: delay -= 1
        elif pend and not isbar:
            gaps = sum(1 for m in range(n, dead + 1) if m % 32 != BP or m // 32 + 1 in skip)
            budget = -(-len(pend) // gaps); last_gap = gaps == 1
        s(f'{M16} {vr(a,4)}, {vr(r,4)}, {vr(xr(xf,0),4)}, ' + ('0' if first else vr(a,4)), needs=needs)
        if not isbar:
            behind = (min(lim, n + NRING - 2) - nxt + 1) * 2 + len(half)
            issue_reads(min(lim, n + NRING - 2), 2 if behind > 2 else 1)
            fillers(budget // 2)
        s(f'{M16} {vr(a+4,4)}, {vr(r,4)}, {vr(xr(xf,1),4)}, ' + ('0' if first else vr(a+4,4)))
        if isbar:
            assert nxt == 32*(st+1) and not half, (n, nxt)
            s('s_waitcnt lgkmcnt(0)')
            if cfg.hdbg and cfg.hb <= st <= cfg.hb + 5: stamp(s, 2*(st-cfg.hb), True)
            s('s_barrier'); passed = st + 1
            if passed + 1 in skip and (passed + 1 == 2 or (passed + 1 == 8 and not (X and cfg.kvq))): passed += 1
            if cfg.hdbg and cfg.hb <= st <= cfg.hb + 5: stamp(s, 2*(st-cfg.hb)+1, True)
            if st in (3, 5): stamp(s, 4 if st == 3 else 5)
            issue_reads(min(n + NRING - 1, N - 1), 4)
            if st == 9:
                s(f'v_readfirstlane_b32 s{sNON}, v{vNON}\ns_lshl_b32 s6, s{sSB}, 8\ns_lshl_b32 s7, s{sW}, 3\ns_add_u32 s6, s6, s7\ns_add_u32 s6, s6, {FE+32}')
                sbase(s, 6)
                s(f's_mov_b32 s{sNON+1}, s{sNON}')
            continue
        if n in mids:
            assert not pend
            s('s_barrier', needs=[i for i in s.l if i.op == 'ds_write_b64'][-1:])
            if st + 1 in skip and (st + 1 == 7 or cfg.kvq): passed = st + 1
        behind = (lim - nxt + 1) * 2 + len(half)
        issue_reads(lim, 2 if behind > 2 else 1)
        if n in late: s(late[n])
        if 0 <= n - pstart < 16:
            k = n - pstart; s.l.extend(pre9[k // 2][2*(k % 2):2*(k % 2) + 2])
        if n >= rstart and ref9 and (n - rstart) % rstep == 0: s.l.extend(ref9.pop(0))
        for lab_, at, dat, adr, sr, cond in ((f'L_e{ty}', cfg.ehn, 250, 253, SWS, f'v_cmp_ne_u32 vcc, v250, v{vNON}'),
                                             (f'L_non{ty}c', 3*32 + 4, vNON, vZ, SDBG, f'v_cmp_eq_u32 vcc, 0, v{vNON}')):
            if n == at and cfg.nbe and at == cfg.ehn:
                if cfg.fslow: cond = 'v_cmp_eq_u32 vcc, v250, v250'
                s(f'{cond}\ns_mov_b32 s73, 0\ns_cbranch_vccnz {lab_}_x')
                for k in range(8):
                    s(f'buffer_load_dwordx4 {vr(64 + 4*k, 4)}, v{vL16}, {srd(SWS)}, s{sH0 + (k & 1)} offen offset:{(k >> 1)*1024} sc1', tag='raw')
                s('s_mov_b32 s73, 1')
                s(f'{lab_}_x:')
            elif n == at:
                s(f'{cond}\ns_cbranch_vccz {lab_}_x')
                s('s_mov_b32 s75, 0')
                s(f'{lab_}:')
                s(f'buffer_load_dword v{dat}, v{adr}, {srd(sr)}, 0 offen sc1\ns_waitcnt vmcnt(0)', tag='raw')
                s(f's_add_u32 s75, s75, 1\ns_cmp_gt_u32 s75, {SPIN}\ns_cbranch_scc1 {lab_}_x')
                s(f'{cond}\ns_cbranch_vccnz {lab_}')
                s(f'{lab_}_x:')
        if 0 <= n - cfg.ehn < 8 and not cfg.nbe:
            k = n - cfg.ehn
            s(f'buffer_load_dwordx4 {vr(64 + 4*k, 4)}, v{vL16}, {srd(SWS)}, s{sH0 + (k & 1)} offen offset:{(k >> 1)*1024} sc1')
        if n in posts: post(s, vNON, posts[n][0], posts[n][1], [[i for i in s.l if i.kind == 'vmst'][-1]])
        fillers(budget - budget // 2 if not last_gap else 99)
    assert not pend and not ref9
    stamp(s, 6)
    for x in tail: s(x)
    vms = [i for i in s.l if i.kind in ('vm', 'vmst', 'vmlds')]
    assert all(i.kind == 'vmst' for i in vms[-4:])
    stamp(s, 7)
    s('s_branch L_BC')
    return s

vOQ, vOG, vW2 = 2, 3, 252
WRB = 72
vOQ2, vOG2 = 249, 250
vOM = 251
def dma_stage(st, X):
    base = SLOT[st % 3]; r = []
    if X and st < 6:
        col = ([1024, 2048, 0] if cfg.kvq else [1024, 0, 2048])[st >> 1]
        for b in range(8): r.append(piece(sL2, base + b*1024, sM0, (256*(st & 1) + 8*b)*3072 + col, (vOQ, vOQ2)[b & 1], SQKV))
    elif st < 4 or st >= 6:
        sl = st if st < 4 else st - 6
        sb = sA0 if st < 4 else sC0
        for b in range(4):
            for pos, sr in enumerate((SG, SU)): r.append(piece(sL4, base + pos*16384 + b*1024, sb, (128*sl + 8*b)*3584, (vOG, vOG2)[b & 1], sr))
    else:
        for b in range(4):
            row = 256*(st & 1) + 16*b
            for pos, sr in enumerate((SG, SU)): r.append(piece(sL4, base + pos*16384 + b*1024, sM0, row*3584, vOM, sr))
    return r
def cwpieces(w):
    return [piece(sLBc, (w+4)*16384 + k*8192 + c*1024, sWBc, (BSTART[w]+12*k)*16384 + 8192*c, vW2, SD) for k in range(2) for c in range(2)]
sLBx, sWBx = 54, 55
def cwpiecesx(w, es=(0, 1)):
    return [piece(sLBx, (w+4)*16384 + e*2048 + c*1024, sWBx, (BSTART[w]+e)*16384 + 8192*c, vW2, SD) for e in es for c in range(2)]
def cwpieces2():
    return [piece(sLBc, w*8192 + c*1024, sWBc, (BSTART[w]+16)*16384 + 8192*c, vW2, SD) for w in range(4) for c in range(2)]
def ownpieces(steps, sbase, offs, voff=vW2, sr=SWH, rel=None):
    return [piece(sbase, o + c*1024, sWB, (rel[i] if rel else i)*16384 + 8192*c, voff, sr) for i, o in zip(steps, offs) for c in range(2)]
def emit(s, pieces, raw=False):
    for p in pieces:
        for x in p:
            if raw: x.tag = 'raw'
            s.l.append(x)
    return pieces[-1][-1]
def b_traddr(s, dst, sbase, t, lane=1):
    s(f'v_lshrrev_b32 v{t}, 5, v{lane}\nv_bfe_u32 v{dst}, v{lane}, 2, 2')
    s(f'v_lshl_add_u32 v{dst}, v{t}, 3, v{dst}\nv_lshlrev_b32 v{dst}, 7, v{dst}')
    s(f'v_bfe_u32 v{t}, v{lane}, 3, 1\nv_lshl_add_u32 v{dst}, v{t}, 6, v{dst}')
    s(f'v_bfe_u32 v{t}, v{lane}, 4, 1\nv_lshl_add_u32 v{dst}, v{t}, 5, v{dst}\nv_and_b32 v{t}, 3, v{lane}\nv_lshl_add_u32 v{dst}, v{t}, 3, v{dst}')
    if sbase is not None: s(f'v_add_u32 v{dst}, s{sbase}, v{dst}')
def line_voff(s, row, chunk, lane=1):
    s(f'v_lshrrev_b32 v{row}, 3, v{lane}\nv_bfe_u32 v{chunk}, v{lane}, 4, 1\nv_lshlrev_b32 v{chunk}, 2, v{chunk}\nv_xor_b32 v{chunk}, v{lane}, v{chunk}\nv_and_b32 v{chunk}, 7, v{chunk}\nv_lshlrev_b32 v{chunk}, 4, v{chunk}')
O8 = [2048*k for k in range(8)]
B2 = 512
def stg_offs(regions): return [(w + 4)*16384 + k*8192 for w in regions for k in range(2)]
def stg_reads(steps, offs, va, tok):
    w = S()
    for i, o in zip(steps, offs):
        for c in range(2):
            f = WRB + 8*i + 4*c
            w(f'ds_read_b64_tr_b16 {vr(f,2)}, v{va+c} offset:{o - 65536}', needs=[tok])
            w(f'ds_read_b64_tr_b16 {vr(f+2,2)}, v{va+c} offset:{o - 65536 + B2}')
    w.l.insert(12, I('s_waitcnt lgkmcnt(4)'))
    w('s_waitcnt lgkmcnt(0)')
    return w

def softmax_k(s, P, rs, out, t):
    m0, m1, n0, n1 = t
    s(f'v_max3_f32 v{m0}, v{P}, v{P+1}, v{P+2}\nv_max3_f32 v{m1}, v{P+3}, v{P+4}, v{P+5}')
    s(f'v_max3_f32 v{n0}, v{P+6}, v{P+7}, v{P+8}\nv_max3_f32 v{n1}, v{P+9}, v{P+10}, v{P+11}')
    s(f'v_max3_f32 v{m0}, v{m0}, v{P+12}, v{P+13}\nv_max3_f32 v{m1}, v{m1}, v{P+14}, v{P+15}')
    s(f'v_max3_f32 v{m0}, v{m0}, v{n0}, v{n1}\nv_max_f32 v{m0}, v{m0}, v{m1}')
    for j in range(16): s(f'v_sub_f32 v{P+j}, v{P+j}, v{m0}')
    for j in range(16): s(f'v_exp_f32 v{P+j}, v{P+j}')
    s(f'v_add_f32 v{n0}, v{P}, v{P+1}\nv_add_f32 v{n1}, v{P+2}, v{P+3}\nv_add_f32 v{m0}, v{P+4}, v{P+5}\nv_add_f32 v{m1}, v{P+6}, v{P+7}')
    for j in range(8, 16): s(f'v_add_f32 v{t[j%4]}, v{t[j%4]}, v{P+j}')
    s(f'v_add_f32 v{m0}, v{m0}, v{m1}\nv_add_f32 v{n0}, v{n0}, v{n1}\nv_add_f32 v{n0}, v{n0}, v{m0}')
    s(f'v_rcp_f32 v{n0}, v{n0}')
    s(f'v_mul_f32 v{n0}, v{n0}, v{rs}')
    for j in range(0, 16, 2):
        s(f'v_mul_f32 v{P+j}, v{P+j}, v{n0}\nv_mul_f32 v{P+j+1}, v{P+j+1}, v{n0}')
        if j >= 2: s(f'v_cvt_pk_bf16_f32 v{out+j//2-1}, v{P+j-2}, v{P+j-1}')
    s(f'v_cvt_pk_bf16_f32 v{out+7}, v{P+14}, v{P+15}')

def softmax_q(s, P, out, t):
    m0, m1, n0, n1 = t
    s(f'v_max3_f32 v{m0}, v{P}, v{P+1}, v{P+2}\nv_max3_f32 v{m1}, v{P+8}, v{P+9}, v{P+10}')
    s(f'v_max3_f32 v{n0}, v{P+3}, v{P+4}, v{P+5}\nv_max3_f32 v{n1}, v{P+11}, v{P+12}, v{P+13}')
    s(f'v_max3_f32 v{m0}, v{m0}, v{P+6}, v{P+7}\nv_max3_f32 v{m1}, v{m1}, v{P+14}, v{P+15}')
    s(f'v_max_f32 v{m0}, v{m0}, v{n0}\nv_max_f32 v{m1}, v{m1}, v{n1}')
    s(f'v_permlane32_swap_b32 v{m0}, v{m1}')
    s(f'v_max_f32 v{m0}, v{m0}, v{m1}')
    s(f'v_mov_b32 v{m1}, v{m0}')
    s(f'v_permlane32_swap_b32 v{m0}, v{m1}')
    for j in range(16): s(f'v_sub_f32 v{P+j}, v{P+j}, v{m0 if j < 8 else m1}')
    for j in range(16):
        s(f'v_exp_f32 v{P+j}, v{P+j}')
        if j >= 3 and j % 2 == 1: s(f'v_cvt_pk_bf16_f32 v{out+(j-3)//2}, v{P+j-3}, v{P+j-2}')
    s(f'v_cvt_pk_bf16_f32 v{out+7}, v{P+14}, v{P+15}')

def w1touch(s, X, part):
    s(f's_and_b32 s6, s{sRB}, 7\ns_lshl_b32 s6, s6, 6\nv_add_u32 v8, s6, v1')
    s('v_mul_u32_u24 v9, 0xe00, v8')
    d = 253 if part != 2 else 243
    if X:
        s('v_mul_u32_u24 v8, 0xc00, v8')
        s(f's_lshl_b32 s6, s{sJ}, 7\n' + (f's_add_u32 s7, s{sW4}, 1\ns_cmp_eq_u32 s{sW4}, 2\ns_cselect_b32 s7, 0, s7' if cfg.kvq else f's_xor_b32 s7, s{sW4}, 1\ns_cmp_eq_u32 s{sW4}, 2\ns_cselect_b32 s7, 2, s7') + f'\ns_lshl_b32 s7, s7, 10\ns_add_u32 s6, s6, s7\ns_lshl_b32 s7, s5, 1')
        s(f's_cmp_eq_u32 s{sW4}, 3\ns_cselect_b32 s6, 0x200000, s6\ns_cselect_b32 s7, s7, 0x200000')
        if part == 1: s(f's_cmp_ge_u32 s{sW4}, 2\ns_cselect_b32 s6, 0x200000, s6\ns_mov_b32 s7, 0x200000')
        if part == 2: s(f's_cmp_lt_u32 s{sW4}, 2\ns_cselect_b32 s6, 0x200000, s6')
        s(f'buffer_load_dword v{d}, v8, {srd(SQKV)}, s6 offen')
        if part != 1: s(f'buffer_load_dword v{d+1}, v9, {srd(SG)}, s7 offen\nbuffer_load_dword v{d+2}, v9, {srd(SU)}, s7 offen')
    else:
        s(f's_cmp_eq_u32 s{sW4}, 1\ns_cselect_b32 s6, s4, s3\ns_cmp_eq_u32 s{sW4}, 2\ns_cselect_b32 s6, s5, s6\ns_lshl_b32 s6, s6, 1')
        s(f's_cmp_eq_u32 s{sW4}, 3\ns_cselect_b32 s6, 0x200000, s6')
        if part == 1: s(f's_cmp_ge_u32 s{sW4}, 1\ns_cselect_b32 s6, 0x200000, s6')
        if part == 2: s(f's_cmp_lt_u32 s{sW4}, 1\ns_cselect_b32 s6, 0x200000, s6')
        s(f'buffer_load_dword v{d}, v9, {srd(SG)}, s6 offen\nbuffer_load_dword v{d+1}, v9, {srd(SU)}, s6 offen')

def malltouch(s):
    s(f's_mul_i32 s6, s2, 6144\ns_mul_i32 s7, s2, 7168\nv_lshlrev_b32 v8, 7, v1\nv_min_u32 v9, 6016, v8\nv_min_u32 v8, 7040, v8')
    s(f's_cmp_eq_u32 s{sW}, 4\ns_cselect_b32 s6, s6, 0x200000\nbuffer_load_dword v236, v9, {srd(SQKV)}, s6 offen')
    s(f's_cmp_eq_u32 s{sW}, 5\ns_cselect_b32 s6, s7, 0x200000\nbuffer_load_dword v237, v8, {srd(SG)}, s6 offen')
    s(f's_cmp_eq_u32 s{sW}, 6\ns_cselect_b32 s6, s7, 0x200000\nbuffer_load_dword v242, v8, {srd(SU)}, s6 offen')

def w2touch(s):
    if cfg.w2t == 1:
        s(f's_mul_i32 s6, s2, 7168\ns_lshl_b32 s7, s2, 11\ns_cmp_eq_u32 s{sW}, 7\ns_cselect_b32 s6, s6, 0x200000\ns_cselect_b32 s7, s7, 0x200000')
        s('v_lshlrev_b32 v8, 7, v1\nv_min_u32 v9, 1920, v8\nv_min_u32 v8, 7040, v8')
        s(f'buffer_load_dword v246, v8, {srd(SD)}, s6 offen\nbuffer_load_dword v247, v9, {srd(SO)}, s7 offen')
    if cfg.w2t == 2:
        s(f's_lshr_b32 s6, s2, 3\ns_lshl_b32 s6, s6, 2\ns_add_u32 s75, s6, s{sW4}')
        if cfg.mx512:
            s(f'v_lshrrev_b32 v8, 2, v1\nv_and_b32 v9, 3, v1\nv_lshlrev_b32 v9, 7, v9\nv_lshl_add_u32 v8, v8, 10, v9\ns_and_b32 s7, s{sNB}, 4\ns_lshl_b32 s7, s7, 7\nv_add_u32 v8, s7, v8')
            s(f's_mul_i32 s6, s75, {14*1024}\nbuffer_load_dword v246, v8, {srd(SD)}, s6 offen')
            s(f's_lshr_b32 s6, s75, 2\ns_lshl_b32 s6, s6, 1\ns_and_b32 s7, s{sW}, 1\ns_add_u32 s6, s6, s7\ns_lshl_b32 s6, s6, 13\ns_cmp_ge_u32 s{sW}, 6\ns_cselect_b32 s6, s6, 0x200000')
            s(f'v_min_u32 v9, {8*1024-128}, v8\nbuffer_load_dword v247, v9, {srd(SO)}, s6 offen')

def l2touch():
    r = []
    p = S(); p(f's_lshr_b32 s6, s2, 3\ns_lshl_b32 s6, s6, 2\ns_add_u32 s55, s6, s{sW4}\nv_lshlrev_b32 v19, 7, v1\ns_mul_i32 s6, s55, 14336')
    p(f'buffer_load_dword v244, v19, {srd(SD)}, s6 offen'); r.append(p.l)
    p = S(); p(f'v_min_u32 v19, 6016, v19\ns_mul_i32 s6, s55, 14336\ns_add_u32 s6, s6, 8192\nbuffer_load_dword v245, v19, {srd(SD)}, s6 offen'); r.append(p.l)
    p = S(); p(f'v_lshlrev_b32 v19, 7, v1\ns_lshr_b32 s6, s55, 2\ns_lshl_b32 s6, s6, 1\ns_and_b32 s7, s{sW}, 1\ns_add_u32 s6, s6, s7\ns_lshl_b32 s6, s6, 13\ns_cmp_ge_u32 s{sW}, 6\ns_cselect_b32 s6, s6, 0x200000')
    p(f'buffer_load_dword v243, v19, {srd(SO)}, s6 offen'); r.append(p.l)
    return r

def recode(tag):
    p = S()
    p('s_getpc_b64 s[54:55]')
    p(f'L_rc{tag}:')
    p(f's_sub_u32 s54, s54, L_rc{tag}-L_pc\ns_subb_u32 s55, s55, 0')
    p(f's_lshr_b32 s6, s2, 3\ns_and_b32 s6, s6, 7\ns_lshl_b32 s6, s6, 2\ns_add_u32 s6, s6, s{sW4}\ns_lshl_b32 s6, s6, 11')
    p('v_and_b32 v19, 15, v1\nv_lshl_add_u32 v19, v19, 7, s6\nv_min_u32 v19, L_end-L_pc, v19')
    p('global_load_dword v242, v19, s[54:55]')
    return [p.l]

def helper_head(s, X, wop, isq):
    global XTOK
    if cfg.hx and cfg.hx != 2: XTOK = emit(s, xpieces()[16:])
    if cfg.mt: malltouch(s)
    if cfg.tp in (1, 2, 4): w1touch(s, X, 0 if cfg.tp == 1 else 1)
    if cfg.hx == 2: XTOK = emit(s, xpieces()[16:])
    if X:
        s(f's_cmp_lg_u32 s2, 0\ns_cbranch_scc1 L_np\ns_cmp_lg_u32 s{sW}, 4\ns_cbranch_scc1 L_np')
        s('s_memrealtime s[76:77]\ns_waitcnt lgkmcnt(0)\ns_or_b32 s76, s76, 1')
        s('v_mov_b32 v4, s76\nv_mov_b32 v6, 0\ns_mov_b64 exec, 1')
        s(f'buffer_store_dword v4, v6, {srd(SDBG)}, 0 offen sc1', tag='raw')
        s('s_mov_b64 exec, -1')
        s('L_np:')
    s(f's_setprio {cfg.prioH}')
    if not X: s(f'v_lshrrev_b32 v4, 2, v1\nv_lshrrev_b32 v5, 4, v1\nv_and_b32 v5, 2, v5\nv_xor_b32 v5, v1, v5\nv_and_b32 v5, 3, v5\nv_lshlrev_b32 v5, 4, v5\nv_mul_u32_u24 v{vOM}, 0xe00, v4\nv_add_u32 v{vOM}, v{vOM}, v5')
    line_voff(s, 4, 5)
    s(f'v_mul_u32_u24 v{vOQ}, 0xc00, v4\nv_add_u32 v{vOQ}, v{vOQ}, v5')
    s(f'v_mul_u32_u24 v{vOG}, 0xe00, v4\nv_add_u32 v{vOG}, v{vOG}, v5')
    s(f'v_lshl_add_u32 v{vW2}, v4, 10, v5')
    s(f'v_xor_b32 v5, 32, v5\nv_mul_u32_u24 v{vOQ2}, 0xc00, v4\nv_add_u32 v{vOQ2}, v{vOQ2}, v5\nv_mul_u32_u24 v{vOG2}, 0xe00, v4\nv_add_u32 v{vOG2}, v{vOG2}, v5')
    s(f's_lshl_b32 s{sL4}, s{sW4}, 12\ns_lshl_b32 s{sL2}, s{sW4}, 13')
    s(f's_mul_i32 s6, s{sW4}, {32*3584}\ns_lshl_b32 s7, s5, 1\ns_add_u32 s{sC0}, s6, s7')
    if X: s(f's_mul_i32 s6, s{sW4}, {64*3072}\ns_lshl_b32 s7, s{sJ}, 7\ns_add_u32 s{sM0}, s6, s7')
    else:
        s(f's_lshl_b32 s7, s3, 1\ns_add_u32 s{sA0}, s6, s7')
        s(f's_mul_i32 s6, s{sW4}, {64*3584}\ns_lshl_b32 s7, s4, 1\ns_add_u32 s{sM0}, s6, s7')
    s(f's_lshl_b32 s{sLBc}, s{sW4}, 11\ns_lshl_b32 s6, s{sW4}, 14\ns_lshl_b32 s7, s{sNB}, 7\ns_add_u32 s{sWBc}, s6, s7')
    s(f's_lshl_b32 s{sHEAD}, s{sJ}, 2\ns_add_u32 s{sHEAD}, s{sHEAD}, s{sW4}')
    s(f's_lshl_b32 s{sKV}, s{sHEAD}, 12\ns_add_u32 s{sKV}, s{sKV}, {KV_OFF}')
    s(f's_cmp_lt_u32 s{sW}, 6\ns_cselect_b32 s{SO}, s{SD}, s{SO}\ns_cselect_b32 s{SO+1}, s{SD+1}, s{SO+1}\ns_cselect_b32 s{SO+2}, s{SD+2}, s{SO+2}')
    s('v_lshrrev_b32 v4, 5, v1\nv_lshlrev_b32 v7, 8, v4')
    if isq: s('v_and_b32 v6, 15, v1\nv_lshl_add_u32 v36, v6, 1, v7')
    else: s('v_bfe_u32 v6, v1, 3, 2\nv_and_b32 v36, 3, v1\nv_lshl_add_u32 v6, v6, 2, v36\nv_lshl_add_u32 v36, v6, 1, v7')
    s(f's_lshl_b32 s{sT2}, s{sHEAD}, 9')
    return

def helper_start(s, X, wop, isq):
    stamp(s, 0)
    def ush():
        for i in range(8): s(f'buffer_load_ushort v{200+i}, v36, {srd(SPHI)}, s{sT2} offen offset:{i*32}')
    if cfg.xl2:
        if cfg.w2e == 2: w2touch(s)
        s('s_barrier', needs=[XTOK])
        stamp(s, 1)
        tok = {0: emit(s, dma_stage(0, X)), 1: emit(s, dma_stage(1, X))}
        if cfg.w2e == 1: w2touch(s)
        if cfg.pgw:
            s(f's_cmp_eq_u32 s{sW}, 6\ns_cselect_b32 s6, 0, 0x7ff00000\nv_min_u32 v8, 6, v1\nv_lshlrev_b32 v8, 21, v8\nv_min_u32 v8, {WS_BYTES - 128}, v8\nv_min_u32 v9, 1, v1\nv_mul_u32_u24 v9, 0x1fff80, v9')
            s(f'buffer_load_dword v37, v8, {srd(SWS)}, s6 offen\nbuffer_load_dword v38, v9, {srd(SOUT)}, s6 offen')
        s(f'v_mov_b32 v17, 0\nbuffer_load_dword v16, v17, {srd(SDBG)}, 0 offen sc1')
        if cfg.o2 == 0: tok[2] = emit(s, dma_stage(2, X))
        s('s_barrier')
        if cfg.o2 == 1: tok[2] = emit(s, dma_stage(2, X))
        s('s_barrier', needs=[tok[0]])
        if cfg.o2 == 2: tok[2] = emit(s, dma_stage(2, X))
        ush()
        if cfg.tp in (2, 4): w1touch(s, X, 2)
        if cfg.w2e == 0: w2touch(s)
        return tok
    if not cfg.hx: s('s_barrier')
    if cfg.hx and cfg.hb1 == 2: s('s_barrier', needs=[XTOK])
    tok = {0: emit(s, dma_stage(0, X))}
    if cfg.hx and cfg.hb1 == 1: s('s_barrier', needs=[XTOK])
    if cfg.tp in (0, 2): w1touch(s, X, 2 if cfg.tp == 2 else 0)
    if cfg.w2at == 0: w2touch(s)
    if cfg.hx and not cfg.hb1: s('s_barrier', needs=[XTOK])
    stamp(s, 1)
    s('s_barrier')
    s(f'v_mov_b32 v17, 0\nbuffer_load_dword v16, v17, {srd(SDBG)}, 0 offen sc1')
    if cfg.pro == 0: tok[1] = emit(s, dma_stage(1, X))
    s('s_barrier', needs=[tok[0]])
    if cfg.pro != 0: tok[1] = emit(s, dma_stage(1, X))
    tok[2] = emit(s, dma_stage(2, X))
    ush()
    if cfg.tp == 4: w1touch(s, X, 2)
    if cfg.w2at == 1: w2touch(s)
    return tok

def nonce_and_wphi(w, lab, wop, bit):
    w(f'v_cmp_eq_u32 vcc, 0, v16\ns_cbranch_vccz {lab}_x')
    w('s_mov_b32 s75, 0')
    w(f'{lab}:')
    w(f'buffer_load_dword v16, v17, {srd(SDBG)}, 0 offen sc1\ns_waitcnt vmcnt(0)', tag='raw')
    w(f's_add_u32 s75, s75, 1\ns_cmp_gt_u32 s75, {SPIN}\ns_cbranch_scc1 {lab}_x')
    w(f'v_cmp_eq_u32 vcc, 0, v16\ns_cbranch_vccnz {lab}')
    w(f'{lab}_x:')
    w(f'v_readfirstlane_b32 s{sNON}, v16\nv_readfirstlane_b32 s{sNON+1}, v16')
    w(f'v_bfe_u32 v6, v1, {bit}, 1\nv_mul_u32_u24 v6, 0x8000, v6\nv_lshl_or_b32 v6, v6, 16, v6')
    for r in range(4):
        w(f'v_lshl_or_b32 v{wop+r}, v{200+2*r+1}, 16, v{200+2*r}\nv_xor_b32 v{wop+r}, v6, v{wop+r}')

def cost(i):
    if i.op in ('v_exp_f32', 'v_rcp_f32') or i.op.startswith('v_permlane'): return 11
    if i.kind == 'mfma': return 36
    if i.kind in ('vm', 'vmst'): return 14
    if i.op in ('v_max3_f32', 'v_fma_f32', 'v_lshl_add_u32', 'v_lshl_or_b32'): return 8.3
    return 5.6

def pack(s, X, work, bars, tok, extra, need10, quiet, frac, late_hi, w1at=None, first=(), tneed={}, pinned={}):
    flat = [(m, w.l) for m, w in work]
    qi = 0; qpos = 0; inloop = False; where = {}
    pieces = []; lgfree = False
    for bi, st in enumerate(bars):
        whole = st == int(st)
        if not lgfree: s('s_waitcnt lgkmcnt(0)')
        lgfree = False
        nd = [tok[t] for t in tneed.get(st, [st] if whole and st <= 9 else [])] + (need10 if st == 10 else [])
        dbg = cfg.hdbg and whole and cfg.hb + 1 <= st <= cfg.hb + 6
        if dbg: stamp(s, 2*(st-cfg.hb-1), True); s('s_nop 0', needs=nd)
        s('s_barrier', needs=nd)
        if dbg: stamp(s, 2*(st-cfg.hb-1)+1, True)
        for tgt in range(3, 10):
            if (w1at or {}).get(tgt, tgt - 2) == st:
                p = dma_stage(tgt, X); tok[tgt] = p[-1][-1]
                if st in first: emit(s, p)
                else: pieces += p
        pieces += extra.get(st, [])
        last = bi + 1 == len(bars)
        BUD = 1e9 if last else cfg.bud * frac.get(st, 1.0)
        hold = []
        if quiet.get(st) == 'all': hold = pieces; pieces = []
        q = quiet.get(st, 0) if quiet.get(st) != 'all' else 0
        if st in pinned: s.l.extend(pinned[st].l)
        used = 0; inexec = False; since = 99 if not inloop and not (qi < len(flat) and qpos == 0 and flat[qi][1][0].op in ('s_waitcnt', 's_memrealtime', 's_memtime')) else 0
        inloop = False
        while qi < len(flat) and flat[qi][0] <= st:
            ins = flat[qi][1][qpos]
            free = not inexec and not inloop and ins.op not in ('s_addc_u32', 's_subb_u32', 's_cselect_b32') and not ins.op.startswith('s_cbranch') and ins.kind != 'vmlds' and ('s', sT) not in ins.wr
            if pieces and free and ((since >= 6 and used >= q) or ins.tag == 'flush'):
                s.l.extend(pieces.pop(0)); used += 20; since = 0
                continue
            if used + 20*len(pieces) >= BUD and free and ins.tag != 'glue': break
            s.l.append(ins); used += cost(ins); since += 1
            where[id(ins)] = st
            if ('s', 'exec') in ins.wr: inexec = '-1' not in ins.text
            if ins.op.startswith('s_cbranch') and ins.text.split()[1].endswith('_x'): inloop = True
            if ins.kind == 'label' and ins.op.endswith('_x:'): inloop = False
            if ins.op.startswith('s_load') or ins.op.startswith('s_cmp') or ins.op in ('s_xor_b64', 's_or_b64'): inloop = True
            qpos += 1
            if qpos == len(flat[qi][1]): qi += 1; qpos = 0
        for p in pieces: s.l.extend(p)
        pieces = hold
        if whole and qi < len(flat) and qpos == 0 and flat[qi][0] == st + 0.5 and (st + 0.5) not in bars:
            s.l.extend(flat[qi][1]); qi += 1; lgfree = True
    assert qi == len(flat)
    l = []; hi = False
    bidx = [k for k, i in enumerate(s.l) if i.op == 's_barrier']
    for k, i in enumerate(s.l):
        want = i.kind == 'mfma' or (k > bidx[late_hi] and i.kind in ('vm', 'vmst'))
        if i.kind in ('mfma', 'valu', 'vm', 'vmst', 'vmlds', 'ds') and want != hi and i.tag != 'raw':
            l.append(I(f's_setprio {3 if want else cfg.prioH}')); hi = want
        l.append(i)
    s.l = l
    return where

def helperX():
    s = S(); X = True
    WK, RS, KF, KVA = 8, 20, 24, 40
    PT = 136; ID = 224; TT = 200; FR = 136
    vB1, vB2, vRD, vKVA, vL16h, vST = 232, 233, 234, 235, 238, 239
    helper_head(s, X, WK, False)
    s(f'v_lshlrev_b32 v{vL16h}, 4, v1\ns_lshl_b32 s6, s{sW4}, 12\ns_add_u32 s6, s6, {KB}\nv_lshlrev_b32 v5, 3, v1\nv_add_u32 v{vRD}, s6, v5')
    s('v_bfe_u32 v5, v1, 2, 2\nv_lshl_add_u32 v5, v4, 2, v5')
    s('v_and_b32 v7, 3, v1\nv_xor_b32 v7, v7, v4\nv_lshlrev_b32 v7, 3, v7\nv_lshl_add_u32 v7, v5, 5, v7\nv_add_u32 v7, s6, v7')
    s(f'v_lshlrev_b32 v6, 3, v5\nv_add_u32 v6, {STDB}, v6')
    s(f'v_bfe_u32 v5, v1, 4, 1\nv_cmp_eq_u32 vcc, 1, v5\nv_cndmask_b32 v{vB1}, v7, v6, vcc')
    s(f'v_xor_b32 v7, 16, v7\nv_add_u32 v7, 256, v7\nv_add_u32 v6, 64, v6\nv_cndmask_b32 v{vB2}, v7, v6, vcc')
    s(f'v_mov_b32 v6, 512\nv_mov_b32 v7, 128\nv_cndmask_b32 v{vST}, v6, v7, vcc')
    s(f'v_and_b32 v5, 31, v1\nv_min_u32 v5, 16, v5\nv_lshl_add_u32 v5, v4, 5, v5\nv_lshlrev_b32 v{vKVA}, 2, v5')
    s('v_and_b32 v5, 1, v1\nv_lshlrev_b32 v5, 4, v5\nv_mov_b32 v6, 0x3f80\nv_lshlrev_b32 v6, v5, v6')
    s('v_bfe_u32 v5, v1, 4, 1\nv_cmp_eq_u32 vcc, v5, v4\nv_cndmask_b32 v6, 0, v6, vcc\nv_bfe_u32 v5, v1, 1, 3')
    for r in range(8): s(f'v_cmp_eq_u32 vcc, {r}, v5\nv_cndmask_b32 v{ID+r}, 0, v6, vcc')
    s(f's_lshl_b32 s{sLBx}, s{sW4}, 12\ns_lshl_b32 s6, s{sW4}, 1\ns_and_b32 s7, s{sW4}, 2\ns_lshl_b32 s7, s7, 2\ns_add_u32 s6, s6, s7\ns_lshl_b32 s6, s6, 14\ns_lshl_b32 s7, s{sNB}, 7\ns_add_u32 s{sWBx}, s6, s7')
    tok = helper_start(s, X, WK, False)
    work = []
    def seg(minb):
        w = S(); work.append((minb, w)); return w
    w = seg(1)
    w(f'v_and_b32 v5, 31, v1\nv_lshlrev_b32 v5, 2, v5\nv_add_u32 v5, {RSB}, v5')
    for rt in range(4): w(f'ds_read_b32 v{RS+rt}, v5 offset:{rt*128}')
    nonce_and_wphi(w, 'L_nonX', WK, 2)
    w(f's_lshl_b32 s6, s{sHEAD}, 7\ns_add_u32 s6, s6, {FKV+64}\nv_mov_b32 v17, s6')
    sbase(w, 6)
    w(f's_lshl_b32 s7, s{sRB}, 2\ns_sub_u32 s6, s6, 64\ns_add_u32 s6, s6, s7\nv_mov_b32 v18, s6')
    w(f's_cmp_lg_u32 s{sRB}, 0\ns_cbranch_scc1 L_zero_x')
    for r in range(4): w(f'v_mov_b32 v{FR+r}, 0')
    for q in range(4): w(f'buffer_store_dwordx4 {vr(FR,4)}, v{vL16h}, {srd(SWS)}, s{sKV} offen offset:{q*1024} sc1', tag='raw')
    w('s_waitcnt vmcnt(0)', tag='raw')
    w('s_mov_b64 exec, 1')
    w(f'buffer_store_dword v16, v17, {srd(SWS)}, 0 offen sc1', tag='raw')
    w('s_mov_b64 exec, -1')
    w('L_zero_x:')
    w = seg(2.5)
    for rt in range(4):
        w(f'ds_read_b64 {vr(KF+4*rt,2)}, v{vRD} offset:{rt*1024}\nds_read_b64 {vr(KF+4*rt+2,2)}, v{vRD} offset:{rt*1024+512}')
    for rt in range(4): w(f'{MF} {vr(PT+16*rt,16)}, {vr(WK,4)}, {vr(KF+4*rt,4)}, 0')
    T4 = (4, 5, 6, 7)
    PH = [56, 64, 24, 32]; TP = [216, 56, 64, 24]
    tr_mm = lambda rt: [[I(f'{MF} {vr(TT,16)}, {vr(PH[rt],4)}, {vr(ID,4)}, 0')], [I(f'{MF} {vr(TT,16)}, {vr(PH[rt]+4,4)}, {vr(ID+4,4)}, {vr(TT,16)}')]]
    tr_cv = lambda rt: [I(f'v_cvt_pk_bf16_f32 v{TP[rt]+j}, v{TT+2*j}, v{TT+2*j+1}') for j in range(8)]
    softmax_k(w, PT, RS, PH[0], T4)
    for rt in range(1, 4):
        m = S(); softmax_k(m, PT + 16*rt, RS + rt, PH[rt], T4)
        merge(w, m, tr_mm(rt - 1) + [[], tr_cv(rt - 1)], 8)
    for x in tr_mm(3): w.l.extend(x)
    sload(w, 44, 1, False); scheck(w, 'L_pollz', 44, 1, False)
    w.l.extend(tr_cv(3))
    w = seg(4.5 if cfg.kvq else 6.5)
    for rt in range(4):
        for ks in range(2):
            f = FR + 8*rt + 4*ks
            lastv = w(f'ds_read_b64_tr_b16 {vr(f,2)}, v{vB1}\nds_read_b64_tr_b16 {vr(f+2,2)}, v{vB2}')
            if rt < 3 or ks < 1: w(f'v_add_u32 v{vB1}, v{vB1}, v{vST}\nv_add_u32 v{vB2}, v{vB2}, v{vST}')
        if rt == 2: w('s_waitcnt lgkmcnt(8)')
    for rt in range(4):
        for ks in range(2):
            w(f'{MF} {vr(KVA,16)}, {vr(TP[rt]+4*ks,4)}, {vr(FR+8*rt+4*ks,4)}, ' + ('0' if rt == 0 and ks == 0 else vr(KVA,16)))
    for i in w.l: i.tag = i.tag or 'glue'
    if cfg.kvq:
        for p in cwpiecesx(0):
            p[-1].needs = [lastv]; w.l.extend(p); tok['cw0'] = p[-1]
        w = seg(7.3)
    elif cfg.skip != 1: w = seg(7)
    if cfg.c0f:
        for p in cwpiecesx(0) + cwpiecesx(3, (1,)): w.l.extend(p); tok['cw0'] = p[-1]
    w('s_mov_b32 s76, 0x1ffff\ns_mov_b32 s77, 0x1ffff')
    w('s_mov_b64 exec, s[76:77]')
    for r in range(16): at = w(f'buffer_atomic_add_f32 v{KVA+r}, v{vKVA}, {srd(SWS)}, s{sKV} offen offset:{r*256}')
    w('s_mov_b64 exec, -1')
    if cfg.xcw and not cfg.c0f and not cfg.kvq:
        for p in cwpiecesx(0): w.l.extend(p); tok['cw0'] = p[-1]
    for i in w.l: i.tag = i.tag or 'glue'
    stamp(w, 2)
    w = seg(7.3 if cfg.kvq else cfg.pat if cfg.skip == 2 else 8)
    post(w, 16, 18, '0', [at])
    for i in w.l: i.tag = 'glue'
    stamp(w, 3)
    bars = [1, 2, 2.5, 3, 4, 5, 6, 6.5] + [[7, 8], [8], [7]][cfg.skip] + [9, 10]
    c9 = cwpieces2()
    extra = {1: cwpieces(1), 3: cwpieces(2), 8: cwpieces(0) + cwpieces(3), 9: c9}
    if cfg.xcw: extra = {1: cwpiecesx(1), 3: cwpiecesx(2), 5: cwpiecesx(3, (0,)), 8: cwpiecesx(3, (1,)), 9: c9}
    tok['cw'] = extra[8][-1][-1]
    if cfg.kvq:
        extra[7] = extra.pop(8)
        where = pack(s, X, work, [1] + ([] if cfg.s2x else [2]) + [2.5, 3, 4, 4.5, 5, 6, 7, 7.3, 9, 10], tok, extra, [c9[-1][-1]], {2: 'all', 4: 'all'},
                     {2.5: cfg.f25, 3: cfg.fk, 4: 0.55*cfg.fk, 4.5: 0.45*cfg.fk, 5: cfg.fk, 6: cfg.fk, 7: 0.3, 7.3: 2}, -3, {4: 2.5} if cfg.s2x else None, (7,), {1: [1, 2] if cfg.s2x else [1], 7.3: [8, 'cw', 'cw0'] if cfg.p8 else [8], 9: [9, 'cw', 'cw0']})
    elif cfg.skip == 2:
        extra[7] = extra.pop(8)
        if cfg.c0f: del extra[7]; tok['cw'] = tok['cw0']
        where = pack(s, X, work, bars, tok, extra, [c9[-1][-1]], {2: 'all', 4: cfg.quiet, 7: cfg.q7, 9: cfg.q9},
                     {2.5: cfg.f25, 3: cfg.fk, 4: cfg.fk, 5: cfg.fk, 6: 0.45, 6.5: 0.4, 7: 2}, -3, None, (6, 7) if cfg.f8 else (6,), {7: [7, 8], 9: [9, 'cw', 'cw0']})
    elif cfg.skip:
        where = pack(s, X, work, bars, tok, extra, [c9[-1][-1]], {2: 'all', 4: cfg.quiet, 8: 30},
                     {2.5: cfg.f25, 3: cfg.fk, 4: cfg.fk, 5: cfg.fk, 6: 0.45}, -4, {8: 6.5, 9: 8, 4: cfg.s4}, (6.5, 8) if cfg.f8 else (6.5,), {6.5: [7], 9: [9, 'cw', 'cw0']})
    else:
        where = pack(s, X, work, bars, tok, extra, [c9[-1][-1]], {2: 'all', 4: cfg.quiet, 7: 100, 8: 30},
                     {2.5: cfg.f25, 3: cfg.fk, 4: cfg.fk, 5: cfg.fk, 6: 0.45, 6.5: 0.4}, -4, None, (6,), {9: [9, 'cw', 'cw0']})
    assert where[id(lastv)] < 7
    return s

def own_first(s, lab):
    pass

def helperY():
    s = S(); X = False
    WQ, QF, KVA = 8, 24, 40
    PT = 136; vKVA, vL16h, vSA = 235, 238, 240
    helper_head(s, X, WQ, True)
    s(f'v_lshlrev_b32 v{vL16h}, 4, v1')
    s(f'v_and_b32 v5, 31, v1\nv_min_u32 v5, 16, v5\nv_lshl_add_u32 v5, v4, 5, v5\nv_lshlrev_b32 v{vKVA}, 2, v5')
    s(f's_add_u32 s79, s{sLBc}, 65536')
    b_traddr(s, vSA, 79, 11)
    s(f'v_xor_b32 v{vSA+1}, 64, v{vSA}')
    tok = helper_start(s, X, WQ, True)
    work = []
    def seg(minb):
        w = S(); work.append((minb, w)); return w
    w = seg(3)
    nonce_and_wphi(w, 'L_nonY', WQ, 4)
    w(f's_lshl_b32 s6, s{sRB}, 3\ns_add_u32 s6, s6, s{sJ}\ns_lshl_b32 s{sQ}, s6, 14\ns_lshl_b32 s7, s{sW4}, 12\ns_add_u32 s{sQ}, s{sQ}, s7\ns_add_u32 s{sQ}, s{sQ}, {Q_OFF}')
    w(f's_lshl_b32 s6, s6, 7\ns_add_u32 s6, s6, {FQ}')
    sbase(w, 6)
    w(f's_lshl_b32 s6, s{sRB}, 5\ns_add_u32 s6, s6, s{sHEAD}\ns_lshl_b32 s6, s6, 2\ns_add_u32 s6, s6, {FO}\nv_mov_b32 v18, s6')
    w = seg(cfg.qat - 0.5)
    sload(w, 44, 4, False)
    w = seg(cfg.qat)
    stamp(w, 2)
    scheck(w, 'L_pollq', 44, 4, False)
    stamp(w, 3)
    for rt in range(4): w(f'buffer_load_dwordx4 {vr(QF+4*rt,4)}, v{vL16h}, {srd(SWS)}, s{sQ} offen offset:{rt*1024} sc1')
    w(f's_lshl_b32 s6, s{sHEAD}, 7\ns_add_u32 s6, s6, {FKV}')
    sbase(w, 6)
    w('s_mov_b32 s73, 0', tag='flush')
    for rt in range(4): w(f'{MF} {vr(PT+16*rt,16)}, {vr(WQ,4)}, {vr(QF+4*rt,4)}, 0')
    T4 = (4, 5, 6, 7)
    PQ = [56, 64, 200, 208]
    def kvloads(w):
        for r in range(16): w(f'buffer_load_dword v{KVA+r}, v{vKVA}, {srd(SWS)}, s{sKV} offen offset:{r*256} sc1', tag='raw')
    if cfg.kvq:
        for rt in range(4):
            if rt == cfg.kvr: sload(w, SP, 16, False)
            softmax_q(w, PT + 16*rt, PQ[rt], T4)
            if rt == cfg.kvr:
                stamp(w, 4); scheck(w, 'L_pollkv', SP, 16, False); kvloads(w); stamp(w, 5)
        w = seg(10)
    else:
        for rt in range(4): softmax_q(w, PT + 16*rt, PQ[rt], T4)
        w = seg(9.5)
        sload(w, SP, 16, False)
        w = seg(10)
        stamp(w, 4)
        scheck(w, 'L_pollkv', SP, 16, False)
        kvloads(w)
        stamp(w, 5)
    if cfg.yw == 2:
        emit(w, ownpieces(range(8, 16), sLB, O8)); w('s_waitcnt vmcnt(16) lgkmcnt(0)')
    else: w('s_waitcnt vmcnt(0) lgkmcnt(0)')
    w('v_and_b32 v4, 27, v1\nv_cmp_eq_u32 vcc, 17, v4\nv_mov_b32 v4, 0x3f803f80')
    for r in range(8): w(f'v_cvt_pk_bf16_f32 v{KVA+r}, v{KVA+2*r}, v{KVA+2*r+1}')
    for r in range(8): w(f'v_cndmask_b32 v{KVA+r}, v{KVA+r}, v4, vcc')
    OT = [136, 168, 24, 216]; ON = [152, 184, 48 - 0, 232]
    ON[2] = 0
    w(f'v_mov_b32 v3, v{vL16h}\nv_mov_b32 v248, v16\nv_mov_b32 v249, v18')
    ON = [152, 184, 8, 232]
    for rt in range(4):
        w(f'{MF} {vr(OT[rt],16)}, {vr(KVA,4)}, {vr(PQ[rt],4)}, 0')
        w(f'{MF} {vr(ON[rt],16)}, {vr(KVA+4,4)}, {vr(PQ[rt]+4,4)}, 0')
    w(f's_lshl_b32 s6, s{sRB}, 2\ns_mul_i32 s6, s6, 144\ns_add_u32 s6, s6, s{sHEAD}\ns_add_u32 s6, s6, 112\ns_lshl_b32 s79, s6, 10')
    w('v_mov_b32 v4, 0x358637bd')
    for rt in range(4):
        o = OT[rt]; n = ON[rt]
        w(f'v_rcp_f32 v{o+9}, v{o+9}\nv_rcp_f32 v{n+9}, v{n+9}')
        w(f'v_fma_f32 v{o+8}, v{o+8}, v{o+9}, v4\nv_fma_f32 v{o+8}, v{n+8}, v{n+9}, v{o+8}\nv_rcp_f32 v{o+8}, v{o+8}')
        w(f'v_mul_f32 v{o+9}, v{o+9}, v{o+8}\nv_mul_f32 v{n+9}, v{n+9}, v{o+8}')
        for j in range(8): w(f'v_mul_f32 v{o+j}, v{o+j}, v{o+9}')
        for j in range(8): w(f'v_fma_f32 v{o+j}, v{n+j}, v{n+9}, v{o+j}')
        for j in range(0, 8, 2): w(f'v_cvt_pk_bf16_f32 v{o+12+j//2}, v{o+j}, v{o+j+1}')
        ost = w(f'buffer_store_dwordx4 {vr(o+12,4)}, v3, {srd(SWS)}, s79 offen sc1')
        if rt < 3: w(f's_add_u32 s79, s79, {144*1024}')
    stamp(w, 6)
    post(w, 248, 249, '0', [ost])
    stamp(w, 7)
    c2 = cwpieces2()
    oa, ob = stg_offs([0, 1]), stg_offs([2, 3])
    ga, gb = ownpieces(range(4), sLBc, oa), ownpieces(range(4, 8), sLBc, ob)
    ra, rb_ = stg_reads(range(4), oa, vSA, ga[-1][-1]), stg_reads(range(4, 8), ob, vSA, gb[-1][-1])
    extra = {1: ga, 4: gb + cwpieces(0), 5: cwpieces(1), 6: cwpieces(2), 7: cwpieces(3), 9: c2}
    if cfg.l2t:
        t = l2touch(); extra[5] += t[:2]; extra[6] += t[2:]
    tok['cw'] = [p for p in extra[7]][-1][-1]
    if cfg.rc: extra[cfg.rc] = extra.get(cfg.rc, []) + recode('a')
    if cfg.w2r:
        p = S()
        p(f's_and_b32 s6, s2, 127\ns_lshl_b32 s6, s6, 1\ns_and_b32 s7, s{sW}, 1\ns_add_u32 s75, s6, s7\ns_mul_i32 s6, s75, 7168\ns_lshl_b32 s7, s75, 11\ns_cmp_ge_u32 s{sW}, 6\ns_cselect_b32 s6, s6, 0x200000\ns_cselect_b32 s7, s7, 0x200000')
        p('v_lshlrev_b32 v19, 7, v1\nv_min_u32 v20, 1920, v19\nv_min_u32 v19, 7040, v19')
        p(f'buffer_load_dword v242, v19, {srd(SD)}, s6 offen\nbuffer_load_dword v21, v20, {srd(SO)}, s7 offen')
        extra[cfg.w2r] = extra.get(cfg.w2r, []) + [p.l]
    if cfg.skipy:
        pack(s, X, work, [1, 2, 3, 4, 5, 6, 7, 9, 10], tok, extra, [c2[-1][-1]], {}, {7: cfg.f7 + 1, 9: cfg.f9}, -3, None, (6,), {7: [7, 8], 9: [9, 'cw']}, {3: ra, 6: rb_})
    else:
        extra[8] = extra.pop(9)
        pack(s, X, work, [1, 2.4 if cfg.s2y else 2] + list(range(3, 11)), tok, extra, [c2[-1][-1]], {}, {7: cfg.f7, 8: 0.9, 9: cfg.f9}, -3, {4: 2.4} if cfg.s2y else None, (), {1: [1, 2] if cfg.s2y else [1], 8: [8, 'cw'] if cfg.p8 else [8], 9: [9, 'cw']}, {3: ra, 6: rb_})
    s('s_branch L_BHY')
    return s

BACC = [8, 24, 40, 56]; BW = 232; vBX = 248
def red_write(s, acc, t):
    s(f'v_and_b32 v4, 31, v1\nv_lshrrev_b32 v5, 5, v1\nv_and_b32 v6, 7, v1\nv_xor_b32 v6, v5, v6\nv_lshlrev_b32 v6, 4, v6\nv_lshl_add_u32 v6, v4, 8, v6\nv_add_u32 v{t}, s{sLB}, v6')
    for k in range(1, 4): s(f'v_xor_b32 v{t+k}, {k<<5}, v{t}')
    for nt in range(2):
        for st in range(2):
            for q in range(4):
                if q == 3 and nt == 1 and st == 1: s('s_waitcnt lgkmcnt(8)')
                s(f'ds_write_b128 v{t+q}, {vr(acc[2*nt+st]+4*q,4)} offset:{st*8192 + nt*128}')
    s('s_waitcnt vmcnt(0)')

def phaseB_body(kind):
    s = S(); lab = f'L_B{kind}'
    C = kind == 'C'; n = 20 if C else 16
    order = CORDER if C else list(range(16))
    if C:
        acc = [160, 176, 192, 208]; bw = 224; vl, v16, vd, vtr, vxo, wr, vtr2 = 240, 242, 243, 244, 245, 96, 246
        hreg = lambda i: 8*i if i < 12 else 8*(i - 12)
        if cfg.cpre:
            wr = 0; hreg = lambda i: 64 + 8*i if i < 12 else 8*(i - 12)
    else:
        acc = BACC; bw = BW; vl, v16, vd, vtr, vxo, wr, vtr2 = 1, 3, vW2, 6, 7, WRB, 5
        hreg = lambda i: 136 + 8*i if i < 12 else WRB + 8*(i - 12)
    hoff = [0]
    def hload(i):
        rel = order[i]
        if rel // 4 != hoff[0]:
            d = (rel // 4 - hoff[0]) * 4096; hoff[0] = rel // 4
            op = 's_add_u32' if d > 0 else 's_sub_u32'
            s(f'{op} s{sH0}, s{sH0}, {abs(d)}\n{op} s{sH1}, s{sH1}, {abs(d)}')
        for c in range(2):
            s(f'buffer_load_dwordx4 {vr(hreg(i)+4*c,4)}, v{v16}, {srd(SWS)}, s{sH0+c} offen offset:{(rel%4)*1024}' + (' sc1' if not cfg.nosc else ''))
    wt = {}; rt_ = {}
    def rd(i, f):
        va, o0 = ((vtr, vtr2), (i % 8)*2048) if i < 16 else ((241, 247), (i - 16)*2048)
        for c in range(2):
            s(f'ds_read_b64_tr_b16 {vr(f+4*c,2)}, v{va[c]} offset:{o0}', needs=[wt[i]] if i in wt else [])
            rt_[i] = s(f'ds_read_b64_tr_b16 {vr(f+4*c+2,2)}, v{va[c]} offset:{o0 + B2}')
    def wdma(i):
        if cfg.now: return
        for p in ownpieces([i], sLB, [(i % 8)*2048], vd, SD if C else SWH, order):
            if i - 8 in rt_: p[-1].needs = [rt_[i-8]]
            s.l.extend(p); wt[i] = p[-1]
    def preread():
        for i in range(8):
            rd(i, wr + 8*i)
            if i % 2 == 1 and i >= 3: s('s_waitcnt lgkmcnt(8)')
    def step(i):
        if 8 <= i + 1 < n: rd(i + 1, bw + 8*((i + 1) % 2))
        f = wr + 8*i if i < 8 else bw + 8*(i % 2)
        for nt in range(2):
            for st in range(2):
                a = acc[2*nt+st]
                if cfg.nomf: s(f'v_xor_b32 v{a}, v{f+4*nt}, v{hreg(i)+4*st}'); continue
                s(f'{MF} {vr(a,16)}, {vr(f+4*nt,4)}, {vr(hreg(i)+4*st,4)}, ' + ('0' if i == 0 else vr(a,16)))
        if cfg.cdbg and i in (0, 3, 7, 11, 15): stamp(s, (0, 3, 7, 11, 15).index(i))
    def xload(t):
        s(f'v_lshrrev_b32 v{t}, 3, v{vl}\nv_and_b32 v{vxo}, 7, v{vl}\nv_lshlrev_b32 v{vxo}, 4, v{vxo}\nv_lshl_add_u32 v{vxo}, v{t}, 10, v{vxo}')
        s(f'buffer_load_dwordx4 {vr(vBX,4)}, v{vxo}, {srd(SX)}, s{sXO} offen')
    if C:
        s('s_setprio 3')
        if cfg.nbe:
            s(f's_cmp_eq_u32 s73, 1\ns_cbranch_scc1 {lab}_fast')
            s('s_waitcnt vmcnt(0)', tag='raw')
            s('s_mov_b64 exec, 1')
            s(f'buffer_store_dword v{vNON}, v{vFA}, {srd(SWS)}, 0 offen sc1', tag='raw')
            s('s_mov_b64 exec, -1')
            sload(s, SP, 2, True); scheck(s, lab + '_e', SP, 2, True)
            for k in range(8):
                s(f'buffer_load_dwordx4 {vr(64 + 4*k, 4)}, v{v16}, {srd(SWS)}, s{sH0 + (k & 1)} offen offset:{(k >> 1)*1024} sc1', tag='raw')
            s('s_waitcnt vmcnt(0)', tag='raw')
            s(f'{lab}_fast:')
        p0 = 4 if cfg.eh else 0
        if not cfg.eh: scheck(s, lab + '_e', SP, 2, True)
        for i in range(p0, p0 + cfg.pre): hload(i)
        s(f'v_lshrrev_b32 v{vl}, 4, v{v16}')
        b_traddr(s, 241, None, 247, vl)
        s(f'v_add_u32 v{vtr}, s{sLB}, v241\nv_xor_b32 v{vtr2}, 64, v{vtr}\ns_lshl_b32 s6, s{sW}, 13\nv_add_u32 v241, s6, v241\nv_xor_b32 v247, 64, v241')
        if not cfg.cpre:
            preread()
            line_voff(s, vxo, vd, vl)
            s(f'v_lshl_add_u32 v{vd}, v{vxo}, 10, v{vd}')
        s(f's_sub_u32 s4, s4, {FE-FH}\ns_subb_u32 s5, s5, 0')
        cf = cfg.cf if cfg.eh else 0
        if cf: s(f's_waitcnt vmcnt({4 + 2*cfg.pre})')
        for i in range(cf): step(i)
        s(f's_waitcnt vmcnt({2*cfg.pre})')
        post(s, vNON, vFA)
        if cfg.b11: s(f's_cmp_lg_u32 s{sTY}, 0\ns_cbranch_scc1 L_nb11\ns_barrier\nL_nb11:')
        stamp(s, 8)
        s('s_setprio 0')
        LA = max(cfg.la, p0 + cfg.pre)
        for i in range(p0 + cfg.pre, min(12, LA + cf)): hload(i)
        for i in range(cf, 8):
            step(i)
            if i + LA < 12: hload(i + LA)
            for k in (8 + cfg.nref + 2*(i - cf), 9 + cfg.nref + 2*(i - cf)):
                if k < 16: wdma(k)
            if i == cfg.sl: sload(s, SP, 2, True)
        scheck(s, lab + '_f', SP, 2, True)
        stamp(s, 9)
        nl = 12
        for k in range(cfg.lb): hload(nl); nl += 1
        for i in range(8, n):
            step(i)
            for k in range(2):
                if nl < 20: hload(nl); nl += 1
            if i == 12: xload(252)
        stamp(s, 10)
        s(f'v_mov_b32 v1, v{vl}\nv_mov_b32 v7, v{vxo}')
        red_write(s, acc, 72)
        s('s_branch L_red')
        return s
    s('s_setprio 0')
    s('v_lshlrev_b32 v3, 4, v1')
    b_traddr(s, 6, sLB, 7)
    s('v_xor_b32 v5, 64, v6')
    s(f's_lshr_b32 s6, s{sSB}, 1\ns_lshl_b32 s6, s6, 7\ns_and_b32 s78, s{sW}, 1\ns_lshl_b32 s7, s78, 6\ns_add_u32 s6, s6, s7\ns_add_u32 s6, s6, {FO}')
    s(f's_lshl_b32 s7, s{sSB}, 8\ns_lshl_b32 s78, s78, 4\ns_add_u32 s7, s7, s78\ns_add_u32 s7, s7, {FH}')
    s(f's_cmp_ge_u32 s{sW}, 6\ns_cselect_b32 s6, s6, s7')
    sbase(s, 6)
    def snap():
        s(f's_cmp_ge_u32 s{sW}, 6\ns_cbranch_scc1 {lab}_so')
        sload(s, SP, 4, True); s(f's_branch {lab}_sx\n{lab}_so:'); sload(s, SP, 16, False); s(f'{lab}_sx:')
    if kind == 'HX':
        if cfg.b11 == 1: s('s_barrier')
        for i in range(8):
            if cfg.b11 == 2 and i == 3: s('s_barrier')
            wdma(i)
        preread()
    early = kind == 'HX' and cfg.esn
    if early: s('s_waitcnt lgkmcnt(0)'); snap()
    npre = cfg.hw if kind == 'HY' else cfg.hwx
    if kind == 'HY' and cfg.yw: npre = -100
    for i in range(8, 8 + npre): wdma(i)
    xload(8)
    stamp(s, 8)
    if not early: s('s_waitcnt lgkmcnt(0)')
    def gate(k, first):
        s(f's_cmp_ge_u32 s{sW}, 6\ns_cbranch_scc1 {lab}_o{k}')
        if first: sload(s, SP, 4, True)
        scheck(s, f'{lab}_ph{k}', SP, 4, True, [[0, 2], [1, 3], [0, 1, 2, 3]][k])
        s(f's_branch {lab}_go{k}')
        s(f'{lab}_o{k}:')
        if first: sload(s, SP, 16, False)
        scheck(s, f'{lab}_po{k}', SP, 16, False, [[0, 1, 2, 3], [4, 5, 6, 7], list(range(8))][k])
        s(f'{lab}_go{k}:')
    gate(0 if cfg.g2 >= 0 else 2, not early)
    stamp(s, 9)
    nl = 0
    for k in range(cfg.lh): hload(nl); nl += 1
    for i in range(n):
        step(i)
        if i == cfg.g2: gate(1, False)
        for k in range(2):
            if nl < n and (nl < 12 or nl - 12 <= i) and (nl < 8 or i >= cfg.g2): hload(nl); nl += 1
        for k in (8 + npre + 2*i, 9 + npre + 2*i):
            if 8 <= k < 16: wdma(k)
    stamp(s, 10)
    red_write(s, acc, 72)
    if kind != 'HX': s('s_branch L_red')
    return s

def phaseB_tail():
    s = S()
    s(f'v_lshrrev_b32 v4, 3, v1\nv_and_b32 v5, 7, v1\nv_lshlrev_b32 v5, 1, v5\nv_xor_b32 v5, v4, v5\nv_lshlrev_b32 v5, 4, v5\nv_lshl_add_u32 v5, v4, 8, v5\ns_lshl_b32 s7, s{sW}, 11\nv_add_u32 v76, s7, v5')
    s('v_xor_b32 v77, 16, v76')
    s('v_add_u32 v78, 0x10000, v76\nv_add_u32 v79, 0x10000, v77\nv_add_u32 v80, 0x20000, v76\nv_add_u32 v81, 0x20000, v77')
    R = 84
    for j in range(4):
        s(f'v_lshlrev_b32 v{R+64+2*j}, 16, v{vBX+j}\nv_and_b32 v{R+65+2*j}, 0xffff0000, v{vBX+j}')
    s('s_waitcnt lgkmcnt(0)\ns_barrier')
    stamp(s, 11)
    for p in range(8):
        g, o = [(1, 0), (1, 16384), (1, 32768), (1, 49152), (0, 32768), (0, 49152), (2, 0), (2, 16384)][p]
        if p == 7: s('s_waitcnt lgkmcnt(8)')
        s(f'ds_read_b128 {vr(R+8*p,4)}, v{76+2*g} offset:{o}\nds_read_b128 {vr(R+8*p+4,4)}, v{77+2*g} offset:{o}')
    for p in range(1, 6):
        for j in range(8): s(f'v_add_f32 v{R+j}, v{R+j}, v{R+8*p+j}')
    for j in range(8): s(f'v_mul_f32 v{R+8+j}, 0xbfb8aa3b, v{R+j}')
    for j in range(8): s(f'v_exp_f32 v{R+8+j}, v{R+8+j}')
    for j in range(8): s(f'v_add_f32 v{R+48+j}, v{R+48+j}, v{R+56+j}')
    for j in range(8): s(f'v_add_f32 v{R+8+j}, 1.0, v{R+8+j}')
    for j in range(8): s(f'v_rcp_f32 v{R+8+j}, v{R+8+j}')
    for j in range(8): s(f'v_mul_f32 v{R+j}, v{R+j}, v{R+48+j}')
    for j in range(8): s(f'v_fma_f32 v{R+j}, v{R+j}, v{R+8+j}, v{R+64+j}')
    for j in range(4): s(f'v_cvt_pk_bf16_f32 v{R+24+j}, v{R+2*j}, v{R+2*j+1}')
    s(f'buffer_store_dwordx4 {vr(R+24,4)}, v7, {srd(SOUT)}, s{sXO} offen' + ['', ' sc1', ' nt', ' sc0 sc1', ' sc1 nt'][cfg.ost])
    return s

def fin():
    s = S()
    if cfg.stamps:
        s('s_waitcnt vmcnt(0)')
        stamp(s, 12)
        if cfg.pb >= 0:
            s(f's_cmp_lg_u32 s{sW}, {cfg.pw}\ns_cbranch_scc1 L_nospin\ns_cmp_lg_u32 s2, {cfg.pwg}\ns_cbranch_scc1 L_nospin')
            s(f's_sub_u32 s6, s{sTS+cfg.pb}, s{sTS+cfg.pa}\ns_lshl_b32 s6, s6, 3\ns_min_u32 s6, s6, 40000\ns_add_u32 s6, s6, s{sTS+12}')
            s('L_spin:\ns_memrealtime s[76:77]\ns_waitcnt lgkmcnt(0)\ns_cmp_lt_u32 s76, s6\ns_cbranch_scc1 L_spin\nL_nospin:')
        s(f's_lshl_b32 s6, s2, 3\ns_add_u32 s6, s6, s{sW}\ns_lshl_b32 s6, s6, 6\ns_add_u32 s6, s6, {TS_OFF}\nv_mov_b32 v8, s6')
        s('s_memrealtime s[76:77]\ns_waitcnt lgkmcnt(0)\ns_mov_b32 s99, s76')
        for q in range(4):
            for r in range(4): s(f'v_mov_b32 v{12+r}, s{sTS+4*q+r}')
            s('s_mov_b64 exec, 1')
            s(f'buffer_store_dwordx4 v[12:15], v8, {srd(SWS)}, 0 offen offset:{q*16}')
            s('s_mov_b64 exec, -1\ns_nop 2')
    return s

Cfg.w2t = 1; Cfg.w2at = 0; Cfg.ktry = 0; Cfg.xl = 1; Cfg.fk = 1.0; Cfg.skip = 2; Cfg.f7 = 0.55; Cfg.nomf = 0; Cfg.nosc = 0; Cfg.now = 0; Cfg.slp = 2; Cfg.la = 4; Cfg.lb = 2; Cfg.lh = 4; Cfg.ost = 4; Cfg.pwg = 72; Cfg.cdbg = 0; Cfg.sl = 3; Cfg.nbm = 1; Cfg.hw = 0; Cfg.hwx = 8; Cfg.mt = 0; Cfg.tmaj = 0; Cfg.yw = 0; Cfg.b11 = 0; Cfg.hb = 4; Cfg.f25 = 0.3; Cfg.s4 = 2; Cfg.g2 = 3; Cfg.l2t = 0; Cfg.tlbw = 0; Cfg.cpre = 1; Cfg.cpd = 4; Cfg.cps = 1; Cfg.esn = 0; Cfg.xcw = 1; Cfg.f8 = 1; Cfg.skipy = 0; Cfg.q7 = 0; Cfg.eh = 1; Cfg.ehn = 302; Cfg.cf = 3; Cfg.e4 = 22; Cfg.nref = 8; Cfg.c0f = 0; Cfg.p8 = 0; Cfg.rsx = 286; Cfg.rtx = 1; Cfg.rsy = 264; Cfg.rty = 2; Cfg.kvq = 1; Cfg.kvr = 2; Cfg.qp = 7; Cfg.pat = 7; Cfg.q9 = 0; Cfg.rc = 0; Cfg.fslow = 0; Cfg.nbe = 1; Cfg.pgw = 0; Cfg.w2r = 0; Cfg.w2e = 0; Cfg.bm = 1; Cfg.xl2 = 1; Cfg.o2 = 1; Cfg.s2x = 0; Cfg.s2y = 0; Cfg.hx = 1; Cfg.hb1 = 1; Cfg.hk0 = 4; Cfg.hk1 = 10; Cfg.hk2 = 16; Cfg.kvf = 8; Cfg.ystg = 1; Cfg.qat = 9; Cfg.f9 = 0.8

def build():
    out = []
    def put(lab, streams, name):
        l = []
        for x in streams: l += x.l
        if lab: out.append(lab + ':')
        out.extend('    ' + i.text if i.kind != 'label' else i.text for i in finalize(l, name))
    put(None, [prologue()], 'pro')
    if cfg.bonly:
        b = S()
        b('s_waitcnt vmcnt(0)')
        line_voff(b, 4, 5)
        b(f'v_lshl_add_u32 v252, v4, 10, v5\nv_lshlrev_b32 v242, 4, v1\nv_mov_b32 v248, 0\ns_lshl_b32 s6, s{sSB}, 8\ns_add_u32 s6, s6, {FE}')
        sbase(b, 6)
        b(f's_cmp_lt_u32 s{sW}, 6\ns_cselect_b32 s{SO}, s{SD}, s{SO}\ns_cselect_b32 s{SO+1}, s{SD+1}, s{SO+1}\ns_cselect_b32 s{SO+2}, s{SD+2}, s{SO+2}')
        b(f's_cmp_ge_u32 s{sW}, 4\ns_cbranch_scc1 L_bh')
        b(f'v_mov_b32 v252, {WS_BYTES}')
        b('s_barrier'); stamp(b, 7); b('s_branch L_BC\nL_bh:')
        b('s_barrier'); stamp(b, 7); b('s_branch L_BHY' if cfg.bonly == 1 else 's_branch L_BHX')
        put('L_bonly', [b], 'bo')
    put('L_compX', [compute('X')], 'cX')
    put('L_compY', [compute('Y')], 'cY')
    put('L_BC', [phaseB_body('C')], 'BC')
    hs = S(); hs(f's_cmp_eq_u32 s{sTY}, 0\ns_cbranch_scc1 L_helpX')
    put('L_helper', [hs, helperY()], 'hY')
    put('L_BHY', [phaseB_body('HY')], 'BHY')
    lx = S(); lx('L_BHX:')
    put('L_helpX', [helperX(), lx, phaseB_body('HX')], 'hX')
    put('L_red', [phaseB_tail()], 'red')
    put('L_fin', [fin()], 'fin')
    hdr = open('cdna_kernels/' + KN[:-7] + '.s.ref').read().split('; Override')[0]
    txt = hdr + '; @launch grid=(256,1,1) block=(512,1,1) lds=163840\n'
    txt += f'.amdgcn_target "amdgcn-amd-amdhsa--gfx950"\n.text\n.globl {KN}\n.p2align 8\n.type {KN},@function\n{KN}:\n'
    txt += '\n'.join(out) + '\nL_end:\n    s_endpgm\n'
    txt += f'''.section .rodata,"a"
.p2align 6
.amdhsa_kernel {KN}
  .amdhsa_next_free_vgpr 256
  .amdhsa_next_free_sgpr 102
  .amdhsa_accum_offset 256
  .amdhsa_group_segment_fixed_size 0
  .amdhsa_kernarg_size 88
  .amdhsa_user_sgpr_count 2
  .amdhsa_user_sgpr_kernarg_segment_ptr 1
  .amdhsa_system_sgpr_workgroup_id_x 1
.end_amdhsa_kernel
'''
    return txt

if __name__ == '__main__':
    for a in sys.argv[2:]:
        k, v = a.split('='); setattr(cfg, k, float(v) if '.' in v else int(v))
    d = getattr(cfg, 'fsh', 0)
    FKV += d; FH += d; FE += d; FO += d; FQ += d
    KV_OFF += getattr(cfg, 'ksh', 0)
    open(sys.argv[1], 'w').write(build())
```

```python
import sys
from fw import S, I, finalize
KN = 'recurrent_scan__linear_kernel_hedgehog__glu_gated_reglu__prompt_kernel'

class Cfg:
    stamps = 0; hdbg = 0; rt = 0; span = 0
    pa = -1; pb = -1; pw = 0
    mx512 = 1
    prioC = 1; prioH = 0
    tp = 2; pro = 0
    bud = 1000; quiet = 450
    mid2 = 1
    pre = 2
    bonly = 0
cfg = Cfg()

SLOT = [131072, 0, 32768]
KB = 65536; VB = 65536; STDB = 129024; RSB = 130048
KV_OFF = 0x900000
Q_OFF = 0x940000
F_OFF = 0xB40000
FKV, FH, FE, FO, FQ = F_OFF, F_OFF + 0x1000, F_OFF + 0x3000, F_OFF + 0x5000, F_OFF + 0x6000
TS_OFF = 0xB50000
WS_BYTES = 0xC00000
SPIN = 1 << 20
SX, SD, SO, SWS, SOUT, SQKV, SG, SU, SDBG, SPHI = 8, 12, 16, 20, 24, 28, 32, 36, 40, 44
SWH = SO
SP = 28
def srd(b): return f's[{b}:{b+3}]'
sW, sRB, sJ, sTY, sSB, sNB = 48, 49, 50, 51, 52, 53
sA0, sM0, sLBc, sC0, sL4, sL2 = 54, 56, 57, 58, 59, 60
sNON = 62
sT, sT2, sHEAD = 64, 65, 67
sHA, sHM, sHC, sW4 = 68, 69, 70, 71
sQ, sONES, sKV = 72, 74, 78
sWB, sLB, sH0, sH1, sXO, sWBc = 80, 81, 82, 83, 84, 85
sTS = 86
def vr(b, n): return f'v[{b}:{b+n-1}]'
MF = 'v_mfma_f32_32x32x16_bf16'

def stamp(s, idx, force=False):
    if not cfg.stamps: return
    if (cfg.hdbg or cfg.span) and idx != 12 and not force: return
    s('s_memrealtime s[76:77]' if cfg.rt else 's_memtime s[76:77]'); s('s_waitcnt lgkmcnt(0)'); s(f's_mov_b32 s{sTS+idx}, s76')

def build_srd(s, b, lo, nbytes):
    s(f's_mov_b32 s{b}, s{lo}\ns_mov_b32 s{b+1}, s{lo+1}\ns_mov_b32 s{b+2}, {nbytes}\ns_mov_b32 s{b+3}, 0x00020000')

BSTART = [32, 52, 72, 92, 0, 16, 112, 128]
CORDER = [0, 1, 2, 3, 12, 13, 14, 15, 8, 9, 10, 11, 4, 5, 6, 7, 16, 17, 18, 19]
NX0 = 8
def xpieces():
    a, b = (96, 97) if not cfg.stamps else (62, 63)
    r = []
    for c, g in ([(c, 4*b + g) for b in range(2) for c in range(4) for g in range(4)] if cfg.bm else [(c, g) for c in range(4) for g in range(8)]):
        if True:
            t = 66 if len(r) >= NX0 else 7
            p = S()
            p(f's_add_u32 m0, s{b}, {(g >> 2)*65536 + c*4096 + (g & 3)*1024 if cfg.xl2 else c*8192+g*1024}\ns_add_u32 s{t}, s{a}, {g*4096+c*256}')
            p(f'buffer_load_dwordx4 v{10+(g&3)}, {srd(SX)}, s{t} offen lds')
            r.append(p.l)
    return r

def merge(w, main, side, every):
    side = list(side)
    for n, i in enumerate(main.l):
        w.l.append(i)
        if side and n % every == every - 1: w.l.extend(side.pop(0))
    for x in side: w.l.extend(x)

def piece(lds_s, lds_o, g_s, g_o, voff, sr):
    p = S()
    p(f's_add_u32 m0, s{lds_s}, {lds_o}\ns_add_u32 s{sT}, s{g_s}, {g_o}')
    p(f'buffer_load_dwordx4 v{voff}, {srd(sr)}, s{sT} offen lds')
    return p.l

def sbase(s, soff): s(f's_add_u32 s4, s{SWS}, s{soff}\ns_addc_u32 s5, s{SWS+1}, 0')
def sload(s, z, n, two):
    sfx = {1: '', 2: 'x2', 4: 'x4', 8: 'x8', 16: 'x16'}[n]
    rg = lambda b: f's{b}' if n == 1 else f's[{b}:{b+n-1}]'
    s(f's_load_dword{sfx} {rg(z)}, s[4:5], 0 glc')
    if two: s(f's_load_dword{sfx} {rg(z+n)}, s[4:5], 128 glc')
def scheck(s, label, z, n, two, pairs=None):
    tot = n * (2 if two else 1)
    pairs = pairs or list(range(tot // 2))
    def test():
        s('s_waitcnt lgkmcnt(0)')
        if tot == 1: s(f's_cmp_eq_u32 s{z}, s{sNON}'); return
        s(f's_xor_b64 s[6:7], s[{z+2*pairs[0]}:{z+2*pairs[0]+1}], s[{sNON}:{sNON+1}]')
        for k in pairs[1:]:
            s(f's_xor_b64 s[76:77], s[{z+2*k}:{z+2*k+1}], s[{sNON}:{sNON+1}]\ns_or_b64 s[6:7], s[6:7], s[76:77]')
        s('s_cmp_eq_u64 s[6:7], 0')
    test()
    if cfg.bonly: return
    s(f's_cbranch_scc1 {label}_x')
    s('s_mov_b32 s75, 0')
    s(f'{label}:')
    if cfg.slp: s(f's_sleep {cfg.slp}')
    sload(s, z, n, two)
    s(f's_add_u32 s75, s75, 1\ns_cmp_gt_u32 s75, {SPIN}\ns_cbranch_scc1 {label}_y')
    test()
    s(f's_cbranch_scc0 {label}')
    s(f'{label}_y:')
    s('s_waitcnt lgkmcnt(0)')
    s(f'{label}_x:')
def post(s, vdat, vaddr, soff='0', needs=None):
    s('s_mov_b64 exec, 1', needs=needs)
    s(f'buffer_store_dword v{vdat}, v{vaddr}, {srd(SWS)}, {soff} offen sc1')
    s('s_mov_b64 exec, -1')

def prologue():
    s = S()
    s('s_cmp_ge_u32 s2, 256\ns_cbranch_scc1 L_end')
    s('s_load_dwordx16 s[64:79], s[0:1], 0\ns_load_dwordx4 s[80:83], s[0:1], 64\ns_load_dwordx2 s[84:85], s[0:1], 80')
    if cfg.stamps: s('s_memtime s[86:87]\ns_memrealtime s[88:89]')
    s('v_lshrrev_b32 v2, 6, v0\nv_and_b32 v1, 63, v0')
    s(f'v_readfirstlane_b32 s{sW}, v2')
    s('s_and_b32 s3, s2, 7\ns_lshr_b32 s4, s2, 3')
    s(f's_cmp_lg_u32 s{sW}, 7\ns_cbranch_scc1 L_nocode')
    s('s_getpc_b64 s[6:7]')
    s('L_pc:')
    s('s_and_b32 s5, s4, 7\ns_lshl_b32 s5, s5, 13\nv_lshl_add_u32 v3, v1, 7, s5\nv_min_u32 v3, L_end-L_pc, v3')
    s('global_load_dword v9, v3, s[6:7]', tag='raw')
    s('L_nocode:')
    s(f's_and_b32 s5, s3, 1\ns_lshl_b32 s5, s5, 3\ns_and_b32 s6, s4, 7\ns_add_u32 s{sRB}, s5, s6')
    s(f's_and_b32 s6, s{sW}, 3\ns_lshl_b32 s6, s6, 15\ns_lshl_b32 s5, s{sRB}, 17\ns_add_u32 s5, s5, s6')
    s('v_lshrrev_b32 v3, 4, v1\nv_and_b32 v4, 15, v1\nv_xor_b32 v4, v3, v4\nv_lshlrev_b32 v4, 4, v4\nv_lshl_add_u32 v10, v3, 10, v4')
    s('v_xor_b32 v11, 64, v10\nv_xor_b32 v12, 128, v10\nv_xor_b32 v13, 192, v10')
    s('s_waitcnt lgkmcnt(0)')
    if cfg.stamps:
        s('s_mov_b32 s101, s86\ns_mov_b32 s100, s88')
        for q in range(13): s(f's_mov_b32 s{86+q}, s101')
    build_srd(s, SX, 64, 2097152)
    if cfg.xl2: s('s_lshr_b32 s6, s6, 1')
    s('s_mov_b32 s96, s5\ns_mov_b32 s97, s6' if not cfg.stamps else 's_mov_b32 s62, s5\ns_mov_b32 s63, s6')
    s(f's_cmp_ge_u32 s{sW}, 4\ns_cbranch_scc1 L_nox')
    for p in xpieces()[:NX0]: s.l.extend(p)
    s('L_nox:')
    build_srd(s, SQKV, 66, 1572864); build_srd(s, SG, 74, 1835008); build_srd(s, SU, 76, 1835008)
    s(f's_lshr_b32 s5, s4, 3\ns_lshr_b32 s{sTY}, s5, 1\ns_and_b32 s5, s5, 1\ns_and_b32 s6, s3, 6\ns_add_u32 s{sJ}, s6, s5')
    if cfg.mx512:
        if cfg.nbm:
            s(f's_lshr_b32 s5, s3, 1\ns_lshl_b32 s5, s5, 3\ns_and_b32 s6, s4, 7\ns_add_u32 s{sSB}, s5, s6')
            s(f's_and_b32 s5, s3, 1\ns_lshl_b32 s5, s5, 2\ns_lshr_b32 s6, s4, 3\ns_add_u32 s{sNB}, s5, s6')
        else:
            s(f's_lshr_b32 s5, s3, 1\ns_lshl_b32 s5, s5, 3\ns_lshr_b32 s6, s4, 2\ns_add_u32 s{sSB}, s5, s6')
            s(f's_and_b32 s5, s3, 1\ns_lshl_b32 s5, s5, 2\ns_and_b32 s6, s4, 3\ns_add_u32 s{sNB}, s5, s6')
    else:
        s(f's_lshl_b32 s5, s3, 2\ns_lshr_b32 s6, s4, 3\ns_add_u32 s{sSB}, s5, s6\ns_and_b32 s{sNB}, s4, 7')
    build_srd(s, SPHI, 68, 16384); build_srd(s, SO, 70, 524288); build_srd(s, SD, 78, 1835008)
    build_srd(s, SOUT, 80, 2097152); build_srd(s, SDBG, 82, 256); build_srd(s, SWS, 84, WS_BYTES)
    s(f's_and_b32 s{sW4}, s{sW}, 3')
    s(f's_mul_i32 s6, s{sJ}, 160\ns_add_u32 s6, s6, 512\ns_and_b32 s7, s{sJ}, 1')
    s('s_lshl_b32 s3, s7, 5\ns_add_u32 s3, s3, s6')
    s('s_xor_b32 s7, s7, 1\ns_lshl_b32 s4, s7, 7\ns_add_u32 s4, s4, s6')
    s(f's_add_u32 s5, s3, 64\ns_lshl_b32 s6, s{sJ}, 6\ns_cmp_eq_u32 s{sTY}, 0\ns_cselect_b32 s5, s6, s5')
    s(f's_mov_b32 s6, {BSTART[0]}')
    for w in range(1, 8): s(f's_cmp_eq_u32 s{sW}, {w}\ns_cselect_b32 s6, {BSTART[w]}, s6')
    s(f's_add_u32 s{sLB}, s{sW}, 4\ns_sub_u32 s7, s{sW}, 2\ns_cmp_ge_u32 s{sW}, 4\ns_cselect_b32 s{sLB}, s7, s{sLB}\ns_add_u32 s7, s{sW}, 2\ns_cmp_ge_u32 s{sW}, 6\ns_cselect_b32 s{sLB}, s7, s{sLB}\ns_cselect_b32 s7, 112, 0\ns_lshl_b32 s{sLB}, s{sLB}, 14')
    s(f's_sub_u32 s7, s6, s7\ns_lshl_b32 s{sWB}, s7, 14\ns_lshl_b32 s7, s{sNB}, 7\ns_add_u32 s{sWB}, s{sWB}, s7')
    s(f's_mul_i32 s{sH0}, s{sSB}, 288\ns_add_u32 s{sH0}, s{sH0}, s6\ns_lshl_b32 s{sH0}, s{sH0}, 10\ns_add_u32 s{sH1}, s{sH0}, {144*1024}')
    s(f's_lshl_b32 s6, s{sSB}, 3\ns_add_u32 s6, s6, s{sW}\ns_lshl_b32 s6, s6, 13\ns_add_u32 s{sXO}, s6, s7')
    if cfg.bonly: s('s_branch L_bonly')
    s(f's_cmp_ge_u32 s{sW}, 4\ns_cbranch_scc1 L_helper')
    s(f's_cmp_eq_u32 s{sTY}, 0\ns_cbranch_scc0 L_compY\ns_branch L_compX')
    return s

M16 = 'v_mfma_f32_16x16x32_bf16'
XN = 0; ACC = [128, 144, 160, 176]; WF = 192; NRING = 6; PK = 224
vTL, vTH = 216, 220
vL16, vKW, vVW, vM2, vXA = 242, 243, 244, 245, 246
vC, vR2, vNON, vFA, vZ = 240, 254, 248, 252, 251

def compute(ty):
    X = ty == 'X'
    s = S()
    s(f's_setprio {cfg.prioC}')
    s(f'v_lshlrev_b32 v{vL16}, 4, v1')
    s('v_lshrrev_b32 v2, 4, v1\nv_and_b32 v3, 15, v1')
    s('v_bfe_u32 v4, v1, 2, 2\nv_lshl_add_u32 v4, v2, 3, v4\nv_and_b32 v5, 3, v1\nv_lshlrev_b32 v5, 3, v5')
    if not X:
        s(f'v_and_b32 v6, 1, v2\nv_lshl_add_u32 v6, v6, 5, v5\nv_lshl_add_u32 v{vKW}, v4, 6, v6\nv_xor_b32 v{vM2}, 32, v{vKW}')
    s(f'v_bfe_u32 v6, v1, 3, 1\nv_and_b32 v7, 1, v2\nv_lshl_add_u32 v6, v6, 1, v7\nv_lshl_add_u32 v5, v6, 5, v5\nv_lshl_add_u32 v{vTL}, v4, 7, v5')
    s(f'v_add_u32 v{vTH}, 0x20000, v{vTL}')
    for q in range(1, 4): s(f'v_xor_b32 v{vTL+q}, {32*q}, v{vTL}\nv_xor_b32 v{vTH+q}, {32*q}, v{vTH}')
    s('v_xor_b32 v4, v2, v3\nv_lshlrev_b32 v4, 4, v4\nv_and_b32 v5, 3, v1\nv_lshl_add_u32 v4, v5, 8, v4')
    s(f'v_bfe_u32 v5, v1, 2, 2\nv_lshl_add_u32 v4, v5, 10, v4\ns_lshl_b32 s6, s{sW}, {14 if cfg.xl2 else 15}\nv_add_u32 v{vXA}, s6, v4')
    for u in range(1, 4): s(f'v_xor_b32 v{vXA+u}, {u<<6}, v{vXA}')
    if X:
        s(f's_lshl_b32 s6, s{sW}, 10\ns_add_u32 s6, s6, {KB}\nv_lshlrev_b32 v4, 3, v1\nv_add_u32 v{vKW}, s6, v4')
        s(f'v_and_b32 v4, 1, v2\nv_lshrrev_b32 v6, 1, v2\nv_lshl_add_u32 v4, v4, 1, v6\nv_xor_b32 v4, v4, v5\nv_lshlrev_b32 v4, 3, v4\nv_lshl_add_u32 v4, v3, 5, v4\nv_add_u32 v{vVW}, s6, v4')
        s(f's_lshl_b32 s6, s{sRB}, 3\ns_add_u32 s6, s6, s{sJ}\ns_lshl_b32 s6, s6, 4\ns_add_u32 s6, s6, s{sW}\ns_lshl_b32 s6, s6, 10\ns_add_u32 s{sQ}, s6, {Q_OFF}')
    E = PK
    s('v_and_b32 v4, 1, v1\nv_lshlrev_b32 v4, 4, v4\nv_mov_b32 v6, 0x3f80\nv_lshlrev_b32 v6, v4, v6')
    s('v_cmp_eq_u32 vcc, v5, v2\nv_cndmask_b32 v6, 0, v6, vcc\nv_bfe_u32 v4, v1, 1, 1')
    s(f'v_cmp_eq_u32 vcc, 0, v4\nv_cndmask_b32 v{E}, 0, v6, vcc\nv_cndmask_b32 v{E+1}, v6, 0, vcc')
    s(f'v_mov_b32 v{E+2}, 0\nv_mov_b32 v{E+3}, 0\nv_mov_b32 v{E+4}, 0\nv_mov_b32 v{E+5}, 0\nv_mov_b32 v{E+6}, v{E}\nv_mov_b32 v{E+7}, v{E+1}')
    s(f's_lshl_b32 s6, s{sRB}, 2\ns_add_u32 s6, s6, s{sW}\ns_mul_i32 s6, s6, {144*1024}')
    s(f's_lshl_b32 s7, s3, 6\ns_add_u32 s{sHA}, s6, s7\ns_lshl_b32 s7, s4, 6\ns_add_u32 s{sHM}, s6, s7\ns_lshl_b32 s7, s5, 6\ns_add_u32 s{sHC}, s6, s7')
    s(f's_mov_b32 s{sONES}, 0x3f803f80')
    setup = s; s = S()
    merge(s, setup, xpieces()[NX0:16 if cfg.hx else 32], 3)
    if not cfg.hx: s('s_barrier')
    stamp(s, 0)
    SA = ACC[0]
    xr = lambda tt, b: XN + 8*tt + 4*b
    if cfg.bm:
        A0, Q0 = SA, SA + 2
        CM = ACC[0] + 8
        DT = ACC[1]; ND = 5; LAG = 2
        def reads(b, c):
            if not cfg.hx: s(f's_waitcnt vmcnt({4*(7 - 4*b - c)})')
            elif b == 0: s(f's_waitcnt vmcnt({4*(3 - c)})')
            for u in range(4): s(f'ds_read_b128 {vr(xr(4*c+u,b),4)}, v{vXA+u} offset:{c*4096 if cfg.xl2 else c*8192 + b*4096}')
            if cfg.xl2 and b == 0 and c == 3:
                for u in range(4): s(f'v_add_u32 v{vXA+u}, 0x10000, v{vXA+u}')
        def dots(b, c):
            for u in range(4):
                for r in range(4):
                    z = c == 0 and u == 0 and r < 2; x = xr(4*c+u, b) + r; k = 4*(r & 1)
                    s(f'v_dot2_f32_bf16 v{A0+b+k}, v{x}, s{sONES}, ' + ('0' if z else f'v{A0+b+k}'))
                    s(f'v_dot2_f32_bf16 v{Q0+b+k}, v{x}, v{x}, ' + ('0' if z else f'v{Q0+b+k}'))
        def stats(b):
            a_, q = A0 + b, Q0 + b
            s(f'v_add_f32 v{a_}, v{a_}, v{a_+4}\nv_add_f32 v{q}, v{q}, v{q+4}')
            s(f'v_permlane32_swap_b32 v{a_}, v{q}\nv_add_f32 v{a_}, v{a_}, v{q}\nv_mov_b32 v{q}, v{a_}\nv_permlane16_swap_b32 v{a_}, v{q}')
            s(f'v_add_f32 v{a_}, v{a_}, v{q}\nv_mul_f32 v{a_}, 0x3b000000, v{a_}\nv_mov_b32 v{q}, v{a_}\nv_permlane32_swap_b32 v{a_}, v{q}')
            s(f'v_cvt_pk_bf16_f32 v{CM+4*b}, -v{a_}, -v{a_}\nv_and_b32 v{CM+4*b}, 0xffff0000, v{CM+4*b}')
            for r in range(1, 4): s(f'v_mov_b32 v{CM+4*b+r}, v{CM+4*b}')
        def mkside(b):
            side = S(); q = Q0 + b
            if b == 0: side(f'v_mov_b32 v{vZ}, 0')
            side(f'v_fma_f32 v{q}, -v{A0+b}, v{A0+b}, v{q}\nv_max_f32 v{q}, 0, v{q}')
            side(f'v_cvt_pk_bf16_f32 v{q}, v{q}, v{q}\nv_and_b32 v{q}, 0xffff0000, v{q}\nv_add_f32 v{q}, 0x3727c5ac, v{q}')
            side(f'v_cvt_pk_bf16_f32 v{q}, v{q}, v{q}\nv_and_b32 v{q}, 0xffff0000, v{q}\nv_sqrt_f32 v{q}, v{q}')
            if X and b == 0: side(f'v_lshrrev_b32 v250, 2, v{vL16}\nv_and_b32 v250, 0x3c, v250\ns_lshl_b32 s6, s{sW}, 7\nv_add_u32 v250, s6, v250\nv_add_u32 v252, {RSB}, v250\nv_lshlrev_b32 v253, 1, v250\nv_add_u32 v253, {STDB}, v253')
            else: side('s_nop 0')
            side(f'v_cvt_pk_bf16_f32 v{234+2*b}, v{q}, v{q}\nv_mov_b32 v{235+2*b}, v{234+2*b}\nv_and_b32 v{q}, 0xffff0000, v{234+2*b}\nv_rcp_f32 v{q}, v{q}')
            if X and b == 1:
                for bb in range(2): side(f'ds_write_b64 v253, v[{234+2*bb}:{235+2*bb}] offset:{128*bb}')
            else: side('s_nop 0')
            if X: side(f'v_mul_f32 v{vC+b}, 0x3fb8aa3b, v{q}')
            side(f'v_mul_f32 v{vR2+b}, v{q}, v{q}')
            if X and b == 1:
                for bb in range(2): side(f'ds_write_b32 v252, v{Q0+bb} offset:{64*bb}')
            return side.l
        def center(b, hooks):
            nonlocal pre_reads_at
            side = mkside(b)
            for f in range(16 + LAG):
                g = f - LAG
                cv = [f'v_cvt_pk_bf16_f32 v{xr(g,b)+j}, v{DT+8*(g%ND)+2*j}, v{DT+8*(g%ND)+2*j+1}' for j in range(4)] if g >= 0 else []
                for a_ in range(2):
                    if f < 16: s(f'{M16} {vr(DT+8*(f%ND)+4*a_,4)}, {vr(E+4*a_,4)}, {vr(xr(f,b),4)}, {vr(CM+4*b,4)}')
                    for x in cv[2*a_:2*a_+2]: s(x)
                    if side: s.l.append(side.pop(0))
                if f in hooks: hooks[f]()
                if b == 1 and f == 12: s('s_waitcnt lgkmcnt(0)\ns_barrier')
                if b == 1 and f == 14: pre_reads_at = len(s.l)
            assert not side
        pre_reads_at = None
        for c in range(4): reads(0, c); dots(0, c)
        stats(0)
        stamp(s, 1)
        if cfg.hx:
            center(0, {cfg.hk2: lambda: (s('s_barrier'), reads(1, 0), reads(1, 1), reads(1, 2))})
            dots(1, 0); reads(1, 3); dots(1, 1); dots(1, 2); dots(1, 3)
        else:
            center(0, {cfg.hk0: lambda: reads(1, 0), cfg.hk1: lambda: reads(1, 1), cfg.hk2: lambda: reads(1, 2)})
            dots(1, 0); dots(1, 1); reads(1, 3); dots(1, 2); dots(1, 3)
        s('s_barrier')
        stats(1)
        stamp(s, 2)
        center(1, {})
    else:
        for c in range(4):
            s(f's_waitcnt vmcnt({8*(3-c)})')
            if c == 3: stamp(s, 1)
            for u in range(4):
                for b in range(2): s(f'ds_read_b128 {vr(xr(4*c+u,b),4)}, v{vXA+u} offset:{c*8192 + b*4096}')
            for u in range(4):
                for r in range(4):
                    for b in range(2):
                        z = c == 0 and u == 0 and r == 0; x = xr(4*c+u, b) + r
                        s(f'v_dot2_f32_bf16 v{SA+b}, v{x}, s{sONES}, ' + ('0' if z else f'v{SA+b}'))
                        s(f'v_dot2_f32_bf16 v{SA+2+b}, v{x}, v{x}, ' + ('0' if z else f'v{SA+2+b}'))
        s('s_barrier')
        A0, A1, Q0, Q1 = SA, SA + 1, SA + 2, SA + 3
        s(f'v_permlane32_swap_b32 v{A0}, v{Q0}\nv_permlane32_swap_b32 v{A1}, v{Q1}\nv_add_f32 v{A0}, v{A0}, v{Q0}\nv_add_f32 v{A1}, v{A1}, v{Q1}')
        s(f'v_permlane16_swap_b32 v{A0}, v{A1}\nv_add_f32 v{A0}, v{A0}, v{A1}\nv_mul_f32 v{A0}, 0x3b000000, v{A0}')
        s(f'v_mov_b32 v{A1}, v{A0}\nv_permlane16_swap_b32 v{A0}, v{A1}\nv_mov_b32 v{Q0}, v{A0}\nv_mov_b32 v{Q1}, v{A1}')
        s(f'v_permlane32_swap_b32 v{A0}, v{Q0}\nv_permlane32_swap_b32 v{A1}, v{Q1}')
        CM = ACC[0] + 8
        for b in range(2):
            s(f'v_cvt_pk_bf16_f32 v{CM+4*b}, -v{A0+b}, -v{A0+b}\nv_and_b32 v{CM+4*b}, 0xffff0000, v{CM+4*b}')
            for r in range(1, 4): s(f'v_mov_b32 v{CM+4*b+r}, v{CM+4*b}')
        stamp(s, 2)
        side = S()
        side(f'v_mov_b32 v{vZ}, 0')
        for b in range(2):
            q = Q0 + b
            side(f'v_fma_f32 v{q}, -v{A0+b}, v{A0+b}, v{q}\nv_max_f32 v{q}, 0, v{q}')
            side(f'v_cvt_pk_bf16_f32 v{q}, v{q}, v{q}\nv_and_b32 v{q}, 0xffff0000, v{q}\nv_add_f32 v{q}, 0x3727c5ac, v{q}')
            side(f'v_cvt_pk_bf16_f32 v{q}, v{q}, v{q}\nv_and_b32 v{q}, 0xffff0000, v{q}\nv_sqrt_f32 v{q}, v{q}')
            if X and b == 0: side(f'v_lshrrev_b32 v250, 2, v{vL16}\nv_and_b32 v250, 0x3c, v250\ns_lshl_b32 s6, s{sW}, 7\nv_add_u32 v250, s6, v250\nv_add_u32 v252, {RSB}, v250\nv_lshlrev_b32 v253, 1, v250\nv_add_u32 v253, {STDB}, v253')
            else: side('s_nop 0')
            side(f'v_cvt_pk_bf16_f32 v234, v{q}, v{q}\nv_mov_b32 v235, v234\nv_and_b32 v{q}, 0xffff0000, v234\nv_rcp_f32 v{q}, v{q}')
            if X:
                side(f'ds_write_b64 v253, v[234:235] offset:{128*b}\nds_write_b32 v252, v{q} offset:{64*b}')
                side(f'v_mul_f32 v{vC+b}, 0x3fb8aa3b, v{q}')
            else: side('s_nop 0')
            side(f'v_mul_f32 v{vR2+b}, v{q}, v{q}')
        side = side.l
        DT = ACC[1]; ND = 5
        LAG = 2
        for f in range(32 + LAG):
            g = f - LAG
            cv = [f'v_cvt_pk_bf16_f32 v{XN+4*g+j}, v{DT+8*(g%ND)+2*j}, v{DT+8*(g%ND)+2*j+1}' for j in range(4)] if g >= 0 else []
            for a_ in range(2):
                if f < 32: s(f'{M16} {vr(DT+8*(f%ND)+4*a_,4)}, {vr(E+4*a_,4)}, {vr(XN+4*f,4)}, {vr(CM+4*(f&1),4)}')
                for x in cv[2*a_:2*a_+2]: s(x)
                if side: s.l.append(side.pop(0))
            if f == 28: s('s_waitcnt lgkmcnt(0)\ns_barrier')
            if f == 30: pre_reads_at = len(s.l)
        assert not side
    stamp(s, 3)
    mf = []
    for st in range(10):
        base = SLOT[st % 3]
        if not ((4 <= st < 6) or (X and st < 4)):
            sl = st if st < 4 else st - 6
            accs = [0, 1, 2, 3] if st < 4 else [2, 3, 0, 1]
            for p in range(2):
                for t in range(4):
                    for c in range(2):
                        for a_ in range(2):
                            mf.append((st, ACC[accs[2*p+c]] + 8*a_, 4*sl + t, (base + c*16384 + t*4096, 2*p + a_), sl == 0 and t == 0))
        else:
            sl = st & 1; a0 = 2 if st in (2, 3) else 0
            for t in range(8):
                for c in range(2):
                    for a_ in range(2):
                        mf.append((st, ACC[a0 + c] + 8*a_, 8*sl + t, (base + t*4096, 2*c + a_) if X else (base + c*16384 + t*2048, -1 - a_), sl == 0 and t == 0))
    N = len(mf)
    def packswap(e, src, pk, mul):
        for b in range(2):
            if mul is not None:
                for r in range(4): e.append(f'v_mul_f32 v{src+4*b+r}, v{src+4*b+r}, v{mul+b}')
            e.append(f'v_cvt_pk_bf16_f32 v{pk+2*b}, v{src+4*b}, v{src+4*b+1}')
            e.append(f'v_cvt_pk_bf16_f32 v{pk+2*b+1}, v{src+4*b+2}, v{src+4*b+3}')
    def swaps(e, pk):
        e.append(f'v_permlane16_swap_b32 v{pk}, v{pk+2}'); e.append(f'v_permlane16_swap_b32 v{pk+1}, v{pk+3}')
    def ep_h(g, u, sbase, off, PK=PK, defer=None):
        e = []; dst = e if defer is None else defer
        for a_ in range(2):
            for j in range(8*a_, 8*a_ + 8): e.append(f'v_max_f32 v{g+j}, 0, v{g+j}')
            if a_ == 1:
                swaps(e, PK); dst.append(f'buffer_store_dwordx4 {vr(PK,4)}, v{vL16}, {srd(SWS)}, s{sbase} offen offset:{off} sc1')
            for j in range(8*a_, 8*a_ + 8): e.append(f'v_mul_f32 v{g+j}, v{g+j}, v{u+j}')
            packswap(e, g + 8*a_, PK + 4*a_, vR2)
        e.append('s_nop 0'); swaps(e, PK + 4)
        dst.append(f'buffer_store_dwordx4 {vr(PK+4,4)}, v{vL16}, {srd(SWS)}, s{sbase} offen offset:{off+1024} sc1')
        return e
    def ep_hand(a0, a1, kind):
        e = []; fin = []
        for hd in range(4):
            src = (a0, a1)[hd >> 1] + 8*(hd & 1); pk = PK + 4*hd
            t = []; packswap(t, src, pk, None if kind == 'v' else vC)
            if kind == 'v':
                e += t[:2] + [f'ds_write_b64 v{vVW}, {vr(pk,2)} offset:{hd*4096}'] + t[2:] + [f'ds_write_b64 v{vVW}, {vr(pk+2,2)} offset:{hd*4096+512}']
                continue
            e += t[:6] + fin + t[6:]; fin = []
            swaps(fin, pk)
            if kind == 'k': fin += [f'ds_write_b64 v{vKW}, {vr(pk,2)} offset:{hd*4096}', f'ds_write_b64 v{vKW}, {vr(pk+2,2)} offset:{hd*4096+512}']
            else:
                fin.append(f'buffer_store_dwordx4 {vr(pk,4)}, v{vL16}, {srd(SWS)}, s{sQ} offen sc1')
                if hd < 3: fin.append(f's_add_u32 s{sQ}, s{sQ}, 4096')
        return e + fin
    A = ACC
    fill = {}; late = {}; posts = {}; mids = []
    skip = (({0: set(), 1: {7}, 2: {8}}[cfg.skip]) if X else ({8} if cfg.skipy else set()))
    fa = f's_lshl_b32 s6, s{sRB}, 2\ns_add_u32 s6, s6, s{sW}\ns_lshl_b32 s6, s6, 5\ns_add_u32 s6, s6, s{sJ}' + ('' if X else '\ns_add_u32 s6, s6, 8') + f'\ns_lshl_b32 s6, s6, 2\ns_add_u32 s6, s6, {FH}\nv_mov_b32 v{vFA}, s6'
    if X:
        fill[2*32] = (ep_hand(A[0], A[1], 'k'), 2*32 + 17); mids.append(2*32 + 19)
        if cfg.kvq:
            fill[4*32] = (ep_hand(A[2], A[3], 'v'), 4*32 + 12); mids.append(4*32 + 14)
            fill[6*32] = (ep_hand(A[0], A[1], 'q'), 6*32 + 15); mids.append(7*32 + cfg.qp + 1)
            skip = {8}
        else:
            fill[4*32] = (ep_hand(A[2], A[3], 'q'), 4*32 + 24)
            fill[6*32] = (ep_hand(A[0], A[1], 'v'), 6*32 + 10)
            mids.append(6*32 + 12)
        extra = f'\ns_lshl_b32 s6, s{sRB}, 3\ns_add_u32 s6, s6, s{sJ}\ns_lshl_b32 s6, s6, 5\ns_add_u32 s6, s6, s{sW}\ns_lshl_b32 s6, s6, 2\ns_add_u32 s6, s6, {FQ}\nv_mov_b32 v253, s6'
        posts[7*32 + cfg.qp if cfg.kvq else 5*32 + 12] = (253, '0')
    else:
        d1 = []; d2 = []
        fill[3*32+16] = (ep_h(A[0], A[1], sHA, 0, PK, d1), 3*32 + 31)
        fill[4*32] = (ep_h(A[2], A[3], sHA, 2048, PK + 8, d1), 4*32 + cfg.e4)
        fill[6*32] = (ep_h(A[0], A[1], sHM, 0, PK, d2), 6*32 + 15)
        for k, x in enumerate(d1): late[4*32 + (19, 21, cfg.e4 + 1, cfg.e4 + 2)[k]] = x
        for k, x in enumerate(d2): late[6*32 + 21 + 3*k] = x
        extra = f'\ns_mov_b32 s{sQ}, {FE-FH}'
        posts[7*32 + 20] = (vFA, f's{sQ}')
    if cfg.s2x if X else cfg.s2y:
        skip = skip | {2}
        if not X: mids.append(2*32 + cfg.s2y)
    fill[1*32+2] = ([f'buffer_load_dword v{vNON}, v{vZ}, {srd(SDBG)}, 0 offen sc1'] + (fa + extra).split('\n'), 1*32 + 22)
    t = S()
    t(f'v_lshrrev_b32 v249, 4, v{vL16}')
    b_traddr(t, 244, sLB, 250, 249)
    t('v_xor_b32 v246, 64, v244')
    line_voff(t, 250, 243, 249)
    t('v_lshl_add_u32 v243, v250, 10, v243')
    t('v_and_b32 v250, 1, v249\nv_lshlrev_b32 v250, 2, v250\nv_bfe_u32 v253, v249, 1, 1\nv_lshl_add_u32 v253, v253, 7, v250')
    t(f's_lshl_b32 s6, s{sSB}, 8\ns_lshl_b32 s7, s{sW}, 3\ns_add_u32 s6, s6, s7\ns_add_u32 s6, s6, {FE+32}\nv_add_u32 v253, s6, v253')
    late[cfg.ehn - 10] = f'buffer_load_dword v250, v253, {srd(SWS)}, 0 offen sc1'
    if cfg.p8:
        fill[7*32+12] = ([i.text for i in t.l], 7*32 + 27)
        pstart = 8*32 + 2; rstart, rstep = (cfg.rsx, cfg.rtx) if X else (cfg.rsy, cfg.rty)
    else:
        fill[8*32+2] = ([i.text for i in t.l], 8*32 + 24)
        pstart = 8*32 + 30; rstart, rstep = pstart + cfg.cpd, 1
    pre9 = []
    for i in range(8):
        g = []
        for c in range(2):
            g.append(I(f'ds_read_b64_tr_b16 {vr(8*i+4*c,2)}, v{(244, 246)[c]} offset:{2048*i}'))
            g.append(I(f'ds_read_b64_tr_b16 {vr(8*i+4*c+2,2)}, v{(244, 246)[c]} offset:{2048*i+B2}'))
        pre9.append(g)
    ref9 = ownpieces(range(8, 16), sLB, O8, 243, SD, CORDER)
    for k, p in enumerate(ref9): p[-1].needs = [pre9[k // 2][-1]]
    ref9 = ref9[:2*cfg.nref]
    fill[9*32+16] = (ep_h(A[2], A[3], sHC, 0), 9*32 + 31)
    tail = ep_h(A[0], A[1], sHC, 2048, PK + 8)
    def rd(n):
        st, a, xf, (off, q), first = mf[n]
        if q < 0: va, o, d = (vKW, vM2)[-1 - q], off, 256
        elif off >= 131072: va, o, d = vTH + q, off - 131072, 512
        else: va, o, d = vTL + q, off, 512
        r = WF + 4*(n % NRING)
        return [f'ds_read_b64_tr_b16 {vr(r,2)}, v{va} offset:{o}', f'ds_read_b64_tr_b16 {vr(r+2,2)}, v{va} offset:{o+d}']
    nxt = 0; half = []; pend = []; rdtok = {}
    def issue_reads(limit_frag, maxn):
        nonlocal nxt, half
        k = 0
        while k < maxn:
            if not half:
                if nxt > limit_frag or nxt >= N: break
                half = [(nxt, x) for x in rd(nxt)]; nxt += 1
            f, x = half.pop(0); rdtok[f] = s(x); k += 1
        return k
    passed = 0
    keep = s.l[pre_reads_at:]; del s.l[pre_reads_at:]
    issue_reads(NRING - 2, 2*(NRING - 1))
    s.l.extend(keep)
    delay = 0; dead = 0
    BP = 28
    def fillers(k):
        nw = 0
        while pend and k > 0:
            if pend[0].startswith('ds_write'):
                if nw and not last_gap: break
                nw += 1
            s(pend.pop(0)); k -= 1
    for n in range(N):
        st, a, xf, off, first = mf[n]
        if n in fill:
            assert not pend
            pend = list(fill[n][0]); dead = fill[n][1]; delay = 1
        needs = []
        if n % 2 == 0 and (n + 1) in rdtok and not (half and half[0][0] == n + 1): needs = [rdtok[n+1]]
        r = WF + 4*(n % NRING)
        isbar = n % 32 == BP and st + 1 not in skip
        lim = min(n + NRING - 1, 32*(passed+1) - 1)
        budget = 0; last_gap = False
        if delay > 0: delay -= 1
        elif pend and not isbar:
            gaps = sum(1 for m in range(n, dead + 1) if m % 32 != BP or m // 32 + 1 in skip)
            budget = -(-len(pend) // gaps); last_gap = gaps == 1
        s(f'{M16} {vr(a,4)}, {vr(r,4)}, {vr(xr(xf,0),4)}, ' + ('0' if first else vr(a,4)), needs=needs)
        if not isbar:
            behind = (min(lim, n + NRING - 2) - nxt + 1) * 2 + len(half)
            issue_reads(min(lim, n + NRING - 2), 2 if behind > 2 else 1)
            fillers(budget // 2)
        s(f'{M16} {vr(a+4,4)}, {vr(r,4)}, {vr(xr(xf,1),4)}, ' + ('0' if first else vr(a+4,4)))
        if isbar:
            assert nxt == 32*(st+1) and not half, (n, nxt)
            s('s_waitcnt lgkmcnt(0)')
            if cfg.hdbg and cfg.hb <= st <= cfg.hb + 5: stamp(s, 2*(st-cfg.hb), True)
            s('s_barrier'); passed = st + 1
            if passed + 1 in skip and (passed + 1 == 2 or (passed + 1 == 8 and not (X and cfg.kvq))): passed += 1
            if cfg.hdbg and cfg.hb <= st <= cfg.hb + 5: stamp(s, 2*(st-cfg.hb)+1, True)
            if st in (3, 5): stamp(s, 4 if st == 3 else 5)
            issue_reads(min(n + NRING - 1, N - 1), 4)
            if st == 9:
                s(f'v_readfirstlane_b32 s{sNON}, v{vNON}\ns_lshl_b32 s6, s{sSB}, 8\ns_lshl_b32 s7, s{sW}, 3\ns_add_u32 s6, s6, s7\ns_add_u32 s6, s6, {FE+32}')
                sbase(s, 6)
                s(f's_mov_b32 s{sNON+1}, s{sNON}')
            continue
        if n in mids:
            assert not pend
            s('s_barrier', needs=[i for i in s.l if i.op == 'ds_write_b64'][-1:])
            if st + 1 in skip and (st + 1 == 7 or cfg.kvq): passed = st + 1
        behind = (lim - nxt + 1) * 2 + len(half)
        issue_reads(lim, 2 if behind > 2 else 1)
        if n in late: s(late[n])
        if 0 <= n - pstart < 16:
            k = n - pstart; s.l.extend(pre9[k // 2][2*(k % 2):2*(k % 2) + 2])
        if n >= rstart and ref9 and (n - rstart) % rstep == 0: s.l.extend(ref9.pop(0))
        for lab_, at, dat, adr, sr, cond in ((f'L_e{ty}', cfg.ehn, 250, 253, SWS, f'v_cmp_ne_u32 vcc, v250, v{vNON}'),
                                             (f'L_non{ty}c', 3*32 + 4, vNON, vZ, SDBG, f'v_cmp_eq_u32 vcc, 0, v{vNON}')):
            if n == at and cfg.nbe and at == cfg.ehn:
                if cfg.fslow: cond = 'v_cmp_eq_u32 vcc, v250, v250'
                s(f'{cond}\ns_mov_b32 s73, 0\ns_cbranch_vccnz {lab_}_x')
                for k in range(8):
                    s(f'buffer_load_dwordx4 {vr(64 + 4*k, 4)}, v{vL16}, {srd(SWS)}, s{sH0 + (k & 1)} offen offset:{(k >> 1)*1024} sc1', tag='raw')
                s('s_mov_b32 s73, 1')
                s(f'{lab_}_x:')
            elif n == at:
                s(f'{cond}\ns_cbranch_vccz {lab_}_x')
                s('s_mov_b32 s75, 0')
                s(f'{lab_}:')
                s(f'buffer_load_dword v{dat}, v{adr}, {srd(sr)}, 0 offen sc1\ns_waitcnt vmcnt(0)', tag='raw')
                s(f's_add_u32 s75, s75, 1\ns_cmp_gt_u32 s75, {SPIN}\ns_cbranch_scc1 {lab_}_x')
                s(f'{cond}\ns_cbranch_vccnz {lab_}')
                s(f'{lab_}_x:')
        if 0 <= n - cfg.ehn < 8 and not cfg.nbe:
            k = n - cfg.ehn
            s(f'buffer_load_dwordx4 {vr(64 + 4*k, 4)}, v{vL16}, {srd(SWS)}, s{sH0 + (k & 1)} offen offset:{(k >> 1)*1024} sc1')
        if n in posts: post(s, vNON, posts[n][0], posts[n][1], [[i for i in s.l if i.kind == 'vmst'][-1]])
        fillers(budget - budget // 2 if not last_gap else 99)
    assert not pend and not ref9
    stamp(s, 6)
    for x in tail: s(x)
    vms = [i for i in s.l if i.kind in ('vm', 'vmst', 'vmlds')]
    assert all(i.kind == 'vmst' for i in vms[-4:])
    stamp(s, 7)
    s('s_branch L_BC')
    return s

vOQ, vOG, vW2 = 2, 3, 252
WRB = 72
vOQ2, vOG2 = 249, 250
vOM = 251
def dma_stage(st, X):
    base = SLOT[st % 3]; r = []
    if X and st < 6:
        col = ([1024, 2048, 0] if cfg.kvq else [1024, 0, 2048])[st >> 1]
        for b in range(8): r.append(piece(sL2, base + b*1024, sM0, (256*(st & 1) + 8*b)*3072 + col, (vOQ, vOQ2)[b & 1], SQKV))
    elif st < 4 or st >= 6:
        sl = st if st < 4 else st - 6
        sb = sA0 if st < 4 else sC0
        for b in range(4):
            for pos, sr in enumerate((SG, SU)): r.append(piece(sL4, base + pos*16384 + b*1024, sb, (128*sl + 8*b)*3584, (vOG, vOG2)[b & 1], sr))
    else:
        for b in range(4):
            row = 256*(st & 1) + 16*b
            for pos, sr in enumerate((SG, SU)): r.append(piece(sL4, base + pos*16384 + b*1024, sM0, row*3584, vOM, sr))
    return r
def cwpieces(w):
    return [piece(sLBc, (w+4)*16384 + k*8192 + c*1024, sWBc, (BSTART[w]+12*k)*16384 + 8192*c, vW2, SD) for k in range(2) for c in range(2)]
sLBx, sWBx = 54, 55
def cwpiecesx(w, es=(0, 1)):
    return [piece(sLBx, (w+4)*16384 + e*2048 + c*1024, sWBx, (BSTART[w]+e)*16384 + 8192*c, vW2, SD) for e in es for c in range(2)]
def cwpieces2():
    return [piece(sLBc, w*8192 + c*1024, sWBc, (BSTART[w]+16)*16384 + 8192*c, vW2, SD) for w in range(4) for c in range(2)]
def ownpieces(steps, sbase, offs, voff=vW2, sr=SWH, rel=None):
    return [piece(sbase, o + c*1024, sWB, (rel[i] if rel else i)*16384 + 8192*c, voff, sr) for i, o in zip(steps, offs) for c in range(2)]
def emit(s, pieces, raw=False):
    for p in pieces:
        for x in p:
            if raw: x.tag = 'raw'
            s.l.append(x)
    return pieces[-1][-1]
def b_traddr(s, dst, sbase, t, lane=1):
    s(f'v_lshrrev_b32 v{t}, 5, v{lane}\nv_bfe_u32 v{dst}, v{lane}, 2, 2')
    s(f'v_lshl_add_u32 v{dst}, v{t}, 3, v{dst}\nv_lshlrev_b32 v{dst}, 7, v{dst}')
    s(f'v_bfe_u32 v{t}, v{lane}, 3, 1\nv_lshl_add_u32 v{dst}, v{t}, 6, v{dst}')
    s(f'v_bfe_u32 v{t}, v{lane}, 4, 1\nv_lshl_add_u32 v{dst}, v{t}, 5, v{dst}\nv_and_b32 v{t}, 3, v{lane}\nv_lshl_add_u32 v{dst}, v{t}, 3, v{dst}')
    if sbase is not None: s(f'v_add_u32 v{dst}, s{sbase}, v{dst}')
def line_voff(s, row, chunk, lane=1):
    s(f'v_lshrrev_b32 v{row}, 3, v{lane}\nv_bfe_u32 v{chunk}, v{lane}, 4, 1\nv_lshlrev_b32 v{chunk}, 2, v{chunk}\nv_xor_b32 v{chunk}, v{lane}, v{chunk}\nv_and_b32 v{chunk}, 7, v{chunk}\nv_lshlrev_b32 v{chunk}, 4, v{chunk}')
O8 = [2048*k for k in range(8)]
B2 = 512
def stg_offs(regions): return [(w + 4)*16384 + k*8192 for w in regions for k in range(2)]
def stg_reads(steps, offs, va, tok):
    w = S()
    for i, o in zip(steps, offs):
        for c in range(2):
            f = WRB + 8*i + 4*c
            w(f'ds_read_b64_tr_b16 {vr(f,2)}, v{va+c} offset:{o - 65536}', needs=[tok])
            w(f'ds_read_b64_tr_b16 {vr(f+2,2)}, v{va+c} offset:{o - 65536 + B2}')
    w.l.insert(12, I('s_waitcnt lgkmcnt(4)'))
    w('s_waitcnt lgkmcnt(0)')
    return w

def softmax_k(s, P, rs, out, t):
    m0, m1, n0, n1 = t
    s(f'v_max3_f32 v{m0}, v{P}, v{P+1}, v{P+2}\nv_max3_f32 v{m1}, v{P+3}, v{P+4}, v{P+5}')
    s(f'v_max3_f32 v{n0}, v{P+6}, v{P+7}, v{P+8}\nv_max3_f32 v{n1}, v{P+9}, v{P+10}, v{P+11}')
    s(f'v_max3_f32 v{m0}, v{m0}, v{P+12}, v{P+13}\nv_max3_f32 v{m1}, v{m1}, v{P+14}, v{P+15}')
    s(f'v_max3_f32 v{m0}, v{m0}, v{n0}, v{n1}\nv_max_f32 v{m0}, v{m0}, v{m1}')
    for j in range(16): s(f'v_sub_f32 v{P+j}, v{P+j}, v{m0}')
    for j in range(16): s(f'v_exp_f32 v{P+j}, v{P+j}')
    s(f'v_add_f32 v{n0}, v{P}, v{P+1}\nv_add_f32 v{n1}, v{P+2}, v{P+3}\nv_add_f32 v{m0}, v{P+4}, v{P+5}\nv_add_f32 v{m1}, v{P+6}, v{P+7}')
    for j in range(8, 16): s(f'v_add_f32 v{t[j%4]}, v{t[j%4]}, v{P+j}')
    s(f'v_add_f32 v{m0}, v{m0}, v{m1}\nv_add_f32 v{n0}, v{n0}, v{n1}\nv_add_f32 v{n0}, v{n0}, v{m0}')
    s(f'v_rcp_f32 v{n0}, v{n0}')
    s(f'v_mul_f32 v{n0}, v{n0}, v{rs}')
    for j in range(0, 16, 2):
        s(f'v_mul_f32 v{P+j}, v{P+j}, v{n0}\nv_mul_f32 v{P+j+1}, v{P+j+1}, v{n0}')
        if j >= 2: s(f'v_cvt_pk_bf16_f32 v{out+j//2-1}, v{P+j-2}, v{P+j-1}')
    s(f'v_cvt_pk_bf16_f32 v{out+7}, v{P+14}, v{P+15}')

def softmax_q(s, P, out, t):
    m0, m1, n0, n1 = t
    s(f'v_max3_f32 v{m0}, v{P}, v{P+1}, v{P+2}\nv_max3_f32 v{m1}, v{P+8}, v{P+9}, v{P+10}')
    s(f'v_max3_f32 v{n0}, v{P+3}, v{P+4}, v{P+5}\nv_max3_f32 v{n1}, v{P+11}, v{P+12}, v{P+13}')
    s(f'v_max3_f32 v{m0}, v{m0}, v{P+6}, v{P+7}\nv_max3_f32 v{m1}, v{m1}, v{P+14}, v{P+15}')
    s(f'v_max_f32 v{m0}, v{m0}, v{n0}\nv_max_f32 v{m1}, v{m1}, v{n1}')
    s(f'v_permlane32_swap_b32 v{m0}, v{m1}')
    s(f'v_max_f32 v{m0}, v{m0}, v{m1}')
    s(f'v_mov_b32 v{m1}, v{m0}')
    s(f'v_permlane32_swap_b32 v{m0}, v{m1}')
    for j in range(16): s(f'v_sub_f32 v{P+j}, v{P+j}, v{m0 if j < 8 else m1}')
    for j in range(16):
        s(f'v_exp_f32 v{P+j}, v{P+j}')
        if j >= 3 and j % 2 == 1: s(f'v_cvt_pk_bf16_f32 v{out+(j-3)//2}, v{P+j-3}, v{P+j-2}')
    s(f'v_cvt_pk_bf16_f32 v{out+7}, v{P+14}, v{P+15}')

def w1touch(s, X, part):
    s(f's_and_b32 s6, s{sRB}, 7\ns_lshl_b32 s6, s6, 6\nv_add_u32 v8, s6, v1')
    s('v_mul_u32_u24 v9, 0xe00, v8')
    d = 253 if part != 2 else 243
    if X:
        s('v_mul_u32_u24 v8, 0xc00, v8')
        s(f's_lshl_b32 s6, s{sJ}, 7\n' + (f's_add_u32 s7, s{sW4}, 1\ns_cmp_eq_u32 s{sW4}, 2\ns_cselect_b32 s7, 0, s7' if cfg.kvq else f's_xor_b32 s7, s{sW4}, 1\ns_cmp_eq_u32 s{sW4}, 2\ns_cselect_b32 s7, 2, s7') + f'\ns_lshl_b32 s7, s7, 10\ns_add_u32 s6, s6, s7\ns_lshl_b32 s7, s5, 1')
        s(f's_cmp_eq_u32 s{sW4}, 3\ns_cselect_b32 s6, 0x200000, s6\ns_cselect_b32 s7, s7, 0x200000')
        if part == 1: s(f's_cmp_ge_u32 s{sW4}, 2\ns_cselect_b32 s6, 0x200000, s6\ns_mov_b32 s7, 0x200000')
        if part == 2: s(f's_cmp_lt_u32 s{sW4}, 2\ns_cselect_b32 s6, 0x200000, s6')
        s(f'buffer_load_dword v{d}, v8, {srd(SQKV)}, s6 offen')
        if part != 1: s(f'buffer_load_dword v{d+1}, v9, {srd(SG)}, s7 offen\nbuffer_load_dword v{d+2}, v9, {srd(SU)}, s7 offen')
    else:
        s(f's_cmp_eq_u32 s{sW4}, 1\ns_cselect_b32 s6, s4, s3\ns_cmp_eq_u32 s{sW4}, 2\ns_cselect_b32 s6, s5, s6\ns_lshl_b32 s6, s6, 1')
        s(f's_cmp_eq_u32 s{sW4}, 3\ns_cselect_b32 s6, 0x200000, s6')
        if part == 1: s(f's_cmp_ge_u32 s{sW4}, 1\ns_cselect_b32 s6, 0x200000, s6')
        if part == 2: s(f's_cmp_lt_u32 s{sW4}, 1\ns_cselect_b32 s6, 0x200000, s6')
        s(f'buffer_load_dword v{d}, v9, {srd(SG)}, s6 offen\nbuffer_load_dword v{d+1}, v9, {srd(SU)}, s6 offen')

def malltouch(s):
    s(f's_mul_i32 s6, s2, 6144\ns_mul_i32 s7, s2, 7168\nv_lshlrev_b32 v8, 7, v1\nv_min_u32 v9, 6016, v8\nv_min_u32 v8, 7040, v8')
    s(f's_cmp_eq_u32 s{sW}, 4\ns_cselect_b32 s6, s6, 0x200000\nbuffer_load_dword v236, v9, {srd(SQKV)}, s6 offen')
    s(f's_cmp_eq_u32 s{sW}, 5\ns_cselect_b32 s6, s7, 0x200000\nbuffer_load_dword v237, v8, {srd(SG)}, s6 offen')
    s(f's_cmp_eq_u32 s{sW}, 6\ns_cselect_b32 s6, s7, 0x200000\nbuffer_load_dword v242, v8, {srd(SU)}, s6 offen')

def w2touch(s):
    if cfg.w2t == 1:
        s(f's_mul_i32 s6, s2, 7168\ns_lshl_b32 s7, s2, 11\ns_cmp_eq_u32 s{sW}, 7\ns_cselect_b32 s6, s6, 0x200000\ns_cselect_b32 s7, s7, 0x200000')
        s('v_lshlrev_b32 v8, 7, v1\nv_min_u32 v9, 1920, v8\nv_min_u32 v8, 7040, v8')
        s(f'buffer_load_dword v246, v8, {srd(SD)}, s6 offen\nbuffer_load_dword v247, v9, {srd(SO)}, s7 offen')
    if cfg.w2t == 2:
        s(f's_lshr_b32 s6, s2, 3\ns_lshl_b32 s6, s6, 2\ns_add_u32 s75, s6, s{sW4}')
        if cfg.mx512:
            s(f'v_lshrrev_b32 v8, 2, v1\nv_and_b32 v9, 3, v1\nv_lshlrev_b32 v9, 7, v9\nv_lshl_add_u32 v8, v8, 10, v9\ns_and_b32 s7, s{sNB}, 4\ns_lshl_b32 s7, s7, 7\nv_add_u32 v8, s7, v8')
            s(f's_mul_i32 s6, s75, {14*1024}\nbuffer_load_dword v246, v8, {srd(SD)}, s6 offen')
            s(f's_lshr_b32 s6, s75, 2\ns_lshl_b32 s6, s6, 1\ns_and_b32 s7, s{sW}, 1\ns_add_u32 s6, s6, s7\ns_lshl_b32 s6, s6, 13\ns_cmp_ge_u32 s{sW}, 6\ns_cselect_b32 s6, s6, 0x200000')
            s(f'v_min_u32 v9, {8*1024-128}, v8\nbuffer_load_dword v247, v9, {srd(SO)}, s6 offen')

def l2touch():
    r = []
    p = S(); p(f's_lshr_b32 s6, s2, 3\ns_lshl_b32 s6, s6, 2\ns_add_u32 s55, s6, s{sW4}\nv_lshlrev_b32 v19, 7, v1\ns_mul_i32 s6, s55, 14336')
    p(f'buffer_load_dword v244, v19, {srd(SD)}, s6 offen'); r.append(p.l)
    p = S(); p(f'v_min_u32 v19, 6016, v19\ns_mul_i32 s6, s55, 14336\ns_add_u32 s6, s6, 8192\nbuffer_load_dword v245, v19, {srd(SD)}, s6 offen'); r.append(p.l)
    p = S(); p(f'v_lshlrev_b32 v19, 7, v1\ns_lshr_b32 s6, s55, 2\ns_lshl_b32 s6, s6, 1\ns_and_b32 s7, s{sW}, 1\ns_add_u32 s6, s6, s7\ns_lshl_b32 s6, s6, 13\ns_cmp_ge_u32 s{sW}, 6\ns_cselect_b32 s6, s6, 0x200000')
    p(f'buffer_load_dword v243, v19, {srd(SO)}, s6 offen'); r.append(p.l)
    return r

def recode(tag):
    p = S()
    p('s_getpc_b64 s[54:55]')
    p(f'L_rc{tag}:')
    p(f's_sub_u32 s54, s54, L_rc{tag}-L_pc\ns_subb_u32 s55, s55, 0')
    p(f's_lshr_b32 s6, s2, 3\ns_and_b32 s6, s6, 7\ns_lshl_b32 s6, s6, 2\ns_add_u32 s6, s6, s{sW4}\ns_lshl_b32 s6, s6, 11')
    p('v_and_b32 v19, 15, v1\nv_lshl_add_u32 v19, v19, 7, s6\nv_min_u32 v19, L_end-L_pc, v19')
    p('global_load_dword v242, v19, s[54:55]')
    return [p.l]

def w2l2(d0, d1, t0, t1):
    p = S()
    p(f's_and_b32 s6, s{sSB}, 7\ns_lshl_b32 s7, s6, 5\nv_min_u32 v{t0}, 31, v1\nv_add_u32 v{t0}, s7, v{t0}\nv_lshlrev_b32 v{t0}, 10, v{t0}')
    p(f'buffer_load_dword v{d0}, v{t0}, {srd(SWH)}, s{sWB} offen')
    q = S()
    q(f'v_min_u32 v{t0}, 23, v1\nv_lshrrev_b32 v{t1}, 3, v{t0}\nv_and_b32 v{t0}, 7, v{t0}\nv_lshlrev_b32 v{t1}, 6, v{t1}\nv_and_b32 v{d1}, 128, v{t1}\nv_lshrrev_b32 v{d1}, 1, v{d1}\nv_add3_u32 v{t0}, v{t0}, v{t1}, v{d1}')
    q(f's_and_b32 s6, s{sSB}, 7\ns_lshl_b32 s6, s6, 3\ns_mul_i32 s7, s{sW4}, 320\ns_add_u32 s6, s6, s7\ns_add_u32 s6, s6, {32*16 + 64}\ns_lshl_b32 s6, s6, 10\ns_lshl_b32 s7, s{sNB}, 7\ns_add_u32 s6, s6, s7\nv_lshlrev_b32 v{t0}, 10, v{t0}')
    q(f'buffer_load_dword v{d1}, v{t0}, {srd(SD)}, s6 offen')
    return [p.l, q.l]

def helper_head(s, X, wop, isq):
    global XTOK
    if cfg.hx and cfg.hx != 2: XTOK = emit(s, xpieces()[16:])
    if cfg.mt: malltouch(s)
    if cfg.tp in (1, 2, 4): w1touch(s, X, 0 if cfg.tp == 1 else 1)
    if cfg.hx == 2: XTOK = emit(s, xpieces()[16:])
    if X:
        s(f's_cmp_lg_u32 s2, 0\ns_cbranch_scc1 L_np\ns_cmp_lg_u32 s{sW}, 4\ns_cbranch_scc1 L_np')
        s('s_memrealtime s[76:77]\ns_waitcnt lgkmcnt(0)\ns_or_b32 s76, s76, 1')
        s('v_mov_b32 v4, s76\nv_mov_b32 v6, 0\ns_mov_b64 exec, 1')
        s(f'buffer_store_dword v4, v6, {srd(SDBG)}, 0 offen sc1', tag='raw')
        s('s_mov_b64 exec, -1')
        s('L_np:')
    s(f's_setprio {cfg.prioH}')
    if not X: s(f'v_lshrrev_b32 v4, 2, v1\nv_lshrrev_b32 v5, 4, v1\nv_and_b32 v5, 2, v5\nv_xor_b32 v5, v1, v5\nv_and_b32 v5, 3, v5\nv_lshlrev_b32 v5, 4, v5\nv_mul_u32_u24 v{vOM}, 0xe00, v4\nv_add_u32 v{vOM}, v{vOM}, v5')
    line_voff(s, 4, 5)
    s(f'v_mul_u32_u24 v{vOQ}, 0xc00, v4\nv_add_u32 v{vOQ}, v{vOQ}, v5')
    s(f'v_mul_u32_u24 v{vOG}, 0xe00, v4\nv_add_u32 v{vOG}, v{vOG}, v5')
    s(f'v_lshl_add_u32 v{vW2}, v4, 10, v5')
    s(f'v_xor_b32 v5, 32, v5\nv_mul_u32_u24 v{vOQ2}, 0xc00, v4\nv_add_u32 v{vOQ2}, v{vOQ2}, v5\nv_mul_u32_u24 v{vOG2}, 0xe00, v4\nv_add_u32 v{vOG2}, v{vOG2}, v5')
    s(f's_lshl_b32 s{sL4}, s{sW4}, 12\ns_lshl_b32 s{sL2}, s{sW4}, 13')
    s(f's_mul_i32 s6, s{sW4}, {32*3584}\ns_lshl_b32 s7, s5, 1\ns_add_u32 s{sC0}, s6, s7')
    if X: s(f's_mul_i32 s6, s{sW4}, {64*3072}\ns_lshl_b32 s7, s{sJ}, 7\ns_add_u32 s{sM0}, s6, s7')
    else:
        s(f's_lshl_b32 s7, s3, 1\ns_add_u32 s{sA0}, s6, s7')
        s(f's_mul_i32 s6, s{sW4}, {64*3584}\ns_lshl_b32 s7, s4, 1\ns_add_u32 s{sM0}, s6, s7')
    s(f's_lshl_b32 s{sLBc}, s{sW4}, 11\ns_lshl_b32 s6, s{sW4}, 14\ns_lshl_b32 s7, s{sNB}, 7\ns_add_u32 s{sWBc}, s6, s7')
    s(f's_lshl_b32 s{sHEAD}, s{sJ}, 2\ns_add_u32 s{sHEAD}, s{sHEAD}, s{sW4}')
    s(f's_lshl_b32 s{sKV}, s{sHEAD}, 12\ns_add_u32 s{sKV}, s{sKV}, {KV_OFF}')
    s(f's_cmp_lt_u32 s{sW}, 6\ns_cselect_b32 s{SO}, s{SD}, s{SO}\ns_cselect_b32 s{SO+1}, s{SD+1}, s{SO+1}\ns_cselect_b32 s{SO+2}, s{SD+2}, s{SO+2}')
    s('v_lshrrev_b32 v4, 5, v1\nv_lshlrev_b32 v7, 8, v4')
    if isq: s('v_and_b32 v6, 15, v1\nv_lshl_add_u32 v36, v6, 1, v7')
    else: s('v_bfe_u32 v6, v1, 3, 2\nv_and_b32 v36, 3, v1\nv_lshl_add_u32 v6, v6, 2, v36\nv_lshl_add_u32 v36, v6, 1, v7')
    s(f's_lshl_b32 s{sT2}, s{sHEAD}, 9')
    return

def helper_start(s, X, wop, isq):
    stamp(s, 0)
    def ush():
        for i in range(8): s(f'buffer_load_ushort v{200+i}, v36, {srd(SPHI)}, s{sT2} offen offset:{i*32}')
    if cfg.xl2:
        if cfg.w2e == 2: w2touch(s)
        s('s_barrier', needs=[XTOK])
        stamp(s, 1)
        tok = {0: emit(s, dma_stage(0, X)), 1: emit(s, dma_stage(1, X))}
        if cfg.w2e == 1: w2touch(s)
        if cfg.pgw:
            s(f's_cmp_eq_u32 s{sW}, 6\ns_cselect_b32 s6, 0, 0x7ff00000\nv_min_u32 v8, 6, v1\nv_lshlrev_b32 v8, 21, v8\nv_min_u32 v8, {WS_BYTES - 128}, v8\nv_min_u32 v9, 1, v1\nv_mul_u32_u24 v9, 0x1fff80, v9')
            s(f'buffer_load_dword v37, v8, {srd(SWS)}, s6 offen\nbuffer_load_dword v38, v9, {srd(SOUT)}, s6 offen')
        s(f'v_mov_b32 v17, 0\nbuffer_load_dword v16, v17, {srd(SDBG)}, 0 offen sc1')
        if cfg.o2 == 0: tok[2] = emit(s, dma_stage(2, X))
        s('s_barrier')
        if cfg.o2 == 1: tok[2] = emit(s, dma_stage(2, X))
        s('s_barrier', needs=[tok[0]])
        if cfg.o2 == 2: tok[2] = emit(s, dma_stage(2, X))
        ush()
        if cfg.tp in (2, 4): w1touch(s, X, 2)
        if cfg.w2e == 0: w2touch(s)
        return tok
    if not cfg.hx: s('s_barrier')
    if cfg.hx and cfg.hb1 == 2: s('s_barrier', needs=[XTOK])
    tok = {0: emit(s, dma_stage(0, X))}
    if cfg.hx and cfg.hb1 == 1: s('s_barrier', needs=[XTOK])
    if cfg.tp in (0, 2): w1touch(s, X, 2 if cfg.tp == 2 else 0)
    if cfg.w2at == 0: w2touch(s)
    if cfg.hx and not cfg.hb1: s('s_barrier', needs=[XTOK])
    stamp(s, 1)
    s('s_barrier')
    s(f'v_mov_b32 v17, 0\nbuffer_load_dword v16, v17, {srd(SDBG)}, 0 offen sc1')
    if cfg.pro == 0: tok[1] = emit(s, dma_stage(1, X))
    s('s_barrier', needs=[tok[0]])
    if cfg.pro != 0: tok[1] = emit(s, dma_stage(1, X))
    tok[2] = emit(s, dma_stage(2, X))
    ush()
    if cfg.tp == 4: w1touch(s, X, 2)
    if cfg.w2at == 1: w2touch(s)
    return tok

def nonce_and_wphi(w, lab, wop, bit):
    w(f'v_cmp_eq_u32 vcc, 0, v16\ns_cbranch_vccz {lab}_x')
    w('s_mov_b32 s75, 0')
    w(f'{lab}:')
    w(f'buffer_load_dword v16, v17, {srd(SDBG)}, 0 offen sc1\ns_waitcnt vmcnt(0)', tag='raw')
    w(f's_add_u32 s75, s75, 1\ns_cmp_gt_u32 s75, {SPIN}\ns_cbranch_scc1 {lab}_x')
    w(f'v_cmp_eq_u32 vcc, 0, v16\ns_cbranch_vccnz {lab}')
    w(f'{lab}_x:')
    w(f'v_readfirstlane_b32 s{sNON}, v16\nv_readfirstlane_b32 s{sNON+1}, v16')
    w(f'v_bfe_u32 v6, v1, {bit}, 1\nv_mul_u32_u24 v6, 0x8000, v6\nv_lshl_or_b32 v6, v6, 16, v6')
    for r in range(4):
        w(f'v_lshl_or_b32 v{wop+r}, v{200+2*r+1}, 16, v{200+2*r}\nv_xor_b32 v{wop+r}, v6, v{wop+r}')

def cost(i):
    if i.op in ('v_exp_f32', 'v_rcp_f32') or i.op.startswith('v_permlane'): return 11
    if i.kind == 'mfma': return 36
    if i.kind in ('vm', 'vmst'): return 14
    if i.op in ('v_max3_f32', 'v_fma_f32', 'v_lshl_add_u32', 'v_lshl_or_b32'): return 8.3
    return 5.6

def pack(s, X, work, bars, tok, extra, need10, quiet, frac, late_hi, w1at=None, first=(), tneed={}, pinned={}):
    flat = [(m, w.l) for m, w in work]
    qi = 0; qpos = 0; inloop = False; where = {}
    pieces = []; lgfree = False
    for bi, st in enumerate(bars):
        whole = st == int(st)
        if not lgfree: s('s_waitcnt lgkmcnt(0)')
        lgfree = False
        nd = [tok[t] for t in tneed.get(st, [st] if whole and st <= 9 else [])] + (need10 if st == 10 else [])
        dbg = cfg.hdbg and whole and cfg.hb + 1 <= st <= cfg.hb + 6
        if dbg: stamp(s, 2*(st-cfg.hb-1), True); s('s_nop 0', needs=nd)
        s('s_barrier', needs=nd)
        if dbg: stamp(s, 2*(st-cfg.hb-1)+1, True)
        for tgt in range(3, 10):
            if (w1at or {}).get(tgt, tgt - 2) == st:
                p = dma_stage(tgt, X); tok[tgt] = p[-1][-1]
                if st in first: emit(s, p)
                else: pieces += p
        pieces += extra.get(st, [])
        last = bi + 1 == len(bars)
        BUD = 1e9 if last else cfg.bud * frac.get(st, 1.0)
        hold = []
        if quiet.get(st) == 'all': hold = pieces; pieces = []
        q = quiet.get(st, 0) if quiet.get(st) != 'all' else 0
        if st in pinned: s.l.extend(pinned[st].l)
        used = 0; inexec = False; since = 99 if not inloop and not (qi < len(flat) and qpos == 0 and flat[qi][1][0].op in ('s_waitcnt', 's_memrealtime', 's_memtime')) else 0
        inloop = False
        while qi < len(flat) and flat[qi][0] <= st:
            ins = flat[qi][1][qpos]
            free = not inexec and not inloop and ins.op not in ('s_addc_u32', 's_subb_u32', 's_cselect_b32') and not ins.op.startswith('s_cbranch') and ins.kind != 'vmlds' and ('s', sT) not in ins.wr
            if pieces and free and ((since >= 6 and used >= q) or ins.tag == 'flush'):
                s.l.extend(pieces.pop(0)); used += 20; since = 0
                continue
            if used + 20*len(pieces) >= BUD and free and ins.tag != 'glue': break
            s.l.append(ins); used += cost(ins); since += 1
            where[id(ins)] = st
            if ('s', 'exec') in ins.wr: inexec = '-1' not in ins.text
            if ins.op.startswith('s_cbranch') and ins.text.split()[1].endswith('_x'): inloop = True
            if ins.kind == 'label' and ins.op.endswith('_x:'): inloop = False
            if ins.op.startswith('s_load') or ins.op.startswith('s_cmp') or ins.op in ('s_xor_b64', 's_or_b64'): inloop = True
            qpos += 1
            if qpos == len(flat[qi][1]): qi += 1; qpos = 0
        for p in pieces: s.l.extend(p)
        pieces = hold
        if whole and qi < len(flat) and qpos == 0 and flat[qi][0] == st + 0.5 and (st + 0.5) not in bars:
            s.l.extend(flat[qi][1]); qi += 1; lgfree = True
    assert qi == len(flat)
    l = []; hi = False
    bidx = [k for k, i in enumerate(s.l) if i.op == 's_barrier']
    for k, i in enumerate(s.l):
        want = i.kind == 'mfma' or (k > bidx[late_hi] and i.kind in ('vm', 'vmst'))
        if i.kind in ('mfma', 'valu', 'vm', 'vmst', 'vmlds', 'ds') and want != hi and i.tag != 'raw':
            l.append(I(f's_setprio {3 if want else cfg.prioH}')); hi = want
        l.append(i)
    s.l = l
    return where

def helperX():
    s = S(); X = True
    WK, RS, KF, KVA = 8, 20, 24, 40
    PT = 136; ID = 224; TT = 200; FR = 136
    vB1, vB2, vRD, vKVA, vL16h, vST = 232, 233, 234, 235, 238, 239
    helper_head(s, X, WK, False)
    s(f'v_lshlrev_b32 v{vL16h}, 4, v1\ns_lshl_b32 s6, s{sW4}, 12\ns_add_u32 s6, s6, {KB}\nv_lshlrev_b32 v5, 3, v1\nv_add_u32 v{vRD}, s6, v5')
    s('v_bfe_u32 v5, v1, 2, 2\nv_lshl_add_u32 v5, v4, 2, v5')
    s('v_and_b32 v7, 3, v1\nv_xor_b32 v7, v7, v4\nv_lshlrev_b32 v7, 3, v7\nv_lshl_add_u32 v7, v5, 5, v7\nv_add_u32 v7, s6, v7')
    s(f'v_lshlrev_b32 v6, 3, v5\nv_add_u32 v6, {STDB}, v6')
    s(f'v_bfe_u32 v5, v1, 4, 1\nv_cmp_eq_u32 vcc, 1, v5\nv_cndmask_b32 v{vB1}, v7, v6, vcc')
    s(f'v_xor_b32 v7, 16, v7\nv_add_u32 v7, 256, v7\nv_add_u32 v6, 64, v6\nv_cndmask_b32 v{vB2}, v7, v6, vcc')
    s(f'v_mov_b32 v6, 512\nv_mov_b32 v7, 128\nv_cndmask_b32 v{vST}, v6, v7, vcc')
    s(f'v_and_b32 v5, 31, v1\nv_min_u32 v5, 16, v5\nv_lshl_add_u32 v5, v4, 5, v5\nv_lshlrev_b32 v{vKVA}, 2, v5')
    s('v_and_b32 v5, 1, v1\nv_lshlrev_b32 v5, 4, v5\nv_mov_b32 v6, 0x3f80\nv_lshlrev_b32 v6, v5, v6')
    s('v_bfe_u32 v5, v1, 4, 1\nv_cmp_eq_u32 vcc, v5, v4\nv_cndmask_b32 v6, 0, v6, vcc\nv_bfe_u32 v5, v1, 1, 3')
    for r in range(8): s(f'v_cmp_eq_u32 vcc, {r}, v5\nv_cndmask_b32 v{ID+r}, 0, v6, vcc')
    s(f's_lshl_b32 s{sLBx}, s{sW4}, 12\ns_lshl_b32 s6, s{sW4}, 1\ns_and_b32 s7, s{sW4}, 2\ns_lshl_b32 s7, s7, 2\ns_add_u32 s6, s6, s7\ns_lshl_b32 s6, s6, 14\ns_lshl_b32 s7, s{sNB}, 7\ns_add_u32 s{sWBx}, s6, s7')
    tok = helper_start(s, X, WK, False)
    work = []
    def seg(minb):
        w = S(); work.append((minb, w)); return w
    w = seg(1)
    w(f'v_and_b32 v5, 31, v1\nv_lshlrev_b32 v5, 2, v5\nv_add_u32 v5, {RSB}, v5')
    for rt in range(4): w(f'ds_read_b32 v{RS+rt}, v5 offset:{rt*128}')
    nonce_and_wphi(w, 'L_nonX', WK, 2)
    w(f's_lshl_b32 s6, s{sHEAD}, 7\ns_add_u32 s6, s6, {FKV+64}\nv_mov_b32 v17, s6')
    sbase(w, 6)
    w(f's_lshl_b32 s7, s{sRB}, 2\ns_sub_u32 s6, s6, 64\ns_add_u32 s6, s6, s7\nv_mov_b32 v18, s6')
    w(f's_cmp_lg_u32 s{sRB}, 0\ns_cbranch_scc1 L_zero_x')
    for r in range(4): w(f'v_mov_b32 v{FR+r}, 0')
    for q in range(4): w(f'buffer_store_dwordx4 {vr(FR,4)}, v{vL16h}, {srd(SWS)}, s{sKV} offen offset:{q*1024} sc1', tag='raw')
    w('s_waitcnt vmcnt(0)', tag='raw')
    w('s_mov_b64 exec, 1')
    w(f'buffer_store_dword v16, v17, {srd(SWS)}, 0 offen sc1', tag='raw')
    w('s_mov_b64 exec, -1')
    w('L_zero_x:')
    w = seg(2.5)
    for rt in range(4):
        w(f'ds_read_b64 {vr(KF+4*rt,2)}, v{vRD} offset:{rt*1024}\nds_read_b64 {vr(KF+4*rt+2,2)}, v{vRD} offset:{rt*1024+512}')
    for rt in range(4): w(f'{MF} {vr(PT+16*rt,16)}, {vr(WK,4)}, {vr(KF+4*rt,4)}, 0')
    T4 = (4, 5, 6, 7)
    PH = [56, 64, 24, 32]; TP = [216, 56, 64, 24]
    tr_mm = lambda rt: [[I(f'{MF} {vr(TT,16)}, {vr(PH[rt],4)}, {vr(ID,4)}, 0')], [I(f'{MF} {vr(TT,16)}, {vr(PH[rt]+4,4)}, {vr(ID+4,4)}, {vr(TT,16)}')]]
    tr_cv = lambda rt: [I(f'v_cvt_pk_bf16_f32 v{TP[rt]+j}, v{TT+2*j}, v{TT+2*j+1}') for j in range(8)]
    softmax_k(w, PT, RS, PH[0], T4)
    for rt in range(1, 4):
        m = S(); softmax_k(m, PT + 16*rt, RS + rt, PH[rt], T4)
        merge(w, m, tr_mm(rt - 1) + [[], tr_cv(rt - 1)], 8)
    for x in tr_mm(3): w.l.extend(x)
    sload(w, 44, 1, False); scheck(w, 'L_pollz', 44, 1, False)
    w.l.extend(tr_cv(3))
    w = seg(4.5 if cfg.kvq else 6.5)
    for rt in range(4):
        for ks in range(2):
            f = FR + 8*rt + 4*ks
            lastv = w(f'ds_read_b64_tr_b16 {vr(f,2)}, v{vB1}\nds_read_b64_tr_b16 {vr(f+2,2)}, v{vB2}')
            if rt < 3 or ks < 1: w(f'v_add_u32 v{vB1}, v{vB1}, v{vST}\nv_add_u32 v{vB2}, v{vB2}, v{vST}')
        if rt == 2: w('s_waitcnt lgkmcnt(8)')
    for rt in range(4):
        for ks in range(2):
            w(f'{MF} {vr(KVA,16)}, {vr(TP[rt]+4*ks,4)}, {vr(FR+8*rt+4*ks,4)}, ' + ('0' if rt == 0 and ks == 0 else vr(KVA,16)))
    for i in w.l: i.tag = i.tag or 'glue'
    if cfg.kvq:
        for p in cwpiecesx(0):
            p[-1].needs = [lastv]; w.l.extend(p); tok['cw0'] = p[-1]
        w = seg(7.3)
    elif cfg.skip != 1: w = seg(7)
    if cfg.c0f:
        for p in cwpiecesx(0) + cwpiecesx(3, (1,)): w.l.extend(p); tok['cw0'] = p[-1]
    w('s_mov_b32 s76, 0x1ffff\ns_mov_b32 s77, 0x1ffff')
    w('s_mov_b64 exec, s[76:77]')
    for r in range(16): at = w(f'buffer_atomic_add_f32 v{KVA+r}, v{vKVA}, {srd(SWS)}, s{sKV} offen offset:{r*256}')
    w('s_mov_b64 exec, -1')
    if cfg.xcw and not cfg.c0f and not cfg.kvq:
        for p in cwpiecesx(0): w.l.extend(p); tok['cw0'] = p[-1]
    for i in w.l: i.tag = i.tag or 'glue'
    stamp(w, 2)
    w = seg(7.3 if cfg.kvq else cfg.pat if cfg.skip == 2 else 8)
    post(w, 16, 18, '0', [at])
    for i in w.l: i.tag = 'glue'
    stamp(w, 3)
    bars = [1, 2, 2.5, 3, 4, 5, 6, 6.5] + [[7, 8], [8], [7]][cfg.skip] + [9, 10]
    c9 = cwpieces2()
    extra = {1: cwpieces(1), 3: cwpieces(2), 8: cwpieces(0) + cwpieces(3), 9: c9}
    if cfg.xcw: extra = {1: cwpiecesx(1), 3: cwpiecesx(2), 5: cwpiecesx(3, (0,)), 8: cwpiecesx(3, (1,)), 9: c9}
    if cfg.lateW: extra[cfg.lateW] = extra.get(cfg.lateW, []) + extra.pop(1)
    tok['cw'] = extra[8][-1][-1]
    if cfg.wl2: extra[cfg.wl2] = extra.get(cfg.wl2, []) + w2l2(242, 243, 244, 245)
    if cfg.kvq:
        extra[7] = extra.pop(8)
        where = pack(s, X, work, [1] + ([] if cfg.s2x else [2]) + [2.5, 3, 4, 4.5, 5, 6, 7, 7.3, 9, 10], tok, extra, [c9[-1][-1]], {2: 'all', 4: 'all'},
                     {2.5: cfg.f25, 3: cfg.fk, 4: 0.55*cfg.fk, 4.5: 0.45*cfg.fk, 5: cfg.fk, 6: cfg.fk, 7: 0.3, 7.3: 2}, -3, {4: 2.5} if cfg.s2x else None, (7,), {1: [1, 2] if cfg.s2x else [1], 7.3: [8, 'cw', 'cw0'] if cfg.p8 else [8], 9: [9, 'cw', 'cw0']})
    elif cfg.skip == 2:
        extra[7] = extra.pop(8)
        if cfg.c0f: del extra[7]; tok['cw'] = tok['cw0']
        where = pack(s, X, work, bars, tok, extra, [c9[-1][-1]], {2: 'all', 4: cfg.quiet, 7: cfg.q7, 9: cfg.q9},
                     {2.5: cfg.f25, 3: cfg.fk, 4: cfg.fk, 5: cfg.fk, 6: 0.45, 6.5: 0.4, 7: 2}, -3, None, (6, 7) if cfg.f8 else (6,), {7: [7, 8], 9: [9, 'cw', 'cw0']})
    elif cfg.skip:
        where = pack(s, X, work, bars, tok, extra, [c9[-1][-1]], {2: 'all', 4: cfg.quiet, 8: 30},
                     {2.5: cfg.f25, 3: cfg.fk, 4: cfg.fk, 5: cfg.fk, 6: 0.45}, -4, {8: 6.5, 9: 8, 4: cfg.s4}, (6.5, 8) if cfg.f8 else (6.5,), {6.5: [7], 9: [9, 'cw', 'cw0']})
    else:
        where = pack(s, X, work, bars, tok, extra, [c9[-1][-1]], {2: 'all', 4: cfg.quiet, 7: 100, 8: 30},
                     {2.5: cfg.f25, 3: cfg.fk, 4: cfg.fk, 5: cfg.fk, 6: 0.45, 6.5: 0.4}, -4, None, (6,), {9: [9, 'cw', 'cw0']})
    assert where[id(lastv)] < 7
    return s

def own_first(s, lab):
    pass

def helperY():
    s = S(); X = False
    WQ, QF, KVA = 8, 24, 40
    PT = 136; vKVA, vL16h, vSA = 235, 238, 240
    helper_head(s, X, WQ, True)
    s(f'v_lshlrev_b32 v{vL16h}, 4, v1')
    s(f'v_and_b32 v5, 31, v1\nv_min_u32 v5, 16, v5\nv_lshl_add_u32 v5, v4, 5, v5\nv_lshlrev_b32 v{vKVA}, 2, v5')
    s(f's_add_u32 s79, s{sLBc}, 65536')
    b_traddr(s, vSA, 79, 11)
    s(f'v_xor_b32 v{vSA+1}, 64, v{vSA}')
    tok = helper_start(s, X, WQ, True)
    work = []
    def seg(minb):
        w = S(); work.append((minb, w)); return w
    w = seg(3)
    nonce_and_wphi(w, 'L_nonY', WQ, 4)
    w(f's_lshl_b32 s6, s{sRB}, 3\ns_add_u32 s6, s6, s{sJ}\ns_lshl_b32 s{sQ}, s6, 14\ns_lshl_b32 s7, s{sW4}, 12\ns_add_u32 s{sQ}, s{sQ}, s7\ns_add_u32 s{sQ}, s{sQ}, {Q_OFF}')
    w(f's_lshl_b32 s6, s6, 7\ns_add_u32 s6, s6, {FQ}')
    sbase(w, 6)
    w(f's_lshl_b32 s6, s{sRB}, 5\ns_add_u32 s6, s6, s{sHEAD}\ns_lshl_b32 s6, s6, 2\ns_add_u32 s6, s6, {FO}\nv_mov_b32 v18, s6')
    w = seg(cfg.qat - 0.5)
    sload(w, 44, 4, False)
    w = seg(cfg.qat)
    stamp(w, 2)
    scheck(w, 'L_pollq', 44, 4, False)
    stamp(w, 3)
    for rt in range(4): w(f'buffer_load_dwordx4 {vr(QF+4*rt,4)}, v{vL16h}, {srd(SWS)}, s{sQ} offen offset:{rt*1024} sc1')
    w(f's_lshl_b32 s6, s{sHEAD}, 7\ns_add_u32 s6, s6, {FKV}')
    sbase(w, 6)
    w('s_mov_b32 s73, 0', tag='flush')
    for rt in range(4): w(f'{MF} {vr(PT+16*rt,16)}, {vr(WQ,4)}, {vr(QF+4*rt,4)}, 0')
    T4 = (4, 5, 6, 7)
    PQ = [56, 64, 200, 208]
    def kvloads(w):
        for r in range(16): w(f'buffer_load_dword v{KVA+r}, v{vKVA}, {srd(SWS)}, s{sKV} offen offset:{r*256} sc1', tag='raw')
    if cfg.kvq:
        for rt in range(4):
            if rt == cfg.kvr: sload(w, SP, 16, False)
            softmax_q(w, PT + 16*rt, PQ[rt], T4)
            if rt == cfg.kvr:
                stamp(w, 4); scheck(w, 'L_pollkv', SP, 16, False); kvloads(w); stamp(w, 5)
        w = seg(10)
    else:
        for rt in range(4): softmax_q(w, PT + 16*rt, PQ[rt], T4)
        w = seg(9.5)
        sload(w, SP, 16, False)
        w = seg(10)
        stamp(w, 4)
        scheck(w, 'L_pollkv', SP, 16, False)
        kvloads(w)
        stamp(w, 5)
    if cfg.yw == 2:
        emit(w, ownpieces(range(8, 16), sLB, O8)); w('s_waitcnt vmcnt(16) lgkmcnt(0)')
    else: w('s_waitcnt vmcnt(0) lgkmcnt(0)')
    w('v_and_b32 v4, 27, v1\nv_cmp_eq_u32 vcc, 17, v4\nv_mov_b32 v4, 0x3f803f80')
    for r in range(8): w(f'v_cvt_pk_bf16_f32 v{KVA+r}, v{KVA+2*r}, v{KVA+2*r+1}')
    for r in range(8): w(f'v_cndmask_b32 v{KVA+r}, v{KVA+r}, v4, vcc')
    OT = [136, 168, 24, 216]; ON = [152, 184, 48 - 0, 232]
    ON[2] = 0
    w(f'v_mov_b32 v3, v{vL16h}\nv_mov_b32 v248, v16\nv_mov_b32 v249, v18')
    ON = [152, 184, 8, 232]
    for rt in range(4):
        w(f'{MF} {vr(OT[rt],16)}, {vr(KVA,4)}, {vr(PQ[rt],4)}, 0')
        w(f'{MF} {vr(ON[rt],16)}, {vr(KVA+4,4)}, {vr(PQ[rt]+4,4)}, 0')
    w(f's_lshl_b32 s6, s{sRB}, 2\ns_mul_i32 s6, s6, 144\ns_add_u32 s6, s6, s{sHEAD}\ns_add_u32 s6, s6, 112\ns_lshl_b32 s79, s6, 10')
    w('v_mov_b32 v4, 0x358637bd')
    for rt in range(4):
        o = OT[rt]; n = ON[rt]
        w(f'v_rcp_f32 v{o+9}, v{o+9}\nv_rcp_f32 v{n+9}, v{n+9}')
        w(f'v_fma_f32 v{o+8}, v{o+8}, v{o+9}, v4\nv_fma_f32 v{o+8}, v{n+8}, v{n+9}, v{o+8}\nv_rcp_f32 v{o+8}, v{o+8}')
        w(f'v_mul_f32 v{o+9}, v{o+9}, v{o+8}\nv_mul_f32 v{n+9}, v{n+9}, v{o+8}')
        for j in range(8): w(f'v_mul_f32 v{o+j}, v{o+j}, v{o+9}')
        for j in range(8): w(f'v_fma_f32 v{o+j}, v{n+j}, v{n+9}, v{o+j}')
        for j in range(0, 8, 2): w(f'v_cvt_pk_bf16_f32 v{o+12+j//2}, v{o+j}, v{o+j+1}')
        ost = w(f'buffer_store_dwordx4 {vr(o+12,4)}, v3, {srd(SWS)}, s79 offen sc1')
        if rt < 3: w(f's_add_u32 s79, s79, {144*1024}')
    stamp(w, 6)
    post(w, 248, 249, '0', [ost])
    stamp(w, 7)
    c2 = cwpieces2()
    oa, ob = stg_offs([0, 1]), stg_offs([2, 3])
    ga, gb = ownpieces(range(4), sLBc, oa), ownpieces(range(4, 8), sLBc, ob)
    ra, rb_ = stg_reads(range(4), oa, vSA, ga[-1][-1]), stg_reads(range(4, 8), ob, vSA, gb[-1][-1])
    extra = {1: ga, 4: gb + cwpieces(0), 5: cwpieces(1), 6: cwpieces(2), 7: cwpieces(3), 9: c2}
    pin = {3: ra, 6: rb_}
    if cfg.lateW:
        extra = {4: ga + gb[:4], 5: gb[4:], 6: cwpieces(0) + cwpieces(1), 7: cwpieces(2) + cwpieces(3), 9: c2}
        pin = {6: ra, 7: rb_}
    if cfg.l2t:
        t = l2touch(); extra[5] += t[:2]; extra[6] += t[2:]
    tok['cw'] = [p for p in extra[7]][-1][-1]
    if cfg.wl2: extra[cfg.wl2y] = extra.get(cfg.wl2y, []) + w2l2(242, 243, 244, 245)
    if cfg.rc: extra[cfg.rc] = extra.get(cfg.rc, []) + recode('a')
    if cfg.w2r:
        p = S()
        p(f's_and_b32 s6, s2, 127\ns_lshl_b32 s6, s6, 1\ns_and_b32 s7, s{sW}, 1\ns_add_u32 s75, s6, s7\ns_mul_i32 s6, s75, 7168\ns_lshl_b32 s7, s75, 11\ns_cmp_ge_u32 s{sW}, 6\ns_cselect_b32 s6, s6, 0x200000\ns_cselect_b32 s7, s7, 0x200000')
        p('v_lshlrev_b32 v19, 7, v1\nv_min_u32 v20, 1920, v19\nv_min_u32 v19, 7040, v19')
        p(f'buffer_load_dword v242, v19, {srd(SD)}, s6 offen\nbuffer_load_dword v21, v20, {srd(SO)}, s7 offen')
        extra[cfg.w2r] = extra.get(cfg.w2r, []) + [p.l]
    if cfg.skipy:
        pack(s, X, work, [1, 2, 3, 4, 5, 6, 7, 9, 10], tok, extra, [c2[-1][-1]], {}, {7: cfg.f7 + 1, 9: cfg.f9}, -3, None, (6,), {7: [7, 8], 9: [9, 'cw']}, pin)
    else:
        extra[8] = extra.pop(9)
        pack(s, X, work, [1, 2.4 if cfg.s2y else 2] + list(range(3, 11)), tok, extra, [c2[-1][-1]], {}, {7: cfg.f7, 8: 0.9, 9: cfg.f9}, -3, {4: 2.4} if cfg.s2y else None, (), {1: [1, 2] if cfg.s2y else [1], 8: [8, 'cw'] if cfg.p8 else [8], 9: [9, 'cw']}, pin)
    s('s_branch L_BHY')
    return s

BACC = [8, 24, 40, 56]; BW = 232; vBX = 248
def red_write(s, acc, t):
    s(f'v_and_b32 v4, 31, v1\nv_lshrrev_b32 v5, 5, v1\nv_and_b32 v6, 7, v1\nv_xor_b32 v6, v5, v6\nv_lshlrev_b32 v6, 4, v6\nv_lshl_add_u32 v6, v4, 8, v6\nv_add_u32 v{t}, s{sLB}, v6')
    for k in range(1, 4): s(f'v_xor_b32 v{t+k}, {k<<5}, v{t}')
    for nt in range(2):
        for st in range(2):
            for q in range(4):
                if q == 3 and nt == 1 and st == 1: s('s_waitcnt lgkmcnt(8)')
                s(f'ds_write_b128 v{t+q}, {vr(acc[2*nt+st]+4*q,4)} offset:{st*8192 + nt*128}')
    s('s_waitcnt vmcnt(0)')

def phaseB_body(kind):
    s = S(); lab = f'L_B{kind}'
    C = kind == 'C'; n = 20 if C else 16
    order = CORDER if C else list(range(16))
    if C:
        acc = [160, 176, 192, 208]; bw = 224; vl, v16, vd, vtr, vxo, wr, vtr2 = 240, 242, 243, 244, 245, 96, 246
        hreg = lambda i: 8*i if i < 12 else 8*(i - 12)
        if cfg.cpre:
            wr = 0; hreg = lambda i: 64 + 8*i if i < 12 else 8*(i - 12)
    else:
        acc = BACC; bw = BW; vl, v16, vd, vtr, vxo, wr, vtr2 = 1, 3, vW2, 6, 7, WRB, 5
        hreg = lambda i: 136 + 8*i if i < 12 else WRB + 8*(i - 12)
    hoff = [0]
    def hload(i):
        rel = order[i]
        if rel // 4 != hoff[0]:
            d = (rel // 4 - hoff[0]) * 4096; hoff[0] = rel // 4
            op = 's_add_u32' if d > 0 else 's_sub_u32'
            s(f'{op} s{sH0}, s{sH0}, {abs(d)}\n{op} s{sH1}, s{sH1}, {abs(d)}')
        for c in range(2):
            s(f'buffer_load_dwordx4 {vr(hreg(i)+4*c,4)}, v{v16}, {srd(SWS)}, s{sH0+c} offen offset:{(rel%4)*1024}' + (' sc1' if not cfg.nosc else ''))
    wt = {}; rt_ = {}
    def rd(i, f):
        va, o0 = ((vtr, vtr2), (i % 8)*2048) if i < 16 else ((241, 247), (i - 16)*2048)
        for c in range(2):
            s(f'ds_read_b64_tr_b16 {vr(f+4*c,2)}, v{va[c]} offset:{o0}', needs=[wt[i]] if i in wt else [])
            rt_[i] = s(f'ds_read_b64_tr_b16 {vr(f+4*c+2,2)}, v{va[c]} offset:{o0 + B2}')
    def wdma(i):
        if cfg.now: return
        for p in ownpieces([i], sLB, [(i % 8)*2048], vd, SD if C else SWH, order):
            if i - 8 in rt_: p[-1].needs = [rt_[i-8]]
            s.l.extend(p); wt[i] = p[-1]
    def preread():
        for i in range(8):
            rd(i, wr + 8*i)
            if i % 2 == 1 and i >= 3: s('s_waitcnt lgkmcnt(8)')
    def step(i):
        if 8 <= i + 1 < n: rd(i + 1, bw + 8*((i + 1) % 2))
        f = wr + 8*i if i < 8 else bw + 8*(i % 2)
        for nt in range(2):
            for st in range(2):
                a = acc[2*nt+st]
                if cfg.nomf: s(f'v_xor_b32 v{a}, v{f+4*nt}, v{hreg(i)+4*st}'); continue
                s(f'{MF} {vr(a,16)}, {vr(f+4*nt,4)}, {vr(hreg(i)+4*st,4)}, ' + ('0' if i == 0 else vr(a,16)))
        if cfg.cdbg and i in (0, 3, 7, 11, 15): stamp(s, (0, 3, 7, 11, 15).index(i))
    def xload(t):
        s(f'v_lshrrev_b32 v{t}, 3, v{vl}\nv_and_b32 v{vxo}, 7, v{vl}\nv_lshlrev_b32 v{vxo}, 4, v{vxo}\nv_lshl_add_u32 v{vxo}, v{t}, 10, v{vxo}')
        s(f'buffer_load_dwordx4 {vr(vBX,4)}, v{vxo}, {srd(SX)}, s{sXO} offen')
    if C:
        s('s_setprio 3')
        if cfg.nbe:
            s(f's_cmp_eq_u32 s73, 1\ns_cbranch_scc1 {lab}_fast')
            s('s_waitcnt vmcnt(0)', tag='raw')
            s('s_mov_b64 exec, 1')
            s(f'buffer_store_dword v{vNON}, v{vFA}, {srd(SWS)}, 0 offen sc1', tag='raw')
            s('s_mov_b64 exec, -1')
            sload(s, SP, 2, True); scheck(s, lab + '_e', SP, 2, True)
            for k in range(8):
                s(f'buffer_load_dwordx4 {vr(64 + 4*k, 4)}, v{v16}, {srd(SWS)}, s{sH0 + (k & 1)} offen offset:{(k >> 1)*1024} sc1', tag='raw')
            s('s_waitcnt vmcnt(0)', tag='raw')
            s(f'{lab}_fast:')
        p0 = 4 if cfg.eh else 0
        if not cfg.eh: scheck(s, lab + '_e', SP, 2, True)
        for i in range(p0, p0 + cfg.pre): hload(i)
        s(f'v_lshrrev_b32 v{vl}, 4, v{v16}')
        b_traddr(s, 241, None, 247, vl)
        s(f'v_add_u32 v{vtr}, s{sLB}, v241\nv_xor_b32 v{vtr2}, 64, v{vtr}\ns_lshl_b32 s6, s{sW}, 13\nv_add_u32 v241, s6, v241\nv_xor_b32 v247, 64, v241')
        if not cfg.cpre:
            preread()
            line_voff(s, vxo, vd, vl)
            s(f'v_lshl_add_u32 v{vd}, v{vxo}, 10, v{vd}')
        s(f's_sub_u32 s4, s4, {FE-FH}\ns_subb_u32 s5, s5, 0')
        cf = cfg.cf if cfg.eh else 0
        if cf: s(f's_waitcnt vmcnt({4 + 2*cfg.pre})')
        for i in range(cf): step(i)
        s(f's_waitcnt vmcnt({2*cfg.pre})')
        post(s, vNON, vFA)
        if cfg.b11: s(f's_cmp_lg_u32 s{sTY}, 0\ns_cbranch_scc1 L_nb11\ns_barrier\nL_nb11:')
        stamp(s, 8)
        s('s_setprio 0')
        LA = max(cfg.la, p0 + cfg.pre)
        for i in range(p0 + cfg.pre, min(12, LA + cf)): hload(i)
        for i in range(cf, 8):
            step(i)
            if i + LA < 12: hload(i + LA)
            for k in (8 + cfg.nref + 2*(i - cf), 9 + cfg.nref + 2*(i - cf)):
                if k < 16: wdma(k)
            if i == cfg.sl: sload(s, SP, 2, True)
        scheck(s, lab + '_f', SP, 2, True)
        stamp(s, 9)
        nl = 12
        for k in range(cfg.lb): hload(nl); nl += 1
        for i in range(8, n):
            step(i)
            for k in range(2):
                if nl < 20: hload(nl); nl += 1
            if i == 12: xload(252)
        stamp(s, 10)
        s(f'v_mov_b32 v1, v{vl}\nv_mov_b32 v7, v{vxo}')
        red_write(s, acc, 72)
        s('s_branch L_red')
        return s
    s('s_setprio 0')
    s('v_lshlrev_b32 v3, 4, v1')
    b_traddr(s, 6, sLB, 7)
    s('v_xor_b32 v5, 64, v6')
    s(f's_lshr_b32 s6, s{sSB}, 1\ns_lshl_b32 s6, s6, 7\ns_and_b32 s78, s{sW}, 1\ns_lshl_b32 s7, s78, 6\ns_add_u32 s6, s6, s7\ns_add_u32 s6, s6, {FO}')
    s(f's_lshl_b32 s7, s{sSB}, 8\ns_lshl_b32 s78, s78, 4\ns_add_u32 s7, s7, s78\ns_add_u32 s7, s7, {FH}')
    s(f's_cmp_ge_u32 s{sW}, 6\ns_cselect_b32 s6, s6, s7')
    sbase(s, 6)
    def snap():
        s(f's_cmp_ge_u32 s{sW}, 6\ns_cbranch_scc1 {lab}_so')
        sload(s, SP, 4, True); s(f's_branch {lab}_sx\n{lab}_so:'); sload(s, SP, 16, False); s(f'{lab}_sx:')
    if kind == 'HX':
        if cfg.b11 == 1: s('s_barrier')
        for i in range(8):
            if cfg.b11 == 2 and i == 3: s('s_barrier')
            wdma(i)
        preread()
    early = kind == 'HX' and cfg.esn
    if early: s('s_waitcnt lgkmcnt(0)'); snap()
    npre = cfg.hw if kind == 'HY' else cfg.hwx
    if kind == 'HY' and cfg.yw: npre = -100
    for i in range(8, 8 + npre): wdma(i)
    xload(8)
    stamp(s, 8)
    if not early: s('s_waitcnt lgkmcnt(0)')
    def gate(k, first):
        s(f's_cmp_ge_u32 s{sW}, 6\ns_cbranch_scc1 {lab}_o{k}')
        if first: sload(s, SP, 4, True)
        scheck(s, f'{lab}_ph{k}', SP, 4, True, [[0, 2], [1, 3], [0, 1, 2, 3]][k])
        s(f's_branch {lab}_go{k}')
        s(f'{lab}_o{k}:')
        if first: sload(s, SP, 16, False)
        scheck(s, f'{lab}_po{k}', SP, 16, False, [[0, 1, 2, 3], [4, 5, 6, 7], list(range(8))][k])
        s(f'{lab}_go{k}:')
    gate(0 if cfg.g2 >= 0 else 2, not early)
    stamp(s, 9)
    nl = 0
    for k in range(cfg.lh): hload(nl); nl += 1
    for i in range(n):
        step(i)
        if i == cfg.g2: gate(1, False)
        for k in range(2):
            if nl < n and (nl < 12 or nl - 12 <= i) and (nl < 8 or i >= cfg.g2): hload(nl); nl += 1
        for k in (8 + npre + 2*i, 9 + npre + 2*i):
            if 8 <= k < 16: wdma(k)
    stamp(s, 10)
    red_write(s, acc, 72)
    if kind != 'HX': s('s_branch L_red')
    return s

def phaseB_tail():
    s = S()
    s(f'v_lshrrev_b32 v4, 3, v1\nv_and_b32 v5, 7, v1\nv_lshlrev_b32 v5, 1, v5\nv_xor_b32 v5, v4, v5\nv_lshlrev_b32 v5, 4, v5\nv_lshl_add_u32 v5, v4, 8, v5\ns_lshl_b32 s7, s{sW}, 11\nv_add_u32 v76, s7, v5')
    s('v_xor_b32 v77, 16, v76')
    s('v_add_u32 v78, 0x10000, v76\nv_add_u32 v79, 0x10000, v77\nv_add_u32 v80, 0x20000, v76\nv_add_u32 v81, 0x20000, v77')
    R = 84
    for j in range(4):
        s(f'v_lshlrev_b32 v{R+64+2*j}, 16, v{vBX+j}\nv_and_b32 v{R+65+2*j}, 0xffff0000, v{vBX+j}')
    s('s_waitcnt lgkmcnt(0)\ns_barrier')
    stamp(s, 11)
    for p in range(8):
        g, o = [(1, 0), (1, 16384), (1, 32768), (1, 49152), (0, 32768), (0, 49152), (2, 0), (2, 16384)][p]
        if p == 7: s('s_waitcnt lgkmcnt(8)')
        s(f'ds_read_b128 {vr(R+8*p,4)}, v{76+2*g} offset:{o}\nds_read_b128 {vr(R+8*p+4,4)}, v{77+2*g} offset:{o}')
    for p in range(1, 6):
        for j in range(8): s(f'v_add_f32 v{R+j}, v{R+j}, v{R+8*p+j}')
    for j in range(8): s(f'v_mul_f32 v{R+8+j}, 0xbfb8aa3b, v{R+j}')
    for j in range(8): s(f'v_exp_f32 v{R+8+j}, v{R+8+j}')
    for j in range(8): s(f'v_add_f32 v{R+48+j}, v{R+48+j}, v{R+56+j}')
    for j in range(8): s(f'v_add_f32 v{R+8+j}, 1.0, v{R+8+j}')
    for j in range(8): s(f'v_rcp_f32 v{R+8+j}, v{R+8+j}')
    for j in range(8): s(f'v_mul_f32 v{R+j}, v{R+j}, v{R+48+j}')
    for j in range(8): s(f'v_fma_f32 v{R+j}, v{R+j}, v{R+8+j}, v{R+64+j}')
    for j in range(4): s(f'v_cvt_pk_bf16_f32 v{R+24+j}, v{R+2*j}, v{R+2*j+1}')
    s(f'buffer_store_dwordx4 {vr(R+24,4)}, v7, {srd(SOUT)}, s{sXO} offen' + ['', ' sc1', ' nt', ' sc0 sc1', ' sc1 nt'][cfg.ost])
    return s

def fin():
    s = S()
    if cfg.stamps:
        s('s_waitcnt vmcnt(0)')
        stamp(s, 12)
        if cfg.pb >= 0:
            s(f's_cmp_lg_u32 s{sW}, {cfg.pw}\ns_cbranch_scc1 L_nospin\ns_cmp_lg_u32 s2, {cfg.pwg}\ns_cbranch_scc1 L_nospin')
            s(f's_sub_u32 s6, s{sTS+cfg.pb}, s{sTS+cfg.pa}\ns_lshl_b32 s6, s6, 3\ns_min_u32 s6, s6, 40000\ns_add_u32 s6, s6, s{sTS+12}')
            s('L_spin:\ns_memrealtime s[76:77]\ns_waitcnt lgkmcnt(0)\ns_cmp_lt_u32 s76, s6\ns_cbranch_scc1 L_spin\nL_nospin:')
        s(f's_lshl_b32 s6, s2, 3\ns_add_u32 s6, s6, s{sW}\ns_lshl_b32 s6, s6, 6\ns_add_u32 s6, s6, {TS_OFF}\nv_mov_b32 v8, s6')
        s('s_memrealtime s[76:77]\ns_waitcnt lgkmcnt(0)\ns_mov_b32 s99, s76')
        for q in range(4):
            for r in range(4): s(f'v_mov_b32 v{12+r}, s{sTS+4*q+r}')
            s('s_mov_b64 exec, 1')
            s(f'buffer_store_dwordx4 v[12:15], v8, {srd(SWS)}, 0 offen offset:{q*16}')
            s('s_mov_b64 exec, -1\ns_nop 2')
    return s

Cfg.w2t = 1; Cfg.w2at = 0; Cfg.ktry = 0; Cfg.xl = 1; Cfg.fk = 1.0; Cfg.skip = 2; Cfg.f7 = 0.55; Cfg.nomf = 0; Cfg.nosc = 0; Cfg.now = 0; Cfg.slp = 2; Cfg.la = 4; Cfg.lb = 2; Cfg.lh = 4; Cfg.ost = 4; Cfg.pwg = 72; Cfg.cdbg = 0; Cfg.sl = 3; Cfg.nbm = 1; Cfg.hw = 0; Cfg.hwx = 8; Cfg.mt = 0; Cfg.tmaj = 0; Cfg.yw = 0; Cfg.b11 = 0; Cfg.hb = 4; Cfg.f25 = 0.3; Cfg.s4 = 2; Cfg.g2 = 3; Cfg.l2t = 0; Cfg.tlbw = 0; Cfg.cpre = 1; Cfg.cpd = 4; Cfg.cps = 1; Cfg.esn = 0; Cfg.xcw = 1; Cfg.f8 = 1; Cfg.skipy = 0; Cfg.q7 = 0; Cfg.eh = 1; Cfg.ehn = 302; Cfg.cf = 3; Cfg.e4 = 22; Cfg.nref = 8; Cfg.c0f = 0; Cfg.p8 = 0; Cfg.rsx = 286; Cfg.rtx = 1; Cfg.rsy = 264; Cfg.rty = 2; Cfg.kvq = 1; Cfg.kvr = 2; Cfg.qp = 7; Cfg.pat = 7; Cfg.q9 = 0; Cfg.rc = 0; Cfg.fslow = 0; Cfg.nbe = 1; Cfg.lateW = 0; Cfg.wl2 = 0; Cfg.wl2y = 5; Cfg.pgw = 0; Cfg.w2r = 0; Cfg.w2e = 0; Cfg.bm = 1; Cfg.xl2 = 1; Cfg.o2 = 1; Cfg.s2x = 0; Cfg.s2y = 0; Cfg.hx = 1; Cfg.hb1 = 1; Cfg.hk0 = 4; Cfg.hk1 = 10; Cfg.hk2 = 16; Cfg.kvf = 8; Cfg.ystg = 1; Cfg.qat = 9; Cfg.f9 = 0.8

def build():
    out = []
    def put(lab, streams, name):
        l = []
        for x in streams: l += x.l
        if lab: out.append(lab + ':')
        out.extend('    ' + i.text if i.kind != 'label' else i.text for i in finalize(l, name))
    put(None, [prologue()], 'pro')
    if cfg.bonly:
        b = S()
        b('s_waitcnt vmcnt(0)')
        line_voff(b, 4, 5)
        b(f'v_lshl_add_u32 v252, v4, 10, v5\nv_lshlrev_b32 v242, 4, v1\nv_mov_b32 v248, 0\ns_lshl_b32 s6, s{sSB}, 8\ns_add_u32 s6, s6, {FE}')
        sbase(b, 6)
        b(f's_cmp_lt_u32 s{sW}, 6\ns_cselect_b32 s{SO}, s{SD}, s{SO}\ns_cselect_b32 s{SO+1}, s{SD+1}, s{SO+1}\ns_cselect_b32 s{SO+2}, s{SD+2}, s{SO+2}')
        b(f's_cmp_ge_u32 s{sW}, 4\ns_cbranch_scc1 L_bh')
        b(f'v_mov_b32 v252, {WS_BYTES}')
        b('s_barrier'); stamp(b, 7); b('s_branch L_BC\nL_bh:')
        b('s_barrier'); stamp(b, 7); b('s_branch L_BHY' if cfg.bonly == 1 else 's_branch L_BHX')
        put('L_bonly', [b], 'bo')
    put('L_compX', [compute('X')], 'cX')
    put('L_compY', [compute('Y')], 'cY')
    put('L_BC', [phaseB_body('C')], 'BC')
    hs = S(); hs(f's_cmp_eq_u32 s{sTY}, 0\ns_cbranch_scc1 L_helpX')
    put('L_helper', [hs, helperY()], 'hY')
    put('L_BHY', [phaseB_body('HY')], 'BHY')
    lx = S(); lx('L_BHX:')
    put('L_helpX', [helperX(), lx, phaseB_body('HX')], 'hX')
    put('L_red', [phaseB_tail()], 'red')
    put('L_fin', [fin()], 'fin')
    hdr = open('cdna_kernels/' + KN[:-7] + '.s.ref').read().split('; Override')[0]
    txt = hdr + '; @launch grid=(256,1,1) block=(512,1,1) lds=163840\n'
    txt += f'.amdgcn_target "amdgcn-amd-amdhsa--gfx950"\n.text\n.globl {KN}\n.p2align 8\n.type {KN},@function\n{KN}:\n'
    txt += '\n'.join(out) + '\nL_end:\n    s_endpgm\n'
    txt += f'''.section .rodata,"a"
.p2align 6
.amdhsa_kernel {KN}
  .amdhsa_next_free_vgpr 256
  .amdhsa_next_free_sgpr 102
  .amdhsa_accum_offset 256
  .amdhsa_group_segment_fixed_size 0
  .amdhsa_kernarg_size 88
  .amdhsa_user_sgpr_count 2
  .amdhsa_user_sgpr_kernarg_segment_ptr 1
  .amdhsa_system_sgpr_workgroup_id_x 1
.end_amdhsa_kernel
'''
    return txt

if __name__ == '__main__':
    for a in sys.argv[2:]:
        k, v = a.split('='); setattr(cfg, k, float(v) if '.' in v else int(v))
    d = getattr(cfg, 'fsh', 0)
    FKV += d; FH += d; FE += d; FO += d; FQ += d
    KV_OFF += getattr(cfg, 'ksh', 0)
    open(sys.argv[1], 'w').write(build())
```
